```python
import torch

def _softmax(x, axis=-1):
    return torch.softmax(x, dim=axis)
def _gelu(x):
    return torch.nn.functional.gelu(x, approximate="tanh")
def _silu(x):
    return torch.nn.functional.silu(x)
def _sigmoid(x):
    return torch.sigmoid(x)
def _layernorm(x, axis=-1, eps=1e-5):
    m = x.mean(dim=axis, keepdim=True)
    v = x.var(dim=axis, keepdim=True, unbiased=False)
    return (x - m) / torch.sqrt(v + eps)
def _scatter_add(tgt, idx, src, axis=0):
    return tgt.clone().index_add_(axis, idx, src)
def _segment_sum(src, seg, n):
    out = torch.zeros((n,) + src.shape[1:], dtype=src.dtype)
    return out.index_add_(0, seg, src)
def _pad(x, pw):
    flat = tuple(v for pair in reversed(pw) for v in pair)
    return torch.nn.functional.pad(x, flat)

kernel_name = 'sequential_preLN__sliding_block_cached__moe_arch_mod__decode'

def setup_inputs():

    _w = (lambda a: (lambda t: t.to(torch.bfloat16) if t.is_floating_point() else t)(torch.as_tensor(a)))
    def _A_setup():
        B, Sq, D = 2, 1, 512
        Hq, Hkv, Sk, Dh = 32, 32, 16384, 128
        assert Hq % Hkv == 0, (Hq, Hkv)
        return {
            "x": _w((lambda *s: torch.randn(*s, dtype=torch.bfloat16) * 0.05)(B, Sq, D)),
            "k_cache": _w((lambda *s: torch.randn(*s, dtype=torch.bfloat16) * 3.2)(B, Hkv, Sk, Dh)),
            "v_cache": _w((lambda *s: torch.randn(*s, dtype=torch.bfloat16) * 0.4)(B, Hkv, Sk, Dh)),
            "wq": _w((lambda *s: torch.randn(*s, dtype=torch.bfloat16) * 3.2)(D, Hq * Dh) * (D ** -0.5)),
            "wo": _w((lambda *s: torch.randn(*s, dtype=torch.bfloat16) * 0.4)(Hq * Dh, D) * ((Hq * Dh) ** -0.5)),
        }
    _A_in = _A_setup()

    def _B_setup():
        B, S, D, F, C = 2, 1, 512, 1376, 1
        return {
            "x": _w((lambda *s: torch.randn(*s, dtype=torch.bfloat16) * 0.05)(B, S, D)),
            "w_r": _w((lambda *s: torch.randn(*s, dtype=torch.bfloat16) * 3.2)(D)),
            "w_gate": _w((lambda *s: torch.randn(*s, dtype=torch.bfloat16) * 0.1)(D, F)),
            "w_up": _w((lambda *s: torch.randn(*s, dtype=torch.bfloat16) * 0.1)(D, F)),
            "w_down": _w((lambda *s: torch.randn(*s, dtype=torch.bfloat16) * 0.1)(F, D)),
        }
    _B_in = _B_setup()

    return {
        "A_x": _A_in["x"],
        "A_k_cache": _A_in["k_cache"],
        "A_v_cache": _A_in["v_cache"],
        "A_wq": _A_in["wq"],
        "A_wo": _A_in["wo"],
        "B_x": _B_in["x"],
        "B_w_r": _B_in["w_r"],
        "B_w_gate": _B_in["w_gate"],
        "B_w_up": _B_in["w_up"],
        "B_w_down": _B_in["w_down"],
    }

def reference(A_x, A_k_cache, A_v_cache, A_wq, A_wo, B_x, B_w_r, B_w_gate, B_w_up, B_w_down):
    def _A_ref(x, k_cache, v_cache, wq, wo):
        B, Sq, D = x.shape
        Hq, Dh = 32, 128
        Hkv, Sk = k_cache.shape[1], k_cache.shape[2]
        W = min(4096, max(256, Sk // 4))
        rep = Hq // Hkv
        q = (lambda x, *d: x.permute(*d))((x @ wq).reshape(B, Sq, Hq, Dh), 0, 2, 1, 3)
        k = (lambda x, n, axis: torch.repeat_interleave(x, n, dim=axis))(k_cache[:, :, Sk - W:, :], rep, axis=1)
        v = (lambda x, n, axis: torch.repeat_interleave(x, n, dim=axis))(v_cache[:, :, Sk - W:, :], rep, axis=1)
        scores = torch.einsum("bhqd,bhkd->bhqk", q, k) * (Dh ** -0.5)
        p = _softmax(scores, axis=-1)
        o = torch.einsum("bhqk,bhkd->bhqd", p, v)
        return (lambda x, *d: x.permute(*d))(o, 0, 2, 1, 3).reshape(B, Sq, Hq * Dh) @ wo

    def _B_ref(x, w_r, w_gate, w_up, w_down):
        B, S, D = x.shape
        C = 1
        r = x @ w_r
        idx = torch.argsort(-r, axis=-1)[:, :C]
        idx_e = (lambda x, n, axis: torch.repeat_interleave(x, n, dim=axis))(idx.reshape(B, C, 1), D, axis=2)
        x_sel = (lambda x, i, axis: torch.take_along_dim(x, i, dim=axis))(x, idx_e, axis=1)
        g = _silu(x_sel @ w_gate)
        u = x_sel @ w_up
        y = (g * u) @ w_down
        r_sel = _sigmoid((lambda x, i, axis: torch.take_along_dim(x, i, dim=axis))(r, idx, axis=1))
        y = y * r_sel.reshape(B, C, 1)
        b_off = (torch.arange(B) * S).reshape(B, 1)
        flat_idx = (idx + b_off).reshape(B * C)
        zero = (x * 0.0).reshape(B * S, D)
        upd = _scatter_add(zero, flat_idx, y.reshape(B * C, D), axis=0)
        return x + upd.reshape(B, S, D)

    x = A_x
    h = x + _A_ref(_layernorm(x, axis=-1), A_k_cache, A_v_cache, A_wq, A_wo)
    h2 = h + _B_ref(_layernorm(h, axis=-1), B_w_r, B_w_gate, B_w_up, B_w_down)
    return h2
```

```python
import re

def _regs(tok):
    tok = tok.strip()
    tok = re.sub(r"^-|^abs\(|\)$|^\||\|$", "", tok)
    m = re.fullmatch(r"([vsa])(\d+)", tok)
    if m:
        return {(m.group(1), int(m.group(2)))}
    m = re.fullmatch(r"([vsa])\[(\d+):(\d+)\]", tok)
    if m:
        return {(m.group(1), i) for i in range(int(m.group(2)), int(m.group(3)) + 1)}
    if tok == "vcc":
        return {("s", 106), ("s", 107)}
    if tok == "vcc_lo": return {("s", 106)}
    if tok == "vcc_hi": return {("s", 107)}
    if tok == "exec":
        return {("s", 126), ("s", 127)}
    if tok == "exec_lo": return {("s", 126)}
    if tok == "exec_hi": return {("s", 127)}
    if tok == "m0":
        return {("s", 124)}
    return set()

TRANS = ("v_exp_f32", "v_log_f32", "v_rcp_f32", "v_rsq_f32", "v_sqrt_f32", "v_sin_f32", "v_cos_f32")

class Ins:
    def __init__(self, text):
        self.text = text
        t = text.split(";")[0].strip()
        self.label = t.endswith(":")
        self.directive = t.startswith(".")
        self.empty = (t == "")
        parts = t.split(None, 1)
        self.op = parts[0] if parts else ""
        rest = parts[1] if len(parts) > 1 else ""
        ops, depth, cur = [], 0, ""
        for ch in rest:
            if ch == "[": depth += 1
            if ch == "]": depth -= 1
            if ch == "," and depth == 0:
                ops.append(cur.strip()); cur = ""
            else:
                cur += ch
        if cur.strip():
            ops.append(cur.strip())
        self.mods = ""
        if ops:
            sp = ops[-1].split(None, 1)
            ops[-1] = sp[0]
            self.mods = sp[1] if len(sp) > 1 else ""
        self.ops = ops
        op = self.op
        self.valu = op.startswith("v_")
        self.mfma = op.startswith("v_mfma")
        self.dot = op.startswith("v_dot")
        self.trans = any(op.startswith(x) for x in TRANS)
        self.dpp = "_dpp" in op
        self.perm = op.startswith("v_permlane")
        self.rdlane = op.startswith("v_readlane") or op.startswith("v_readfirstlane")
        self.vmem = op.startswith("buffer_") or op.startswith("global_")
        self.ds = op.startswith("ds_")
        self.salu = op.startswith("s_")
        self.wr, self.rd = set(), set()
        R = [_regs(o) for o in ops]
        if self.valu:
            if op.startswith("v_cmp"):
                self.wr = R[0]; self.rd = set().union(*R[1:])
            elif self.perm:
                self.wr = R[0] | R[1]; self.rd = R[0] | R[1]
            elif "_co_" in op:
                self.wr = R[0] | R[1]; self.rd = set().union(*R[2:])
            else:
                self.wr = R[0] if R else set(); self.rd = set().union(*R[1:]) if len(R) > 1 else set()
                if op.startswith("v_fmac") or op.startswith("v_dot2c") or self.dpp or op.startswith("v_writelane"):
                    self.rd |= R[0]
                if op.startswith("v_cndmask") and len(R) == 3:
                    self.rd |= _regs("vcc")
            if self.mfma:
                self.srcC = R[3]; self.srcAB = R[1] | R[2]
        elif self.vmem:
            lds = " lds" in (" " + self.mods) or "load_lds" in op
            if "load" in op and not lds:
                self.wr = R[0]; self.rd = set().union(*R[1:])
            elif "atomic" in op and "sc0" in self.mods and op.startswith("global"):
                self.wr = R[0]; self.rd = set().union(*R[1:])
            elif "atomic" in op and "sc0" in self.mods:
                self.wr = R[0]; self.rd = set().union(*R)
            else:
                self.rd = set().union(*R) if R else set()
            self.ldsdma = lds
            self.widestore = ("store" in op) and ("x3" in op or "x4" in op)
            if self.widestore:
                self.sdata = R[0] if op.startswith("buffer") else R[1]
        elif self.ds:
            if "read" in op or "permute" in op or "swizzle" in op:
                self.wr = R[0]; self.rd = set().union(*R[1:])
            else:
                self.rd = set().union(*R)
        elif self.salu:
            if op.startswith("s_cmp") or op.startswith("s_cbranch") or op.startswith("s_branch") or op in ("s_waitcnt", "s_nop", "s_barrier", "s_endpgm", "s_sleep", "s_setprio") or op.startswith("s_bitcmp"):
                self.rd = set().union(*R) if R else set()
            else:
                self.wr = R[0] if R else set(); self.rd = set().union(*R[1:]) if len(R) > 1 else set()
                if "saveexec" in op:
                    self.wr |= _regs("exec")

    def states(self):
        if self.op == "s_nop":
            return int(self.ops[0], 0) + 1
        return 1

def mfma_passes(op):
    if "16x16x32" in op: return 4
    if "32x32x16" in op: return 8
    raise ValueError(op)

def need(prod, cons):
    n = 0
    V = lambda s: {r for r in s if r[0] in "va"}
    S = lambda s: {r for r in s if r[0] == "s"}
    if prod.valu and not prod.mfma:
        w = V(prod.wr)
        if cons.dpp and cons.valu and (w & cons.rd): n = max(n, 2)
        if cons.perm and (w & cons.rd): n = max(n, 2)
        if cons.rdlane and (w & cons.rd): n = max(n, 1)
        if cons.mfma and (w & cons.rd): n = max(n, 2)
        if prod.trans and cons.valu and not cons.trans and (w & cons.rd): n = max(n, 1)
        if prod.trans and (cons.vmem or cons.ds) and (w & cons.rd): n = max(n, 1)
        if prod.dot:
            if w & (cons.rd | cons.wr):
                same = cons.op.replace("_e32", "") == prod.op.replace("_e32", "")
                if same and cons.dot:
                    ab = set().union(*[_regs(o) for o in cons.ops[1:3]])
                    if w & ab: n = max(n, 3)
                else:
                    n = max(n, 3)
        ws = S(prod.wr)
        if ws:
            if cons.valu and (ws & cons.rd):
                n = max(n, 4 if cons.rdlane or cons.op.startswith("v_writelane") else 2)
            if cons.vmem and (ws & cons.rd): n = max(n, 5)
            if cons.salu and (ws & cons.rd): n = max(n, 1)
        if "sdwa" in prod.op and cons.valu and (w & cons.rd): n = max(n, 1)
    if prod.mfma:
        p = mfma_passes(prod.op)
        d = prod.wr
        if cons.mfma:
            if d & cons.srcAB: n = max(n, {4: 8, 8: 12}[p])
            if d & cons.srcC and not (cons.srcC == d and cons.op == prod.op): n = max(n, {4: 6, 8: 10}[p])
        elif (cons.valu or cons.vmem or cons.ds) and (d & (cons.rd | cons.wr)):
            n = max(n, {4: 8, 8: 12}[p])
        if cons.valu and not cons.mfma and (prod.srcC & cons.wr): n = max(n, {4: 3, 8: 7}[p])
    if prod.vmem and getattr(prod, "widestore", False):
        if (prod.sdata & cons.wr): n = max(n, 2)
    if prod.salu and (("s", 124) in prod.wr) and cons.vmem and getattr(cons, "ldsdma", False): n = max(n, 1)
    return n

class Asm:
    def __init__(self):
        self.lines = []
    def __call__(self, s):
        for ln in s.split("\n"):
            self.lines.append(ln)
    def finalize(self):
        out = []
        hist = []
        for ln in self.lines:
            ins = Ins(ln)
            if ins.empty or ins.directive or ins.label:
                out.append(ln)
                continue
            req = 0
            dist = 0
            for prev in reversed(hist):
                r = need(prev, ins) - dist
                req = max(req, r)
                dist += prev.states()
                if dist > 20: break
            while req > 0:
                k = min(req, 16)
                nop = Ins(f"s_nop {k-1}")
                out.append(f"  s_nop {k-1}")
                hist.append(nop)
                req -= k
            out.append(ln if ln.startswith(" ") else "  " + ln)
            hist.append(ins)
            hist = hist[-24:]
        return "\n".join(out) + "\n"
```

```python
import sys, json
from asmlib import Asm
NAME = "sequential_preLN__sliding_block_cached__moe_arch_mod__decode"
HEADER = open("cdna_kernels/" + NAME + ".s.ref").read().split("; Override launch geometry")[0] if False else None

HDR = """; Kernarg layout for this problem (104 bytes, ptrs only, base s[0:1]):
"""

WS_Z = 0
WS_ML = 0x80000
WS_H = 0x81000
WS_Y = 0x82000
WS_SIZE = WS_Y + 43 * 4096
L_STG = 0
L_QP = 0x20000
L_QB = 0x22200
L_OB = 0x22300
L_MB = 0x23400
L_LB = 0x23440
L_LN2 = 0x23800
L_HB = 0x24000
L_GP = 0x24800
L_ACT = 0x26C00
L_RA = 0x20000
LDS_SIZE = 0x27000
NMLP = 43
RED0 = 64
SPIN = 100000
LOG2E = 0x3fb8aa3b
SCALE = 0x3db504f3

def gen(stamps=False, depth=6, ivec=(0,1,2,3), wvec=(4,5,6,7), wx=((0,2),(1,3)), gx=(), vx=0,
        kv_aux="nt", w_aux="", init_order="wq_first", ring=8, wo_start=4):
    a = Asm()
    nstamp = [0]
    def stamp():
        if stamps:
            k = 80 + 2 * nstamp[0]
            a(f"s_memrealtime s[{k}:{k+1}]")
        nstamp[0] += 1
    def stampat(i):
        if stamps:
            a(f"s_memrealtime s[{80+2*i}:{81+2*i}]")

    a(HDR + f"; @launch grid=(256,1,1) block=(1024,1,1) lds={LDS_SIZE}")
    a('.amdgcn_target "amdgcn-amd-amdhsa--gfx950"')
    a(".text")
    a(f".globl {NAME}_kernel")
    a(".p2align 8")
    a(f".type {NAME}_kernel,@function")
    a(f"{NAME}_kernel:")
    if stamps:
        for i in range(1, 10):
            a(f"s_mov_b64 s[{80+2*i}:{81+2*i}], 0")
    stampat(0)
    a("s_load_dwordx2 s[4:5], s[0:1], 0")
    a("s_load_dwordx2 s[8:9], s[0:1], 24")
    a("s_load_dwordx2 s[12:13], s[0:1], 8")
    a("s_cmp_ge_u32 s2, 256")
    a("s_cbranch_scc1 L_end")
    a("v_lshrrev_b32 v40, 6, v0")
    a("v_and_b32 v0, 63, v0")
    a("v_readfirstlane_b32 s3, v40")
    a("v_lshlrev_b32 v1, 4, v0")
    a("s_movk_i32 s6, 2048")
    a("s_mov_b32 s7, 0x20000")
    a("s_mov_b32 s10, 0x400000")
    a("s_mov_b32 s11, 0x20000")
    a("s_mov_b32 s14, 0x10000000")
    a("s_mov_b32 s15, 0x20000")
    a("s_and_b32 s55, s2, 31")
    a("s_bfe_u32 s56, s2, 0x10005")
    a("s_lshr_b32 s57, s2, 6")
    a("s_and_b32 s52, s2, 63")
    a("s_lshl_b32 s52, s52, 4")
    a("s_add_u32 s52, s52, s57")
    a("s_add_u32 s52, s52, 12")
    a("s_lshl_b32 s52, s52, 18")
    if tuple(wvec) == (4,5,6,7):
        a("s_lshl_b32 s53, s3, 14")
        a("s_xor_b32 s52, s52, s53")
        lst = list(wx)
    else:
        lst = [(k, b) for k, b in enumerate(wvec)] + list(wx)
    if tuple(lst) == ((0,2),(1,3)):
        a("s_and_b32 s53, s3, 3"); a("s_lshl_b32 s53, s53, 12"); a("s_xor_b32 s52, s52, s53")
        lst = []
    for src, l2 in ((3, lst), (2, list(gx))):
        for k, b in l2:
            a(f"s_bfe_u32 s53, s{src}, {k | (1 << 16)}")
            a(f"s_lshl_b32 s53, s53, {10 + b}")
            a("s_xor_b32 s52, s52, s53")
    a("v_lshrrev_b32 v41, 4, v0")
    a("v_and_b32 v42, 15, v0")
    a("v_lshlrev_b32 v2, 16, v41")
    a("v_lshl_or_b32 v2, v42, 4, v2")
    a("v_lshlrev_b32 v43, 4, v41")
    a("s_lshl_b32 s54, s3, 18")
    a("s_lshl_b32 s53, s55, 8")
    a("s_or_b32 s54, s54, s53")
    a("s_lshl_b32 s59, s56, 10")
    a("s_lshl_b32 s58, s3, 6")
    a("s_add_u32 s58, s58, s59")
    a("s_movk_i32 s65, 0x2000")
    a("s_waitcnt lgkmcnt(0)")

    def P(i):
        r = 0
        for k, b in enumerate(ivec):
            if i >> k & 1: r ^= 1 << b
        return r
    issued = []
    def wait_for(name):
        idx = issued.index(name)
        n = len(issued) - 1 - idx
        assert n < 64
        a(f"s_waitcnt vmcnt({n})")
    def ringreg(j):
        return 96 + 4 * (j % ring)
    def ld_kv(j):
        i = j & 15
        srd = 12 if j < 16 else 16
        p = P(i) if j < 16 else P(i)
        r = ringreg(j)
        if p:
            a(f"s_xor_b32 s53, s52, {p << 10}")
            so = 53
        else:
            so = 52
        a(f"buffer_load_dwordx4 v[{r}:{r+3}], v1, s[{srd}:{srd+3}], s{so} offen {kv_aux}")
        issued.append(f"kv{j}")
    def ld_wq(i):
        r = 64 + 4 * i
        a(f"buffer_load_dwordx4 v[{r}:{r+3}], v2, s[8:11], s54 offen {w_aux}")
        if i < 7: a("s_add_u32 s54, s54, s65")
        issued.append(f"wq{i}")

    a("buffer_load_dwordx4 v[44:47], v1, s[4:7], s59 offen"); issued.append("xf")
    a("buffer_load_dwordx4 v[48:51], v43, s[4:7], s58 offen"); issued.append("xs")
    if init_order == "wq_first":
        for i in range(8): ld_wq(i)
        for j in range(ring): ld_kv(j)
    elif init_order == "inter":
        for i in range(8):
            ld_wq(i)
            if i < ring: ld_kv(i)
    elif init_order == "k2":
        ld_kv(0); ld_kv(1)
        for i in range(8): ld_wq(i)
        for j in range(2, ring): ld_kv(j)
    nkv = [ring]
    a("s_load_dwordx2 s[16:17], s[0:1], 16")
    a("s_load_dwordx2 s[20:21], s[0:1], 32")
    a("s_load_dwordx2 s[24:25], s[0:1], 96")
    a("s_load_dwordx2 s[28:29], s[0:1], 88")
    a("s_load_dwordx2 s[32:33], s[0:1], 56")
    a("s_load_dwordx2 s[36:37], s[0:1], 64")
    a("s_load_dwordx2 s[40:41], s[0:1], 72")
    a("s_load_dwordx2 s[44:45], s[0:1], 48")
    a("s_load_dwordx2 s[48:49], s[0:1], 80")
    for base, size in ((16, 0x10000000), (20, 0x400000), (24, WS_SIZE), (28, 256), (32, 1409024), (36, 1409024), (40, 1409024), (44, 1024), (48, 2048)):
        a(f"s_mov_b32 s{base+2}, {size}")
        a(f"s_mov_b32 s{base+3}, 0x20000")
    a("s_mov_b32 s60, 0xcccccccc"); a("s_mov_b32 s61, 0xcccccccc")
    a("s_mov_b32 s62, 0xaaaaaaaa"); a("s_mov_b32 s63, 0xaaaaaaaa")
    a("v_and_b32 v52, 1, v42")
    a("v_lshlrev_b32 v52, 4, v52")
    a("v_mov_b32 v53, 0xffff")
    a("v_lshlrev_b32 v52, v52, v53")
    a("v_lshrrev_b32 v53, 1, v42")
    for r in range(4):
        a(f"v_cmp_eq_u32 vcc, {r}, v53")
        a(f"v_cndmask_b32 v{4+r}, 0, v52, vcc")
    a("v_lshrrev_b32 v52, 2, v0")
    a("v_and_b32 v53, 3, v0")
    a("v_lshlrev_b32 v3, 10, v52")
    a("v_lshl_or_b32 v3, v53, 4, v3")
    for i in range(16):
        a(f"v_mov_b32 v{24+i}, 0")

    def unpack(src, dst):
        for k in range(4):
            a(f"v_lshlrev_b32 v{dst+2*k}, 16, v{src+k}")
            a(f"v_and_b32 v{dst+2*k+1}, 0xffff0000, v{src+k}")
    def wave_reduce(regs, op="v_add_f32"):
        for m in ("row_shr:1", "row_shr:2", "row_shr:4", "row_shr:8"):
            for r in regs:
                a(f"{op}_dpp v{r}, v{r}, v{r} {m} row_mask:0xf bank_mask:0xf")
        for r in regs:
            a(f"{op}_dpp v{r}, v{r}, v{r} row_bcast:15 row_mask:0xa bank_mask:0xf")
        for r in regs:
            a(f"{op}_dpp v{r}, v{r}, v{r} row_bcast:31 row_mask:0xc bank_mask:0xf")
    def bf16r(r):
        a(f"v_cvt_pk_bf16_f32 v{r}, v{r}, v{r}")
        a(f"v_lshlrev_b32 v{r}, 16, v{r}")
    def ln_stats(f, t, mb, rs):
        a(f"v_readfirstlane_b32 s66, v{f}")
        for i in range(8):
            a(f"v_subrev_f32 v{t+i}, s66, v{f+i}")
        s1, s2 = t + 8, t + 9
        a(f"v_add_f32 v{s1}, v{t}, v{t+1}")
        a(f"v_mul_f32 v{s2}, v{t}, v{t}")
        a(f"v_fmac_f32 v{s2}, v{t+1}, v{t+1}")
        for i in range(2, 8):
            a(f"v_add_f32 v{s1}, v{s1}, v{t+i}")
            a(f"v_fmac_f32 v{s2}, v{t+i}, v{t+i}")
        wave_reduce([s1, s2])
        a(f"v_readlane_b32 s67, v{s1}, 63")
        a(f"v_readlane_b32 s68, v{s2}, 63")
        a(f"v_mov_b32 v{t}, 0x3b000000")
        a(f"v_mul_f32 v{mb}, s67, v{t}")
        a(f"v_mul_f32 v{rs}, s68, v{t}")
        a(f"v_fma_f32 v{rs}, -v{mb}, v{mb}, v{rs}")
        a(f"v_add_f32 v{mb}, s66, v{mb}")
        a(f"v_max_f32 v{rs}, 0, v{rs}")
        a(f"v_cvt_pk_bf16_f32 v{t}, v{mb}, v{rs}")
        a(f"v_lshlrev_b32 v{mb}, 16, v{t}")
        a(f"v_and_b32 v{rs}, 0xffff0000, v{t}")
        a(f"v_add_f32 v{rs}, 0x3727c5ac, v{rs}")
        bf16r(rs)
        a(f"v_sqrt_f32 v{rs}, v{rs}")
        bf16r(rs)
        a(f"v_rcp_f32 v{rs}, v{rs}")
    def ln_apply(f, t, mb, rs):
        for i in range(8):
            a(f"v_sub_f32 v{t+i}, v{f+i}, v{mb}")
        for k in range(4):
            a(f"v_cvt_pk_bf16_f32 v{t+2*k+1}, v{t+2*k}, v{t+2*k+1}")
        for k in range(4):
            a(f"v_lshlrev_b32 v{t+2*k}, 16, v{t+2*k+1}")
            a(f"v_and_b32 v{t+2*k+1}, 0xffff0000, v{t+2*k+1}")
        for i in range(8):
            a(f"v_mul_f32 v{t+i}, v{t+i}, v{rs}")

    wait_for("xf")
    unpack(44, 52)
    ln_stats(52, 8, 60, 61)
    wait_for("xs")
    unpack(48, 52)
    ln_apply(52, 40, 60, 61)
    for i in range(8):
        a(f"v_cvt_pk_bf16_f32 v{40+i}, v{40+i}, v{40+i}")
    for i in range(8):
        t = 12 + 4 * (i & 1)
        for r in range(4):
            a(f"v_and_b32 v{t+r}, v{40+i}, v{4+r}")
        wait_for(f"wq{i}")
        c = "0" if i == 0 else "v[20:23]"
        a(f"v_mfma_f32_16x16x32_bf16 v[20:23], v[{t}:{t+3}], v[{64+4*i}:{67+4*i}], {c}")
    stampat(1)
    a("v_lshrrev_b32 v41, 4, v0")
    a("v_and_b32 v42, 15, v0")
    a("s_mul_i32 s64, s3, 544")
    a(f"s_add_u32 s64, s64, {L_QP}")
    a("v_lshlrev_b32 v43, 5, v42")
    a("v_lshl_add_u32 v43, v41, 4, v43")
    a("v_add_u32 v43, s64, v43")
    a("s_mov_b32 exec_hi, 0")
    a("ds_write_b128 v43, v[20:23]")
    a("s_mov_b64 exec, -1")
    a("v_lshrrev_b32 v44, 2, v0")
    a("v_mul_u32_u24 v44, 544, v44")
    a("v_and_b32 v45, 3, v0")
    a("v_lshl_add_u32 v44, v45, 3, v44")
    a("s_lshl_b32 s64, s3, 5")
    a(f"s_add_u32 s64, s64, {L_QP}")
    a("v_add_u32 v44, s64, v44")
    a("v_and_b32 v46, 1, v41")
    a("v_lshlrev_b32 v46, 1, v46")
    a("v_lshl_add_u32 v46, v45, 2, v46")
    a("s_lshl_b32 s64, s3, 4")
    a(f"s_add_u32 s64, s64, {L_QB}")
    a("v_add_u32 v46, s64, v46")
    a("v_lshlrev_b32 v47, 4, v42")
    a(f"v_add_u32 v47, {L_QB}, v47")
    a("s_waitcnt lgkmcnt(0)")
    a("s_barrier")
    a("ds_read_b64 v[12:13], v44")
    a("s_waitcnt lgkmcnt(0)")
    for m in ("row_ror:4", "row_ror:8"):
        for r in (12, 13):
            a(f"v_add_f32_dpp v{r}, v{r}, v{r} {m} row_mask:0xf bank_mask:0xf")
    a("v_permlane16_swap_b32 v12, v13")
    a("v_add_f32 v12, v12, v13")
    a("v_mov_b32 v13, v12")
    a("v_permlane32_swap_b32 v13, v12")
    a("v_add_f32 v12, v12, v13")
    a("v_cvt_pk_bf16_f32 v12, v12, v12")
    a("ds_write_b16 v46, v12")
    a("s_waitcnt lgkmcnt(0)")
    a("s_barrier")
    a("ds_read_b128 v[8:11], v47")
    a("s_lshl_b32 s69, s56, 7")
    a("s_lshl_b32 s64, s55, 2")
    a("s_add_u32 s69, s69, s64")
    a("s_add_u32 s69, s69, s57")
    a("s_cmp_lg_u32 s3, 15")
    a("s_cbranch_scc1 L_noclear")
    for r in range(4):
        a(f"v_mov_b32 v{12+r}, -1")
    a("s_lshl_b32 s64, s69, 11")
    a("buffer_store_dwordx4 v[12:15], v1, s[24:27], s64 offen sc1")
    a("buffer_store_dwordx4 v[12:15], v1, s[24:27], s64 offen offset:1024 sc1")
    a("s_lshl_b32 s64, s69, 3")
    a(f"s_add_u32 s64, s64, {WS_ML}")
    a("s_mov_b64 exec, 1")
    a("buffer_store_dwordx2 v[12:13], v1, s[24:27], s64 offen sc1")
    a(f"s_sub_u32 s64, s2, {RED0}")
    a("s_cmp_ge_u32 s64, 64")
    a("s_cbranch_scc1 L_noclear_h")
    a("s_lshl_b32 s64, s64, 5")
    a(f"s_add_u32 s64, s64, {WS_H}")
    a("s_mov_b64 exec, 3")
    a("buffer_store_dwordx4 v[12:15], v1, s[24:27], s64 offen sc1")
    a("L_noclear_h:")
    a("s_mov_b64 exec, -1")
    a(f"s_cmp_ge_u32 s2, {NMLP}")
    a("s_cbranch_scc1 L_noclear")
    a("s_lshl_b32 s64, s2, 12")
    a(f"s_add_u32 s64, s64, {WS_Y}")
    for k in range(4):
        a(f"buffer_store_dwordx4 v[12:15], v1, s[24:27], s64 offen offset:{1024*k} sc1")
    a("L_noclear:")
    clear_mark = len(issued)
    a("s_lshl_b32 s70, s55, 17")
    a("s_lshl_b32 s64, s3, 6")
    a("s_add_u32 s70, s70, s64")
    a("s_lshl_b32 s71, s3, 13")
    a("s_waitcnt lgkmcnt(0)")
    stampat(2)

    def ld_wo(i):
        a(f"s_add_u32 m0, s71, {1024*i}")
        a(f"buffer_load_dwordx4 v3, s[20:23], s70 offen lds {w_aux}")
        if i < 7: a("s_add_u32 s70, s70, 0x4000")
        issued.append(f"wo{i}")

    def top_up(j):
        while nkv[0] < 32 and nkv[0] <= j + depth and nkv[0] <= j + ring:
            ld_kv(nkv[0]); nkv[0] += 1
    signalled = False
    for i in range(16):
        wait_for(f"kv{i}")
        r = ringreg(i)
        for k in range(4):
            a(f"v_dot2c_f32_bf16 v{24+i}, v{r+k}, v{8+k}")
        top_up(i)
        if wo_start <= i < wo_start + 8:
            ld_wo(i - wo_start)
        if not signalled and issued.index(f"kv{i}") >= clear_mark:
            a("s_cmp_lg_u32 s3, 15")
            a("s_cbranch_scc1 L_nosig")
            a("v_mov_b32 v12, 1")
            a("v_mov_b32 v13, 0")
            a("s_mov_b64 exec, 1")
            a("buffer_atomic_add v12, v13, s[28:31], 0 offen sc1")
            a("s_mov_b64 exec, -1")
            a("L_nosig:")
            signalled = True
    assert signalled
    stampat(3)
    for i in range(8):
        a(f"v_add_f32_dpp v{24+i}, v{24+i}, v{24+i} row_ror:8 row_mask:0xf bank_mask:0x3")
    for i in range(8):
        a(f"v_add_f32_dpp v{24+i}, v{32+i}, v{32+i} row_ror:8 row_mask:0xf bank_mask:0xc")
    for i in range(4):
        a(f"v_add_f32_dpp v{24+i}, v{24+i}, v{24+i} row_half_mirror row_mask:0xf bank_mask:0x5")
    for i in range(4):
        a(f"v_add_f32_dpp v{24+i}, v{28+i}, v{28+i} row_half_mirror row_mask:0xf bank_mask:0xa")
    for i in range(4):
        a(f"v_add_f32_dpp v{24+i}, v{24+i}, v{24+i} quad_perm:[2,3,0,1] row_mask:0xf bank_mask:0xf")
    a("v_cndmask_b32 v24, v24, v26, s[60:61]")
    a("v_cndmask_b32 v25, v25, v27, s[60:61]")
    for i in range(2):
        a(f"v_add_f32_dpp v{24+i}, v{24+i}, v{24+i} quad_perm:[1,0,3,2] row_mask:0xf bank_mask:0xf")
    a("v_cndmask_b32 v24, v24, v25, s[62:63]")
    bf16r(24)
    a(f"v_mul_f32 v24, {SCALE:#x}, v24")
    bf16r(24)
    a("v_mov_b32 v25, v24")
    wave_reduce([25], "v_max_f32")
    a("v_readlane_b32 s72, v25, 63")
    a("v_subrev_f32 v24, s72, v24")
    a(f"v_mul_f32 v24, {LOG2E:#x}, v24")
    a("v_exp_f32 v24, v24")
    a("v_cvt_pk_bf16_f32 v26, v24, v24")
    wave_reduce([24])
    a("v_lshrrev_b32 v27, 2, v42")
    a("v_lshl_add_u32 v27, v41, 3, v27")
    a("v_lshlrev_b32 v27, 6, v27")
    a("v_and_b32 v28, 3, v42")
    a("v_lshl_add_u32 v27, v28, 3, v27")
    a("v_add_u32 v27, s71, v27")
    a("s_lshl_b32 s64, s3, 2")
    a(f"s_add_u32 s64, s64, {L_MB}")
    a("v_mov_b32 v28, s64")
    a("v_mov_b32 v25, s72")
    a("s_mov_b32 exec_lo, 0")
    a("s_mov_b32 exec_hi, 0x80000000")
    a("ds_write2_b32 v28, v25, v24 offset0:0 offset1:16")
    a("s_mov_b64 exec, -1")
    a("v_lshrrev_b32 v29, 2, v0")
    a("v_mul_u32_u24 v29, 2752, v29")
    a("v_and_b32 v30, 3, v0")
    a("v_lshl_add_u32 v29, v30, 4, v29")
    stampat(4)

    TR_AT = 3
    MLP_AT = 6
    CHK_AT = 9
    for i in range(16):
        j = 16 + i
        t = 12 + 4 * (i & 1)
        for r in range(4):
            a(f"v_and_b32_dpp v{t+r}, v26, v{4+r} row_newbcast:{i} row_mask:0xf bank_mask:0xf")
        wait_for(f"kv{j}")
        r = ringreg(j)
        c = "0" if i == 0 else "v[20:23]"
        a(f"v_mfma_f32_16x16x32_bf16 v[20:23], v[{t}:{t+3}], v[{r}:{r+3}], {c}")
        top_up(j)
        if i == TR_AT:
            assert issued.index("wo7") < issued.index(f"kv{j}")
            for tt in range(2):
                for ks in range(4):
                    for hh in range(2):
                        d = 64 + (tt * 4 + ks) * 4 + hh * 2
                        a(f"ds_read_b64_tr_b16 v[{d}:{d+1}], v27 offset:{ks*2048 + hh*256 + tt*32}")
        if i == MLP_AT:
            a(f"s_cmp_ge_u32 s2, {NMLP}")
            a("s_cbranch_scc1 L_nomlpst")
            a("s_waitcnt lgkmcnt(0)")
            a("s_mul_i32 s64, s3, 88064")
            a("s_lshl_b32 s73, s2, 6")
            a("s_add_u32 s64, s64, s73")
            a("s_add_u32 s73, s64, 44032")
            a("s_mov_b32 m0, s71")
            a(f"buffer_load_dwordx4 v29, s[32:35], s64 offen lds {w_aux}")
            a("s_add_u32 m0, s71, 1024")
            a(f"buffer_load_dwordx4 v29, s[32:35], s73 offen lds {w_aux}")
            a("s_add_u32 m0, s71, 2048")
            a(f"buffer_load_dwordx4 v29, s[36:39], s64 offen lds {w_aux}")
            a("s_add_u32 m0, s71, 3072")
            a(f"buffer_load_dwordx4 v29, s[36:39], s73 offen lds {w_aux}")
            a("s_lshl_b32 s64, s2, 15")
            a("s_lshl_b32 s73, s3, 6")
            a("s_add_u32 s64, s64, s73")
            a("s_add_u32 s73, s64, 0x4000")
            a("s_add_u32 m0, s71, 4096")
            a(f"buffer_load_dwordx4 v3, s[40:43], s64 offen lds {w_aux}")
            a("s_add_u32 m0, s71, 5120")
            a(f"buffer_load_dwordx4 v3, s[40:43], s73 offen lds {w_aux}")
            a("buffer_load_dwordx4 v[56:59], v1, s[44:47], 0 offen")
            a("L_nomlpst:")
        if i == CHK_AT:
            a("v_mov_b32 v31, 0")
            a("v_mov_b32 v30, 0")
            a("s_cmp_ge_u32 s2, 128")
            a("s_cbranch_scc1 L_nochk")
            a("s_cmp_ge_u32 s3, 8")
            a("s_cbranch_scc1 L_nochk")
            a("buffer_load_dword v30, v31, s[28:31], 0 offen sc1")
            a("L_nochk:")
    stampat(5)
    a("s_mul_i32 s64, s3, 272")
    a(f"s_add_u32 s64, s64, {L_OB}")
    a("v_lshlrev_b32 v32, 4, v42")
    a("v_lshl_add_u32 v32, v41, 3, v32")
    a("v_add_u32 v32, s64, v32")
    a("v_mul_u32_u24 v33, 272, v42")
    a("v_lshl_add_u32 v33, v41, 4, v33")
    a(f"v_add_u32 v33, {L_OB}, v33")
    a("v_lshlrev_b32 v34, 4, v41")
    a(f"v_add_u32 v34, {L_MB}, v34")
    a(f"v_mov_b32 v35, {L_MB}")
    a("v_cvt_pk_bf16_f32 v12, v20, v21")
    a("v_cvt_pk_bf16_f32 v13, v22, v23")
    a("s_mov_b32 exec_hi, 0")
    a("ds_write_b64 v32, v[12:13]")
    a("s_mov_b64 exec, -1")
    a("s_waitcnt lgkmcnt(0)")
    a("s_barrier")
    for ks in range(4):
        a(f"ds_read_b128 v[{96+4*ks}:{99+4*ks}], v33 offset:{64*ks}")
    for k in range(4):
        a(f"ds_read_b128 v[{112+4*k}:{115+4*k}], v35 offset:{16*k}")
    a("ds_read_b128 v[44:47], v34")
    a("ds_read_b128 v[48:51], v34 offset:64")
    for ks in range(4):
        a(f"s_waitcnt lgkmcnt({9-ks})")
        for tt in range(2):
            d = 12 + 4 * tt
            bq = 64 + (tt * 4 + ks) * 4
            c = "0" if ks == 0 else f"v[{d}:{d+3}]"
            a(f"v_mfma_f32_16x16x32_bf16 v[{d}:{d+3}], v[{96+4*ks}:{99+4*ks}], v[{bq}:{bq+3}], {c}")
    a("s_waitcnt lgkmcnt(0)")
    a("v_max3_f32 v112, v112, v113, v114")
    a("v_max3_f32 v115, v115, v116, v117")
    a("v_max3_f32 v118, v118, v119, v120")
    a("v_max3_f32 v121, v121, v122, v123")
    a("v_max3_f32 v124, v124, v125, v126")
    a("v_max3_f32 v112, v112, v115, v118")
    a("v_max3_f32 v121, v121, v124, v127")
    a("v_max_f32 v36, v112, v121")
    for r in range(4):
        a(f"v_sub_f32 v{44+r}, v{44+r}, v36")
    for r in range(4):
        a(f"v_mul_f32 v{44+r}, {LOG2E:#x}, v{44+r}")
    for r in range(4):
        a(f"v_exp_f32 v{44+r}, v{44+r}")
    a("v_mul_f32 v37, v44, v48")
    for r in range(1, 4):
        a(f"v_fmac_f32 v37, v{44+r}, v{48+r}")
    a("v_mul_f32 v12, v12, v44")
    a("v_mul_f32 v16, v16, v44")
    for r in range(1, 4):
        a(f"v_fmac_f32 v12, v{12+r}, v{44+r}")
        a(f"v_fmac_f32 v16, v{16+r}, v{44+r}")
    a("v_permlane16_swap_b32 v12, v16")
    a("v_add_f32 v12, v12, v16")
    a("v_mov_b32 v16, v12")
    a("v_permlane32_swap_b32 v16, v12")
    a("v_add_f32 v12, v12, v16")
    a("s_lshl_b32 s64, s69, 11")
    a("s_lshl_b32 s73, s3, 7")
    a("s_add_u32 s64, s64, s73")
    a("v_lshlrev_b32 v38, 2, v0")
    a("s_mov_b32 exec_hi, 0")
    a("buffer_store_dword v12, v38, s[24:27], s64 offen sc1")
    a("s_mov_b64 exec, -1")
    a("s_cmp_lg_u32 s3, 15")
    a("s_cbranch_scc1 L_noml")
    a("v_mov_b32 v16, v37")
    a("v_permlane16_swap_b32 v16, v37")
    a("v_add_f32 v37, v37, v16")
    a("v_mov_b32 v16, v37")
    a("v_permlane32_swap_b32 v16, v37")
    a("v_add_f32 v37, v37, v16")
    a("s_lshl_b32 s64, s69, 3")
    a(f"s_add_u32 s64, s64, {WS_ML}")
    a("s_mov_b64 exec, 1")
    a("buffer_store_dwordx2 v[36:37], v38, s[24:27], s64 offen sc1")
    a("s_mov_b64 exec, -1")
    a("L_noml:")
    stampat(6)
    a(f"s_cmp_lt_u32 s2, {NMLP}")
    a("s_cbranch_scc1 L_mlp")
    a(f"s_sub_u32 s74, s2, {RED0}")
    a("s_cmp_ge_u32 s74, 64")
    a("s_cbranch_scc1 L_fin")
    a("s_cmp_ge_u32 s3, 8")
    a("s_cbranch_scc1 L_fin")

    def check_cleared(tag):
        a(f"s_mov_b32 s75, {SPIN}")
        a(f"L_clr_{tag}:")
        a("s_waitcnt vmcnt(0)")
        a("v_readfirstlane_b32 s64, v30")
        a("s_cmp_eq_u32 s64, 256")
        a(f"s_cbranch_scc1 L_clr_ok_{tag}")
        a("buffer_load_dword v30, v31, s[28:31], 0 offen sc1")
        a("s_sub_u32 s75, s75, 1")
        a("s_cmp_lg_u32 s75, 0")
        a(f"s_cbranch_scc1 L_clr_{tag}")
        a(f"L_clr_ok_{tag}:")
        a(f"s_mov_b32 s75, {SPIN}")

    a("s_lshr_b32 s76, s74, 5")
    a("s_and_b32 s77, s74, 31")
    a("v_lshrrev_b32 v40, 2, v0")
    a("v_and_b32 v43, 3, v0")
    a("v_lshlrev_b32 v44, 11, v40")
    a("v_lshl_or_b32 v44, v43, 4, v44")
    a("v_lshlrev_b32 v45, 3, v40")
    a("s_lshl_b32 s64, s76, 3")
    a("s_add_u32 s64, s64, s3")
    a("s_lshl_b32 s78, s64, 15")
    a("s_lshl_b32 s73, s77, 6")
    a("s_add_u32 s78, s78, s73")
    a("s_lshl_b32 s79, s64, 7")
    a(f"s_add_u32 s79, s79, {WS_ML}")
    a("s_lshl_b32 s64, s76, 10")
    a("s_lshl_b32 s73, s77, 5")
    a("s_add_u32 s64, s64, s73")
    a("v_lshlrev_b32 v46, 1, v42")
    a("buffer_load_ushort v47, v46, s[4:7], s64 offen")
    a("s_lshl_b32 s64, s3, 8")
    a(f"s_add_u32 s64, s64, {L_RA}")
    a("v_lshlrev_b32 v48, 6, v41")
    a("v_lshl_add_u32 v48, v43, 4, v48")
    a("v_add_u32 v48, s64, v48")
    a("v_lshlrev_b32 v49, 9, v41")
    a("v_lshl_add_u32 v49, v42, 2, v49")
    a(f"v_add_u32 v49, {L_RA}, v49")
    check_cleared("ra")
    a("L_pollA:")
    a("buffer_load_dwordx4 v[12:15], v44, s[24:27], s78 offen sc1")
    a("buffer_load_dwordx2 v[16:17], v45, s[24:27], s79 offen sc1")
    a("s_sub_u32 s75, s75, 1")
    a("s_cmp_eq_u32 s75, 0")
    a("s_cbranch_scc1 L_pollA_ok")
    a("s_waitcnt vmcnt(0)")
    a("v_max3_u32 v18, v12, v13, v14")
    a("v_max3_u32 v19, v15, v16, v17")
    a("v_max_u32 v18, v18, v19")
    a("v_cmp_eq_u32 vcc, -1, v18")
    a("s_cbranch_vccnz L_pollA")
    a("L_pollA_ok:")
    a("s_waitcnt vmcnt(0)")
    stampat(7)
    a("v_mov_b32 v18, v16")
    for m in ("row_ror:4", "row_ror:8"):
        a(f"v_max_f32_dpp v18, v18, v18 {m} row_mask:0xf bank_mask:0xf")
    a("v_sub_f32 v16, v16, v18")
    a(f"v_mul_f32 v16, {LOG2E:#x}, v16")
    a("v_exp_f32 v16, v16")
    a("v_mul_f32 v17, v17, v16")
    for m in ("row_ror:4", "row_ror:8"):
        a(f"v_add_f32_dpp v17, v17, v17 {m} row_mask:0xf bank_mask:0xf")
    a("v_rcp_f32 v17, v17")
    a("v_mul_f32 v16, v16, v17")
    for r in range(4):
        a(f"v_mul_f32 v{12+r}, v{12+r}, v16")
    for m in ("row_ror:4", "row_ror:8"):
        for r in range(4):
            a(f"v_add_f32_dpp v{12+r}, v{12+r}, v{12+r} {m} row_mask:0xf bank_mask:0xf")
    a("s_mov_b32 exec_lo, 0x000f000f")
    a("s_mov_b32 exec_hi, 0x000f000f")
    a("ds_write_b128 v48, v[12:15]")
    a("s_mov_b64 exec, -1")
    a("s_waitcnt lgkmcnt(0)")
    a("s_barrier")
    a("s_cmp_lg_u32 s3, 0")
    a("s_cbranch_scc1 L_fin")
    for k in range(4):
        a(f"ds_read2_b32 v[{12+2*k}:{13+2*k}], v49 offset0:{32*k} offset1:{32*k+16}")
    a("s_waitcnt lgkmcnt(0)")
    a("v_add_f32 v12, v12, v13"); a("v_add_f32 v14, v14, v15"); a("v_add_f32 v16, v16, v17"); a("v_add_f32 v18, v18, v19")
    a("v_add_f32 v12, v12, v14"); a("v_add_f32 v16, v16, v18")
    a("v_add_f32 v12, v12, v16")
    a("v_mov_b32 v13, v12")
    a("v_permlane16_swap_b32 v13, v12")
    a("v_add_f32 v12, v12, v13")
    a("v_mov_b32 v13, v12")
    a("v_permlane32_swap_b32 v13, v12")
    a("v_add_f32 v12, v12, v13")
    bf16r(12)
    a("v_lshlrev_b32 v47, 16, v47")
    a("v_add_f32 v12, v12, v47")
    a("v_mov_b32_dpp v13, v12 quad_perm:[1,0,3,2] row_mask:0xf bank_mask:0xf")
    a("v_cvt_pk_bf16_f32 v12, v12, v13")
    a("s_lshl_b32 s64, s74, 5")
    a(f"s_add_u32 s64, s64, {WS_H}")
    a("s_mov_b64 exec, 0x5555")
    a("buffer_store_dword v12, v46, s[24:27], s64 offen sc1")
    a("s_mov_b64 exec, -1")
    stampat(8)
    a("s_branch L_fin")

    a("L_mlp:")
    a("s_waitcnt vmcnt(0)")
    for ks in range(3):
        for tt in range(2):
            for hh in range(2):
                d = 64 + (ks * 2 + tt) * 4 + hh * 2
                a(f"ds_read_b64_tr_b16 v[{d}:{d+1}], v27 offset:{ks*2048 + hh*256 + tt*32}")
    a("v_and_b32 v40, 1, v42")
    a("v_lshlrev_b32 v43, 10, v40")
    a("v_lshl_add_u32 v43, v41, 4, v43")
    a("s_lshl_b32 s64, s3, 6")
    a(f"s_add_u32 s64, s64, {L_LN2}")
    a("v_add_u32 v43, s64, v43")
    a("v_mul_u32_u24 v44, 144, v42")
    a("s_lshl_b32 s64, s3, 2")
    a(f"s_add_u32 s64, s64, {L_GP}")
    a("v_add_u32 v44, s64, v44")
    a("v_add_u32 v45, 2304, v44")
    a("v_add_u32 v46, 4608, v44")
    a("v_add_u32 v47, 6912, v44")
    a("v_lshrrev_b32 v48, 3, v0")
    a("v_mul_u32_u24 v48, 144, v48")
    a("v_and_b32 v49, 7, v0")
    a("v_lshl_add_u32 v48, v49, 4, v48")
    a("s_mul_i32 s64, s3, 1152")
    a(f"s_add_u32 s64, s64, {L_GP}")
    a("v_add_u32 v48, s64, v48")
    a("v_lshrrev_b32 v49, 3, v0")
    a("v_lshlrev_b32 v49, 1, v49")
    a("v_bfe_u32 v50, v0, 2, 1")
    a("v_lshl_add_u32 v49, v50, 6, v49")
    a("s_lshl_b32 s64, s3, 4")
    a(f"s_add_u32 s64, s64, {L_ACT}")
    a("v_add_u32 v49, s64, v49")
    a("v_lshlrev_b32 v50, 6, v40")
    a("v_lshl_add_u32 v50, v41, 4, v50")
    a(f"v_add_u32 v50, {L_ACT}, v50")
    a("v_lshrrev_b32 v51, 5, v0")
    a("v_lshlrev_b32 v51, 11, v51")
    a("v_and_b32 v52, 31, v0")
    a("v_lshl_add_u32 v51, v52, 2, v51")
    a("s_lshl_b32 s78, s2, 12")
    a("s_lshl_b32 s64, s3, 7")
    a("s_add_u32 s78, s78, s64")
    a(f"s_add_u32 s78, s78, {WS_Y}")
    a("s_cmp_ge_u32 s3, 2")
    a("s_cbranch_scc1 L_mlp_b1")
    a("s_lshl_b32 s79, s3, 10")
    a(f"v_add_u32 v52, s79, v1")
    a(f"v_add_u32 v52, {L_LN2}, v52")
    a(f"s_add_u32 s79, s79, {WS_H}")
    check_cleared("mlp")
    a("L_pollB:")
    a("buffer_load_dwordx4 v[96:99], v1, s[24:27], s79 offen sc1")
    a("s_sub_u32 s75, s75, 1")
    a("s_cmp_eq_u32 s75, 0")
    a("s_cbranch_scc1 L_pollB_ok")
    a("s_waitcnt vmcnt(0)")
    a("v_max3_u32 v18, v96, v97, v98")
    a("v_max_u32 v18, v18, v99")
    a("v_cmp_eq_u32 vcc, -1, v18")
    a("s_cbranch_vccnz L_pollB")
    a("L_pollB_ok:")
    a("s_waitcnt vmcnt(0)")
    stampat(7)
    unpack(96, 100)
    ln_stats(100, 108, 60, 61)
    ln_apply(100, 108, 60, 61)
    for k in range(4):
        a(f"v_cvt_pk_bf16_f32 v{120+k}, v{108+2*k}, v{109+2*k}")
    a("ds_write_b128 v52, v[120:123]")
    a("ds_write_b128 v52, v[96:99] offset:2048")
    a("L_mlp_b1:")
    a("s_waitcnt lgkmcnt(0)")
    a("s_barrier")
    a("ds_read_b128 v[8:11], v43")
    a("s_waitcnt lgkmcnt(0)")
    for tl in range(4):
        a(f"v_mfma_f32_16x16x32_bf16 v[{12+4*tl}:{15+4*tl}], v[8:11], v[{64+4*tl}:{67+4*tl}], 0")
    a("s_mov_b64 exec, 0xffff")
    for tl in range(4):
        a(f"ds_write2_b32 v{44+tl}, v{12+4*tl}, v{13+4*tl} offset0:0 offset1:16")
    a("s_mov_b64 exec, -1")
    a("s_waitcnt lgkmcnt(0)")
    a("s_barrier")
    a("s_cmp_ge_u32 s3, 4")
    a("s_cbranch_scc1 L_mlp_b3")
    a("ds_read_b128 v[12:15], v48")
    a("ds_read_b128 v[16:19], v48 offset:4608")
    a("s_waitcnt lgkmcnt(0)")
    a("v_add_f32 v12, v12, v13"); a("v_add_f32 v16, v16, v17")
    a("v_add_f32 v14, v14, v15"); a("v_add_f32 v18, v18, v19")
    a("v_add_f32 v12, v12, v14"); a("v_add_f32 v16, v16, v18")
    for m in ("quad_perm:[1,0,3,2]", "quad_perm:[2,3,0,1]"):
        for r in (12, 16):
            a(f"v_add_f32_dpp v{r}, v{r}, v{r} {m} row_mask:0xf bank_mask:0xf")
    a("v_cvt_pk_bf16_f32 v13, v12, v16")
    a("v_lshlrev_b32 v12, 16, v13")
    a("v_and_b32 v16, 0xffff0000, v13")
    a("v_mul_f32 v13, 0xbfb8aa3b, v12")
    a("v_exp_f32 v13, v13")
    a("v_add_f32 v13, 1.0, v13")
    a("v_rcp_f32 v13, v13")
    a("v_mul_f32 v12, v12, v13")
    bf16r(12)
    a("v_mul_f32 v12, v12, v16")
    a("v_cvt_pk_bf16_f32 v12, v12, v12")
    a("ds_write_b16 v49, v12")
    a("L_mlp_b3:")
    a("s_waitcnt lgkmcnt(0)")
    a("s_barrier")
    a("ds_read_b128 v[8:11], v50")
    a("s_waitcnt lgkmcnt(0)")
    a("v_mfma_f32_16x16x32_bf16 v[12:15], v[8:11], v[80:83], 0")
    a("v_mfma_f32_16x16x32_bf16 v[16:19], v[8:11], v[84:87], 0")
    a("s_mov_b32 s66, 0xffff0000"); a("s_mov_b32 s67, 0xffff0000")
    a("s_mov_b32 s68, 0"); a("s_mov_b32 s69, -1")
    a("v_cndmask_b32 v12, v12, v16, s[66:67]")
    a("v_cndmask_b32 v13, v13, v17, s[66:67]")
    a("v_cndmask_b32 v12, v12, v13, s[68:69]")
    a("buffer_store_dword v12, v51, s[24:27], s78 offen sc1")
    stampat(8)
    a("s_cmp_ge_u32 s3, 2")
    a("s_cbranch_scc1 L_fin")
    a("s_cmp_ge_u32 s2, 32")
    a("s_cbranch_scc1 L_fin")
    a("v_lshrrev_b32 v40, 2, v0")
    a("v_and_b32 v43, 3, v0")
    a("v_lshlrev_b32 v44, 12, v40")
    a("v_lshl_or_b32 v44, v43, 4, v44")
    a("s_lshl_b32 s78, s3, 11")
    a("s_lshl_b32 s64, s2, 6")
    a("s_add_u32 s78, s78, s64")
    a(f"s_add_u32 s78, s78, {WS_Y}")
    a("s_add_u32 s79, s78, 0x10000")
    a("s_add_u32 s77, s78, 0x20000")
    a("v_add_u32 v53, s77, v44")
    a("s_lshl_b32 s64, s3, 10")
    a("s_lshl_b32 s73, s2, 5")
    a("s_add_u32 s76, s64, s73")
    a(f"s_add_u32 s64, s76, {L_LN2}")
    a("v_lshlrev_b32 v45, 3, v43")
    a("v_add_u32 v46, s64, v45")
    a("ds_read_b64 v[48:49], v46")
    a("ds_read_b64 v[50:51], v46 offset:2048")
    a("v_mov_b32 v47, 0")
    for k in range(4):
        a(f"v_dot2c_f32_bf16 v47, v{120+k}, v{56+k}")
    wave_reduce([47])
    a("v_readlane_b32 s64, v47, 63")
    a("v_mov_b32 v47, s64")
    bf16r(47)
    a("v_mul_f32 v47, 0xbfb8aa3b, v47")
    a("v_exp_f32 v47, v47")
    a("v_add_f32 v47, 1.0, v47")
    a("v_rcp_f32 v47, v47")
    bf16r(47)
    a("s_waitcnt lgkmcnt(0)")
    a("v_lshlrev_b32 v100, 16, v48"); a("v_and_b32 v101, 0xffff0000, v48")
    a("v_lshlrev_b32 v102, 16, v49"); a("v_and_b32 v103, 0xffff0000, v49")
    a("v_lshlrev_b32 v104, 16, v50"); a("v_and_b32 v105, 0xffff0000, v50")
    a("v_lshlrev_b32 v106, 16, v51"); a("v_and_b32 v107, 0xffff0000, v51")
    a(f"s_mov_b32 s75, {SPIN}")
    a("L_pollC:")
    a("buffer_load_dwordx4 v[12:15], v44, s[24:27], s78 offen sc1")
    a("buffer_load_dwordx4 v[16:19], v44, s[24:27], s79 offen sc1")
    a("buffer_load_dwordx4 v[20:23], v53, s[24:27], 0 offen sc1")
    a("s_sub_u32 s75, s75, 1")
    a("s_cmp_eq_u32 s75, 0")
    a("s_cbranch_scc1 L_pollC_ok")
    a("s_waitcnt vmcnt(0)")
    a("v_max3_u32 v24, v12, v13, v14")
    a("v_max3_u32 v25, v15, v16, v17")
    a("v_max3_u32 v26, v18, v19, v20")
    a("v_max3_u32 v27, v21, v22, v23")
    a("v_max3_u32 v24, v24, v25, v26")
    a("v_max_u32 v24, v24, v27")
    a("v_cmp_eq_u32 vcc, -1, v24")
    a("s_cbranch_vccnz L_pollC")
    a("L_pollC_ok:")
    a("s_waitcnt vmcnt(0)")
    for r in range(4):
        a(f"v_add_f32 v{12+r}, v{12+r}, v{16+r}")
    for r in range(4):
        a(f"v_add_f32 v{12+r}, v{12+r}, v{20+r}")
    for m in ("row_ror:4", "row_ror:8"):
        for r in range(4):
            a(f"v_add_f32_dpp v{12+r}, v{12+r}, v{12+r} {m} row_mask:0xf bank_mask:0xf")
    for sw in ("v_permlane16_swap_b32", "v_permlane32_swap_b32"):
        for r in range(4):
            a(f"v_mov_b32 v{16+r}, v{12+r}")
        for r in range(4):
            a(f"{sw} v{16+r}, v{12+r}")
        for r in range(4):
            a(f"v_add_f32 v{12+r}, v{12+r}, v{16+r}")
    def round4(base):
        a(f"v_cvt_pk_bf16_f32 v{base+1}, v{base}, v{base+1}")
        a(f"v_cvt_pk_bf16_f32 v{base+3}, v{base+2}, v{base+3}")
        a(f"v_lshlrev_b32 v{base}, 16, v{base+1}")
        a(f"v_and_b32 v{base+1}, 0xffff0000, v{base+1}")
        a(f"v_lshlrev_b32 v{base+2}, 16, v{base+3}")
        a(f"v_and_b32 v{base+3}, 0xffff0000, v{base+3}")
    round4(12)
    for r in range(4): a(f"v_mul_f32 v{12+r}, v{12+r}, v47")
    round4(12)
    for r in range(4): a(f"v_add_f32 v{12+r}, v{12+r}, v{100+r}")
    round4(12)
    for r in range(4): a(f"v_add_f32 v{12+r}, v{12+r}, v{104+r}")
    a("v_cvt_pk_bf16_f32 v12, v12, v13")
    a("v_cvt_pk_bf16_f32 v13, v14, v15")
    a("s_mov_b64 exec, 0xf")
    a("buffer_store_dwordx2 v[12:13], v45, s[48:51], s76 offen")
    a("s_mov_b64 exec, -1")
    stampat(9)
    a("L_fin:")
    if stamps:
        a("s_cmp_lg_u32 s3, 0")
        a("s_cbranch_scc1 L_end")
        a("s_waitcnt lgkmcnt(0)")
        a("s_mul_i32 s64, s2, 80")
        a(f"s_add_u32 s64, s64, {512<<20}")
        a("v_mov_b32 v40, s64")
        a("s_mov_b64 exec, 1")
        for i in range(10):
            a(f"v_mov_b32 v12, s{80+2*i}")
            a(f"v_mov_b32 v13, s{81+2*i}")
            a(f"global_store_dwordx2 v40, v[12:13], s[24:25] offset:{8*i}")
            a("s_nop 1")
    a("L_end:")
    a("s_endpgm")
    a('.section .rodata,"a"')
    a(".p2align 6")
    a(f".amdhsa_kernel {NAME}_kernel")
    a("  .amdhsa_next_free_vgpr 128")
    a("  .amdhsa_next_free_sgpr 102")
    a("  .amdhsa_accum_offset 128")
    a("  .amdhsa_group_segment_fixed_size 0")
    a("  .amdhsa_kernarg_size 104")
    a("  .amdhsa_user_sgpr_count 2")
    a("  .amdhsa_user_sgpr_kernarg_segment_ptr 1")
    a("  .amdhsa_system_sgpr_workgroup_id_x 1")
    a(".end_amdhsa_kernel")
    return a.finalize()

if __name__ == "__main__":
    out = sys.argv[1]
    kw = eval("dict(" + (sys.argv[2] if len(sys.argv) > 2 else "") + ")")
    open(out, "w").write(gen(**kw))
```

```python
import sys, json
from asmlib import Asm
NAME = "sequential_preLN__sliding_block_cached__moe_arch_mod__decode"
HEADER = open("cdna_kernels/" + NAME + ".s.ref").read().split("; Override launch geometry")[0] if False else None

HDR = """; Kernarg layout for this problem (104 bytes, ptrs only, base s[0:1]):
;   offset  24: d_in[3] A_wq  shape=(512, 4096) dtype=bfloat16 strides=(8192, 2) contiguous=True
"""

WS_Z = 0
WS_ML = 0x80000
WS_H = 0x81000
WS_Y = 0x82000
WS_SIZE = WS_Y + 43 * 4096
L_STG = 0
L_QP = 0x20000
L_QB = 0x22200
L_OB = 0x22300
L_MB = 0x23400
L_LB = 0x23440
L_LN2 = 0x23800
L_HB = 0x24000
L_GP = 0x24800
L_ACT = 0x26C00
L_RA = 0x20000
LDS_SIZE = 0x27000
NMLP = 43
RED0 = 64
SPIN = 100000
LOG2E = 0x3fb8aa3b
SCALE = 0x3db504f3

def gen(stamps=False, depth=6, ivec=(0,1,2,3), wvec=(4,5,6,7), wx=((0,2),(1,3)), gx=(), vx=0,
        kv_aux="nt", w_aux="", init_order="wq_first", ring=8, wo_start=4, no_wo=False, no_wq=False, no_mlp=False, wq_aux=None):
    a = Asm()
    nstamp = [0]
    def stamp():
        if stamps:
            k = 80 + 2 * nstamp[0]
            a(f"s_memrealtime s[{k}:{k+1}]")
        nstamp[0] += 1
    def stampat(i):
        if stamps:
            a(f"s_memrealtime s[{80+2*i}:{81+2*i}]")

    a(HDR + f"; @launch grid=(256,1,1) block=(1024,1,1) lds={LDS_SIZE}")
    a('.amdgcn_target "amdgcn-amd-amdhsa--gfx950"')
    a(".text")
    a(f".globl {NAME}_kernel")
    a(".p2align 8")
    a(f".type {NAME}_kernel,@function")
    a(f"{NAME}_kernel:")
    if stamps:
        for i in range(1, 10):
            a(f"s_mov_b64 s[{80+2*i}:{81+2*i}], 0")
    stampat(0)
    a("s_load_dwordx2 s[4:5], s[0:1], 0")
    a("s_load_dwordx2 s[8:9], s[0:1], 24")
    a("s_load_dwordx2 s[12:13], s[0:1], 8")
    a("s_cmp_ge_u32 s2, 256")
    a("s_cbranch_scc1 L_end")
    a("v_lshrrev_b32 v40, 6, v0")
    a("v_and_b32 v0, 63, v0")
    a("v_readfirstlane_b32 s3, v40")
    a("v_lshlrev_b32 v1, 4, v0")
    a("s_movk_i32 s6, 2048")
    a("s_mov_b32 s7, 0x20000")
    a("s_mov_b32 s10, 0x400000")
    a("s_mov_b32 s11, 0x20000")
    a("s_mov_b32 s14, 0x10000000")
    a("s_mov_b32 s15, 0x20000")
    a("s_and_b32 s55, s2, 31")
    a("s_bfe_u32 s56, s2, 0x10005")
    a("s_lshr_b32 s57, s2, 6")
    a("s_and_b32 s52, s2, 63")
    a("s_lshl_b32 s52, s52, 4")
    a("s_add_u32 s52, s52, s57")
    a("s_add_u32 s52, s52, 12")
    a("s_lshl_b32 s52, s52, 18")
    if tuple(wvec) == (4,5,6,7):
        a("s_lshl_b32 s53, s3, 14")
        a("s_xor_b32 s52, s52, s53")
        lst = list(wx)
    else:
        lst = [(k, b) for k, b in enumerate(wvec)] + list(wx)
    if tuple(lst) == ((0,2),(1,3)):
        a("s_and_b32 s53, s3, 3"); a("s_lshl_b32 s53, s53, 12"); a("s_xor_b32 s52, s52, s53")
        lst = []
    for src, l2 in ((3, lst), (2, list(gx))):
        for k, b in l2:
            a(f"s_bfe_u32 s53, s{src}, {k | (1 << 16)}")
            a(f"s_lshl_b32 s53, s53, {10 + b}")
            a("s_xor_b32 s52, s52, s53")
    a("v_lshrrev_b32 v41, 4, v0")
    a("v_and_b32 v42, 15, v0")
    a("v_lshlrev_b32 v2, 16, v41")
    a("v_lshl_or_b32 v2, v42, 4, v2")
    a("v_lshlrev_b32 v43, 4, v41")
    a("s_lshl_b32 s54, s3, 18")
    a("s_lshl_b32 s53, s55, 8")
    a("s_or_b32 s54, s54, s53")
    a("s_lshl_b32 s59, s56, 10")
    a("s_lshl_b32 s58, s3, 6")
    a("s_add_u32 s58, s58, s59")
    a("s_movk_i32 s65, 0x2000")
    a("s_waitcnt lgkmcnt(0)")

    def P(i):
        r = 0
        for k, b in enumerate(ivec):
            if i >> k & 1: r ^= 1 << b
        return r
    issued = []
    def wait_for(name):
        idx = issued.index(name)
        n = len(issued) - 1 - idx
        assert n < 64
        a(f"s_waitcnt vmcnt({n})")
    def ringreg(j):
        return 96 + 4 * (j % ring)
    def ld_kv(j):
        i = j & 15
        srd = 12 if j < 16 else 16
        p = P(i) if j < 16 else P(i)
        r = ringreg(j)
        if p:
            a(f"s_xor_b32 s53, s52, {p << 10}")
            so = 53
        else:
            so = 52
        a(f"buffer_load_dwordx4 v[{r}:{r+3}], v1, s[{srd}:{srd+3}], s{so} offen {kv_aux}")
        issued.append(f"kv{j}")
    def ld_wq(i):
        r = 64 + 4 * i
        if no_wq and i > 0:
            return
        a(f"buffer_load_dwordx4 v[{r}:{r+3}], v2, s[8:11], s54 offen {w_aux if wq_aux is None else wq_aux}")
        if i < 7: a("s_add_u32 s54, s54, s65")
        issued.append(f"wq{i}")

    a("buffer_load_dwordx4 v[44:47], v1, s[4:7], s59 offen"); issued.append("xf")
    a("buffer_load_dwordx4 v[48:51], v43, s[4:7], s58 offen"); issued.append("xs")
    if init_order == "wq_first":
        for i in range(8): ld_wq(i)
        for j in range(ring): ld_kv(j)
    elif init_order == "inter":
        for i in range(8):
            ld_wq(i)
            if i < ring: ld_kv(i)
    elif init_order == "k2":
        ld_kv(0); ld_kv(1)
        for i in range(8): ld_wq(i)
        for j in range(2, ring): ld_kv(j)
    nkv = [ring]
    a("s_load_dwordx2 s[16:17], s[0:1], 16")
    a("s_load_dwordx2 s[20:21], s[0:1], 32")
    a("s_load_dwordx2 s[24:25], s[0:1], 96")
    a("s_load_dwordx2 s[28:29], s[0:1], 88")
    a("s_load_dwordx2 s[32:33], s[0:1], 56")
    a("s_load_dwordx2 s[36:37], s[0:1], 64")
    a("s_load_dwordx2 s[40:41], s[0:1], 72")
    a("s_load_dwordx2 s[44:45], s[0:1], 48")
    a("s_load_dwordx2 s[48:49], s[0:1], 80")
    for base, size in ((16, 0x10000000), (20, 0x400000), (24, WS_SIZE), (28, 256), (32, 1409024), (36, 1409024), (40, 1409024), (44, 1024), (48, 2048)):
        a(f"s_mov_b32 s{base+2}, {size}")
        a(f"s_mov_b32 s{base+3}, 0x20000")
    a("s_mov_b32 s60, 0xcccccccc"); a("s_mov_b32 s61, 0xcccccccc")
    a("s_mov_b32 s62, 0xaaaaaaaa"); a("s_mov_b32 s63, 0xaaaaaaaa")
    a("v_and_b32 v52, 1, v42")
    a("v_lshlrev_b32 v52, 4, v52")
    a("v_mov_b32 v53, 0xffff")
    a("v_lshlrev_b32 v52, v52, v53")
    a("v_lshrrev_b32 v53, 1, v42")
    for r in range(4):
        a(f"v_cmp_eq_u32 vcc, {r}, v53")
        a(f"v_cndmask_b32 v{4+r}, 0, v52, vcc")
    a("v_lshrrev_b32 v52, 2, v0")
    a("v_and_b32 v53, 3, v0")
    a("v_lshlrev_b32 v3, 10, v52")
    a("v_lshl_or_b32 v3, v53, 4, v3")
    for i in range(16):
        a(f"v_mov_b32 v{24+i}, 0")

    def unpack(src, dst):
        for k in range(4):
            a(f"v_lshlrev_b32 v{dst+2*k}, 16, v{src+k}")
            a(f"v_and_b32 v{dst+2*k+1}, 0xffff0000, v{src+k}")
    def wave_reduce(regs, op="v_add_f32"):
        for m in ("row_shr:1", "row_shr:2", "row_shr:4", "row_shr:8"):
            for r in regs:
                a(f"{op}_dpp v{r}, v{r}, v{r} {m} row_mask:0xf bank_mask:0xf")
        for r in regs:
            a(f"{op}_dpp v{r}, v{r}, v{r} row_bcast:15 row_mask:0xa bank_mask:0xf")
        for r in regs:
            a(f"{op}_dpp v{r}, v{r}, v{r} row_bcast:31 row_mask:0xc bank_mask:0xf")
    def bf16r(r):
        a(f"v_cvt_pk_bf16_f32 v{r}, v{r}, v{r}")
        a(f"v_lshlrev_b32 v{r}, 16, v{r}")
    def ln_stats(f, t, mb, rs):
        a(f"v_readfirstlane_b32 s66, v{f}")
        for i in range(8):
            a(f"v_subrev_f32 v{t+i}, s66, v{f+i}")
        s1, s2 = t + 8, t + 9
        a(f"v_add_f32 v{s1}, v{t}, v{t+1}")
        a(f"v_mul_f32 v{s2}, v{t}, v{t}")
        a(f"v_fmac_f32 v{s2}, v{t+1}, v{t+1}")
        for i in range(2, 8):
            a(f"v_add_f32 v{s1}, v{s1}, v{t+i}")
            a(f"v_fmac_f32 v{s2}, v{t+i}, v{t+i}")
        wave_reduce([s1, s2])
        a(f"v_readlane_b32 s67, v{s1}, 63")
        a(f"v_readlane_b32 s68, v{s2}, 63")
        a(f"v_mov_b32 v{t}, 0x3b000000")
        a(f"v_mul_f32 v{mb}, s67, v{t}")
        a(f"v_mul_f32 v{rs}, s68, v{t}")
        a(f"v_fma_f32 v{rs}, -v{mb}, v{mb}, v{rs}")
        a(f"v_add_f32 v{mb}, s66, v{mb}")
        a(f"v_max_f32 v{rs}, 0, v{rs}")
        a(f"v_cvt_pk_bf16_f32 v{t}, v{mb}, v{rs}")
        a(f"v_lshlrev_b32 v{mb}, 16, v{t}")
        a(f"v_and_b32 v{rs}, 0xffff0000, v{t}")
        a(f"v_add_f32 v{rs}, 0x3727c5ac, v{rs}")
        bf16r(rs)
        a(f"v_sqrt_f32 v{rs}, v{rs}")
        bf16r(rs)
        a(f"v_rcp_f32 v{rs}, v{rs}")
    def ln_apply(f, t, mb, rs):
        for i in range(8):
            a(f"v_sub_f32 v{t+i}, v{f+i}, v{mb}")
        for k in range(4):
            a(f"v_cvt_pk_bf16_f32 v{t+2*k+1}, v{t+2*k}, v{t+2*k+1}")
        for k in range(4):
            a(f"v_lshlrev_b32 v{t+2*k}, 16, v{t+2*k+1}")
            a(f"v_and_b32 v{t+2*k+1}, 0xffff0000, v{t+2*k+1}")
        for i in range(8):
            a(f"v_mul_f32 v{t+i}, v{t+i}, v{rs}")

    wait_for("xf")
    unpack(44, 52)
    ln_stats(52, 8, 60, 61)
    wait_for("xs")
    unpack(48, 52)
    ln_apply(52, 40, 60, 61)
    for i in range(8):
        a(f"v_cvt_pk_bf16_f32 v{40+i}, v{40+i}, v{40+i}")
    for i in range(8):
        t = 12 + 4 * (i & 1)
        for r in range(4):
            a(f"v_and_b32 v{t+r}, v{40+i}, v{4+r}")
        if f"wq{i}" in issued: wait_for(f"wq{i}")
        c = "0" if i == 0 else "v[20:23]"
        a(f"v_mfma_f32_16x16x32_bf16 v[20:23], v[{t}:{t+3}], v[{64+4*i}:{67+4*i}], {c}")
    stampat(1)
    a("v_lshrrev_b32 v41, 4, v0")
    a("v_and_b32 v42, 15, v0")
    a("s_mul_i32 s64, s3, 544")
    a(f"s_add_u32 s64, s64, {L_QP}")
    a("v_lshlrev_b32 v43, 5, v42")
    a("v_lshl_add_u32 v43, v41, 4, v43")
    a("v_add_u32 v43, s64, v43")
    a("s_mov_b32 exec_hi, 0")
    a("ds_write_b128 v43, v[20:23]")
    a("s_mov_b64 exec, -1")
    a("v_lshrrev_b32 v44, 2, v0")
    a("v_mul_u32_u24 v44, 544, v44")
    a("v_and_b32 v45, 3, v0")
    a("v_lshl_add_u32 v44, v45, 3, v44")
    a("s_lshl_b32 s64, s3, 5")
    a(f"s_add_u32 s64, s64, {L_QP}")
    a("v_add_u32 v44, s64, v44")
    a("v_and_b32 v46, 1, v41")
    a("v_lshlrev_b32 v46, 1, v46")
    a("v_lshl_add_u32 v46, v45, 2, v46")
    a("s_lshl_b32 s64, s3, 4")
    a(f"s_add_u32 s64, s64, {L_QB}")
    a("v_add_u32 v46, s64, v46")
    a("v_lshlrev_b32 v47, 4, v42")
    a(f"v_add_u32 v47, {L_QB}, v47")
    a("s_waitcnt lgkmcnt(0)")
    a("s_barrier")
    a("ds_read_b64 v[12:13], v44")
    a("s_waitcnt lgkmcnt(0)")
    for m in ("row_ror:4", "row_ror:8"):
        for r in (12, 13):
            a(f"v_add_f32_dpp v{r}, v{r}, v{r} {m} row_mask:0xf bank_mask:0xf")
    a("v_permlane16_swap_b32 v12, v13")
    a("v_add_f32 v12, v12, v13")
    a("v_mov_b32 v13, v12")
    a("v_permlane32_swap_b32 v13, v12")
    a("v_add_f32 v12, v12, v13")
    a("v_cvt_pk_bf16_f32 v12, v12, v12")
    a("ds_write_b16 v46, v12")
    a("s_waitcnt lgkmcnt(0)")
    a("s_barrier")
    a("ds_read_b128 v[8:11], v47")
    a("s_lshl_b32 s69, s56, 7")
    a("s_lshl_b32 s64, s55, 2")
    a("s_add_u32 s69, s69, s64")
    a("s_add_u32 s69, s69, s57")
    a("s_cmp_lg_u32 s3, 15")
    a("s_cbranch_scc1 L_noclear")
    for r in range(4):
        a(f"v_mov_b32 v{12+r}, -1")
    a("s_lshl_b32 s64, s69, 11")
    a("buffer_store_dwordx4 v[12:15], v1, s[24:27], s64 offen sc1")
    a("buffer_store_dwordx4 v[12:15], v1, s[24:27], s64 offen offset:1024 sc1")
    a("s_lshl_b32 s64, s69, 3")
    a(f"s_add_u32 s64, s64, {WS_ML}")
    a("s_mov_b64 exec, 1")
    a("buffer_store_dwordx2 v[12:13], v1, s[24:27], s64 offen sc1")
    a(f"s_sub_u32 s64, s2, {RED0}")
    a("s_cmp_ge_u32 s64, 64")
    a("s_cbranch_scc1 L_noclear_h")
    a("s_lshl_b32 s64, s64, 5")
    a(f"s_add_u32 s64, s64, {WS_H}")
    a("s_mov_b64 exec, 3")
    a("buffer_store_dwordx4 v[12:15], v1, s[24:27], s64 offen sc1")
    a("L_noclear_h:")
    a("s_mov_b64 exec, -1")
    a(f"s_cmp_ge_u32 s2, {NMLP}")
    a("s_cbranch_scc1 L_noclear")
    a("s_lshl_b32 s64, s2, 12")
    a(f"s_add_u32 s64, s64, {WS_Y}")
    for k in range(4):
        a(f"buffer_store_dwordx4 v[12:15], v1, s[24:27], s64 offen offset:{1024*k} sc1")
    a("L_noclear:")
    clear_mark = len(issued)
    a("s_lshl_b32 s70, s55, 17")
    a("s_lshl_b32 s64, s3, 6")
    a("s_add_u32 s70, s70, s64")
    a("s_lshl_b32 s71, s3, 13")
    a("s_waitcnt lgkmcnt(0)")
    stampat(2)

    def ld_wo(i):
        if no_wo and i < 7: return
        a(f"s_add_u32 m0, s71, {1024*i}")
        a(f"buffer_load_dwordx4 v3, s[20:23], s70 offen {w_aux} lds")
        if i < 7: a("s_add_u32 s70, s70, 0x4000")
        issued.append(f"wo{i}")

    def top_up(j):
        while nkv[0] < 32 and nkv[0] <= j + depth and nkv[0] <= j + ring:
            ld_kv(nkv[0]); nkv[0] += 1
    signalled = False
    for i in range(16):
        wait_for(f"kv{i}")
        r = ringreg(i)
        for k in range(4):
            a(f"v_dot2c_f32_bf16 v{24+i}, v{r+k}, v{8+k}")
        top_up(i)
        if wo_start <= i < wo_start + 8:
            ld_wo(i - wo_start)
        if not signalled and issued.index(f"kv{i}") >= clear_mark:
            a("s_cmp_lg_u32 s3, 15")
            a("s_cbranch_scc1 L_nosig")
            a("v_mov_b32 v12, 1")
            a("v_mov_b32 v13, 0")
            a("s_mov_b64 exec, 1")
            a("buffer_atomic_add v12, v13, s[28:31], 0 offen sc1")
            a("s_mov_b64 exec, -1")
            a("L_nosig:")
            signalled = True
    assert signalled
    stampat(3)
    for i in range(8):
        a(f"v_add_f32_dpp v{24+i}, v{24+i}, v{24+i} row_ror:8 row_mask:0xf bank_mask:0x3")
    for i in range(8):
        a(f"v_add_f32_dpp v{24+i}, v{32+i}, v{32+i} row_ror:8 row_mask:0xf bank_mask:0xc")
    for i in range(4):
        a(f"v_add_f32_dpp v{24+i}, v{24+i}, v{24+i} row_half_mirror row_mask:0xf bank_mask:0x5")
    for i in range(4):
        a(f"v_add_f32_dpp v{24+i}, v{28+i}, v{28+i} row_half_mirror row_mask:0xf bank_mask:0xa")
    for i in range(4):
        a(f"v_add_f32_dpp v{24+i}, v{24+i}, v{24+i} quad_perm:[2,3,0,1] row_mask:0xf bank_mask:0xf")
    a("v_cndmask_b32 v24, v24, v26, s[60:61]")
    a("v_cndmask_b32 v25, v25, v27, s[60:61]")
    for i in range(2):
        a(f"v_add_f32_dpp v{24+i}, v{24+i}, v{24+i} quad_perm:[1,0,3,2] row_mask:0xf bank_mask:0xf")
    a("v_cndmask_b32 v24, v24, v25, s[62:63]")
    bf16r(24)
    a(f"v_mul_f32 v24, {SCALE:#x}, v24")
    bf16r(24)
    a("v_mov_b32 v25, v24")
    wave_reduce([25], "v_max_f32")
    a("v_readlane_b32 s72, v25, 63")
    a("v_subrev_f32 v24, s72, v24")
    a(f"v_mul_f32 v24, {LOG2E:#x}, v24")
    a("v_exp_f32 v24, v24")
    a("v_cvt_pk_bf16_f32 v26, v24, v24")
    wave_reduce([24])
    a("v_lshrrev_b32 v27, 2, v42")
    a("v_lshl_add_u32 v27, v41, 3, v27")
    a("v_lshlrev_b32 v27, 6, v27")
    a("v_and_b32 v28, 3, v42")
    a("v_lshl_add_u32 v27, v28, 3, v27")
    a("v_add_u32 v27, s71, v27")
    a("s_lshl_b32 s64, s3, 2")
    a(f"s_add_u32 s64, s64, {L_MB}")
    a("v_mov_b32 v28, s64")
    a("v_mov_b32 v25, s72")
    a("s_mov_b32 exec_lo, 0")
    a("s_mov_b32 exec_hi, 0x80000000")
    a("ds_write2_b32 v28, v25, v24 offset0:0 offset1:16")
    a("s_mov_b64 exec, -1")
    a("v_lshrrev_b32 v29, 2, v0")
    a("v_mul_u32_u24 v29, 2752, v29")
    a("v_and_b32 v30, 3, v0")
    a("v_lshl_add_u32 v29, v30, 4, v29")
    stampat(4)

    TR_AT = 3
    MLP_AT = 6
    CHK_AT = 9
    for i in range(16):
        j = 16 + i
        t = 12 + 4 * (i & 1)
        for r in range(4):
            a(f"v_and_b32_dpp v{t+r}, v26, v{4+r} row_newbcast:{i} row_mask:0xf bank_mask:0xf")
        wait_for(f"kv{j}")
        r = ringreg(j)
        c = "0" if i == 0 else "v[20:23]"
        a(f"v_mfma_f32_16x16x32_bf16 v[20:23], v[{t}:{t+3}], v[{r}:{r+3}], {c}")
        top_up(j)
        if i == TR_AT:
            assert issued.index("wo7") < issued.index(f"kv{j}")
            for tt in range(2):
                for ks in range(4):
                    for hh in range(2):
                        d = 64 + (tt * 4 + ks) * 4 + hh * 2
                        a(f"ds_read_b64_tr_b16 v[{d}:{d+1}], v27 offset:{ks*2048 + hh*256 + tt*32}")
        if i == MLP_AT and not no_mlp:
            a(f"s_cmp_ge_u32 s2, {NMLP}")
            a("s_cbranch_scc1 L_nomlpst")
            a("s_waitcnt lgkmcnt(0)")
            a("s_mul_i32 s64, s3, 88064")
            a("s_lshl_b32 s73, s2, 6")
            a("s_add_u32 s64, s64, s73")
            a("s_add_u32 s73, s64, 44032")
            a("s_mov_b32 m0, s71")
            a(f"buffer_load_dwordx4 v29, s[32:35], s64 offen {w_aux} lds")
            a("s_add_u32 m0, s71, 1024")
            a(f"buffer_load_dwordx4 v29, s[32:35], s73 offen {w_aux} lds")
            a("s_add_u32 m0, s71, 2048")
            a(f"buffer_load_dwordx4 v29, s[36:39], s64 offen {w_aux} lds")
            a("s_add_u32 m0, s71, 3072")
            a(f"buffer_load_dwordx4 v29, s[36:39], s73 offen {w_aux} lds")
            a("s_lshl_b32 s64, s2, 15")
            a("s_lshl_b32 s73, s3, 6")
            a("s_add_u32 s64, s64, s73")
            a("s_add_u32 s73, s64, 0x4000")
            a("s_add_u32 m0, s71, 4096")
            a(f"buffer_load_dwordx4 v3, s[40:43], s64 offen {w_aux} lds")
            a("s_add_u32 m0, s71, 5120")
            a(f"buffer_load_dwordx4 v3, s[40:43], s73 offen {w_aux} lds")
            a("buffer_load_dwordx4 v[56:59], v1, s[44:47], 0 offen")
            a("L_nomlpst:")
        if i == CHK_AT:
            a("v_mov_b32 v31, 0")
            a("v_mov_b32 v30, 0")
            a("s_cmp_ge_u32 s2, 128")
            a("s_cbranch_scc1 L_nochk")
            a("s_cmp_ge_u32 s3, 8")
            a("s_cbranch_scc1 L_nochk")
            a("buffer_load_dword v30, v31, s[28:31], 0 offen sc1")
            a("L_nochk:")
    stampat(5)
    a("s_mul_i32 s64, s3, 272")
    a(f"s_add_u32 s64, s64, {L_OB}")
    a("v_lshlrev_b32 v32, 4, v42")
    a("v_lshl_add_u32 v32, v41, 3, v32")
    a("v_add_u32 v32, s64, v32")
    a("v_mul_u32_u24 v33, 272, v42")
    a("v_lshl_add_u32 v33, v41, 4, v33")
    a(f"v_add_u32 v33, {L_OB}, v33")
    a("v_lshlrev_b32 v34, 4, v41")
    a(f"v_add_u32 v34, {L_MB}, v34")
    a(f"v_mov_b32 v35, {L_MB}")
    a("v_cvt_pk_bf16_f32 v12, v20, v21")
    a("v_cvt_pk_bf16_f32 v13, v22, v23")
    a("s_mov_b32 exec_hi, 0")
    a("ds_write_b64 v32, v[12:13]")
    a("s_mov_b64 exec, -1")
    a("s_waitcnt lgkmcnt(0)")
    a("s_barrier")
    for ks in range(4):
        a(f"ds_read_b128 v[{96+4*ks}:{99+4*ks}], v33 offset:{64*ks}")
    for k in range(4):
        a(f"ds_read_b128 v[{112+4*k}:{115+4*k}], v35 offset:{16*k}")
    a("ds_read_b128 v[44:47], v34")
    a("ds_read_b128 v[48:51], v34 offset:64")
    for ks in range(4):
        a(f"s_waitcnt lgkmcnt({9-ks})")
        for tt in range(2):
            d = 12 + 4 * tt
            bq = 64 + (tt * 4 + ks) * 4
            c = "0" if ks == 0 else f"v[{d}:{d+3}]"
            a(f"v_mfma_f32_16x16x32_bf16 v[{d}:{d+3}], v[{96+4*ks}:{99+4*ks}], v[{bq}:{bq+3}], {c}")
    a("s_waitcnt lgkmcnt(0)")
    a("v_max3_f32 v112, v112, v113, v114")
    a("v_max3_f32 v115, v115, v116, v117")
    a("v_max3_f32 v118, v118, v119, v120")
    a("v_max3_f32 v121, v121, v122, v123")
    a("v_max3_f32 v124, v124, v125, v126")
    a("v_max3_f32 v112, v112, v115, v118")
    a("v_max3_f32 v121, v121, v124, v127")
    a("v_max_f32 v36, v112, v121")
    for r in range(4):
        a(f"v_sub_f32 v{44+r}, v{44+r}, v36")
    for r in range(4):
        a(f"v_mul_f32 v{44+r}, {LOG2E:#x}, v{44+r}")
    for r in range(4):
        a(f"v_exp_f32 v{44+r}, v{44+r}")
    a("v_mul_f32 v37, v44, v48")
    for r in range(1, 4):
        a(f"v_fmac_f32 v37, v{44+r}, v{48+r}")
    a("v_mul_f32 v12, v12, v44")
    a("v_mul_f32 v16, v16, v44")
    for r in range(1, 4):
        a(f"v_fmac_f32 v12, v{12+r}, v{44+r}")
        a(f"v_fmac_f32 v16, v{16+r}, v{44+r}")
    a("v_permlane16_swap_b32 v12, v16")
    a("v_add_f32 v12, v12, v16")
    a("v_mov_b32 v16, v12")
    a("v_permlane32_swap_b32 v16, v12")
    a("v_add_f32 v12, v12, v16")
    a("s_lshl_b32 s64, s69, 11")
    a("s_lshl_b32 s73, s3, 7")
    a("s_add_u32 s64, s64, s73")
    a("v_lshlrev_b32 v38, 2, v0")
    a("s_mov_b32 exec_hi, 0")
    a("buffer_store_dword v12, v38, s[24:27], s64 offen sc1")
    a("s_mov_b64 exec, -1")
    a("s_cmp_lg_u32 s3, 15")
    a("s_cbranch_scc1 L_noml")
    a("v_mov_b32 v16, v37")
    a("v_permlane16_swap_b32 v16, v37")
    a("v_add_f32 v37, v37, v16")
    a("v_mov_b32 v16, v37")
    a("v_permlane32_swap_b32 v16, v37")
    a("v_add_f32 v37, v37, v16")
    a("s_lshl_b32 s64, s69, 3")
    a(f"s_add_u32 s64, s64, {WS_ML}")
    a("s_mov_b64 exec, 1")
    a("buffer_store_dwordx2 v[36:37], v38, s[24:27], s64 offen sc1")
    a("s_mov_b64 exec, -1")
    a("L_noml:")
    stampat(6)
    a(f"s_cmp_lt_u32 s2, {NMLP}")
    a("s_cbranch_scc1 L_mlp")
    a(f"s_sub_u32 s74, s2, {RED0}")
    a("s_cmp_ge_u32 s74, 64")
    a("s_cbranch_scc1 L_fin")
    a("s_cmp_ge_u32 s3, 8")
    a("s_cbranch_scc1 L_fin")

    def check_cleared(tag):
        a(f"s_mov_b32 s75, {SPIN}")
        a(f"L_clr_{tag}:")
        a("s_waitcnt vmcnt(0)")
        a("v_readfirstlane_b32 s64, v30")
        a("s_cmp_ge_u32 s64, 256")
        a(f"s_cbranch_scc1 L_clr_ok_{tag}")
        a("buffer_load_dword v30, v31, s[28:31], 0 offen sc1")
        a("s_sub_u32 s75, s75, 1")
        a("s_cmp_lg_u32 s75, 0")
        a(f"s_cbranch_scc1 L_clr_{tag}")
        a(f"L_clr_ok_{tag}:")
        a(f"s_mov_b32 s75, {SPIN}")

    a("s_lshr_b32 s76, s74, 5")
    a("s_and_b32 s77, s74, 31")
    a("v_lshrrev_b32 v40, 2, v0")
    a("v_and_b32 v43, 3, v0")
    a("v_lshlrev_b32 v44, 11, v40")
    a("v_lshl_or_b32 v44, v43, 4, v44")
    a("v_lshlrev_b32 v45, 3, v40")
    a("s_lshl_b32 s64, s76, 3")
    a("s_add_u32 s64, s64, s3")
    a("s_lshl_b32 s78, s64, 15")
    a("s_lshl_b32 s73, s77, 6")
    a("s_add_u32 s78, s78, s73")
    a("s_lshl_b32 s79, s64, 7")
    a(f"s_add_u32 s79, s79, {WS_ML}")
    a("s_lshl_b32 s64, s76, 10")
    a("s_lshl_b32 s73, s77, 5")
    a("s_add_u32 s64, s64, s73")
    a("v_lshlrev_b32 v46, 1, v42")
    a("buffer_load_ushort v47, v46, s[4:7], s64 offen")
    a("s_lshl_b32 s64, s3, 8")
    a(f"s_add_u32 s64, s64, {L_RA}")
    a("v_lshlrev_b32 v48, 6, v41")
    a("v_lshl_add_u32 v48, v43, 4, v48")
    a("v_add_u32 v48, s64, v48")
    a("v_lshlrev_b32 v49, 9, v41")
    a("v_lshl_add_u32 v49, v42, 2, v49")
    a(f"v_add_u32 v49, {L_RA}, v49")
    check_cleared("ra")
    a("L_pollA:")
    a("buffer_load_dwordx4 v[12:15], v44, s[24:27], s78 offen sc1")
    a("buffer_load_dwordx2 v[16:17], v45, s[24:27], s79 offen sc1")
    a("s_sub_u32 s75, s75, 1")
    a("s_cmp_eq_u32 s75, 0")
    a("s_cbranch_scc1 L_pollA_ok")
    a("s_waitcnt vmcnt(0)")
    a("v_max3_u32 v18, v12, v13, v14")
    a("v_max3_u32 v19, v15, v16, v17")
    a("v_max_u32 v18, v18, v19")
    a("v_cmp_eq_u32 vcc, -1, v18")
    a("s_cbranch_vccnz L_pollA")
    a("L_pollA_ok:")
    a("s_waitcnt vmcnt(0)")
    stampat(7)
    a("v_mov_b32 v18, v16")
    for m in ("row_ror:4", "row_ror:8"):
        a(f"v_max_f32_dpp v18, v18, v18 {m} row_mask:0xf bank_mask:0xf")
    a("v_sub_f32 v16, v16, v18")
    a(f"v_mul_f32 v16, {LOG2E:#x}, v16")
    a("v_exp_f32 v16, v16")
    a("v_mul_f32 v17, v17, v16")
    for m in ("row_ror:4", "row_ror:8"):
        a(f"v_add_f32_dpp v17, v17, v17 {m} row_mask:0xf bank_mask:0xf")
    a("v_rcp_f32 v17, v17")
    a("v_mul_f32 v16, v16, v17")
    for r in range(4):
        a(f"v_mul_f32 v{12+r}, v{12+r}, v16")
    for m in ("row_ror:4", "row_ror:8"):
        for r in range(4):
            a(f"v_add_f32_dpp v{12+r}, v{12+r}, v{12+r} {m} row_mask:0xf bank_mask:0xf")
    a("s_mov_b32 exec_lo, 0x000f000f")
    a("s_mov_b32 exec_hi, 0x000f000f")
    a("ds_write_b128 v48, v[12:15]")
    a("s_mov_b64 exec, -1")
    a("s_waitcnt lgkmcnt(0)")
    a("s_barrier")
    a("s_cmp_lg_u32 s3, 0")
    a("s_cbranch_scc1 L_fin")
    for k in range(4):
        a(f"ds_read2_b32 v[{12+2*k}:{13+2*k}], v49 offset0:{32*k} offset1:{32*k+16}")
    a("s_waitcnt lgkmcnt(0)")
    a("v_add_f32 v12, v12, v13"); a("v_add_f32 v14, v14, v15"); a("v_add_f32 v16, v16, v17"); a("v_add_f32 v18, v18, v19")
    a("v_add_f32 v12, v12, v14"); a("v_add_f32 v16, v16, v18")
    a("v_add_f32 v12, v12, v16")
    a("v_mov_b32 v13, v12")
    a("v_permlane16_swap_b32 v13, v12")
    a("v_add_f32 v12, v12, v13")
    a("v_mov_b32 v13, v12")
    a("v_permlane32_swap_b32 v13, v12")
    a("v_add_f32 v12, v12, v13")
    bf16r(12)
    a("v_lshlrev_b32 v47, 16, v47")
    a("v_add_f32 v12, v12, v47")
    a("v_mov_b32_dpp v13, v12 quad_perm:[1,0,3,2] row_mask:0xf bank_mask:0xf")
    a("v_cvt_pk_bf16_f32 v12, v12, v13")
    a("s_lshl_b32 s64, s74, 5")
    a(f"s_add_u32 s64, s64, {WS_H}")
    a("s_mov_b64 exec, 0x5555")
    a("buffer_store_dword v12, v46, s[24:27], s64 offen sc1")
    a("s_mov_b64 exec, -1")
    stampat(8)
    a("s_branch L_fin")

    a("L_mlp:")
    a("s_waitcnt vmcnt(0)")
    for ks in range(3):
        for tt in range(2):
            for hh in range(2):
                d = 64 + (ks * 2 + tt) * 4 + hh * 2
                a(f"ds_read_b64_tr_b16 v[{d}:{d+1}], v27 offset:{ks*2048 + hh*256 + tt*32}")
    a("v_and_b32 v40, 1, v42")
    a("v_lshlrev_b32 v43, 10, v40")
    a("v_lshl_add_u32 v43, v41, 4, v43")
    a("s_lshl_b32 s64, s3, 6")
    a(f"s_add_u32 s64, s64, {L_LN2}")
    a("v_add_u32 v43, s64, v43")
    a("v_mul_u32_u24 v44, 144, v42")
    a("s_lshl_b32 s64, s3, 2")
    a(f"s_add_u32 s64, s64, {L_GP}")
    a("v_add_u32 v44, s64, v44")
    a("v_add_u32 v45, 2304, v44")
    a("v_add_u32 v46, 4608, v44")
    a("v_add_u32 v47, 6912, v44")
    a("v_lshrrev_b32 v48, 3, v0")
    a("v_mul_u32_u24 v48, 144, v48")
    a("v_and_b32 v49, 7, v0")
    a("v_lshl_add_u32 v48, v49, 4, v48")
    a("s_mul_i32 s64, s3, 1152")
    a(f"s_add_u32 s64, s64, {L_GP}")
    a("v_add_u32 v48, s64, v48")
    a("v_lshrrev_b32 v49, 3, v0")
    a("v_lshlrev_b32 v49, 1, v49")
    a("v_bfe_u32 v50, v0, 2, 1")
    a("v_lshl_add_u32 v49, v50, 6, v49")
    a("s_lshl_b32 s64, s3, 4")
    a(f"s_add_u32 s64, s64, {L_ACT}")
    a("v_add_u32 v49, s64, v49")
    a("v_lshlrev_b32 v50, 6, v40")
    a("v_lshl_add_u32 v50, v41, 4, v50")
    a(f"v_add_u32 v50, {L_ACT}, v50")
    a("v_lshrrev_b32 v51, 5, v0")
    a("v_lshlrev_b32 v51, 11, v51")
    a("v_and_b32 v52, 31, v0")
    a("v_lshl_add_u32 v51, v52, 2, v51")
    a("s_lshl_b32 s78, s2, 12")
    a("s_lshl_b32 s64, s3, 7")
    a("s_add_u32 s78, s78, s64")
    a(f"s_add_u32 s78, s78, {WS_Y}")
    a("s_cmp_ge_u32 s3, 2")
    a("s_cbranch_scc1 L_mlp_b1")
    a("s_lshl_b32 s79, s3, 10")
    a(f"v_add_u32 v52, s79, v1")
    a(f"v_add_u32 v52, {L_LN2}, v52")
    a(f"s_add_u32 s79, s79, {WS_H}")
    check_cleared("mlp")
    a("L_pollB:")
    a("buffer_load_dwordx4 v[96:99], v1, s[24:27], s79 offen sc1")
    a("s_sub_u32 s75, s75, 1")
    a("s_cmp_eq_u32 s75, 0")
    a("s_cbranch_scc1 L_pollB_ok")
    a("s_waitcnt vmcnt(0)")
    a("v_max3_u32 v18, v96, v97, v98")
    a("v_max_u32 v18, v18, v99")
    a("v_cmp_eq_u32 vcc, -1, v18")
    a("s_cbranch_vccnz L_pollB")
    a("L_pollB_ok:")
    a("s_waitcnt vmcnt(0)")
    stampat(7)
    unpack(96, 100)
    ln_stats(100, 108, 60, 61)
    ln_apply(100, 108, 60, 61)
    for k in range(4):
        a(f"v_cvt_pk_bf16_f32 v{120+k}, v{108+2*k}, v{109+2*k}")
    a("ds_write_b128 v52, v[120:123]")
    a("ds_write_b128 v52, v[96:99] offset:2048")
    a("L_mlp_b1:")
    a("s_waitcnt lgkmcnt(0)")
    a("s_barrier")
    a("ds_read_b128 v[8:11], v43")
    a("s_waitcnt lgkmcnt(0)")
    for tl in range(4):
        a(f"v_mfma_f32_16x16x32_bf16 v[{12+4*tl}:{15+4*tl}], v[8:11], v[{64+4*tl}:{67+4*tl}], 0")
    a("s_mov_b64 exec, 0xffff")
    for tl in range(4):
        a(f"ds_write2_b32 v{44+tl}, v{12+4*tl}, v{13+4*tl} offset0:0 offset1:16")
    a("s_mov_b64 exec, -1")
    a("s_waitcnt lgkmcnt(0)")
    a("s_barrier")
    a("s_cmp_ge_u32 s3, 4")
    a("s_cbranch_scc1 L_mlp_b3")
    a("ds_read_b128 v[12:15], v48")
    a("ds_read_b128 v[16:19], v48 offset:4608")
    a("s_waitcnt lgkmcnt(0)")
    a("v_add_f32 v12, v12, v13"); a("v_add_f32 v16, v16, v17")
    a("v_add_f32 v14, v14, v15"); a("v_add_f32 v18, v18, v19")
    a("v_add_f32 v12, v12, v14"); a("v_add_f32 v16, v16, v18")
    for m in ("quad_perm:[1,0,3,2]", "quad_perm:[2,3,0,1]"):
        for r in (12, 16):
            a(f"v_add_f32_dpp v{r}, v{r}, v{r} {m} row_mask:0xf bank_mask:0xf")
    a("v_cvt_pk_bf16_f32 v13, v12, v16")
    a("v_lshlrev_b32 v12, 16, v13")
    a("v_and_b32 v16, 0xffff0000, v13")
    a("v_mul_f32 v13, 0xbfb8aa3b, v12")
    a("v_exp_f32 v13, v13")
    a("v_add_f32 v13, 1.0, v13")
    a("v_rcp_f32 v13, v13")
    a("v_mul_f32 v12, v12, v13")
    bf16r(12)
    a("v_mul_f32 v12, v12, v16")
    a("v_cvt_pk_bf16_f32 v12, v12, v12")
    a("ds_write_b16 v49, v12")
    a("L_mlp_b3:")
    a("s_waitcnt lgkmcnt(0)")
    a("s_barrier")
    a("ds_read_b128 v[8:11], v50")
    a("s_waitcnt lgkmcnt(0)")
    a("v_mfma_f32_16x16x32_bf16 v[12:15], v[8:11], v[80:83], 0")
    a("v_mfma_f32_16x16x32_bf16 v[16:19], v[8:11], v[84:87], 0")
    a("s_mov_b32 s66, 0xffff0000"); a("s_mov_b32 s67, 0xffff0000")
    a("s_mov_b32 s68, 0"); a("s_mov_b32 s69, -1")
    a("v_cndmask_b32 v12, v12, v16, s[66:67]")
    a("v_cndmask_b32 v13, v13, v17, s[66:67]")
    a("v_cndmask_b32 v12, v12, v13, s[68:69]")
    a("buffer_store_dword v12, v51, s[24:27], s78 offen sc1")
    stampat(8)
    a("s_cmp_ge_u32 s3, 2")
    a("s_cbranch_scc1 L_fin")
    a("s_cmp_ge_u32 s2, 32")
    a("s_cbranch_scc1 L_fin")
    a("v_lshrrev_b32 v40, 2, v0")
    a("v_and_b32 v43, 3, v0")
    a("v_lshlrev_b32 v44, 12, v40")
    a("v_lshl_or_b32 v44, v43, 4, v44")
    a("s_lshl_b32 s78, s3, 11")
    a("s_lshl_b32 s64, s2, 6")
    a("s_add_u32 s78, s78, s64")
    a(f"s_add_u32 s78, s78, {WS_Y}")
    a("s_add_u32 s79, s78, 0x10000")
    a("s_add_u32 s77, s78, 0x20000")
    a("v_add_u32 v53, s77, v44")
    a("s_lshl_b32 s64, s3, 10")
    a("s_lshl_b32 s73, s2, 5")
    a("s_add_u32 s76, s64, s73")
    a(f"s_add_u32 s64, s76, {L_LN2}")
    a("v_lshlrev_b32 v45, 3, v43")
    a("v_add_u32 v46, s64, v45")
    a("ds_read_b64 v[48:49], v46")
    a("ds_read_b64 v[50:51], v46 offset:2048")
    a("v_mov_b32 v47, 0")
    for k in range(4):
        a(f"v_dot2c_f32_bf16 v47, v{120+k}, v{56+k}")
    wave_reduce([47])
    a("v_readlane_b32 s64, v47, 63")
    a("v_mov_b32 v47, s64")
    bf16r(47)
    a("v_mul_f32 v47, 0xbfb8aa3b, v47")
    a("v_exp_f32 v47, v47")
    a("v_add_f32 v47, 1.0, v47")
    a("v_rcp_f32 v47, v47")
    bf16r(47)
    a("s_waitcnt lgkmcnt(0)")
    a("v_lshlrev_b32 v100, 16, v48"); a("v_and_b32 v101, 0xffff0000, v48")
    a("v_lshlrev_b32 v102, 16, v49"); a("v_and_b32 v103, 0xffff0000, v49")
    a("v_lshlrev_b32 v104, 16, v50"); a("v_and_b32 v105, 0xffff0000, v50")
    a("v_lshlrev_b32 v106, 16, v51"); a("v_and_b32 v107, 0xffff0000, v51")
    a(f"s_mov_b32 s75, {SPIN}")
    a("L_pollC:")
    a("buffer_load_dwordx4 v[12:15], v44, s[24:27], s78 offen sc1")
    a("buffer_load_dwordx4 v[16:19], v44, s[24:27], s79 offen sc1")
    a("buffer_load_dwordx4 v[20:23], v53, s[24:27], 0 offen sc1")
    a("s_sub_u32 s75, s75, 1")
    a("s_cmp_eq_u32 s75, 0")
    a("s_cbranch_scc1 L_pollC_ok")
    a("s_waitcnt vmcnt(0)")
    a("v_max3_u32 v24, v12, v13, v14")
    a("v_max3_u32 v25, v15, v16, v17")
    a("v_max3_u32 v26, v18, v19, v20")
    a("v_max3_u32 v27, v21, v22, v23")
    a("v_max3_u32 v24, v24, v25, v26")
    a("v_max_u32 v24, v24, v27")
    a("v_cmp_eq_u32 vcc, -1, v24")
    a("s_cbranch_vccnz L_pollC")
    a("L_pollC_ok:")
    a("s_waitcnt vmcnt(0)")
    for r in range(4):
        a(f"v_add_f32 v{12+r}, v{12+r}, v{16+r}")
    for r in range(4):
        a(f"v_add_f32 v{12+r}, v{12+r}, v{20+r}")
    for m in ("row_ror:4", "row_ror:8"):
        for r in range(4):
            a(f"v_add_f32_dpp v{12+r}, v{12+r}, v{12+r} {m} row_mask:0xf bank_mask:0xf")
    for sw in ("v_permlane16_swap_b32", "v_permlane32_swap_b32"):
        for r in range(4):
            a(f"v_mov_b32 v{16+r}, v{12+r}")
        for r in range(4):
            a(f"{sw} v{16+r}, v{12+r}")
        for r in range(4):
            a(f"v_add_f32 v{12+r}, v{12+r}, v{16+r}")
    def round4(base):
        a(f"v_cvt_pk_bf16_f32 v{base+1}, v{base}, v{base+1}")
        a(f"v_cvt_pk_bf16_f32 v{base+3}, v{base+2}, v{base+3}")
        a(f"v_lshlrev_b32 v{base}, 16, v{base+1}")
        a(f"v_and_b32 v{base+1}, 0xffff0000, v{base+1}")
        a(f"v_lshlrev_b32 v{base+2}, 16, v{base+3}")
        a(f"v_and_b32 v{base+3}, 0xffff0000, v{base+3}")
    round4(12)
    for r in range(4): a(f"v_mul_f32 v{12+r}, v{12+r}, v47")
    round4(12)
    for r in range(4): a(f"v_add_f32 v{12+r}, v{12+r}, v{100+r}")
    round4(12)
    for r in range(4): a(f"v_add_f32 v{12+r}, v{12+r}, v{104+r}")
    a("v_cvt_pk_bf16_f32 v12, v12, v13")
    a("v_cvt_pk_bf16_f32 v13, v14, v15")
    a("s_mov_b64 exec, 0xf")
    a("buffer_store_dwordx2 v[12:13], v45, s[48:51], s76 offen")
    a("s_mov_b64 exec, -1")
    stampat(9)
    a("L_fin:")
    if stamps:
        a("s_waitcnt lgkmcnt(0)")
        a("s_lshl_b32 s64, s2, 4")
        a("s_add_u32 s64, s64, s3")
        a("s_mul_i32 s64, s64, 80")
        a(f"s_add_u32 s64, s64, {512<<20}")
        a("v_mov_b32 v40, s64")
        a("s_mov_b64 exec, 1")
        for i in range(10):
            a(f"v_mov_b32 v12, s{80+2*i}")
            a(f"v_mov_b32 v13, s{81+2*i}")
            a(f"global_store_dwordx2 v40, v[12:13], s[24:25] offset:{8*i}")
            a("s_nop 1")
    a("L_end:")
    a("s_endpgm")
    a('.section .rodata,"a"')
    a(".p2align 6")
    a(f".amdhsa_kernel {NAME}_kernel")
    a("  .amdhsa_next_free_vgpr 128")
    a("  .amdhsa_next_free_sgpr 102")
    a("  .amdhsa_accum_offset 128")
    a("  .amdhsa_group_segment_fixed_size 0")
    a("  .amdhsa_kernarg_size 104")
    a("  .amdhsa_user_sgpr_count 2")
    a("  .amdhsa_user_sgpr_kernarg_segment_ptr 1")
    a("  .amdhsa_system_sgpr_workgroup_id_x 1")
    a(".end_amdhsa_kernel")
    return a.finalize()

if __name__ == "__main__":
    out = sys.argv[1]
    kw = eval("dict(" + (sys.argv[2] if len(sys.argv) > 2 else "") + ")")
    open(out, "w").write(gen(**kw))
```

```python
import sys, json
from asmlib import Asm
from gen import HDR, NAME

WS_EP = 0
WS_MLX = 0x1000
WS_OX = 0x9000
WS_ZX = 0x29000
WS_Y = 0x31000
WS_SIZE = WS_Y + 43 * 4096
L_STG = 0
L_UP = 0x8020
L_DN = 0x10040
DNP = 1056
L_INIT = 0x18800
L_OP = L_INIT
L_QP = L_INIT + 0x1000
L_QB = L_INIT + 0x1800
L_MB = L_INIT + 0x1900
L_FL = L_INIT + 0x1940
L_KD = L_INIT + 0x1960
L_ZERO = L_INIT + 0x1C00
L_A = L_INIT + 0x1D00
APITCH = 1088
L_HB = L_A + 0x900
L_ACT = L_HB + 0x800
L_STAMP = L_ACT + 0x100
LDS_SIZE = L_STAMP + 0x400
NMLP = 43
RED0 = 64
SPIN = 100000
LOG2E = 0x3fb8aa3b
SCALE = 0x3db504f3
NVGPR = 168

def gen(stamps=False, D0=2, N0=18, D=3, NPRE=22, ring=32, DQ=4, DS=1, DSD=1, DSR=1, ivec=(0,1,5,6,7), wvec=(2,3,4),
        gx=((3,1),(4,5),(6,6),(7,7)), kv_aux="nt", wq_aux="nt", wo_aux="nt", mlp_aux="nt", dn_aux="nt",
        no_stage=False, CU=4, lds_pad=0, skip=(), go_at=60, chunk=24, codepf=False, boost_mlp=32, boost_red=48, paced=(), masked=False, cdelay=0, light=True, warmc=True):
    a = Asm()
    def stampat(i):
        if stamps:
            a(f"s_memrealtime s[{80+2*i}:{81+2*i}]")

    a(HDR + f"; @launch grid=(256,1,1) block=(768,1,1) lds={max(LDS_SIZE, lds_pad)}")
    a('.amdgcn_target "amdgcn-amd-amdhsa--gfx950"')
    a(".text")
    a(f".globl {NAME}_kernel")
    a(".p2align 8")
    a(f".type {NAME}_kernel,@function")
    a(f"{NAME}_kernel:")
    if stamps:
        for i in range(1, 10):
            a(f"s_mov_b64 s[{80+2*i}:{81+2*i}], 0")
    stampat(0)
    a("s_load_dwordx2 s[12:13], s[0:1], 8")
    a("s_load_dwordx2 s[4:5], s[0:1], 0")
    a("s_load_dwordx2 s[8:9], s[0:1], 24")
    a("s_load_dwordx2 s[24:25], s[0:1], 96")
    a("s_cmp_ge_u32 s2, 256")
    a("s_cbranch_scc1 L_end")
    a("v_lshrrev_b32 v2, 6, v0")
    a("v_and_b32 v0, 63, v0")
    a("v_readfirstlane_b32 s3, v2")
    a("v_lshlrev_b32 v1, 4, v0")
    a("s_mov_b32 s14, 0x10000000")
    a("s_mov_b32 s15, 0x20000")
    a("s_movk_i32 s6, 2048")
    a("s_mov_b32 s7, 0x20000")
    a(f"s_mov_b32 s26, {WS_SIZE}")
    a("s_mov_b32 s27, 0x20000")
    a("s_and_b32 s55, s2, 31")
    a("s_bfe_u32 s56, s2, 0x10005")
    a("s_lshr_b32 s57, s2, 6")
    a("s_cmp_lt_u32 s3, 4")
    a("s_cbranch_scc1 L_aux")

    def epoch_load():
        a("s_load_dword s28, s[24:25], 0")
    def epoch_calc():
        a("s_and_b32 s29, s28, 0x7f7f7f7f")
        a("s_add_u32 s29, s29, 0x07050301")
        a("s_and_b32 s30, s28, 0x80808080")
        a("s_xor_b32 s29, s29, s30")
        for k in range(4):
            a(f"s_bfe_u32 s{60+k}, s29, {(8*k) | (8 << 16):#x}")
        a("s_mov_b32 s31, 0xffffff00")
    def srd(base, off, size):
        a(f"s_load_dwordx2 s[{base}:{base+1}], s[0:1], {off}")
        a(f"s_mov_b32 s{base+2}, {size}")
        a(f"s_mov_b32 s{base+3}, 0x20000")
    def masks(t0, t1, both):
        a(f"v_and_b32 v{t0}, 1, v0")
        a(f"v_lshlrev_b32 v{t0}, 4, v{t0}")
        a(f"v_mov_b32 v{t1}, 0xffff")
        a(f"v_lshlrev_b32 v{t0}, v{t0}, v{t1}")
        a(f"v_bfe_u32 v{t1}, v0, 1, {2 if both else 3}")
        for r in range(4):
            a(f"v_cmp_eq_u32 vcc, {r}, v{t1}")
            a(f"v_cndmask_b32 v{4+r}, 0, v{t0}, vcc")
    def unpack(src, dst, n=4):
        for k in range(n):
            a(f"v_lshlrev_b32 v{dst+2*k}, 16, v{src+k}")
            a(f"v_and_b32 v{dst+2*k+1}, 0xffff0000, v{src+k}")
    def wave_reduce(regs, op="v_add_f32"):
        for m in ("row_shr:1", "row_shr:2", "row_shr:4", "row_shr:8"):
            for r in regs:
                a(f"{op}_dpp v{r}, v{r}, v{r} {m} row_mask:0xf bank_mask:0xf")
        for r in regs:
            a(f"{op}_dpp v{r}, v{r}, v{r} row_bcast:15 row_mask:0xa bank_mask:0xf")
        for r in regs:
            a(f"{op}_dpp v{r}, v{r}, v{r} row_bcast:31 row_mask:0xc bank_mask:0xf")
    def bf16r(r):
        a(f"v_cvt_pk_bf16_f32 v{r}, v{r}, v{r}")
        a(f"v_lshlrev_b32 v{r}, 16, v{r}")
    def ln_sums(f, t, sc, o1, o2):
        a(f"v_readfirstlane_b32 s{sc}, v{f}")
        for i in range(8):
            a(f"v_subrev_f32 v{t+i}, s{sc}, v{f+i}")
        s1, s2 = t + 8, t + 9
        a(f"v_add_f32 v{s1}, v{t}, v{t+1}")
        a(f"v_mul_f32 v{s2}, v{t}, v{t}")
        a(f"v_fmac_f32 v{s2}, v{t+1}, v{t+1}")
        for i in range(2, 8):
            a(f"v_add_f32 v{s1}, v{s1}, v{t+i}")
            a(f"v_fmac_f32 v{s2}, v{t+i}, v{t+i}")
        wave_reduce([s1, s2])
        a(f"v_readlane_b32 s{o1}, v{s1}, 63")
        a(f"v_readlane_b32 s{o2}, v{s2}, 63")
    def ln_finish(c, mb, rs, t):
        a(f"v_mul_f32 v{mb}, 0x3b000000, v{mb}")
        a(f"v_mul_f32 v{rs}, 0x3b000000, v{rs}")
        a(f"v_fma_f32 v{rs}, -v{mb}, v{mb}, v{rs}")
        a(f"v_add_f32 v{mb}, {c}, v{mb}")
        a(f"v_max_f32 v{rs}, 0, v{rs}")
        a(f"v_cvt_pk_bf16_f32 v{t}, v{mb}, v{rs}")
        a(f"v_lshlrev_b32 v{mb}, 16, v{t}")
        a(f"v_and_b32 v{rs}, 0xffff0000, v{t}")
        a(f"v_add_f32 v{rs}, 0x3727c5ac, v{rs}")
        bf16r(rs)
        a(f"v_sqrt_f32 v{rs}, v{rs}")
        bf16r(rs)
        a(f"v_rcp_f32 v{rs}, v{rs}")
    def ln_apply(f, t, mb, rs, n=8):
        for i in range(n):
            a(f"v_sub_f32 v{t+i}, v{f+i}, v{mb}")
        for k in range(n // 2):
            a(f"v_cvt_pk_bf16_f32 v{t+2*k+1}, v{t+2*k}, v{t+2*k+1}")
        for k in range(n // 2):
            a(f"v_lshlrev_b32 v{t+2*k}, 16, v{t+2*k+1}")
            a(f"v_and_b32 v{t+2*k+1}, 0xffff0000, v{t+2*k+1}")
        for i in range(n):
            a(f"v_mul_f32 v{t+i}, v{t+i}, v{rs}")
    def spin_head(tag):
        a(f"s_mov_b32 s75, {SPIN}")
        a(f"L_{tag}:")
    def spin_bail(tag):
        a("s_sub_u32 s75, s75, 1")
        a(f"s_cbranch_scc1 L_{tag}_ok")
    def untag_check(regs, t, tag, pre=None):
        for i, r in enumerate(regs):
            if pre and r in pre: continue
            a(f"v_xor_b32 v{r}, s{60 + (i & 3)}, v{r}")
        rs = list(regs)
        a(f"v_or3_b32 v{t}, v{rs[0]}, v{rs[1]}, v{rs[2]}")
        rs = rs[3:]
        while len(rs) >= 2:
            a(f"v_or3_b32 v{t}, v{t}, v{rs[0]}, v{rs[1]}")
            rs = rs[2:]
        if rs:
            a(f"v_or_b32 v{t}, v{t}, v{rs[0]}")
        a(f"v_and_b32 v{t}, 0xff, v{t}")
        a(f"v_cmp_ne_u32 vcc, 0, v{t}")
        a(f"s_cbranch_vccnz L_{tag}")
        a(f"L_{tag}_ok:")
    def masked_poll(tag, loads, t, first_masks=None):
        for k in range(len(loads)):
            if first_masks and first_masks[k]:
                a(f"s_mov_b32 s{32+2*k}, {first_masks[k][0]}"); a(f"s_mov_b32 s{33+2*k}, {first_masks[k][1]}")
            else:
                a(f"s_mov_b64 s[{32+2*k}:{33+2*k}], -1")
        spin_head(tag)
        for k, (r, txt) in enumerate(loads):
            a(f"s_mov_b64 exec, s[{32+2*k}:{33+2*k}]")
            a(txt)
        spin_bail(tag)
        for k, (r, txt) in enumerate(loads):
            a(f"s_mov_b64 exec, s[{32+2*k}:{33+2*k}]")
            a(f"s_waitcnt vmcnt({len(loads)-1-k})")
            for i in range(4):
                a(f"v_xor_b32 v{r+i}, s{60+i}, v{r+i}")
            a(f"v_or3_b32 v{t}, v{r}, v{r+1}, v{r+2}")
            a(f"v_or_b32 v{t}, v{t}, v{r+3}")
            a(f"v_and_b32 v{t}, 0xff, v{t}")
            a(f"v_cmp_ne_u32 s[{32+2*k}:{33+2*k}], 0, v{t}")
        a("s_or_b64 s[40:41], s[32:33], s[34:35]")
        for k in range(2, len(loads)):
            a(f"s_or_b64 s[40:41], s[40:41], s[{32+2*k}:{33+2*k}]")
        a(f"s_cbranch_scc1 L_{tag}")
        a(f"L_{tag}_ok:")
        a("s_mov_b64 exec, -1")
    def swap_add(regs, tmp, sw):
        for i, r in enumerate(regs): a(f"v_mov_b32 v{tmp+i}, v{r}")
        for i, r in enumerate(regs): a(f"{sw} v{tmp+i}, v{r}")
        for i, r in enumerate(regs): a(f"v_add_f32 v{r}, v{r}, v{tmp+i}")
    def round4(base):
        a(f"v_cvt_pk_bf16_f32 v{base+1}, v{base}, v{base+1}")
        a(f"v_cvt_pk_bf16_f32 v{base+3}, v{base+2}, v{base+3}")
        a(f"v_lshlrev_b32 v{base}, 16, v{base+1}")
        a(f"v_and_b32 v{base+1}, 0xffff0000, v{base+1}")
        a(f"v_lshlrev_b32 v{base+2}, 16, v{base+3}")
        a(f"v_and_b32 v{base+3}, 0xffff0000, v{base+3}")

    a("s_sub_u32 s59, s3, 4")
    a("s_and_b32 s52, s2, 63")
    a("s_lshl_b32 s52, s52, 4")
    a("s_add_u32 s52, s52, s57")
    a("s_add_u32 s52, s52, 12")
    a("s_lshl_b32 s52, s52, 18")
    assert list(wvec) == list(range(wvec[0], wvec[0] + 3))
    a(f"s_lshl_b32 s53, s59, {10 + wvec[0]}")
    a("s_xor_b32 s52, s52, s53")
    gl = list(gx)
    while gl:
        k, b = gl.pop(0)
        n = 1
        while gl and gl[0] == (k + n, b + n):
            gl.pop(0); n += 1
        a(f"s_bfe_u32 s53, s2, {k | (n << 16):#x}")
        a(f"s_lshl_b32 s53, s53, {10 + b}")
        a("s_xor_b32 s52, s52, s53")
    a("s_waitcnt lgkmcnt(0)")
    def P(i):
        r = 0
        for k, b in enumerate(ivec):
            if i >> k & 1: r ^= 1 << b
        return r
    def ringreg(j): return 40 + 4 * (j % ring)
    st = dict(iss=0, landed=-1, cons=0)
    def ld_kv():
        j = st["iss"]
        i = j & 31
        sr = 12 if j < 32 else 16
        p = P(i)
        r = ringreg(j)
        if p:
            a(f"s_xor_b32 s53, s52, {p << 10}")
            so = 53
        else:
            so = 52
        a(f"buffer_load_dwordx4 v[{r}:{r+3}], v1, s[{sr}:{sr+3}], s{so} offen {kv_aux}")
        st["iss"] += 1
    def wait_kv(j):
        if j <= st["landed"]: return
        a(f"s_waitcnt vmcnt({st['iss'] - 1 - j})")
        st["landed"] = j
    for j in range(D0): ld_kv()
    epoch_load()
    srd(16, 16, 0x10000000)
    srd(44, 48, 1024)
    srd(48, 80, 2048)
    a("s_mov_b32 s64, 0xcccccccc"); a("s_mov_b32 s65, 0xcccccccc")
    a("s_mov_b32 s66, 0xaaaaaaaa"); a("s_mov_b32 s67, 0xaaaaaaaa")
    masks(12, 13, False)
    a("v_and_b32 v12, 15, v0")
    a("v_lshlrev_b32 v12, 4, v12")
    a(f"v_add_u32 v12, {L_QB}, v12")
    a("s_barrier")
    while st["iss"] < NPRE:
        d = D0 if st["iss"] < N0 else D
        if st["iss"] - 1 - st["landed"] >= d:
            wait_kv(st["iss"] - d)
        ld_kv()
    stampat(1)
    spin_head("wq")
    a("ds_read_b128 v[8:11], v12")
    spin_bail("wq")
    a("s_waitcnt lgkmcnt(0)")
    a("v_max3_u32 v13, v8, v9, v10")
    a("v_max_u32 v13, v13, v11")
    a("v_cmp_eq_u32 vcc, -1, v13")
    a("s_cbranch_vccnz L_wq")
    a("L_wq_ok:")
    a("s_waitcnt lgkmcnt(0)")
    epoch_calc()
    stampat(2)

    def reduce_scores(dst):
        for i in range(8):
            a(f"v_add_f32_dpp v{24+i}, v{24+i}, v{24+i} row_ror:8 row_mask:0xf bank_mask:0x3")
        for i in range(8):
            a(f"v_add_f32_dpp v{24+i}, v{32+i}, v{32+i} row_ror:8 row_mask:0xf bank_mask:0xc")
        for i in range(4):
            a(f"v_add_f32_dpp v{24+i}, v{24+i}, v{24+i} row_half_mirror row_mask:0xf bank_mask:0x5")
        for i in range(4):
            a(f"v_add_f32_dpp v{24+i}, v{28+i}, v{28+i} row_half_mirror row_mask:0xf bank_mask:0xa")
        for i in range(4):
            a(f"v_add_f32_dpp v{24+i}, v{24+i}, v{24+i} quad_perm:[2,3,0,1] row_mask:0xf bank_mask:0xf")
        a("v_cndmask_b32 v24, v24, v26, s[64:65]")
        a("v_cndmask_b32 v25, v25, v27, s[64:65]")
        for i in range(2):
            a(f"v_add_f32_dpp v{24+i}, v{24+i}, v{24+i} quad_perm:[1,0,3,2] row_mask:0xf bank_mask:0xf")
        a(f"v_cndmask_b32 v{dst}, v24, v25, s[66:67]")
        bf16r(dst)
        a(f"v_mul_f32 v{dst}, {SCALE:#x}, v{dst}")
        bf16r(dst)
    def softmax_part():
        stampat(3)
        a("v_max_f32 v24, v2, v3")
        wave_reduce([24], "v_max_f32")
        a("v_readlane_b32 s72, v24, 63")
        for r in (2, 3):
            a(f"v_subrev_f32 v{r}, s72, v{r}")
        for r in (2, 3):
            a(f"v_mul_f32 v{r}, {LOG2E:#x}, v{r}")
        for r in (2, 3):
            a(f"v_exp_f32 v{r}, v{r}")
        a("v_add_f32 v25, v2, v3")
        for r in (2, 3):
            a(f"v_cvt_pk_bf16_f32 v{r}, v{r}, v{r}")
        wave_reduce([25])
        a("s_lshl_b32 s73, s59, 3")
        a(f"s_add_u32 s73, s73, {L_MB}")
        a("v_mov_b32 v26, s73")
        a("s_mov_b32 exec_lo, 0")
        a("s_mov_b32 exec_hi, 0x80000000")
        a("ds_write_b64 v26, v[24:25]")
        a("s_mov_b64 exec, -1")
        a("s_lshl_b32 s73, s59, 9")
        a(f"s_add_u32 s73, s73, {L_OP}")
        a("v_and_b32 v27, 15, v0")
        a("v_lshrrev_b32 v28, 4, v0")
        a("v_lshlrev_b32 v29, 5, v27")
        a("v_lshl_add_u32 v29, v28, 4, v29")
        a("v_add_u32 v29, s73, v29")
        stampat(4)
    bfrom = min(boost_mlp, boost_red)
    nlab = [0]
    def pump(extra=0):
        bo = 1 if st["cons"] >= bfrom else 0
        while st["iss"] < 64 and st["iss"] - 1 - st["landed"] < D + extra + bo and st["iss"] - ring < st["cons"]:
            if bo and st["iss"] - 1 - st["landed"] >= D + extra:
                nlab[0] += 1
                a(f"s_cbranch_vccnz L_bo{nlab[0]}")
                a(f"s_waitcnt vmcnt({D + extra - 1})")
                a(f"L_bo{nlab[0]}:")
            ld_kv()
    def set_boost(j):
        if j == bfrom or j == max(boost_mlp, boost_red):
            a("s_mov_b64 vcc, 0")
            if j >= boost_mlp:
                a(f"s_cmp_lt_u32 s2, {NMLP}")
                a("s_cselect_b32 vcc_lo, 1, 0")
            if j >= boost_red:
                a(f"s_sub_u32 s73, s2, {RED0}")
                a("s_cmp_lt_u32 s73, 64")
                a("s_cselect_b32 vcc_hi, 1, 0")
            a("s_mov_b64 vcc, vcc")
    def role_prep():
        a(f"s_cmp_lt_u32 s2, {NMLP}")
        a("s_cbranch_scc1 L_prep_mlp")
        a(f"s_sub_u32 s74, s2, {RED0}")
        a("s_lshr_b32 s76, s74, 3")
        a("s_lshl_b32 s78, s76, 3")
        a("s_add_u32 s78, s78, s59")
        a("s_lshl_b32 s79, s78, 9")
        a(f"s_add_u32 s79, s79, {WS_MLX}")
        a("v_and_b32 v31, 3, v0")
        a("v_lshlrev_b32 v31, 7, v31")
        a("s_lshl_b32 s78, s78, 11")
        a(f"s_add_u32 s78, s78, {WS_OX}")
        a("s_and_b32 s73, s59, 1")
        a(f"s_mul_i32 s73, s73, {APITCH}")
        a("s_lshr_b32 s77, s59, 1")
        a("s_lshl_b32 s77, s77, 8")
        a("s_add_u32 s73, s73, s77")
        a(f"s_add_u32 s73, s73, {L_A}")
        a("v_lshlrev_b32 v30, 3, v0")
        a("v_add_u32 v30, s73, v30")
        a("s_branch L_prep_done")
        a("L_prep_mlp:")
        a("v_bfe_u32 v30, v0, 2, 1")
        a("v_lshlrev_b32 v30, 10, v30")
        a("v_bfe_u32 v31, v0, 3, 2")
        a("v_lshl_add_u32 v30, v31, 5, v30")
        a("v_and_b32 v31, 3, v0")
        a("v_lshl_add_u32 v30, v31, 3, v30")
        a("s_lshl_b32 s73, s59, 7")
        a("v_add_u32 v30, s73, v30")
        a("buffer_load_dwordx2 v[36:37], v30, s[4:7], 0 offen")
        a("buffer_load_dwordx4 v[32:35], v1, s[44:47], 0 offen")
        a(f"v_add_u32 v30, {L_HB}, v30")
        a("s_lshl_b32 s78, s59, 12")
        a(f"s_add_u32 s78, s78, {WS_ZX}")
        a("L_prep_done:")
    def consume(j):
        r = ringreg(j)
        st["cons"] = j
        if j < 32:
            i = j & 15
            if i == 0:
                for k in range(16):
                    a(f"v_mov_b32 v{24+k}, 0")
            wait_kv(j)
            pump(1 if i == 15 else 0)
            for k in range(4):
                a(f"v_dot2c_f32_bf16 v{24+i}, v{r+k}, v{8+k}")
            if i == 15:
                reduce_scores(2 + (j >> 4))
            if j == 31:
                softmax_part()
        else:
            i = j & 15
            pp = 2 + ((j - 32) >> 4)
            t = 12 + 4 * (i & 1)
            for k in range(4):
                a(f"v_and_b32_dpp v{t+k}, v{pp}, v{4+k} row_newbcast:{i} row_mask:0xf bank_mask:0xf")
            wait_kv(j)
            pump()
            c = "0" if j == 32 else "v[20:23]"
            a(f"v_mfma_f32_16x16x32_bf16 v[20:23], v[{t}:{t+3}], v[{r}:{r+3}], {c}")
            if j == 44:
                role_prep()
            if j == go_at:
                a("s_lshl_b32 s73, s59, 2")
                a(f"s_add_u32 s73, s73, {L_KD}")
                a("v_mov_b32 v38, s73")
                a("v_mov_b32 v39, 0")
                a("ds_write_b32 v38, v39")
    for j in range(64):
        set_boost(j)
        if j <= st["landed"] and j % CU == 0 and st["iss"] < 64 and st["iss"] - ring < j:
            st["cons"] = j
            wait_kv(st["landed"] + 1)
            pump()
        consume(j)
    a("s_mov_b32 exec_hi, 0")
    a("ds_write_b128 v29, v[20:23]")
    a("s_mov_b64 exec, -1")
    stampat(5)
    a(f"s_cmp_lt_u32 s2, {NMLP}")
    a("s_cbranch_scc1 L_mlp_kv")
    a("s_cmp_ge_u32 s74, 64")
    a("s_cbranch_scc1 L_fin")
    spin_head("pL")
    a("buffer_load_dwordx4 v[52:55], v31, s[24:27], s79 offen sc1")
    spin_bail("pL")
    a("s_waitcnt vmcnt(0)")
    a("v_xor_b32 v54, s29, v54")
    a("v_xor_b32 v55, s29, v55")
    a("v_or_b32 v54, v54, v55")
    a("v_cmp_ne_u32 vcc, 0, v54")
    a("s_cbranch_vccnz L_pL")
    a("L_pL_ok:")
    a("v_mov_b32 v56, v52")
    for m in ("quad_perm:[1,0,3,2]", "quad_perm:[2,3,0,1]"):
        a(f"v_max_f32_dpp v56, v56, v56 {m} row_mask:0xf bank_mask:0xf")
    a("v_sub_f32 v52, v52, v56")
    a(f"v_mul_f32 v52, {LOG2E:#x}, v52")
    a("v_exp_f32 v52, v52")
    a("v_mul_f32 v53, v53, v52")
    for m in ("quad_perm:[1,0,3,2]", "quad_perm:[2,3,0,1]"):
        a(f"v_add_f32_dpp v53, v53, v53 {m} row_mask:0xf bank_mask:0xf")
    a("v_rcp_f32 v53, v53")
    a("v_mul_f32 v52, v52, v53")
    a("v_mov_b32_dpp v56, v52 quad_perm:[0,0,0,0] row_mask:0x3 bank_mask:0xf")
    a("v_mov_b32_dpp v57, v52 quad_perm:[2,2,2,2] row_mask:0x3 bank_mask:0xf")
    a("v_mov_b32_dpp v56, v52 quad_perm:[1,1,1,1] row_mask:0xc bank_mask:0xf")
    a("v_mov_b32_dpp v57, v52 quad_perm:[3,3,3,3] row_mask:0xc bank_mask:0xf")
    if masked:
        masked_poll("pA", [(40 + 4*k, f"buffer_load_dwordx4 v[{40+4*k}:{43+4*k}], v1, s[24:27], s78 offen offset:{1024*k} sc1") for k in range(2)], 48)
    else:
        spin_head("pA")
        a("buffer_load_dwordx4 v[40:43], v1, s[24:27], s78 offen sc1")
        a("buffer_load_dwordx4 v[44:47], v1, s[24:27], s78 offen offset:1024 sc1")
        spin_bail("pA")
        a("s_waitcnt vmcnt(0)")
        untag_check(list(range(40, 48)), 48, "pA")
    stampat(6)
    for r in range(4): a(f"v_mul_f32 v{40+r}, v{40+r}, v56")
    for r in range(4): a(f"v_fmac_f32 v{40+r}, v{44+r}, v57")
    swap_add([40, 41, 42, 43], 44, "v_permlane32_swap_b32")
    a("v_cvt_pk_bf16_f32 v40, v40, v41")
    a("v_cvt_pk_bf16_f32 v41, v42, v43")
    a("s_mov_b32 exec_hi, 0")
    a("ds_write_b64 v30, v[40:41]")
    a("s_waitcnt lgkmcnt(0)")
    a("s_barrier")
    stampat(7)
    a("s_mov_b64 exec, -1")
    a("s_branch L_fin")

    a("L_mlp_kv:")
    unpack(36, 60, 2)
    if light:
        a("s_mov_b64 exec, 0xff")
        spin_head("pB0")
        a("s_sleep 2")
        a("buffer_load_dwordx4 v[40:43], v1, s[24:27], s78 offen sc1")
        spin_bail("pB0")
        a("s_waitcnt vmcnt(0)")
        untag_check([40, 41, 42, 43], 56, "pB0")
        a("s_mov_b64 exec, -1")
    if masked:
        masked_poll("pB", [(40 + 4*k, f"buffer_load_dwordx4 v[{40+4*k}:{43+4*k}], v1, s[24:27], s78 offen offset:{1024*k} sc1") for k in range(4)], 56)
    else:
        spin_head("pB")
        for k in range(4):
            a(f"buffer_load_dwordx4 v[{40+4*k}:{43+4*k}], v1, s[24:27], s78 offen offset:{1024*k} sc1")
        spin_bail("pB")
        a("s_waitcnt vmcnt(0)")
        untag_check(list(range(40, 56)), 56, "pB")
    stampat(6)
    for r in range(4):
        a(f"v_add_f32 v{40+r}, v{40+r}, v{44+r}")
        a(f"v_add_f32 v{48+r}, v{48+r}, v{52+r}")
    for r in range(4): a(f"v_add_f32 v{40+r}, v{40+r}, v{48+r}")
    swap_add([40, 41, 42, 43], 44, "v_permlane32_swap_b32")
    round4(40)
    for r in range(4): a(f"v_add_f32 v{40+r}, v{40+r}, v{60+r}")
    a("v_cvt_pk_bf16_f32 v40, v40, v41")
    a("v_cvt_pk_bf16_f32 v41, v42, v43")
    a("s_mov_b32 exec_hi, 0")
    a("ds_write_b64 v30, v[40:41]")
    a("s_mov_b64 exec, -1")
    a("s_lshl_b32 s73, s59, 10")
    a(f"s_add_u32 s73, s73, {L_HB}")
    a("v_add_u32 v52, s73, v1")
    a(f"s_mul_i32 s73, s59, {APITCH}")
    a(f"s_add_u32 s73, s73, {L_A}")
    a("v_add_u32 v53, s73, v1")
    a("s_waitcnt lgkmcnt(0)")
    a("s_barrier")
    a("s_cmp_ge_u32 s59, 2")
    a("s_cbranch_scc1 L_fin")
    a("ds_read_b128 v[96:99], v52")
    a("v_lshrrev_b32 v40, 2, v0")
    a("v_and_b32 v43, 3, v0")
    a("v_lshlrev_b32 v44, 7, v40")
    a("v_lshl_or_b32 v44, v43, 4, v44")
    a("s_min_u32 s78, s2, 31")
    a("s_mul_i32 s78, s78, 5504")
    a("s_lshl_b32 s73, s59, 6")
    a("s_add_u32 s78, s78, s73")
    a(f"s_add_u32 s78, s78, {WS_Y}")
    a("s_add_u32 s79, s78, 2048")
    a("s_add_u32 s77, s78, 4096")
    if warmc:
        for k, so in enumerate((78, 79, 77)):
            a(f"buffer_load_dwordx4 v[{12+4*k}:{15+4*k}], v44, s[24:27], s{so} offen sc1")
    a("s_waitcnt lgkmcnt(0)")
    unpack(96, 100)
    ln_sums(100, 108, 68, 69, 70)
    a("v_mov_b32 v118, s69")
    a("v_mov_b32 v119, s70")
    ln_finish("s68", 118, 119, 108)
    ln_apply(100, 108, 118, 119)
    for k in range(4):
        a(f"v_cvt_pk_bf16_f32 v{120+k}, v{108+2*k}, v{109+2*k}")
    a("ds_write_b128 v53, v[120:123]")
    a("s_waitcnt lgkmcnt(0)")
    a("s_barrier")
    stampat(7)
    a("s_cmp_ge_u32 s2, 32")
    a("s_cbranch_scc1 L_fin")
    a("v_mov_b32 v47, 0")
    for k in range(4):
        a(f"v_dot2c_f32_bf16 v47, v{120+k}, v{32+k}")
    wave_reduce([47])
    a("v_readlane_b32 s73, v47, 63")
    a("v_mov_b32 v47, s73")
    bf16r(47)
    a("v_mul_f32 v47, 0xbfb8aa3b, v47")
    a("v_exp_f32 v47, v47")
    a("v_add_f32 v47, 1.0, v47")
    a("v_rcp_f32 v47, v47")
    bf16r(47)
    a("s_lshl_b32 s73, s59, 2")
    a(f"s_add_u32 s73, s73, {L_ACT + 0x80}")
    a("v_mov_b32 v46, s73")
    a("ds_write_b32 v46, v47")
    a("s_lshl_b32 s74, s2, 5")
    a("s_lshl_b32 s73, s59, 4")
    a("s_add_u32 s76, s74, s73")
    a("v_lshlrev_b32 v45, 2, v43")
    a(f"s_add_u32 s73, s76, {L_HB}")
    a("v_add_u32 v46, s73, v45")
    a("ds_read_b32 v50, v46")
    a("ds_read_b32 v51, v46 offset:1024")
    a(f"s_add_u32 s73, s76, {L_A}")
    a("v_add_u32 v46, s73, v45")
    a("ds_read_b32 v48, v46")
    a(f"ds_read_b32 v49, v46 offset:{APITCH}")
    a(f"v_mov_b32 v46, {L_ACT + 0x80}")
    a("s_waitcnt lgkmcnt(0)")
    a("v_lshlrev_b32 v100, 16, v48"); a("v_lshlrev_b32 v101, 16, v49")
    a("v_and_b32 v102, 0xffff0000, v48"); a("v_and_b32 v103, 0xffff0000, v49")
    a("v_lshlrev_b32 v104, 16, v50"); a("v_lshlrev_b32 v105, 16, v51")
    a("v_and_b32 v106, 0xffff0000, v50"); a("v_and_b32 v107, 0xffff0000, v51")
    a("s_waitcnt vmcnt(0)")
    for r in range(4): a(f"v_mov_b32 v{20+r}, 0")
    a("s_barrier")
    stampat(8)
    a("ds_read_b64 v[46:47], v46")
    if cdelay: a(f"s_sleep {cdelay}")
    if masked:
        masked_poll("pC", [(12 + 4*k, f"buffer_load_dwordx4 v[{12+4*k}:{15+4*k}], v44, s[24:27], s{so} offen sc1") for k, so in enumerate((78, 79, 77))], 24,
                    first_masks=[None, None, (-1, 0xfff)])
    else:
        spin_head("pC")
        a("buffer_load_dwordx4 v[12:15], v44, s[24:27], s78 offen sc1")
        a("buffer_load_dwordx4 v[16:19], v44, s[24:27], s79 offen sc1")
        a("s_mov_b32 exec_hi, 0xfff")
        a("buffer_load_dwordx4 v[20:23], v44, s[24:27], s77 offen sc1")
        a("s_waitcnt vmcnt(0)")
        for r in range(4): a(f"v_xor_b32 v{20+r}, s{60+r}, v{20+r}")
        a("s_mov_b64 exec, -1")
        spin_bail("pC")
        untag_check(list(range(12, 24)), 24, "pC", pre={20, 21, 22, 23})
    stampat(4)
    if stamps:
        a("s_waitcnt lgkmcnt(0)")
        a(f"s_sub_u32 s86, {SPIN}, s75")
        a("s_mul_i32 s86, s86, 100")
        a("s_add_u32 s86, s86, s80")
        a("s_addc_u32 s87, s81, 0")
    for r in range(4): a(f"v_add_f32 v{12+r}, v{12+r}, v{16+r}")
    for r in range(4): a(f"v_add_f32 v{12+r}, v{12+r}, v{20+r}")
    for m in ("row_ror:4", "row_ror:8"):
        for r in range(4):
            a(f"v_add_f32_dpp v{12+r}, v{12+r}, v{12+r} {m} row_mask:0xf bank_mask:0xf")
    swap_add([12, 13, 14, 15], 16, "v_permlane16_swap_b32")
    swap_add([12, 13, 14, 15], 16, "v_permlane32_swap_b32")
    round4(12)
    a("s_waitcnt lgkmcnt(0)")
    for r in range(4): a(f"v_mul_f32 v{12+r}, v{12+r}, v{46 + (r & 1)}")
    round4(12)
    for r in range(4): a(f"v_add_f32 v{12+r}, v{12+r}, v{100+r}")
    round4(12)
    for r in range(4): a(f"v_add_f32 v{12+r}, v{12+r}, v{104+r}")
    a("v_cvt_pk_bf16_f32 v12, v12, v14")
    a("v_cvt_pk_bf16_f32 v13, v13, v15")
    a("s_mov_b64 exec, 0xf")
    a("buffer_store_dword v12, v45, s[48:51], s76 offen")
    a("buffer_store_dword v13, v45, s[48:51], s76 offen offset:1024")
    a("s_cmp_lg_u32 s76, 0")
    a("s_cbranch_scc1 L_noep")
    a("s_mov_b64 exec, 1")
    a("v_mov_b32 v14, s29")
    a("buffer_store_dword v14, v45, s[24:27], 0 offen")
    a("L_noep:")
    a("s_mov_b64 exec, -1")
    stampat(9)
    a("s_branch L_fin")

    a("L_aux:")
    a("v_lshrrev_b32 v2, 4, v0")
    a("v_and_b32 v3, 15, v0")
    a("s_mov_b32 s10, 0x400000")
    a("s_mov_b32 s11, 0x20000")
    a("v_lshlrev_b32 v8, 18, v2")
    a("v_lshl_or_b32 v8, v3, 4, v8")
    a("s_lshl_b32 s54, s3, 20")
    a("s_lshl_b32 s53, s55, 8")
    a("s_or_b32 s54, s54, s53")
    a("v_lshlrev_b32 v10, 6, v2")
    a("s_lshl_b32 s52, s56, 10")
    a("s_lshl_b32 s53, s3, 8")
    a("s_add_u32 s53, s53, s52")
    a("s_movk_i32 s65, 0x2000")
    a("s_waitcnt lgkmcnt(0)")
    a("buffer_load_dwordx4 v[20:23], v1, s[4:7], s52 offen")
    for k in range(4):
        a(f"buffer_load_dwordx4 v[{56+4*k}:{59+4*k}], v10, s[4:7], s53 offen offset:{16*k}")
    QR = 24
    q = dict(iss=0, landed=-1)
    def qreg(i): return 72 + 4 * (i % QR)
    def ld_wq():
        i = q["iss"]
        r = qreg(i)
        a(f"buffer_load_dwordx4 v[{r}:{r+3}], v8, s[8:11], s54 offen {wq_aux}")
        if i < 31: a("s_add_u32 s54, s54, s65")
        q["iss"] += 1
    def wait_wq(i):
        if i <= q["landed"]: return
        a(f"s_waitcnt vmcnt({q['iss'] - 1 - i})")
        q["landed"] = i
    for i in range(DQ): ld_wq()
    epoch_load()
    srd(20, 32, 0x400000)
    srd(32, 56, 1409024)
    srd(36, 64, 1409024)
    srd(40, 72, 1409024)
    a("s_cmp_lg_u32 s3, 1")
    a("s_cbranch_scc1 L_noinit")
    for r in range(4): a(f"v_mov_b32 v{12+r}, -1")
    a(f"v_add_u32 v9, {L_INIT}, v1")
    for k in range(7):
        a(f"ds_write_b128 v9, v[12:15] offset:{1024*k}")
    for r in range(4): a(f"v_mov_b32 v{16+r}, 0")
    a(f"v_mov_b32 v9, {L_ZERO}")
    a("ds_write_b128 v9, v[16:19]")
    a("L_noinit:")
    a("s_waitcnt lgkmcnt(0)")
    a("s_barrier")
    a(f"s_waitcnt vmcnt({DQ})")
    mark = len(a.lines)
    masks(12, 13, False)
    epoch_calc()
    unpack(20, 24)
    ln_sums(24, 32, 68, 69, 70)
    a("v_mov_b32 v10, s69")
    a("v_mov_b32 v11, s70")
    ln_finish("s68", 10, 11, 9)
    unpack(56, 24, 16)
    ln_apply(24, 24, 10, 11, 32)
    for i in range(32):
        a(f"v_cvt_pk_bf16_f32 v{24+i}, v{24+i}, v{24+i}")
    body = a.lines[mark:]
    del a.lines[mark:]
    for k in range(0, len(body), chunk):
        if q["iss"] < QR:
            wait_wq(q["iss"] - DQ)
            ld_wq()
        for ln in body[k:k+chunk]: a(ln)
    for i in range(32):
        t = 12 + 4 * (i & 1)
        for r in range(4):
            a(f"v_and_b32 v{t+r}, v{24+i}, v{4+r}")
        if i <= q["landed"] and i % 4 == 0 and q["iss"] < 32 and q["iss"] - QR < i:
            wait_wq(q["landed"] + 1)
        wait_wq(i)
        while q["iss"] < 32 and q["iss"] - 1 - q["landed"] < DQ and q["iss"] - QR < i: ld_wq()
        c = "0" if i == 0 else "v[20:23]"
        a(f"v_mfma_f32_16x16x32_bf16 v[20:23], v[{t}:{t+3}], v[{qreg(i)}:{qreg(i)+3}], {c}")
    assert q["iss"] == 32
    a("s_lshl_b32 s52, s3, 9")
    a(f"s_add_u32 s52, s52, {L_QP}")
    a("v_lshlrev_b32 v8, 5, v3")
    a("v_lshl_add_u32 v8, v2, 4, v8")
    a("v_add_u32 v8, s52, v8")
    a("s_mov_b32 exec_hi, 0")
    a("ds_write_b128 v8, v[20:23]")
    a("s_mov_b64 exec, -1")
    stampat(1)
    a("s_cmp_lg_u32 s3, 0")
    a("s_cbranch_scc1 L_stager")
    a("v_lshlrev_b32 v8, 3, v0")
    a(f"v_add_u32 v11, {L_OP}, v8")
    a("v_lshlrev_b32 v9, 2, v0")
    a(f"v_add_u32 v10, {L_QB}, v9")
    spin_head("pQ")
    for w in range(4):
        a(f"ds_read_b64 v[{12+2*w}:{13+2*w}], v11 offset:{L_QP - L_OP + 512*w}")
    spin_bail("pQ")
    a("s_waitcnt lgkmcnt(0)")
    a("v_max3_u32 v20, v12, v13, v14")
    a("v_max3_u32 v21, v15, v16, v17")
    a("v_max3_u32 v20, v20, v18, v19")
    a("v_max_u32 v20, v20, v21")
    a("v_cmp_eq_u32 vcc, -1, v20")
    a("s_cbranch_vccnz L_pQ")
    a("L_pQ_ok:")
    for w in range(1, 4):
        a(f"v_add_f32 v12, v12, v{12+2*w}")
        a(f"v_add_f32 v13, v13, v{13+2*w}")
    a("v_cvt_pk_bf16_f32 v12, v12, v13")
    a("ds_write_b32 v10, v12")
    stampat(2)
    a("v_and_b32 v9, 7, v0")
    a("v_lshlrev_b32 v9, 3, v9")
    a(f"v_add_u32 v9, {L_MB}, v9")
    spin_head("pM")
    a("s_sleep 4")
    a("ds_read_b64 v[12:13], v9")
    spin_bail("pM")
    a("s_waitcnt lgkmcnt(0)")
    a("v_max_u32 v14, v12, v13")
    a("v_cmp_eq_u32 vcc, -1, v14")
    a("s_cbranch_vccnz L_pM")
    a("L_pM_ok:")
    oct_ = ("quad_perm:[1,0,3,2]", "quad_perm:[2,3,0,1]", "row_half_mirror")
    a("v_mov_b32 v16, v12")
    for m in oct_:
        a(f"v_max_f32_dpp v16, v16, v16 {m} row_mask:0xf bank_mask:0xf")
    a("v_sub_f32 v14, v12, v16")
    a(f"v_mul_f32 v14, {LOG2E:#x}, v14")
    a("v_exp_f32 v14, v14")
    a("v_mul_f32 v17, v13, v14")
    for m in oct_:
        a(f"v_add_f32_dpp v17, v17, v17 {m} row_mask:0xf bank_mask:0xf")
    a("v_mov_b32 v18, s29")
    a("v_mov_b32 v19, s29")
    a("s_lshl_b32 s52, s55, 1")
    a("s_add_u32 s52, s52, s56")
    a("s_lshl_b32 s52, s52, 2")
    a("s_add_u32 s52, s52, s57")
    a("s_lshl_b32 s53, s52, 7")
    a(f"s_add_u32 s53, s53, {WS_MLX}")
    a("s_lshl_b32 s52, s52, 9")
    a(f"s_add_u32 s52, s52, {WS_OX}")
    a("s_mov_b64 exec, 1")
    a("buffer_store_dwordx4 v[16:19], v8, s[24:27], s53 offen sc1")
    a("s_mov_b64 exec, -1")
    stampat(3)
    for w in range(8):
        a(f"v_readlane_b32 s{44+w}, v14, {w}")
    a("v_and_b32 v9, 1, v0")
    a("v_lshlrev_b32 v9, 4, v9")
    a("v_lshrrev_b32 v9, v9, s29")
    a("v_bfe_u32 v10, v9, 8, 8")
    a("v_and_b32 v9, 0xff, v9")
    if codepf:
        a("s_getpc_b64 s[68:69]")
        a("L_pc:")
        a(f"s_sub_u32 s68, s68, L_pc-{NAME}_kernel")
        a("s_subb_u32 s69, s69, 0")
        a("v_mov_b32 v41, s69")
        a("v_add_co_u32 v40, vcc, s68, v1")
        a("v_addc_co_u32 v41, vcc, 0, v41, vcc")
        a(f"s_mov_b32 s68, (L_end-{NAME}_kernel)>>10")
        a("L_cpf:")
        a("global_load_dwordx4 v[44:47], v[40:41], off")
        a("v_add_co_u32 v40, vcc, 0x400, v40")
        a("v_addc_co_u32 v41, vcc, 0, v41, vcc")
        a("s_waitcnt vmcnt(0)")
        a("s_sub_u32 s68, s68, 1")
        a("s_cmp_lg_u32 s68, 0")
        a("s_cbranch_scc1 L_cpf")
    stampat(4)
    spin_head("pO")
    a("s_sleep 1")
    for w in range(8):
        a(f"ds_read_b64 v[{12+2*w}:{13+2*w}], v11 offset:{512*w}")
    spin_bail("pO")
    a("s_waitcnt lgkmcnt(0)")
    a("v_max3_u32 v28, v12, v13, v14")
    a("v_max3_u32 v29, v15, v16, v17")
    a("v_max3_u32 v30, v18, v19, v20")
    a("v_max3_u32 v31, v21, v22, v23")
    a("v_max3_u32 v32, v24, v25, v26")
    a("v_max3_u32 v28, v28, v29, v30")
    a("v_max3_u32 v31, v31, v32, v27")
    a("v_max_u32 v28, v28, v31")
    a("v_cmp_eq_u32 vcc, -1, v28")
    a("s_cbranch_vccnz L_pO")
    a("L_pO_ok:")
    stampat(5)
    a("v_mul_f32 v12, s44, v12"); a("v_mul_f32 v13, s44, v13")
    a("v_mul_f32 v20, s48, v20"); a("v_mul_f32 v21, s48, v21")
    for w in range(1, 4):
        a(f"v_fmac_f32 v12, s{44+w}, v{12+2*w}"); a(f"v_fmac_f32 v13, s{44+w}, v{13+2*w}")
        a(f"v_fmac_f32 v20, s{48+w}, v{20+2*w}"); a(f"v_fmac_f32 v21, s{48+w}, v{21+2*w}")
    a("v_add_f32 v12, v12, v20"); a("v_add_f32 v13, v13, v21")
    a("v_and_or_b32 v12, v12, s31, v9")
    a("v_and_or_b32 v13, v13, s31, v10")
    a("buffer_store_dwordx2 v[12:13], v8, s[24:27], s52 offen sc1")
    stampat(6)
    a("s_branch L_aux_tail")

    a("L_stager:")
    a(f"s_cmp_lt_u32 s2, {NMLP}")
    a("s_cbranch_scc1 L_role_ok")
    a(f"s_sub_u32 s74, s2, {RED0}")
    a("s_cmp_ge_u32 s74, 64")
    a("s_cbranch_scc1 L_fin")
    a("L_role_ok:")
    a("v_and_b32 v10, 7, v0")
    a("v_lshlrev_b32 v10, 2, v10")
    a(f"v_add_u32 v10, {L_KD}, v10")
    def stage_loop(tag, sr, voff, depth, aux):
        pc = tag in paced
        if not pc:
            spin_head("kd" + tag)
            a("s_sleep 2")
            a("ds_read_b32 v11, v10")
            spin_bail("kd" + tag)
            a("s_waitcnt lgkmcnt(0)")
            a("v_cmp_ne_u32 vcc, 0, v11")
            a(f"s_cbranch_vccnz L_kd{tag}")
            a(f"L_kd{tag}_ok:")
            stampat(3)
        a(f"L_st_{tag}:")
        if pc:
            a("ds_read_b32 v11, v10")
        a("s_mov_b32 m0, s54")
        if pc:
            a("s_waitcnt lgkmcnt(0)")
            a("v_cmp_ne_u32 vcc, 0, v11")
            a(f"s_cbranch_vccz L_go_{tag}")
            a(f"s_waitcnt vmcnt({depth-1})")
            a(f"L_go_{tag}:")
        if not no_stage and tag not in skip:
            a(f"buffer_load_dwordx4 v{voff}, s[{sr}:{sr+3}], s52 offen {aux} lds")
        a("s_add_u32 s52, s52, s53")
        a("s_add_u32 s54, s54, s58")
        a("s_sub_u32 s59, s59, 1")
        a("s_cmp_lg_u32 s59, 0")
        a(f"s_cbranch_scc1 L_st_{tag}")
        a("s_branch L_staged")
    a(f"s_cmp_lt_u32 s2, {NMLP}")
    a("s_cbranch_scc1 L_st_mlp")
    a("v_lshrrev_b32 v8, 3, v0")
    a("v_and_b32 v9, 7, v0")
    a("v_lshlrev_b32 v8, 10, v8")
    a("v_lshl_or_b32 v8, v9, 4, v8")
    a("s_lshr_b32 s52, s74, 3"); a("s_lshl_b32 s52, s52, 19"); a("s_and_b32 s53, s74, 7")
    a("s_lshl_b32 s53, s53, 7")
    a("s_add_u32 s52, s52, s53")
    a("s_sub_u32 s54, s3, 1")
    a("s_lshl_b32 s53, s54, 13")
    a("s_add_u32 s52, s52, s53")
    a("s_lshl_b32 s54, s54, 10")
    a("s_movk_i32 s53, 0x6000")
    a("s_movk_i32 s58, 0xc00")
    a("s_cmp_eq_u32 s3, 1")
    a("s_cselect_b32 s59, 22, 21")
    stage_loop("rd", 20, 8, DSR, wo_aux)
    a("L_st_mlp:")
    a("s_cmp_eq_u32 s3, 3")
    a("s_cbranch_scc1 L_st_dn0")
    a("v_lshrrev_b32 v8, 2, v0")
    a("v_mul_u32_u24 v8, 2752, v8")
    a("v_and_b32 v9, 3, v0")
    a("v_lshl_add_u32 v8, v9, 4, v8")
    a("s_lshl_b32 s52, s2, 6")
    a("s_mov_b32 s53, 44032")
    a("s_movk_i32 s58, 0x400")
    a("s_movk_i32 s59, 32")
    a("s_mov_b32 s54, 0")
    a("s_cmp_eq_u32 s3, 2")
    a("s_cbranch_scc1 L_st_up0")
    stage_loop("g", 32, 8, DS, mlp_aux)
    a("L_st_up0:")
    a(f"s_mov_b32 s54, {L_UP}")
    stage_loop("u", 36, 8, DS, mlp_aux)
    a("L_st_dn0:")
    a("s_lshl_b32 s52, s2, 15")
    a("s_movk_i32 s53, 0x400")
    a(f"s_mov_b32 s54, {L_DN}")
    a(f"s_movk_i32 s58, {DNP}")
    a("s_movk_i32 s59, 32")
    stage_loop("d", 40, 1, DSD, dn_aux)
    a("L_staged:")
    a("s_waitcnt vmcnt(0)")
    a("s_lshl_b32 s52, s3, 2")
    a(f"s_add_u32 s52, s52, {L_FL}")
    a("v_mov_b32 v8, s52")
    a("v_mov_b32 v9, 0")
    a("ds_write_b32 v8, v9")
    stampat(2)

    a("L_aux_tail:")
    a(f"s_cmp_lt_u32 s2, {NMLP}")
    a("s_cbranch_scc1 L_tail_go")
    a(f"s_sub_u32 s74, s2, {RED0}")
    a("s_cmp_ge_u32 s74, 64")
    a("s_cbranch_scc1 L_fin")
    a("L_tail_go:")
    a(f"v_mov_b32 v8, {L_FL}")
    spin_head("fl")
    a("ds_read_b128 v[12:15], v8")
    spin_bail("fl")
    a("s_waitcnt lgkmcnt(0)")
    a("v_or3_b32 v12, v13, v14, v15")
    a("v_cmp_ne_u32 vcc, 0, v12")
    a("s_cbranch_vccz L_fl_ok")
    a("s_sleep 4")
    a("s_branch L_fl")
    a("L_fl_ok:")
    a("s_waitcnt lgkmcnt(0)")
    a("v_lshrrev_b32 v8, 2, v3")
    a("v_lshl_add_u32 v8, v2, 3, v8")
    a("v_and_b32 v9, 3, v0")
    a("v_lshlrev_b32 v7, 3, v9")
    a("v_lshrrev_b32 v7, v7, s29")
    a("v_and_b32 v7, 0xff, v7")
    a("v_bfe_u32 v6, v3, 2, 1")
    a(f"v_mul_u32_u24 v6, {APITCH}, v6")
    a("v_lshl_add_u32 v6, v2, 4, v6")
    a(f"v_add_u32 v6, {L_A}, v6")
    a("v_lshlrev_b32 v5, 2, v0")
    def gemm16(acc):
        for ks in range(12):
            a(f"ds_read_b128 v[{16+4*ks}:{19+4*ks}], v6 offset:{64*ks}")
        out = 12
        for ks in range(16):
            nxt = ks + 12
            a(f"s_waitcnt lgkmcnt({out - 1})")
            out -= 1
            ab = 16 + 4 * (ks % 12)
            c = "0" if ks == 0 else f"v[{acc}:{acc+3}]"
            a(f"v_mfma_f32_16x16x32_bf16 v[{acc}:{acc+3}], v[{ab}:{ab+3}], v[{64+4*ks}:{67+4*ks}], {c}")
            if nxt < 16:
                a(f"ds_read_b128 v[{ab}:{ab+3}], v6 offset:{64*nxt}")
                out += 1
    a(f"s_cmp_lt_u32 s2, {NMLP}")
    a("s_cbranch_scc1 L_tail_mlp")
    a("v_lshlrev_b32 v10, 7, v8")
    a("v_lshl_add_u32 v10, v9, 3, v10")
    a("s_lshl_b32 s52, s3, 5")
    a("v_add_u32 v10, s52, v10")
    for ks in range(16):
        for hh in range(2):
            d = 64 + 4 * ks + 2 * hh
            a(f"ds_read_b64_tr_b16 v[{d}:{d+1}], v10 offset:{ks*4096 + hh*512}")
    a("s_and_b32 s52, s74, 7")
    a("s_lshl_b32 s52, s52, 3")
    a("s_lshr_b32 s53, s74, 3")
    a("s_add_u32 s52, s52, s53")
    a("s_lshl_b32 s52, s52, 2")
    a("s_add_u32 s52, s52, s3")
    a("s_lshl_b32 s52, s52, 7")
    a(f"s_add_u32 s52, s52, {WS_ZX}")
    a("s_waitcnt lgkmcnt(0)")
    stampat(7)
    a("s_barrier")
    gemm16(12)
    a("s_mov_b32 exec_hi, 0")
    a("v_and_or_b32 v12, v12, s31, v7")
    a("buffer_store_dword v12, v5, s[24:27], s52 offen sc1")
    a("s_mov_b64 exec, -1")
    stampat(8)
    a("s_branch L_fin")
    a("L_tail_mlp:")
    a("v_lshlrev_b32 v10, 6, v8")
    a("v_and_b32 v11, 1, v0")
    a("v_lshl_add_u32 v10, v11, 3, v10")
    a("v_bfe_u32 v11, v0, 1, 1")
    a(f"v_mul_u32_u24 v11, {L_UP}, v11")
    a("v_add_u32 v10, v11, v10")
    a("s_lshl_b32 s52, s3, 4")
    a("v_add_u32 v10, s52, v10")
    for ks in range(16):
        for hh in range(2):
            d = 64 + 4 * ks + 2 * hh
            a(f"ds_read_b64_tr_b16 v[{d}:{d+1}], v10 offset:{ks*2048 + hh*256}")
    a(f"v_mul_u32_u24 v10, {DNP}, v8")
    a("v_lshl_add_u32 v10, v9, 3, v10")
    a("s_lshl_b32 s52, s3, 8")
    a(f"s_add_u32 s52, s52, {L_DN}")
    a("v_add_u32 v10, s52, v10")
    for t in range(8):
        for hh in range(2):
            d = 128 + 4 * t + 2 * hh
            a(f"ds_read_b64_tr_b16 v[{d}:{d+1}], v10 offset:{hh*4*DNP + t*32}")
    a("v_and_b32 v4, 1, v2")
    a("v_lshlrev_b32 v4, 6, v4")
    a("v_lshl_add_u32 v4, v3, 1, v4")
    a("s_lshl_b32 s52, s3, 4")
    a(f"s_add_u32 s52, s52, {L_ACT}")
    a("v_add_u32 v4, s52, v4")
    a("v_and_b32 v10, 1, v3")
    a("v_lshlrev_b32 v10, 6, v10")
    a("v_lshl_add_u32 v10, v2, 4, v10")
    a(f"v_add_u32 v10, {L_ACT}, v10")
    a(f"v_mov_b32 v11, {L_ZERO}")
    a("v_lshrrev_b32 v9, 2, v3")
    for u in range(4):
        a(f"v_cmp_eq_u32 vcc, {u}, v9")
        a(f"v_cndmask_b32 v{160+u}, v11, v10, vcc")
    a("v_mul_u32_u24 v5, 5504, v2")
    a("v_lshl_add_u32 v5, v3, 3, v5")
    a("s_mul_i32 s52, s3, 44032")
    a("s_lshl_b32 s53, s2, 7")
    a("s_add_u32 s52, s52, s53")
    a(f"s_add_u32 s52, s52, {WS_Y}")
    a("s_add_u32 s53, s52, 22016")
    a("v_and_b32 v7, 1, v0")
    a("v_lshlrev_b32 v7, 4, v7")
    a("v_lshrrev_b32 v7, v7, s29")
    a("v_bfe_u32 v164, v7, 8, 8")
    a("v_and_b32 v7, 0xff, v7")
    a("s_waitcnt lgkmcnt(0)")
    stampat(7)
    a("s_barrier")
    a("s_barrier")
    gemm16(12)
    a("v_cvt_pk_bf16_f32 v12, v12, v12")
    a("v_lshlrev_b32 v12, 16, v12")
    a("v_mul_f32 v13, 0xbfb8aa3b, v12")
    a("v_exp_f32 v13, v13")
    a("v_add_f32 v13, 1.0, v13")
    a("v_rcp_f32 v13, v13")
    a("v_mul_f32 v13, v12, v13")
    bf16r(13)
    a("v_mul_f32_dpp v13, v12, v13 row_ror:8 row_mask:0xf bank_mask:0xf")
    a("v_cvt_pk_bf16_f32 v13, v13, v13")
    a("s_mov_b64 exec, 0x00ff00ff")
    a("ds_write_b16 v4, v13")
    a("s_mov_b64 exec, -1")
    a("s_waitcnt lgkmcnt(0)")
    a("s_barrier")
    for u in range(4):
        a(f"ds_read_b128 v[{16+4*u}:{19+4*u}], v{160+u}")
    for u in range(4):
        a(f"s_waitcnt lgkmcnt({3-u})")
        for hf in range(2):
            acc = 8 + 4 * hf
            t = hf * 4 + u
            c = "0" if u == 0 else f"v[{acc}:{acc+3}]"
            a(f"v_mfma_f32_16x16x32_bf16 v[{acc}:{acc+3}], v[{16+4*u}:{19+4*u}], v[{128+4*t}:{131+4*t}], {c}")
    for hf in range(2):
        r = 8 + 4 * hf
        a(f"v_and_or_b32 v{r}, v{r}, s31, v7")
        a(f"v_and_or_b32 v{r+1}, v{r+1}, s31, v164")
        a(f"buffer_store_dwordx2 v[{r}:{r+1}], v5, s[24:27], s{52+hf} offen sc1")
    stampat(8)

    a("L_fin:")
    if stamps:
        a("s_waitcnt lgkmcnt(0)")
        a("s_mul_i32 s64, s3, 80")
        a(f"s_add_u32 s64, s64, {L_STAMP}")
        a("v_mov_b32 v40, s64")
        a("s_mov_b64 exec, 1")
        for i in range(10):
            a(f"v_mov_b32 v12, s{80+2*i}")
            a(f"v_mov_b32 v13, s{81+2*i}")
            a(f"ds_write_b64 v40, v[12:13] offset:{8*i}")
        a("s_mov_b64 exec, -1")
        a("s_waitcnt lgkmcnt(0)")
        a("s_cmp_lg_u32 s3, 1")
        a("s_cbranch_scc1 L_end")
        a("L_hold:")
        a("s_sleep 32")
        a("s_memrealtime s[66:67]")
        a("s_waitcnt lgkmcnt(0)")
        a("s_sub_u32 s66, s66, s80")
        a("s_cmp_lt_u32 s66, 4500")
        a("s_cbranch_scc1 L_hold")
        a(f"v_add_u32 v40, {L_STAMP}, v1")
        a("ds_read_b128 v[12:15], v40")
        a("s_mul_i32 s64, s2, 1280")
        a(f"s_add_u32 s64, s64, {512<<20}")
        a("v_add_u32 v40, s64, v1")
        a("s_waitcnt lgkmcnt(0)")
        a("global_store_dwordx4 v40, v[12:15], s[24:25]")
    a("L_end:")
    a("s_endpgm")
    a('.section .rodata,"a"')
    a(".p2align 6")
    a(f".amdhsa_kernel {NAME}_kernel")
    a(f"  .amdhsa_next_free_vgpr {NVGPR}")
    a("  .amdhsa_next_free_sgpr 102")
    a(f"  .amdhsa_accum_offset {NVGPR}")
    a("  .amdhsa_group_segment_fixed_size 0")
    a("  .amdhsa_kernarg_size 104")
    a("  .amdhsa_user_sgpr_count 2")
    a("  .amdhsa_user_sgpr_kernarg_segment_ptr 1")
    a("  .amdhsa_system_sgpr_workgroup_id_x 1")
    a(".end_amdhsa_kernel")
    return a.finalize()

if __name__ == "__main__":
    out = sys.argv[1]
    kw = eval("dict(" + (sys.argv[2] if len(sys.argv) > 2 else "") + ")")
    open(out, "w").write(gen(**kw))
```

```python
import sys, json
from asmlib import Asm
from gen import HDR, NAME

WS_EP = 0
WS_MLX = 0x1000
WS_OP = 0x9000
WS_OS = 0x29000
WS_ZX = 0x49000
WS_Y = 0x51000
WS_SIZE = WS_Y + 43 * 4096
L_UP = 0x8020
L_DN = 0x10040
DNP = 1056
L_INIT = 0x18800
L_OP = L_INIT
L_QP = L_INIT + 0x1000
L_QB = L_INIT + 0x1800
L_MB = L_INIT + 0x1900
L_FL = L_INIT + 0x1940
L_KD = L_INIT + 0x1960
L_ZERO = L_INIT + 0x1C00
L_A = L_INIT + 0x1D00
APITCH = 1088
L_HB = L_A + 0x900
L_ACT = L_HB + 0x800
L_STAMP = L_ACT + 0x100
LDS_SIZE = L_STAMP + 0x400
NMLP = 43
SPIN = 100000
LOG2E = 0x3fb8aa3b
SCALE = 0x3db504f3
NVGPR = 168

def gen(stamps=False, D0=2, N0=18, D=3, Dm=4, Dr=3, NPRE=22, ring=31, DQ=4, DSR=0, na=31, nr=29, npl=34,
        gvec=(0,1,5,6,7,8,9), wbit=2, gx=((3,1),(4,5),(5,6)), kv_aux="nt", wq_aux="", wo_aux="", mlp_aux="", dn_aux="",
        no_stage=False, CU=4, go_back=4, chunk=24, cdelay=0, warmc=True, local=True, osleep=1, pretouch=0, rd_late=True, go_back_r=4, await_stage=False, calib=None, ctl_from=24, masked=False, ackstamp=False):
    assert na + nr + 2 * npl == 128
    a = Asm()
    def stampat(i):
        if stamps:
            a(f"s_memrealtime s[{80+2*i}:{81+2*i}]")

    a(HDR + f"; @launch grid=(256,1,1) block=(768,1,1) lds={LDS_SIZE}")
    a('.amdgcn_target "amdgcn-amd-amdhsa--gfx950"')
    a(".text")
    a(f".globl {NAME}_kernel")
    a(".p2align 8")
    a(f".type {NAME}_kernel,@function")
    a(f"{NAME}_kernel:")
    if stamps:
        for i in range(1, 10):
            a(f"s_mov_b64 s[{80+2*i}:{81+2*i}], 0")
    stampat(0)
    a("s_load_dwordx2 s[12:13], s[0:1], 8")
    a("s_load_dwordx2 s[4:5], s[0:1], 0")
    a("s_load_dwordx2 s[8:9], s[0:1], 24")
    a("s_load_dwordx2 s[24:25], s[0:1], 96")
    a("s_cmp_ge_u32 s2, 256")
    a("s_cbranch_scc1 L_end")
    a("v_lshrrev_b32 v2, 6, v0")
    a("v_and_b32 v0, 63, v0")
    a("v_readfirstlane_b32 s3, v2")
    a("v_lshlrev_b32 v1, 4, v0")
    a("s_mov_b32 s14, 0x10000000")
    a("s_mov_b32 s15, 0x20000")
    a("s_movk_i32 s6, 2048")
    a("s_mov_b32 s7, 0x20000")
    a(f"s_mov_b32 s26, {WS_SIZE}")
    a("s_mov_b32 s27, 0x20000")
    a("s_lshr_b32 s57, s2, 6")
    a("s_cmp_lt_u32 s3, 4")
    a("s_cbranch_scc1 L_aux")

    def epoch_load():
        a("s_load_dword s28, s[24:25], 0")
    def epoch_calc():
        a("s_and_b32 s29, s28, 0x7f7f7f7f")
        a("s_add_u32 s29, s29, 0x07050301")
        a("s_and_b32 s30, s28, 0x80808080")
        a("s_xor_b32 s29, s29, s30")
        for k in range(4):
            a(f"s_bfe_u32 s{60+k}, s29, {(8*k) | (8 << 16):#x}")
        a("s_mov_b32 s31, 0xffffff00")
    def srd(base, off, size):
        a(f"s_load_dwordx2 s[{base}:{base+1}], s[0:1], {off}")
        a(f"s_mov_b32 s{base+2}, {size}")
        a(f"s_mov_b32 s{base+3}, 0x20000")
    def masks(t0, t1):
        a(f"v_and_b32 v{t0}, 1, v0")
        a(f"v_lshlrev_b32 v{t0}, 4, v{t0}")
        a(f"v_mov_b32 v{t1}, 0xffff")
        a(f"v_lshlrev_b32 v{t0}, v{t0}, v{t1}")
        a(f"v_bfe_u32 v{t1}, v0, 1, 3")
        for r in range(4):
            a(f"v_cmp_eq_u32 vcc, {r}, v{t1}")
            a(f"v_cndmask_b32 v{4+r}, 0, v{t0}, vcc")
    def unpack(src, dst, n=4):
        for k in range(n):
            a(f"v_lshlrev_b32 v{dst+2*k}, 16, v{src+k}")
            a(f"v_and_b32 v{dst+2*k+1}, 0xffff0000, v{src+k}")
    def wave_reduce(regs, op="v_add_f32"):
        for m in ("row_shr:1", "row_shr:2", "row_shr:4", "row_shr:8"):
            for r in regs:
                a(f"{op}_dpp v{r}, v{r}, v{r} {m} row_mask:0xf bank_mask:0xf")
        for r in regs:
            a(f"{op}_dpp v{r}, v{r}, v{r} row_bcast:15 row_mask:0xa bank_mask:0xf")
        for r in regs:
            a(f"{op}_dpp v{r}, v{r}, v{r} row_bcast:31 row_mask:0xc bank_mask:0xf")
    def bf16r(r):
        a(f"v_cvt_pk_bf16_f32 v{r}, v{r}, v{r}")
        a(f"v_lshlrev_b32 v{r}, 16, v{r}")
    def ln_sums(f, t, sc, o1, o2):
        a(f"v_readfirstlane_b32 s{sc}, v{f}")
        for i in range(8):
            a(f"v_subrev_f32 v{t+i}, s{sc}, v{f+i}")
        s1, s2 = t + 8, t + 9
        a(f"v_add_f32 v{s1}, v{t}, v{t+1}")
        a(f"v_mul_f32 v{s2}, v{t}, v{t}")
        a(f"v_fmac_f32 v{s2}, v{t+1}, v{t+1}")
        for i in range(2, 8):
            a(f"v_add_f32 v{s1}, v{s1}, v{t+i}")
            a(f"v_fmac_f32 v{s2}, v{t+i}, v{t+i}")
        wave_reduce([s1, s2])
        a(f"v_readlane_b32 s{o1}, v{s1}, 63")
        a(f"v_readlane_b32 s{o2}, v{s2}, 63")
    def ln_finish(c, mb, rs, t):
        a(f"v_mul_f32 v{mb}, 0x3b000000, v{mb}")
        a(f"v_mul_f32 v{rs}, 0x3b000000, v{rs}")
        a(f"v_fma_f32 v{rs}, -v{mb}, v{mb}, v{rs}")
        a(f"v_add_f32 v{mb}, {c}, v{mb}")
        a(f"v_max_f32 v{rs}, 0, v{rs}")
        a(f"v_cvt_pk_bf16_f32 v{t}, v{mb}, v{rs}")
        a(f"v_lshlrev_b32 v{mb}, 16, v{t}")
        a(f"v_and_b32 v{rs}, 0xffff0000, v{t}")
        a(f"v_add_f32 v{rs}, 0x3727c5ac, v{rs}")
        bf16r(rs)
        a(f"v_sqrt_f32 v{rs}, v{rs}")
        bf16r(rs)
        a(f"v_rcp_f32 v{rs}, v{rs}")
    def ln_apply(f, t, mb, rs, n=8):
        for i in range(n):
            a(f"v_sub_f32 v{t+i}, v{f+i}, v{mb}")
        for k in range(n // 2):
            a(f"v_cvt_pk_bf16_f32 v{t+2*k+1}, v{t+2*k}, v{t+2*k+1}")
        for k in range(n // 2):
            a(f"v_lshlrev_b32 v{t+2*k}, 16, v{t+2*k+1}")
            a(f"v_and_b32 v{t+2*k+1}, 0xffff0000, v{t+2*k+1}")
        for i in range(n):
            a(f"v_mul_f32 v{t+i}, v{t+i}, v{rs}")
    def spin_head(tag):
        a(f"s_mov_b32 s75, {SPIN}")
        a(f"L_{tag}:")
    def spin_bail(tag):
        a("s_sub_u32 s75, s75, 1")
        a(f"s_cbranch_scc1 L_{tag}_ok")
    def untag_check(regs, t, tag, pre=None):
        for i, r in enumerate(regs):
            if pre and r in pre: continue
            a(f"v_xor_b32 v{r}, s{60 + (i & 3)}, v{r}")
        rs = list(regs)
        a(f"v_or3_b32 v{t}, v{rs[0]}, v{rs[1]}, v{rs[2]}")
        rs = rs[3:]
        while len(rs) >= 2:
            a(f"v_or3_b32 v{t}, v{t}, v{rs[0]}, v{rs[1]}")
            rs = rs[2:]
        if rs:
            a(f"v_or_b32 v{t}, v{t}, v{rs[0]}")
        a(f"v_and_b32 v{t}, 0xff, v{t}")
        a(f"v_cmp_ne_u32 vcc, 0, v{t}")
        a(f"s_cbranch_vccnz L_{tag}")
        a(f"L_{tag}_ok:")
    def masked_poll(tag, loads, t, first_masks=None):
        for k in range(len(loads)):
            if first_masks and first_masks[k]:
                a(f"s_mov_b32 s{32+2*k}, {first_masks[k][0]}"); a(f"s_mov_b32 s{33+2*k}, {first_masks[k][1]}")
            else:
                a(f"s_mov_b64 s[{32+2*k}:{33+2*k}], -1")
        spin_head(tag)
        for k, (r, txt) in enumerate(loads):
            a(f"s_mov_b64 exec, s[{32+2*k}:{33+2*k}]")
            a(txt)
        spin_bail(tag)
        for k, (r, txt) in enumerate(loads):
            a(f"s_mov_b64 exec, s[{32+2*k}:{33+2*k}]")
            a(f"s_waitcnt vmcnt({len(loads)-1-k})")
            for i in range(4):
                a(f"v_xor_b32 v{r+i}, s{60+i}, v{r+i}")
            a(f"v_or3_b32 v{t}, v{r}, v{r+1}, v{r+2}")
            a(f"v_or_b32 v{t}, v{t}, v{r+3}")
            a(f"v_and_b32 v{t}, 0xff, v{t}")
            a(f"v_cmp_ne_u32 s[{32+2*k}:{33+2*k}], 0, v{t}")
        a("s_or_b64 s[40:41], s[32:33], s[34:35]")
        for k in range(2, len(loads)):
            a(f"s_or_b64 s[40:41], s[40:41], s[{32+2*k}:{33+2*k}]")
        a(f"s_cbranch_scc1 L_{tag}")
        a(f"L_{tag}_ok:")
        a("s_mov_b64 exec, -1")
    def swap_add(regs, tmp, sw):
        for i, r in enumerate(regs): a(f"v_mov_b32 v{tmp+i}, v{r}")
        for i, r in enumerate(regs): a(f"{sw} v{tmp+i}, v{r}")
        for i, r in enumerate(regs): a(f"v_add_f32 v{r}, v{r}, v{tmp+i}")
    def round4(base):
        a(f"v_cvt_pk_bf16_f32 v{base+1}, v{base}, v{base+1}")
        a(f"v_cvt_pk_bf16_f32 v{base+3}, v{base+2}, v{base+3}")
        a(f"v_lshlrev_b32 v{base}, 16, v{base+1}")
        a(f"v_and_b32 v{base+1}, 0xffff0000, v{base+1}")
        a(f"v_lshlrev_b32 v{base+2}, 16, v{base+3}")
        a(f"v_and_b32 v{base+3}, 0xffff0000, v{base+3}")
    def lds_wait_zero(tag, addr, t, sleep):
        spin_head(tag)
        if sleep: a(f"s_sleep {sleep}")
        a(f"ds_read_b32 v{t}, v{addr}")
        spin_bail(tag)
        a("s_waitcnt lgkmcnt(0)")
        a(f"v_cmp_ne_u32 vcc, 0, v{t}")
        a(f"s_cbranch_vccnz L_{tag}")
        a(f"L_{tag}_ok:")
    def P(G):
        r = 0
        for k, b in enumerate(gvec):
            if G >> k & 1: r ^= 1 << b
        return r

    a("s_sub_u32 s59, s3, 4")
    a("s_and_b32 s52, s2, 63")
    a("s_lshl_b32 s52, s52, 2")
    a("s_add_u32 s52, s52, 3")
    a("s_lshl_b32 s52, s52, 20")
    a(f"s_lshl_b32 s53, s59, {10 + wbit}")
    a("s_xor_b32 s52, s52, s53")
    gl = list(gx)
    while gl:
        k, b = gl.pop(0)
        n = 1
        while gl and gl[0] == (k + n, b + n):
            gl.pop(0); n += 1
        a(f"s_bfe_u32 s53, s2, {k | (n << 16):#x}")
        a(f"s_lshl_b32 s53, s53, {10 + b}")
        a("s_xor_b32 s52, s52, s53")
    a("s_cmp_eq_u32 s57, 3")
    a(f"s_cselect_b32 s53, {P(127) << 10}, 0")
    a("s_xor_b32 s52, s52, s53")
    a("s_cmp_eq_u32 s57, 0")
    a("s_cbranch_scc1 L_kv_m")
    a("s_cmp_eq_u32 s57, 1")
    a("s_cbranch_scc1 L_kv_r")

    SC = (2, 3, 40)
    RB = 44
    def kv_path(role, n, G0, Dx):
        def ringreg(j): return RB + 4 * (j % ring)
        st = dict(iss=0, landed=-1, cons=0)
        NT = 2 * n
        nreg = (n + 15) // 16
        def ld_kv():
            j = st["iss"]
            sr = 12 if j < n else 16
            p = P(G0 + (j if j < n else j - n))
            r = ringreg(j)
            if p:
                a(f"s_xor_b32 s53, s52, {p << 10}")
                so = 53
            else:
                so = 52
            a(f"buffer_load_dwordx4 v[{r}:{r+3}], v1, s[{sr}:{sr+3}], s{so} offen {kv_aux}")
            st["iss"] += 1
        def wait_kv(j):
            if j <= st["landed"]: return
            a(f"s_waitcnt vmcnt({st['iss'] - 1 - j})")
            st["landed"] = j
        a("s_waitcnt lgkmcnt(0)")
        for j in range(D0): ld_kv()
        srd(16, 16, 0x10000000)
        if role != "p": epoch_load()
        if role == "m":
            srd(44, 48, 1024)
            srd(48, 80, 2048)
        a("s_mov_b32 s64, 0xcccccccc"); a("s_mov_b32 s65, 0xcccccccc")
        a("s_mov_b32 s66, 0xaaaaaaaa"); a("s_mov_b32 s67, 0xaaaaaaaa")
        masks(12, 13)
        a("v_and_b32 v12, 15, v0")
        a("v_lshlrev_b32 v12, 4, v12")
        a(f"v_add_u32 v12, {L_QB}, v12")
        if pretouch & 1:
            a("s_waitcnt lgkmcnt(0)")
            a("s_cmp_lg_u32 s59, 7")
            a(f"s_cbranch_scc1 L_npt{role}")
            a("s_mov_b64 exec, 1")
            a(f"s_xor_b32 s53, s52, {P(G0) << 10}")
            a(f"buffer_load_dword v41, v1, s[16:19], s53 offen {kv_aux}")
            if role == "m":
                a("buffer_load_dword v42, v1, s[48:51], 0 offen")
                a("buffer_load_dword v43, v1, s[44:47], 0 offen")
            a("s_mov_b64 exec, -1")
            a(f"L_npt{role}:")
        a("s_barrier")
        while st["iss"] < NPRE:
            d = D0 if st["iss"] < N0 else Dx
            if st["iss"] - 1 - st["landed"] >= d:
                wait_kv(st["iss"] - d)
            ld_kv()
        stampat(1)
        spin_head("wq" + role)
        a("ds_read_b128 v[8:11], v12")
        spin_bail("wq" + role)
        a("s_waitcnt lgkmcnt(0)")
        a("v_max3_u32 v13, v8, v9, v10")
        a("v_max_u32 v13, v13, v11")
        a("v_cmp_eq_u32 vcc, -1, v13")
        a(f"s_cbranch_vccnz L_wq{role}")
        a(f"L_wq{role}_ok:")
        a("s_waitcnt lgkmcnt(0)")
        if role != "p": epoch_calc()
        if calib is not None:
            a("s_and_b32 s73, s2, 7")
            a("s_mov_b32 s34, -1"); a("s_mov_b32 s35, 0")
            for x, (m3, m2) in calib.items():
                a(f"s_cmp_eq_u32 s73, {x}")
                a(f"s_cselect_b32 s34, {m3:#x}, s34")
                a(f"s_cselect_b32 s35, {m2:#x}, s35")
        stampat(2)
        def reduce_scores(dst, cnt):
            live = lambda lo, hi: [i for i in range(lo, hi) if i < cnt]
            for i in live(0, 8):
                a(f"v_add_f32_dpp v{24+i}, v{24+i}, v{24+i} row_ror:8 row_mask:0xf bank_mask:0x3")
            for i in live(8, 16):
                a(f"v_add_f32_dpp v{16+i}, v{24+i}, v{24+i} row_ror:8 row_mask:0xf bank_mask:0xc")
            for i in live(0, 4):
                a(f"v_add_f32_dpp v{24+i}, v{24+i}, v{24+i} row_half_mirror row_mask:0xf bank_mask:0x5")
            for i in live(4, 8):
                a(f"v_add_f32_dpp v{20+i}, v{24+i}, v{24+i} row_half_mirror row_mask:0xf bank_mask:0xa")
            for i in live(0, 4):
                a(f"v_add_f32_dpp v{24+i}, v{24+i}, v{24+i} quad_perm:[2,3,0,1] row_mask:0xf bank_mask:0xf")
            if cnt > 2: a("v_cndmask_b32 v24, v24, v26, s[64:65]")
            if cnt > 3: a("v_cndmask_b32 v25, v25, v27, s[64:65]")
            for i in live(0, 2):
                a(f"v_add_f32_dpp v{24+i}, v{24+i}, v{24+i} quad_perm:[1,0,3,2] row_mask:0xf bank_mask:0xf")
            a(f"v_cndmask_b32 v{dst}, v24, v{25 if cnt > 1 else 24}, s[66:67]")
            bf16r(dst)
            a(f"v_mul_f32 v{dst}, {SCALE:#x}, v{dst}")
            bf16r(dst)
            if cnt < 16:
                m16 = (1 << cnt) - 1
                a(f"s_mov_b32 s68, {m16 | (m16 << 16):#x}")
                a("s_mov_b32 s69, s68")
                a("v_mov_b32 v24, 0xff800000")
                a(f"v_cndmask_b32 v{dst}, v24, v{dst}, s[68:69]")
        def softmax_part():
            stampat(3)
            S = SC[:nreg]
            if nreg == 2: a("v_max_f32 v24, v2, v3")
            else: a("v_max3_f32 v24, v2, v3, v40")
            wave_reduce([24], "v_max_f32")
            a("v_readlane_b32 s72, v24, 63")
            for r in S: a(f"v_subrev_f32 v{r}, s72, v{r}")
            for r in S: a(f"v_mul_f32 v{r}, {LOG2E:#x}, v{r}")
            for r in S: a(f"v_exp_f32 v{r}, v{r}")
            a("v_add_f32 v25, v2, v3")
            if nreg == 3: a("v_add_f32 v25, v25, v40")
            for r in S: a(f"v_cvt_pk_bf16_f32 v{r}, v{r}, v{r}")
            wave_reduce([25])
            a("s_lshl_b32 s73, s59, 3")
            a(f"s_add_u32 s73, s73, {L_MB}")
            a("v_mov_b32 v26, s73")
            a("s_mov_b32 exec_lo, 0")
            a("s_mov_b32 exec_hi, 0x80000000")
            a("ds_write_b64 v26, v[24:25]")
            a("s_mov_b64 exec, -1")
            a("s_lshl_b32 s73, s59, 9")
            a(f"s_add_u32 s73, s73, {L_OP}")
            a("v_and_b32 v27, 15, v0")
            a("v_lshrrev_b32 v28, 4, v0")
            a("v_lshlrev_b32 v29, 5, v27")
            a("v_lshl_add_u32 v29, v28, 4, v29")
            a("v_add_u32 v29, s73, v29")
            stampat(4)
        def pump(extra=0):
            ctl = calib is not None and st["cons"] >= ctl_from
            dd = 4 if ctl else Dx
            while st["iss"] < NT and st["iss"] - 1 - st["landed"] < dd + extra and st["iss"] - ring < st["cons"]:
                if ctl:
                    j = st["iss"]
                    lab = f"L_c{role}{j}"
                    a(f"s_bitcmp1_b32 s34, {j & 31}")
                    a(f"s_cbranch_scc0 {lab}")
                    a(f"s_waitcnt vmcnt({2 + extra})")
                    a(f"s_bitcmp1_b32 s35, {j & 31}")
                    a(f"s_cbranch_scc0 {lab}")
                    a(f"s_waitcnt vmcnt({1 + extra})")
                    a(f"{lab}:")
                ld_kv()
        def role_prep():
            if role == "r":
                a("s_and_b32 s76, s2, 7")
                a("s_lshr_b32 s77, s59, 1")
                a("s_lshl_b32 s78, s77, 3")
                a("s_add_u32 s78, s78, s76")
                a("s_lshl_b32 s78, s78, 1")
                a("s_and_b32 s73, s59, 1")
                a("s_add_u32 s78, s78, s73")
                a("s_lshl_b32 s79, s78, 9")
                a(f"s_add_u32 s79, s79, {WS_MLX}")
                a("s_lshl_b32 s78, s78, 11")
                a(f"s_add_u32 s78, s78, {WS_OP}")
                a("v_and_b32 v31, 3, v0")
                a("v_lshlrev_b32 v31, 7, v31")
                a(f"s_mul_i32 s73, s73, {APITCH}")
                a("s_lshl_b32 s77, s77, 8")
                a("s_add_u32 s73, s73, s77")
                a(f"s_add_u32 s73, s73, {L_A}")
                a("v_lshlrev_b32 v30, 3, v0")
                a("v_add_u32 v30, s73, v30")
                a("s_getreg_b32 s74, hwreg(HW_REG_XCC_ID, 0, 4)")
            if role == "m":
                a("v_bfe_u32 v30, v0, 2, 1")
                a("v_lshlrev_b32 v30, 10, v30")
                a("v_bfe_u32 v31, v0, 3, 2")
                a("v_lshl_add_u32 v30, v31, 5, v30")
                a("v_and_b32 v31, 3, v0")
                a("v_lshl_add_u32 v30, v31, 3, v30")
                a("s_lshl_b32 s73, s59, 7")
                a("v_add_u32 v30, s73, v30")
                a("buffer_load_dwordx2 v[36:37], v30, s[4:7], 0 offen")
                a("buffer_load_dwordx4 v[32:35], v1, s[44:47], 0 offen")
                a(f"v_add_u32 v30, {L_HB}, v30")
                a("s_lshl_b32 s78, s59, 12")
                a(f"s_add_u32 s78, s78, {WS_ZX}")
        def consume(j):
            r = ringreg(j)
            st["cons"] = j
            if j < n:
                i = j & 15
                cnt = min(16, n - (j & ~15))
                if i == 0:
                    for k in range(cnt):
                        a(f"v_mov_b32 v{24+k}, 0")
                wait_kv(j)
                pump(1 if i == cnt - 1 else 0)
                for k in range(4):
                    a(f"v_dot2c_f32_bf16 v{24+i}, v{r+k}, v{8+k}")
                if i == cnt - 1:
                    reduce_scores(SC[j >> 4], cnt)
                if j == n - 1:
                    softmax_part()
            else:
                jj = j - n
                i = jj & 15
                pp = SC[jj >> 4]
                t = 12 + 4 * (i & 1)
                for k in range(4):
                    a(f"v_and_b32_dpp v{t+k}, v{pp}, v{4+k} row_newbcast:{i} row_mask:0xf bank_mask:0xf")
                wait_kv(j)
                pump()
                c = "0" if jj == 0 else "v[20:23]"
                a(f"v_mfma_f32_16x16x32_bf16 v[20:23], v[{t}:{t+3}], v[{r}:{r+3}], {c}")
                if jj == 12: role_prep()
                if j == NT - (go_back if role == "m" else go_back_r) and role != "p":
                    a("s_lshl_b32 s73, s59, 2")
                    a(f"s_add_u32 s73, s73, {L_KD}")
                    a("v_mov_b32 v38, s73")
                    a("v_mov_b32 v39, 0")
                    a("ds_write_b32 v38, v39")
        for j in range(NT):
            if j <= st["landed"] and j % CU == 0 and st["iss"] < NT and st["iss"] - ring < j:
                st["cons"] = j
                wait_kv(st["landed"] + 1)
                pump()
            consume(j)
        a("s_mov_b32 exec_hi, 0")
        a("ds_write_b128 v29, v[20:23]")
        a("s_mov_b64 exec, -1")
        stampat(5)

    kv_path("p", npl, 0, D)
    a("s_branch L_fin")

    a("L_kv_r:")
    kv_path("r", nr, npl + na, Dr)
    spin_head("pL")
    a("buffer_load_dwordx4 v[52:55], v31, s[24:27], s79 offen sc1")
    spin_bail("pL")
    a("s_waitcnt vmcnt(0)")
    a("v_xor_b32 v54, s29, v54")
    a("v_xor_b32 v55, s29, v55")
    a("v_lshrrev_b32 v56, 4, v55")
    a("v_or_b32 v54, v54, v56")
    a("v_cmp_ne_u32 vcc, 0, v54")
    a("s_cbranch_vccnz L_pL")
    a("L_pL_ok:")
    a("v_mov_b32 v56, v52")
    for m in ("quad_perm:[1,0,3,2]", "quad_perm:[2,3,0,1]"):
        a(f"v_max_f32_dpp v56, v56, v56 {m} row_mask:0xf bank_mask:0xf")
    a("v_sub_f32 v52, v52, v56")
    a(f"v_mul_f32 v52, {LOG2E:#x}, v52")
    a("v_exp_f32 v52, v52")
    a("v_mul_f32 v53, v53, v52")
    for m in ("quad_perm:[1,0,3,2]", "quad_perm:[2,3,0,1]"):
        a(f"v_add_f32_dpp v53, v53, v53 {m} row_mask:0xf bank_mask:0xf")
    a("v_rcp_f32 v53, v53")
    a("v_mul_f32 v52, v52, v53")
    a(f"v_mov_b32 v54, {WS_OS - WS_OP}")
    if local:
        a("v_cmp_ne_u32 vcc, s74, v55")
        a("v_cndmask_b32 v55, 0, v54, vcc")
    else:
        a("v_mov_b32 v55, v54")
    for src, d0 in ((52, 56), (55, 58)):
        a(f"v_mov_b32_dpp v{d0}, v{src} quad_perm:[0,0,0,0] row_mask:0x3 bank_mask:0xf")
        a(f"v_mov_b32_dpp v{d0+1}, v{src} quad_perm:[2,2,2,2] row_mask:0x3 bank_mask:0xf")
        a(f"v_mov_b32_dpp v{d0}, v{src} quad_perm:[1,1,1,1] row_mask:0xc bank_mask:0xf")
        a(f"v_mov_b32_dpp v{d0+1}, v{src} quad_perm:[3,3,3,3] row_mask:0xc bank_mask:0xf")
    a("v_add_u32 v58, v58, v1")
    a("v_add_u32 v59, v59, v1")
    if await_stage:
        a("v_and_b32 v61, 3, v0")
        a("v_lshlrev_b32 v61, 2, v61")
        a(f"v_add_u32 v61, {L_FL}, v61")
        lds_wait_zero("aws", 61, 62, 2)
    spin_head("pA")
    a("buffer_load_dwordx4 v[44:47], v58, s[24:27], s78 offen sc1")
    a("buffer_load_dwordx4 v[48:51], v59, s[24:27], s78 offen offset:1024 sc1")
    a(f"s_cmp_lg_u32 s75, {SPIN - 400}")
    a("s_cbranch_scc1 L_pA_nf")
    a("v_add_u32 v58, v54, v1")
    a("v_add_u32 v59, v54, v1")
    a("L_pA_nf:")
    spin_bail("pA")
    a("s_waitcnt vmcnt(0)")
    untag_check(list(range(44, 52)), 60, "pA")
    stampat(6)
    for r in range(4): a(f"v_mul_f32 v{44+r}, v{44+r}, v56")
    for r in range(4): a(f"v_fmac_f32 v{44+r}, v{48+r}, v57")
    swap_add([44, 45, 46, 47], 48, "v_permlane32_swap_b32")
    a("v_cvt_pk_bf16_f32 v44, v44, v45")
    a("v_cvt_pk_bf16_f32 v45, v46, v47")
    a("s_mov_b32 exec_hi, 0")
    a("ds_write_b64 v30, v[44:45]")
    a("s_waitcnt lgkmcnt(0)")
    a("s_barrier")
    stampat(7)
    a("s_mov_b64 exec, -1")
    a("s_branch L_fin")

    a("L_kv_m:")
    kv_path("m", na, npl, Dm)
    a(f"s_cmp_ge_u32 s2, {NMLP}")
    a("s_cbranch_scc1 L_fin")
    unpack(36, 60, 2)
    a("s_mov_b64 exec, 0xff")
    spin_head("pB0")
    a("s_sleep 2")
    a("buffer_load_dwordx4 v[40:43], v1, s[24:27], s78 offen sc1")
    spin_bail("pB0")
    a("s_waitcnt vmcnt(0)")
    untag_check([40, 41, 42, 43], 56, "pB0")
    a("s_mov_b64 exec, -1")
    if masked:
        masked_poll("pB", [(40 + 4*k, f"buffer_load_dwordx4 v[{40+4*k}:{43+4*k}], v1, s[24:27], s78 offen offset:{1024*k} sc1") for k in range(4)], 56)
    else:
        spin_head("pB")
        for k in range(4):
            a(f"buffer_load_dwordx4 v[{40+4*k}:{43+4*k}], v1, s[24:27], s78 offen offset:{1024*k} sc1")
        spin_bail("pB")
        a("s_waitcnt vmcnt(0)")
        untag_check(list(range(40, 56)), 56, "pB")
    stampat(6)
    for r in range(4):
        a(f"v_add_f32 v{40+r}, v{40+r}, v{44+r}")
        a(f"v_add_f32 v{48+r}, v{48+r}, v{52+r}")
    for r in range(4): a(f"v_add_f32 v{40+r}, v{40+r}, v{48+r}")
    swap_add([40, 41, 42, 43], 44, "v_permlane32_swap_b32")
    round4(40)
    for r in range(4): a(f"v_add_f32 v{40+r}, v{40+r}, v{60+r}")
    a("v_cvt_pk_bf16_f32 v40, v40, v41")
    a("v_cvt_pk_bf16_f32 v41, v42, v43")
    a("s_mov_b32 exec_hi, 0")
    a("ds_write_b64 v30, v[40:41]")
    a("s_mov_b64 exec, -1")
    a("s_lshl_b32 s73, s59, 10")
    a(f"s_add_u32 s73, s73, {L_HB}")
    a("v_add_u32 v52, s73, v1")
    a(f"s_mul_i32 s73, s59, {APITCH}")
    a(f"s_add_u32 s73, s73, {L_A}")
    a("v_add_u32 v53, s73, v1")
    a("s_waitcnt lgkmcnt(0)")
    a("s_barrier")
    a("s_cmp_ge_u32 s59, 2")
    a("s_cbranch_scc1 L_fin")
    a("ds_read_b128 v[96:99], v52")
    a("v_lshrrev_b32 v40, 2, v0")
    a("v_and_b32 v43, 3, v0")
    a("v_lshlrev_b32 v44, 7, v40")
    a("v_lshl_or_b32 v44, v43, 4, v44")
    a("s_min_u32 s78, s2, 31")
    a("s_mul_i32 s78, s78, 5504")
    a("s_lshl_b32 s73, s59, 6")
    a("s_add_u32 s78, s78, s73")
    a(f"s_add_u32 s78, s78, {WS_Y}")
    a("s_add_u32 s79, s78, 2048")
    a("s_add_u32 s77, s78, 4096")
    if warmc:
        for k, so in enumerate((78, 79, 77)):
            a(f"buffer_load_dwordx4 v[{12+4*k}:{15+4*k}], v44, s[24:27], s{so} offen sc1")
    a("s_waitcnt lgkmcnt(0)")
    unpack(96, 100)
    ln_sums(100, 108, 68, 69, 70)
    a("v_mov_b32 v118, s69")
    a("v_mov_b32 v119, s70")
    ln_finish("s68", 118, 119, 108)
    ln_apply(100, 108, 118, 119)
    for k in range(4):
        a(f"v_cvt_pk_bf16_f32 v{120+k}, v{108+2*k}, v{109+2*k}")
    a("ds_write_b128 v53, v[120:123]")
    a("s_waitcnt lgkmcnt(0)")
    a("s_barrier")
    stampat(7)
    a("s_cmp_ge_u32 s2, 32")
    a("s_cbranch_scc1 L_fin")
    a("v_mov_b32 v47, 0")
    for k in range(4):
        a(f"v_dot2c_f32_bf16 v47, v{120+k}, v{32+k}")
    wave_reduce([47])
    a("v_readlane_b32 s73, v47, 63")
    a("v_mov_b32 v47, s73")
    bf16r(47)
    a("v_mul_f32 v47, 0xbfb8aa3b, v47")
    a("v_exp_f32 v47, v47")
    a("v_add_f32 v47, 1.0, v47")
    a("v_rcp_f32 v47, v47")
    bf16r(47)
    a("s_lshl_b32 s73, s59, 2")
    a(f"s_add_u32 s73, s73, {L_ACT + 0x80}")
    a("v_mov_b32 v46, s73")
    a("ds_write_b32 v46, v47")
    a("s_lshl_b32 s74, s2, 5")
    a("s_lshl_b32 s73, s59, 4")
    a("s_add_u32 s76, s74, s73")
    a("v_lshlrev_b32 v45, 2, v43")
    a(f"s_add_u32 s73, s76, {L_HB}")
    a("v_add_u32 v46, s73, v45")
    a("ds_read_b32 v50, v46")
    a("ds_read_b32 v51, v46 offset:1024")
    a(f"s_add_u32 s73, s76, {L_A}")
    a("v_add_u32 v46, s73, v45")
    a("ds_read_b32 v48, v46")
    a(f"ds_read_b32 v49, v46 offset:{APITCH}")
    a(f"v_mov_b32 v46, {L_ACT + 0x80}")
    a("s_waitcnt lgkmcnt(0)")
    a("v_lshlrev_b32 v100, 16, v48"); a("v_lshlrev_b32 v101, 16, v49")
    a("v_and_b32 v102, 0xffff0000, v48"); a("v_and_b32 v103, 0xffff0000, v49")
    a("v_lshlrev_b32 v104, 16, v50"); a("v_lshlrev_b32 v105, 16, v51")
    a("v_and_b32 v106, 0xffff0000, v50"); a("v_and_b32 v107, 0xffff0000, v51")
    a("s_waitcnt vmcnt(0)")
    for r in range(4): a(f"v_mov_b32 v{20+r}, 0")
    a("s_barrier")
    stampat(8)
    a("ds_read_b64 v[46:47], v46")
    if cdelay: a(f"s_sleep {cdelay}")
    spin_head("pC")
    a("buffer_load_dwordx4 v[12:15], v44, s[24:27], s78 offen sc1")
    a("buffer_load_dwordx4 v[16:19], v44, s[24:27], s79 offen sc1")
    a("s_mov_b32 exec_hi, 0xfff")
    a("buffer_load_dwordx4 v[20:23], v44, s[24:27], s77 offen sc1")
    a("s_waitcnt vmcnt(0)")
    for r in range(4): a(f"v_xor_b32 v{20+r}, s{60+r}, v{20+r}")
    a("s_mov_b64 exec, -1")
    spin_bail("pC")
    untag_check(list(range(12, 24)), 24, "pC", pre={20, 21, 22, 23})
    stampat(4)
    for r in range(4): a(f"v_add_f32 v{12+r}, v{12+r}, v{16+r}")
    for r in range(4): a(f"v_add_f32 v{12+r}, v{12+r}, v{20+r}")
    for m in ("row_ror:4", "row_ror:8"):
        for r in range(4):
            a(f"v_add_f32_dpp v{12+r}, v{12+r}, v{12+r} {m} row_mask:0xf bank_mask:0xf")
    swap_add([12, 13, 14, 15], 16, "v_permlane16_swap_b32")
    swap_add([12, 13, 14, 15], 16, "v_permlane32_swap_b32")
    round4(12)
    a("s_waitcnt lgkmcnt(0)")
    for r in range(4): a(f"v_mul_f32 v{12+r}, v{12+r}, v{46 + (r & 1)}")
    round4(12)
    for r in range(4): a(f"v_add_f32 v{12+r}, v{12+r}, v{100+r}")
    round4(12)
    for r in range(4): a(f"v_add_f32 v{12+r}, v{12+r}, v{104+r}")
    a("v_cvt_pk_bf16_f32 v12, v12, v14")
    a("v_cvt_pk_bf16_f32 v13, v13, v15")
    a("s_mov_b64 exec, 0xf")
    a("buffer_store_dword v12, v45, s[48:51], s76 offen")
    a("buffer_store_dword v13, v45, s[48:51], s76 offen offset:1024")
    a("s_cmp_lg_u32 s76, 0")
    a("s_cbranch_scc1 L_noep")
    a("s_mov_b64 exec, 1")
    a("v_mov_b32 v14, s29")
    a("buffer_store_dword v14, v45, s[24:27], 0 offen")
    a("L_noep:")
    a("s_mov_b64 exec, -1")
    stampat(9)
    a("s_branch L_fin")

    a("L_aux:")
    a("s_and_b32 s55, s2, 31")
    a("s_bfe_u32 s56, s2, 0x10005")
    a("v_lshrrev_b32 v2, 4, v0")
    a("v_and_b32 v3, 15, v0")
    a("s_mov_b32 s10, 0x400000")
    a("s_mov_b32 s11, 0x20000")
    a("v_lshlrev_b32 v8, 18, v2")
    a("v_lshl_or_b32 v8, v3, 4, v8")
    a("s_lshl_b32 s54, s3, 20")
    a("s_lshl_b32 s53, s55, 8")
    a("s_or_b32 s54, s54, s53")
    a("v_lshlrev_b32 v10, 6, v2")
    a("s_lshl_b32 s52, s56, 10")
    a("s_lshl_b32 s53, s3, 8")
    a("s_add_u32 s53, s53, s52")
    a("s_movk_i32 s65, 0x2000")
    a("s_waitcnt lgkmcnt(0)")
    a("buffer_load_dwordx4 v[20:23], v1, s[4:7], s52 offen")
    for k in range(4):
        a(f"buffer_load_dwordx4 v[{56+4*k}:{59+4*k}], v10, s[4:7], s53 offen offset:{16*k}")
    QR = 24
    q = dict(iss=0, landed=-1)
    def qreg(i): return 72 + 4 * (i % QR)
    def ld_wq():
        i = q["iss"]
        r = qreg(i)
        a(f"buffer_load_dwordx4 v[{r}:{r+3}], v8, s[8:11], s54 offen {wq_aux}")
        if i < 31: a("s_add_u32 s54, s54, s65")
        q["iss"] += 1
    def wait_wq(i):
        if i <= q["landed"]: return
        a(f"s_waitcnt vmcnt({q['iss'] - 1 - i})")
        q["landed"] = i
    for i in range(DQ): ld_wq()
    epoch_load()
    srd(20, 32, 0x400000)
    srd(32, 56, 1409024)
    srd(36, 64, 1409024)
    srd(40, 72, 1409024)
    a("s_cmp_lg_u32 s3, 1")
    a("s_cbranch_scc1 L_noinit")
    for r in range(4): a(f"v_mov_b32 v{12+r}, -1")
    a(f"v_add_u32 v9, {L_INIT}, v1")
    for k in range(7):
        a(f"ds_write_b128 v9, v[12:15] offset:{1024*k}")
    for r in range(4): a(f"v_mov_b32 v{16+r}, 0")
    a(f"v_mov_b32 v9, {L_ZERO}")
    a("ds_write_b128 v9, v[16:19]")
    a("L_noinit:")
    a("s_waitcnt lgkmcnt(0)")
    a("s_barrier")
    a(f"s_waitcnt vmcnt({DQ})")
    mark = len(a.lines)
    masks(12, 13)
    epoch_calc()
    unpack(20, 24)
    ln_sums(24, 32, 68, 69, 70)
    a("v_mov_b32 v10, s69")
    a("v_mov_b32 v11, s70")
    ln_finish("s68", 10, 11, 9)
    unpack(56, 24, 16)
    ln_apply(24, 24, 10, 11, 32)
    for i in range(32):
        a(f"v_cvt_pk_bf16_f32 v{24+i}, v{24+i}, v{24+i}")
    body = a.lines[mark:]
    del a.lines[mark:]
    for k in range(0, len(body), chunk):
        if q["iss"] < QR:
            wait_wq(q["iss"] - DQ)
            ld_wq()
        for ln in body[k:k+chunk]: a(ln)
    for i in range(32):
        t = 12 + 4 * (i & 1)
        for r in range(4):
            a(f"v_and_b32 v{t+r}, v{24+i}, v{4+r}")
        if i <= q["landed"] and i % 4 == 0 and q["iss"] < 32 and q["iss"] - QR < i:
            wait_wq(q["landed"] + 1)
        wait_wq(i)
        while q["iss"] < 32 and q["iss"] - 1 - q["landed"] < DQ and q["iss"] - QR < i: ld_wq()
        c = "0" if i == 0 else "v[20:23]"
        a(f"v_mfma_f32_16x16x32_bf16 v[20:23], v[{t}:{t+3}], v[{qreg(i)}:{qreg(i)+3}], {c}")
    assert q["iss"] == 32
    a("s_lshl_b32 s52, s3, 9")
    a(f"s_add_u32 s52, s52, {L_QP}")
    a("v_lshlrev_b32 v8, 5, v3")
    a("v_lshl_add_u32 v8, v2, 4, v8")
    a("v_add_u32 v8, s52, v8")
    a("s_mov_b32 exec_hi, 0")
    a("ds_write_b128 v8, v[20:23]")
    a("s_mov_b64 exec, -1")
    stampat(1)
    a("s_cmp_lg_u32 s3, 0")
    a("s_cbranch_scc1 L_aux2")
    a("v_lshlrev_b32 v8, 3, v0")
    a(f"v_add_u32 v11, {L_QP}, v8")
    a("v_lshlrev_b32 v9, 2, v0")
    a(f"v_add_u32 v10, {L_QB}, v9")
    spin_head("pQ")
    for w in range(4):
        a(f"ds_read_b64 v[{12+2*w}:{13+2*w}], v11 offset:{512*w}")
    spin_bail("pQ")
    a("s_waitcnt lgkmcnt(0)")
    a("v_max3_u32 v20, v12, v13, v14")
    a("v_max3_u32 v21, v15, v16, v17")
    a("v_max3_u32 v20, v20, v18, v19")
    a("v_max_u32 v20, v20, v21")
    a("v_cmp_eq_u32 vcc, -1, v20")
    a("s_cbranch_vccnz L_pQ")
    a("L_pQ_ok:")
    for w in range(1, 4):
        a(f"v_add_f32 v12, v12, v{12+2*w}")
        a(f"v_add_f32 v13, v13, v{13+2*w}")
    a("v_cvt_pk_bf16_f32 v12, v12, v13")
    a("ds_write_b32 v10, v12")
    stampat(2)
    a("L_aux2:")
    if pretouch & 2:
        a("s_cmp_lg_u32 s3, 3")
        a("s_cbranch_scc1 L_npa")
        a("s_cmp_ge_u32 s57, 2")
        a("s_cbranch_scc1 L_npa")
        a("v_lshlrev_b32 v12, 18, v0")
        a("s_mov_b64 exec, 0x3f")
        for sr in (32, 36, 40):
            a(f"buffer_load_dword v13, v12, s[{sr}:{sr+3}], 0 offen")
        a("s_mov_b64 exec, 0xffff")
        a("buffer_load_dword v13, v12, s[20:23], 0 offen")
        a("s_mov_b64 exec, -1")
        a("L_npa:")
    a("v_lshrrev_b32 v33, 2, v3")
    a("v_lshl_add_u32 v33, v2, 3, v33")
    a("v_and_b32 v34, 3, v0")
    a("v_bfe_u32 v6, v3, 2, 1")
    a(f"v_mul_u32_u24 v6, {APITCH}, v6")
    a("v_lshl_add_u32 v6, v2, 4, v6")
    a(f"v_add_u32 v6, {L_A}, v6")
    a("v_lshlrev_b32 v35, 2, v34")
    a(f"v_add_u32 v35, {L_FL}, v35")
    def stage_loop(tag, sr, voff, depth, aux):
        a(f"L_st_{tag}:")
        a("s_mov_b32 m0, s54")
        if depth: a(f"s_waitcnt vmcnt({depth-1})")
        if not no_stage:
            a(f"buffer_load_dwordx4 v{voff}, s[{sr}:{sr+3}], s52 offen {aux} lds")
        a("s_add_u32 s52, s52, s53")
        a("s_add_u32 s54, s54, s58")
        a("s_sub_u32 s59, s59, 1")
        a("s_cmp_lg_u32 s59, 0")
        a(f"s_cbranch_scc1 L_st_{tag}")
    def set_flag():
        a("s_waitcnt vmcnt(0)")
        a("s_lshl_b32 s52, s3, 2")
        a(f"s_add_u32 s52, s52, {L_FL}")
        a("v_mov_b32 v8, s52")
        a("v_mov_b32 v9, 0")
        a("ds_write_b32 v8, v9")
        stampat(9)
    a("s_cmp_lg_u32 s3, 0")
    a("s_cbranch_scc1 L_aux3a")
    a("v_lshlrev_b32 v8, 3, v0")
    a(f"v_add_u32 v11, {L_OP}, v8")
    a("v_and_b32 v9, 7, v0")
    a("v_lshlrev_b32 v9, 3, v9")
    a(f"v_add_u32 v9, {L_MB}, v9")
    spin_head("pM")
    a("s_sleep 4")
    a("ds_read_b64 v[12:13], v9")
    spin_bail("pM")
    a("s_waitcnt lgkmcnt(0)")
    a("v_max_u32 v14, v12, v13")
    a("v_cmp_eq_u32 vcc, -1, v14")
    a("s_cbranch_vccnz L_pM")
    a("L_pM_ok:")
    oct_ = ("quad_perm:[1,0,3,2]", "quad_perm:[2,3,0,1]", "row_half_mirror")
    a("v_mov_b32 v16, v12")
    for m in oct_:
        a(f"v_max_f32_dpp v16, v16, v16 {m} row_mask:0xf bank_mask:0xf")
    a("v_sub_f32 v14, v12, v16")
    a(f"v_mul_f32 v14, {LOG2E:#x}, v14")
    a("v_exp_f32 v14, v14")
    a("v_mul_f32 v17, v13, v14")
    for m in oct_:
        a(f"v_add_f32_dpp v17, v17, v17 {m} row_mask:0xf bank_mask:0xf")
    a("s_getreg_b32 s53, hwreg(HW_REG_XCC_ID, 0, 4)")
    a("s_xor_b32 s53, s53, s29")
    a("v_mov_b32 v18, s29")
    a("v_mov_b32 v19, s53")
    a("s_lshl_b32 s52, s55, 1")
    a("s_add_u32 s52, s52, s56")
    a("s_lshl_b32 s52, s52, 2")
    a("s_add_u32 s52, s52, s57")
    a("s_lshl_b32 s53, s52, 7")
    a(f"s_add_u32 s53, s53, {WS_MLX}")
    a("s_lshl_b32 s52, s52, 9")
    a(f"s_add_u32 s52, s52, {WS_OP}")
    a("s_mov_b64 exec, 1")
    a("buffer_store_dwordx4 v[16:19], v8, s[24:27], s53 offen sc1")
    a("s_mov_b64 exec, -1")
    a(f"s_add_u32 s53, s52, {WS_OS - WS_OP}")
    stampat(3)
    for w in range(8):
        a(f"v_readlane_b32 s{44+w}, v14, {w}")
    a("v_and_b32 v9, 1, v0")
    a("v_lshlrev_b32 v9, 4, v9")
    a("v_lshrrev_b32 v9, v9, s29")
    a("v_bfe_u32 v10, v9, 8, 8")
    a("v_and_b32 v9, 0xff, v9")
    a("s_mov_b32 s71, s52")
    a("s_mov_b32 s72, s53")
    stampat(4)
    a("L_aux3a:")
    a("s_cmp_lg_u32 s57, 1")
    a("s_cbranch_scc1 L_aux3")
    a("v_lshrrev_b32 v36, 3, v0")
    a("v_and_b32 v37, 7, v0")
    a("v_lshlrev_b32 v36, 10, v36")
    a("v_lshl_or_b32 v36, v37, 4, v36")
    a("s_and_b32 s52, s2, 7")
    a("s_lshl_b32 s52, s52, 17")
    a("s_lshl_b32 s53, s3, 20")
    a("s_add_u32 s52, s52, s53")
    a("s_bfe_u32 s53, s2, 0x30003")
    a("s_lshl_b32 s53, s53, 7")
    a("s_add_u32 s52, s52, s53")
    a("s_lshl_b32 s54, s3, 14")
    a("s_movk_i32 s53, 0x2000")
    a("s_movk_i32 s58, 0x400")
    a("s_movk_i32 s59, 16")
    if rd_late:
        a("v_and_b32 v38, 7, v0")
        a("v_lshlrev_b32 v38, 2, v38")
        a(f"v_add_u32 v38, {L_KD}, v38")
        lds_wait_zero("kdr", 38, 39, 2)
        stampat(4)
    stage_loop("rd", 20, 36, DSR, wo_aux)
    a("L_aux3:")
    a("s_cmp_lg_u32 s3, 0")
    a("s_cbranch_scc1 L_aux4")
    spin_head("pO")
    if osleep: a(f"s_sleep {osleep}")
    for w in range(8):
        a(f"ds_read_b64 v[{12+2*w}:{13+2*w}], v11 offset:{512*w}")
    spin_bail("pO")
    a("s_waitcnt lgkmcnt(0)")
    a("v_max3_u32 v28, v12, v13, v14")
    a("v_max3_u32 v29, v15, v16, v17")
    a("v_max3_u32 v30, v18, v19, v20")
    a("v_max3_u32 v31, v21, v22, v23")
    a("v_max3_u32 v32, v24, v25, v26")
    a("v_max3_u32 v28, v28, v29, v30")
    a("v_max3_u32 v31, v31, v32, v27")
    a("v_max_u32 v28, v28, v31")
    a("v_cmp_eq_u32 vcc, -1, v28")
    a("s_cbranch_vccnz L_pO")
    a("L_pO_ok:")
    stampat(5)
    a("v_mul_f32 v12, s44, v12"); a("v_mul_f32 v13, s44, v13")
    a("v_mul_f32 v20, s48, v20"); a("v_mul_f32 v21, s48, v21")
    for w in range(1, 4):
        a(f"v_fmac_f32 v12, s{44+w}, v{12+2*w}"); a(f"v_fmac_f32 v13, s{44+w}, v{13+2*w}")
        a(f"v_fmac_f32 v20, s{48+w}, v{20+2*w}"); a(f"v_fmac_f32 v21, s{48+w}, v{21+2*w}")
    a("v_add_f32 v12, v12, v20"); a("v_add_f32 v13, v13, v21")
    a("v_and_or_b32 v12, v12, s31, v9")
    a("v_and_or_b32 v13, v13, s31, v10")
    if local:
        a("buffer_store_dwordx2 v[12:13], v8, s[24:27], s71 offen")
    a("buffer_store_dwordx2 v[12:13], v8, s[24:27], s72 offen sc1")
    stampat(6)
    a("L_aux4:")
    def gemm16(acc):
        for ks in range(12):
            a(f"ds_read_b128 v[{16+4*ks}:{19+4*ks}], v6 offset:{64*ks}")
        out = 12
        for ks in range(16):
            nxt = ks + 12
            a(f"s_waitcnt lgkmcnt({out - 1})")
            out -= 1
            ab = 16 + 4 * (ks % 12)
            c = "0" if ks == 0 else f"v[{acc}:{acc+3}]"
            a(f"v_mfma_f32_16x16x32_bf16 v[{acc}:{acc+3}], v[{ab}:{ab+3}], v[{64+4*ks}:{67+4*ks}], {c}")
            if nxt < 16:
                a(f"ds_read_b128 v[{ab}:{ab+3}], v6 offset:{64*nxt}")
                out += 1
    a("s_cmp_lg_u32 s57, 1")
    a("s_cbranch_scc1 L_aux5")
    set_flag()
    lds_wait_zero("flr", 35, 12, 1)
    a("v_lshlrev_b32 v10, 7, v33")
    a("v_lshl_add_u32 v10, v34, 3, v10")
    a("s_lshl_b32 s52, s3, 5")
    a("v_add_u32 v10, s52, v10")
    for ks in range(16):
        for hh in range(2):
            d = 64 + 4 * ks + 2 * hh
            a(f"ds_read_b64_tr_b16 v[{d}:{d+1}], v10 offset:{ks*4096 + hh*512}")
    a("v_lshlrev_b32 v7, 3, v34")
    a("v_lshrrev_b32 v7, v7, s29")
    a("v_and_b32 v7, 0xff, v7")
    a("v_lshlrev_b32 v5, 2, v0")
    a("s_and_b32 s70, s2, 63")
    a("s_lshl_b32 s70, s70, 2")
    a("s_add_u32 s70, s70, s3")
    a("s_lshl_b32 s70, s70, 7")
    a(f"s_add_u32 s70, s70, {WS_ZX}")
    a("s_waitcnt lgkmcnt(0)")
    stampat(7)
    a("s_barrier")
    gemm16(12)
    a("s_mov_b32 exec_hi, 0")
    a("v_and_or_b32 v12, v12, s31, v7")
    a("buffer_store_dword v12, v5, s[24:27], s70 offen sc1")
    a("s_mov_b64 exec, -1")
    stampat(8)
    if ackstamp:
        a("s_waitcnt vmcnt(0)")
        stampat(1)
    a("s_branch L_fin")
    a("L_aux5:")
    a(f"s_cmp_ge_u32 s2, {NMLP}")
    a("s_cbranch_scc1 L_fin")
    a("s_cmp_eq_u32 s3, 0")
    a("s_cbranch_scc1 L_staged")
    a("v_and_b32 v10, 7, v0")
    a("v_lshlrev_b32 v10, 2, v10")
    a(f"v_add_u32 v10, {L_KD}, v10")
    lds_wait_zero("kd", 10, 11, 2)
    stampat(3)
    a("s_movk_i32 s59, 32")
    a("s_cmp_eq_u32 s3, 3")
    a("s_cbranch_scc1 L_st_dn0")
    a("v_lshrrev_b32 v8, 2, v0")
    a("v_mul_u32_u24 v8, 2752, v8")
    a("v_lshl_add_u32 v8, v34, 4, v8")
    a("s_lshl_b32 s52, s2, 6")
    a("s_mov_b32 s53, 44032")
    a("s_movk_i32 s58, 0x400")
    a("s_mov_b32 s54, 0")
    a("s_cmp_eq_u32 s3, 2")
    a("s_cbranch_scc1 L_st_up0")
    stage_loop("g", 32, 8, 0, mlp_aux)
    a("s_branch L_staged")
    a("L_st_up0:")
    a(f"s_mov_b32 s54, {L_UP}")
    stage_loop("u", 36, 8, 0, mlp_aux)
    a("s_branch L_staged")
    a("L_st_dn0:")
    a("s_lshl_b32 s52, s2, 15")
    a("s_movk_i32 s53, 0x400")
    a(f"s_mov_b32 s54, {L_DN}")
    a(f"s_movk_i32 s58, {DNP}")
    stage_loop("d", 40, 1, 0, dn_aux)
    a("L_staged:")
    set_flag()
    lds_wait_zero("flm", 35, 12, 1)
    a("v_lshlrev_b32 v10, 6, v33")
    a("v_and_b32 v11, 1, v0")
    a("v_lshl_add_u32 v10, v11, 3, v10")
    a("v_bfe_u32 v11, v0, 1, 1")
    a(f"v_mul_u32_u24 v11, {L_UP}, v11")
    a("v_add_u32 v10, v11, v10")
    a("s_lshl_b32 s52, s3, 4")
    a("v_add_u32 v10, s52, v10")
    for ks in range(16):
        for hh in range(2):
            d = 64 + 4 * ks + 2 * hh
            a(f"ds_read_b64_tr_b16 v[{d}:{d+1}], v10 offset:{ks*2048 + hh*256}")
    a(f"v_mul_u32_u24 v10, {DNP}, v33")
    a("v_lshl_add_u32 v10, v34, 3, v10")
    a("s_lshl_b32 s52, s3, 8")
    a(f"s_add_u32 s52, s52, {L_DN}")
    a("v_add_u32 v10, s52, v10")
    for t in range(8):
        for hh in range(2):
            d = 128 + 4 * t + 2 * hh
            a(f"ds_read_b64_tr_b16 v[{d}:{d+1}], v10 offset:{hh*4*DNP + t*32}")
    a("v_and_b32 v4, 1, v2")
    a("v_lshlrev_b32 v4, 6, v4")
    a("v_lshl_add_u32 v4, v3, 1, v4")
    a("s_lshl_b32 s52, s3, 4")
    a(f"s_add_u32 s52, s52, {L_ACT}")
    a("v_add_u32 v4, s52, v4")
    a("v_and_b32 v10, 1, v3")
    a("v_lshlrev_b32 v10, 6, v10")
    a("v_lshl_add_u32 v10, v2, 4, v10")
    a(f"v_add_u32 v10, {L_ACT}, v10")
    a(f"v_mov_b32 v11, {L_ZERO}")
    a("v_lshrrev_b32 v9, 2, v3")
    for u in range(4):
        a(f"v_cmp_eq_u32 vcc, {u}, v9")
        a(f"v_cndmask_b32 v{160+u}, v11, v10, vcc")
    a("v_mul_u32_u24 v5, 5504, v2")
    a("v_lshl_add_u32 v5, v3, 3, v5")
    a("s_mul_i32 s52, s3, 44032")
    a("s_lshl_b32 s53, s2, 7")
    a("s_add_u32 s52, s52, s53")
    a(f"s_add_u32 s52, s52, {WS_Y}")
    a("s_add_u32 s53, s52, 22016")
    a("v_and_b32 v7, 1, v0")
    a("v_lshlrev_b32 v7, 4, v7")
    a("v_lshrrev_b32 v7, v7, s29")
    a("v_bfe_u32 v164, v7, 8, 8")
    a("v_and_b32 v7, 0xff, v7")
    a("s_waitcnt lgkmcnt(0)")
    stampat(7)
    a("s_barrier")
    a("s_barrier")
    gemm16(12)
    a("v_cvt_pk_bf16_f32 v12, v12, v12")
    a("v_lshlrev_b32 v12, 16, v12")
    a("v_mul_f32 v13, 0xbfb8aa3b, v12")
    a("v_exp_f32 v13, v13")
    a("v_add_f32 v13, 1.0, v13")
    a("v_rcp_f32 v13, v13")
    a("v_mul_f32 v13, v12, v13")
    bf16r(13)
    a("v_mul_f32_dpp v13, v12, v13 row_ror:8 row_mask:0xf bank_mask:0xf")
    a("v_cvt_pk_bf16_f32 v13, v13, v13")
    a("s_mov_b64 exec, 0x00ff00ff")
    a("ds_write_b16 v4, v13")
    a("s_mov_b64 exec, -1")
    a("s_waitcnt lgkmcnt(0)")
    a("s_barrier")
    for u in range(4):
        a(f"ds_read_b128 v[{16+4*u}:{19+4*u}], v{160+u}")
    for u in range(4):
        a(f"s_waitcnt lgkmcnt({3-u})")
        for hf in range(2):
            acc = 8 + 4 * hf
            t = hf * 4 + u
            c = "0" if u == 0 else f"v[{acc}:{acc+3}]"
            a(f"v_mfma_f32_16x16x32_bf16 v[{acc}:{acc+3}], v[{16+4*u}:{19+4*u}], v[{128+4*t}:{131+4*t}], {c}")
    for hf in range(2):
        r = 8 + 4 * hf
        a(f"v_and_or_b32 v{r}, v{r}, s31, v7")
        a(f"v_and_or_b32 v{r+1}, v{r+1}, s31, v164")
        a(f"buffer_store_dwordx2 v[{r}:{r+1}], v5, s[24:27], s{52+hf} offen sc1")
    stampat(8)
    if ackstamp:
        a("s_waitcnt vmcnt(0)")
        stampat(1)

    a("L_fin:")
    if stamps:
        a("s_waitcnt lgkmcnt(0)")
        a("s_mul_i32 s64, s3, 80")
        a(f"s_add_u32 s64, s64, {L_STAMP}")
        a("v_mov_b32 v40, s64")
        a("s_mov_b64 exec, 1")
        for i in range(10):
            a(f"v_mov_b32 v12, s{80+2*i}")
            a(f"v_mov_b32 v13, s{81+2*i}")
            a(f"ds_write_b64 v40, v[12:13] offset:{8*i}")
        a("s_mov_b64 exec, -1")
        a("s_waitcnt lgkmcnt(0)")
        a("s_cmp_lg_u32 s3, 1")
        a("s_cbranch_scc1 L_end")
        a("L_hold:")
        a("s_sleep 32")
        a("s_memrealtime s[66:67]")
        a("s_waitcnt lgkmcnt(0)")
        a("s_sub_u32 s66, s66, s80")
        a("s_cmp_lt_u32 s66, 4500")
        a("s_cbranch_scc1 L_hold")
        a(f"v_add_u32 v40, {L_STAMP}, v1")
        a("ds_read_b128 v[12:15], v40")
        a("s_mul_i32 s64, s2, 1280")
        a(f"s_add_u32 s64, s64, {512<<20}")
        a("v_add_u32 v40, s64, v1")
        a("s_waitcnt lgkmcnt(0)")
        a("global_store_dwordx4 v40, v[12:15], s[24:25]")
    a("L_end:")
    a("s_endpgm")
    a('.section .rodata,"a"')
    a(".p2align 6")
    a(f".amdhsa_kernel {NAME}_kernel")
    a(f"  .amdhsa_next_free_vgpr {NVGPR}")
    a("  .amdhsa_next_free_sgpr 102")
    a(f"  .amdhsa_accum_offset {NVGPR}")
    a("  .amdhsa_group_segment_fixed_size 0")
    a("  .amdhsa_kernarg_size 104")
    a("  .amdhsa_user_sgpr_count 2")
    a("  .amdhsa_user_sgpr_kernarg_segment_ptr 1")
    a("  .amdhsa_system_sgpr_workgroup_id_x 1")
    a(".end_amdhsa_kernel")
    return a.finalize()

if __name__ == "__main__":
    out = sys.argv[1]
    kw = eval("dict(" + (sys.argv[2] if len(sys.argv) > 2 else "") + ")")
    open(out, "w").write(gen(**kw))
```

```python
import sys, json
from asmlib import Asm
from gen import HDR, NAME

WS_EP = 0
WS_MLX = 0x1000
WS_OP = 0x9000
WS_OS = 0x29000
WS_ZX = 0x49000
WS_Y = 0x51000
WS_SIZE = WS_Y + 43 * 4096
L_UP = 0x8020
L_DN = 0x10040
DNP = 1056
L_INIT = 0x18800
L_OP = L_INIT
L_QP = L_INIT + 0x1000
L_QB = L_INIT + 0x1800
L_MB = L_INIT + 0x1900
L_FL = L_INIT + 0x1940
L_KD = L_INIT + 0x1960
L_ZERO = L_INIT + 0x1C00
L_A = L_INIT + 0x1D00
APITCH = 1088
L_HB = L_A + 0x900
L_ACT = L_HB + 0x800
L_STAMP = L_ACT + 0x100
LDS_SIZE = L_STAMP + 0x400
NMLP = 43
SPIN = 100000
LOG2E = 0x3fb8aa3b
SCALE = 0x3db504f3
NVGPR = 168

def gen(stamps=False, D0=2, N0=18, D=3, Dm=4, Dr=3, NPRE=22, ring=31, DQ=4, DSR=0, na=31, nr=29, npl=34,
        gvec=(0,1,5,6,7,8,9), wbit=2, gx=((3,1),(4,5),(5,6)), kv_aux="nt", wq_aux="", wo_aux="", mlp_aux="", dn_aux="",
        no_stage=False, CU=4, go_back=4, chunk=24, cdelay=0, warmc=True, local=True, osleep=1, pretouch=0, rd_late=True, go_back_r=4, await_stage=False, calib=None, ctl_from=24, masked=False, ackstamp=False, hold_x=None):
    assert na + nr + 2 * npl == 128
    a = Asm()
    def stampat(i):
        if stamps:
            a(f"s_memrealtime s[{80+2*i}:{81+2*i}]")

    a(HDR + f"; @launch grid=(256,1,1) block=(768,1,1) lds={LDS_SIZE}")
    a('.amdgcn_target "amdgcn-amd-amdhsa--gfx950"')
    a(".text")
    a(f".globl {NAME}_kernel")
    a(".p2align 8")
    a(f".type {NAME}_kernel,@function")
    a(f"{NAME}_kernel:")
    if stamps:
        for i in range(1, 10):
            a(f"s_mov_b64 s[{80+2*i}:{81+2*i}], 0")
    stampat(0)
    a("s_load_dwordx2 s[12:13], s[0:1], 8")
    a("s_load_dwordx2 s[4:5], s[0:1], 0")
    a("s_load_dwordx2 s[8:9], s[0:1], 24")
    a("s_load_dwordx2 s[24:25], s[0:1], 96")
    a("s_cmp_ge_u32 s2, 256")
    a("s_cbranch_scc1 L_end")
    a("v_lshrrev_b32 v2, 6, v0")
    a("v_and_b32 v0, 63, v0")
    a("v_readfirstlane_b32 s3, v2")
    a("v_lshlrev_b32 v1, 4, v0")
    a("s_mov_b32 s14, 0x10000000")
    a("s_mov_b32 s15, 0x20000")
    a("s_movk_i32 s6, 2048")
    a("s_mov_b32 s7, 0x20000")
    a(f"s_mov_b32 s26, {WS_SIZE}")
    a("s_mov_b32 s27, 0x20000")
    a("s_lshr_b32 s57, s2, 6")
    a("s_cmp_lt_u32 s3, 4")
    a("s_cbranch_scc1 L_aux")

    def epoch_load():
        a("s_load_dword s28, s[24:25], 0")
    def epoch_calc():
        a("s_and_b32 s29, s28, 0x7f7f7f7f")
        a("s_add_u32 s29, s29, 0x07050301")
        a("s_and_b32 s30, s28, 0x80808080")
        a("s_xor_b32 s29, s29, s30")
        for k in range(4):
            a(f"s_bfe_u32 s{60+k}, s29, {(8*k) | (8 << 16):#x}")
        a("s_mov_b32 s31, 0xffffff00")
    def srd(base, off, size):
        a(f"s_load_dwordx2 s[{base}:{base+1}], s[0:1], {off}")
        a(f"s_mov_b32 s{base+2}, {size}")
        a(f"s_mov_b32 s{base+3}, 0x20000")
    def masks(t0, t1):
        a(f"v_and_b32 v{t0}, 1, v0")
        a(f"v_lshlrev_b32 v{t0}, 4, v{t0}")
        a(f"v_mov_b32 v{t1}, 0xffff")
        a(f"v_lshlrev_b32 v{t0}, v{t0}, v{t1}")
        a(f"v_bfe_u32 v{t1}, v0, 1, 3")
        for r in range(4):
            a(f"v_cmp_eq_u32 vcc, {r}, v{t1}")
            a(f"v_cndmask_b32 v{4+r}, 0, v{t0}, vcc")
    def unpack(src, dst, n=4):
        for k in range(n):
            a(f"v_lshlrev_b32 v{dst+2*k}, 16, v{src+k}")
            a(f"v_and_b32 v{dst+2*k+1}, 0xffff0000, v{src+k}")
    def wave_reduce(regs, op="v_add_f32"):
        for m in ("row_shr:1", "row_shr:2", "row_shr:4", "row_shr:8"):
            for r in regs:
                a(f"{op}_dpp v{r}, v{r}, v{r} {m} row_mask:0xf bank_mask:0xf")
        for r in regs:
            a(f"{op}_dpp v{r}, v{r}, v{r} row_bcast:15 row_mask:0xa bank_mask:0xf")
        for r in regs:
            a(f"{op}_dpp v{r}, v{r}, v{r} row_bcast:31 row_mask:0xc bank_mask:0xf")
    def bf16r(r):
        a(f"v_cvt_pk_bf16_f32 v{r}, v{r}, v{r}")
        a(f"v_lshlrev_b32 v{r}, 16, v{r}")
    def ln_sums(f, t, sc, o1, o2):
        a(f"v_readfirstlane_b32 s{sc}, v{f}")
        for i in range(8):
            a(f"v_subrev_f32 v{t+i}, s{sc}, v{f+i}")
        s1, s2 = t + 8, t + 9
        a(f"v_add_f32 v{s1}, v{t}, v{t+1}")
        a(f"v_mul_f32 v{s2}, v{t}, v{t}")
        a(f"v_fmac_f32 v{s2}, v{t+1}, v{t+1}")
        for i in range(2, 8):
            a(f"v_add_f32 v{s1}, v{s1}, v{t+i}")
            a(f"v_fmac_f32 v{s2}, v{t+i}, v{t+i}")
        wave_reduce([s1, s2])
        a(f"v_readlane_b32 s{o1}, v{s1}, 63")
        a(f"v_readlane_b32 s{o2}, v{s2}, 63")
    def ln_finish(c, mb, rs, t):
        a(f"v_mul_f32 v{mb}, 0x3b000000, v{mb}")
        a(f"v_mul_f32 v{rs}, 0x3b000000, v{rs}")
        a(f"v_fma_f32 v{rs}, -v{mb}, v{mb}, v{rs}")
        a(f"v_add_f32 v{mb}, {c}, v{mb}")
        a(f"v_max_f32 v{rs}, 0, v{rs}")
        a(f"v_cvt_pk_bf16_f32 v{t}, v{mb}, v{rs}")
        a(f"v_lshlrev_b32 v{mb}, 16, v{t}")
        a(f"v_and_b32 v{rs}, 0xffff0000, v{t}")
        a(f"v_add_f32 v{rs}, 0x3727c5ac, v{rs}")
        bf16r(rs)
        a(f"v_sqrt_f32 v{rs}, v{rs}")
        bf16r(rs)
        a(f"v_rcp_f32 v{rs}, v{rs}")
    def ln_apply(f, t, mb, rs, n=8):
        for i in range(n):
            a(f"v_sub_f32 v{t+i}, v{f+i}, v{mb}")
        for k in range(n // 2):
            a(f"v_cvt_pk_bf16_f32 v{t+2*k+1}, v{t+2*k}, v{t+2*k+1}")
        for k in range(n // 2):
            a(f"v_lshlrev_b32 v{t+2*k}, 16, v{t+2*k+1}")
            a(f"v_and_b32 v{t+2*k+1}, 0xffff0000, v{t+2*k+1}")
        for i in range(n):
            a(f"v_mul_f32 v{t+i}, v{t+i}, v{rs}")
    def spin_head(tag):
        a(f"s_mov_b32 s75, {SPIN}")
        a(f"L_{tag}:")
    def spin_bail(tag):
        a("s_sub_u32 s75, s75, 1")
        a(f"s_cbranch_scc1 L_{tag}_ok")
    def untag_check(regs, t, tag, pre=None):
        for i, r in enumerate(regs):
            if pre and r in pre: continue
            a(f"v_xor_b32 v{r}, s{60 + (i & 3)}, v{r}")
        rs = list(regs)
        a(f"v_or3_b32 v{t}, v{rs[0]}, v{rs[1]}, v{rs[2]}")
        rs = rs[3:]
        while len(rs) >= 2:
            a(f"v_or3_b32 v{t}, v{t}, v{rs[0]}, v{rs[1]}")
            rs = rs[2:]
        if rs:
            a(f"v_or_b32 v{t}, v{t}, v{rs[0]}")
        a(f"v_and_b32 v{t}, 0xff, v{t}")
        a(f"v_cmp_ne_u32 vcc, 0, v{t}")
        a(f"s_cbranch_vccnz L_{tag}")
        a(f"L_{tag}_ok:")
    def masked_poll(tag, loads, t, first_masks=None):
        for k in range(len(loads)):
            if first_masks and first_masks[k]:
                a(f"s_mov_b32 s{32+2*k}, {first_masks[k][0]}"); a(f"s_mov_b32 s{33+2*k}, {first_masks[k][1]}")
            else:
                a(f"s_mov_b64 s[{32+2*k}:{33+2*k}], -1")
        spin_head(tag)
        for k, (r, txt) in enumerate(loads):
            a(f"s_mov_b64 exec, s[{32+2*k}:{33+2*k}]")
            a(txt)
        spin_bail(tag)
        for k, (r, txt) in enumerate(loads):
            a(f"s_mov_b64 exec, s[{32+2*k}:{33+2*k}]")
            a(f"s_waitcnt vmcnt({len(loads)-1-k})")
            for i in range(4):
                a(f"v_xor_b32 v{r+i}, s{60+i}, v{r+i}")
            a(f"v_or3_b32 v{t}, v{r}, v{r+1}, v{r+2}")
            a(f"v_or_b32 v{t}, v{t}, v{r+3}")
            a(f"v_and_b32 v{t}, 0xff, v{t}")
            a(f"v_cmp_ne_u32 s[{32+2*k}:{33+2*k}], 0, v{t}")
        a("s_or_b64 s[40:41], s[32:33], s[34:35]")
        for k in range(2, len(loads)):
            a(f"s_or_b64 s[40:41], s[40:41], s[{32+2*k}:{33+2*k}]")
        a(f"s_cbranch_scc1 L_{tag}")
        a(f"L_{tag}_ok:")
        a("s_mov_b64 exec, -1")
    def swap_add(regs, tmp, sw):
        for i, r in enumerate(regs): a(f"v_mov_b32 v{tmp+i}, v{r}")
        for i, r in enumerate(regs): a(f"{sw} v{tmp+i}, v{r}")
        for i, r in enumerate(regs): a(f"v_add_f32 v{r}, v{r}, v{tmp+i}")
    def round4(base):
        a(f"v_cvt_pk_bf16_f32 v{base+1}, v{base}, v{base+1}")
        a(f"v_cvt_pk_bf16_f32 v{base+3}, v{base+2}, v{base+3}")
        a(f"v_lshlrev_b32 v{base}, 16, v{base+1}")
        a(f"v_and_b32 v{base+1}, 0xffff0000, v{base+1}")
        a(f"v_lshlrev_b32 v{base+2}, 16, v{base+3}")
        a(f"v_and_b32 v{base+3}, 0xffff0000, v{base+3}")
    def lds_wait_zero(tag, addr, t, sleep):
        spin_head(tag)
        if sleep: a(f"s_sleep {sleep}")
        a(f"ds_read_b32 v{t}, v{addr}")
        spin_bail(tag)
        a("s_waitcnt lgkmcnt(0)")
        a(f"v_cmp_ne_u32 vcc, 0, v{t}")
        a(f"s_cbranch_vccnz L_{tag}")
        a(f"L_{tag}_ok:")
    def P(G):
        r = 0
        for k, b in enumerate(gvec):
            if G >> k & 1: r ^= 1 << b
        return r

    a("s_sub_u32 s59, s3, 4")
    a("s_and_b32 s52, s2, 63")
    a("s_lshl_b32 s52, s52, 2")
    a("s_add_u32 s52, s52, 3")
    a("s_lshl_b32 s52, s52, 20")
    a(f"s_lshl_b32 s53, s59, {10 + wbit}")
    a("s_xor_b32 s52, s52, s53")
    gl = list(gx)
    while gl:
        k, b = gl.pop(0)
        n = 1
        while gl and gl[0] == (k + n, b + n):
            gl.pop(0); n += 1
        a(f"s_bfe_u32 s53, s2, {k | (n << 16):#x}")
        a(f"s_lshl_b32 s53, s53, {10 + b}")
        a("s_xor_b32 s52, s52, s53")
    a("s_cmp_eq_u32 s57, 3")
    a(f"s_cselect_b32 s53, {P(127) << 10}, 0")
    a("s_xor_b32 s52, s52, s53")
    a("s_cmp_eq_u32 s57, 0")
    a("s_cbranch_scc1 L_kv_m")
    a("s_cmp_eq_u32 s57, 1")
    a("s_cbranch_scc1 L_kv_r")

    SC = (2, 3, 40)
    RB = 44
    def kv_path(role, n, G0, Dx):
        def ringreg(j): return RB + 4 * (j % ring)
        st = dict(iss=0, landed=-1, cons=0)
        NT = 2 * n
        nreg = (n + 15) // 16
        def ld_kv():
            j = st["iss"]
            sr = 12 if j < n else 16
            p = P(G0 + (j if j < n else j - n))
            r = ringreg(j)
            if p:
                a(f"s_xor_b32 s53, s52, {p << 10}")
                so = 53
            else:
                so = 52
            a(f"buffer_load_dwordx4 v[{r}:{r+3}], v1, s[{sr}:{sr+3}], s{so} offen {kv_aux}")
            st["iss"] += 1
        def wait_kv(j):
            if j <= st["landed"]: return
            a(f"s_waitcnt vmcnt({st['iss'] - 1 - j})")
            st["landed"] = j
        a("s_waitcnt lgkmcnt(0)")
        for j in range(D0): ld_kv()
        srd(16, 16, 0x10000000)
        if role != "p": epoch_load()
        if role == "m":
            srd(44, 48, 1024)
            srd(48, 80, 2048)
        a("s_mov_b32 s64, 0xcccccccc"); a("s_mov_b32 s65, 0xcccccccc")
        a("s_mov_b32 s66, 0xaaaaaaaa"); a("s_mov_b32 s67, 0xaaaaaaaa")
        masks(12, 13)
        a("v_and_b32 v12, 15, v0")
        a("v_lshlrev_b32 v12, 4, v12")
        a(f"v_add_u32 v12, {L_QB}, v12")
        if pretouch & 1:
            a("s_waitcnt lgkmcnt(0)")
            a("s_cmp_lg_u32 s59, 7")
            a(f"s_cbranch_scc1 L_npt{role}")
            a("s_mov_b64 exec, 1")
            a(f"s_xor_b32 s53, s52, {P(G0) << 10}")
            a(f"buffer_load_dword v41, v1, s[16:19], s53 offen {kv_aux}")
            if role == "m":
                a("buffer_load_dword v42, v1, s[48:51], 0 offen")
                a("buffer_load_dword v43, v1, s[44:47], 0 offen")
            a("s_mov_b64 exec, -1")
            a(f"L_npt{role}:")
        a("s_barrier")
        while st["iss"] < NPRE:
            d = D0 if st["iss"] < N0 else Dx
            if st["iss"] - 1 - st["landed"] >= d:
                wait_kv(st["iss"] - d)
            ld_kv()
        stampat(1)
        spin_head("wq" + role)
        a("ds_read_b128 v[8:11], v12")
        spin_bail("wq" + role)
        a("s_waitcnt lgkmcnt(0)")
        a("v_max3_u32 v13, v8, v9, v10")
        a("v_max_u32 v13, v13, v11")
        a("v_cmp_eq_u32 vcc, -1, v13")
        a(f"s_cbranch_vccnz L_wq{role}")
        a(f"L_wq{role}_ok:")
        a("s_waitcnt lgkmcnt(0)")
        if role != "p": epoch_calc()
        if calib is not None:
            a("s_and_b32 s73, s2, 7")
            a("s_mov_b32 s34, -1"); a("s_mov_b32 s35, 0")
            for x, (m3, m2) in calib.items():
                a(f"s_cmp_eq_u32 s73, {x}")
                a(f"s_cselect_b32 s34, {m3:#x}, s34")
                a(f"s_cselect_b32 s35, {m2:#x}, s35")
        stampat(2)
        def reduce_scores(dst, cnt):
            live = lambda lo, hi: [i for i in range(lo, hi) if i < cnt]
            for i in live(0, 8):
                a(f"v_add_f32_dpp v{24+i}, v{24+i}, v{24+i} row_ror:8 row_mask:0xf bank_mask:0x3")
            for i in live(8, 16):
                a(f"v_add_f32_dpp v{16+i}, v{24+i}, v{24+i} row_ror:8 row_mask:0xf bank_mask:0xc")
            for i in live(0, 4):
                a(f"v_add_f32_dpp v{24+i}, v{24+i}, v{24+i} row_half_mirror row_mask:0xf bank_mask:0x5")
            for i in live(4, 8):
                a(f"v_add_f32_dpp v{20+i}, v{24+i}, v{24+i} row_half_mirror row_mask:0xf bank_mask:0xa")
            for i in live(0, 4):
                a(f"v_add_f32_dpp v{24+i}, v{24+i}, v{24+i} quad_perm:[2,3,0,1] row_mask:0xf bank_mask:0xf")
            if cnt > 2: a("v_cndmask_b32 v24, v24, v26, s[64:65]")
            if cnt > 3: a("v_cndmask_b32 v25, v25, v27, s[64:65]")
            for i in live(0, 2):
                a(f"v_add_f32_dpp v{24+i}, v{24+i}, v{24+i} quad_perm:[1,0,3,2] row_mask:0xf bank_mask:0xf")
            a(f"v_cndmask_b32 v{dst}, v24, v{25 if cnt > 1 else 24}, s[66:67]")
            bf16r(dst)
            a(f"v_mul_f32 v{dst}, {SCALE:#x}, v{dst}")
            bf16r(dst)
            if cnt < 16:
                m16 = (1 << cnt) - 1
                a(f"s_mov_b32 s68, {m16 | (m16 << 16):#x}")
                a("s_mov_b32 s69, s68")
                a("v_mov_b32 v24, 0xff800000")
                a(f"v_cndmask_b32 v{dst}, v24, v{dst}, s[68:69]")
        def softmax_part():
            stampat(3)
            S = SC[:nreg]
            if nreg == 2: a("v_max_f32 v24, v2, v3")
            else: a("v_max3_f32 v24, v2, v3, v40")
            wave_reduce([24], "v_max_f32")
            a("v_readlane_b32 s72, v24, 63")
            for r in S: a(f"v_subrev_f32 v{r}, s72, v{r}")
            for r in S: a(f"v_mul_f32 v{r}, {LOG2E:#x}, v{r}")
            for r in S: a(f"v_exp_f32 v{r}, v{r}")
            a("v_add_f32 v25, v2, v3")
            if nreg == 3: a("v_add_f32 v25, v25, v40")
            for r in S: a(f"v_cvt_pk_bf16_f32 v{r}, v{r}, v{r}")
            wave_reduce([25])
            a("s_lshl_b32 s73, s59, 3")
            a(f"s_add_u32 s73, s73, {L_MB}")
            a("v_mov_b32 v26, s73")
            a("s_mov_b32 exec_lo, 0")
            a("s_mov_b32 exec_hi, 0x80000000")
            a("ds_write_b64 v26, v[24:25]")
            a("s_mov_b64 exec, -1")
            a("s_lshl_b32 s73, s59, 9")
            a(f"s_add_u32 s73, s73, {L_OP}")
            a("v_and_b32 v27, 15, v0")
            a("v_lshrrev_b32 v28, 4, v0")
            a("v_lshlrev_b32 v29, 5, v27")
            a("v_lshl_add_u32 v29, v28, 4, v29")
            a("v_add_u32 v29, s73, v29")
            stampat(4)
        def pump(extra=0):
            ctl = calib is not None and st["cons"] >= ctl_from
            dd = 4 if ctl else Dx
            while st["iss"] < NT and st["iss"] - 1 - st["landed"] < dd + extra and st["iss"] - ring < st["cons"]:
                if ctl:
                    j = st["iss"]
                    lab = f"L_c{role}{j}"
                    a(f"s_bitcmp1_b32 s34, {j & 31}")
                    a(f"s_cbranch_scc0 {lab}")
                    a(f"s_waitcnt vmcnt({2 + extra})")
                    a(f"s_bitcmp1_b32 s35, {j & 31}")
                    a(f"s_cbranch_scc0 {lab}")
                    a(f"s_waitcnt vmcnt({1 + extra})")
                    a(f"{lab}:")
                ld_kv()
        def role_prep():
            if role == "r":
                a("s_and_b32 s76, s2, 7")
                a("s_lshr_b32 s77, s59, 1")
                a("s_lshl_b32 s78, s77, 3")
                a("s_add_u32 s78, s78, s76")
                a("s_lshl_b32 s78, s78, 1")
                a("s_and_b32 s73, s59, 1")
                a("s_add_u32 s78, s78, s73")
                a("s_lshl_b32 s79, s78, 9")
                a(f"s_add_u32 s79, s79, {WS_MLX}")
                a("s_lshl_b32 s78, s78, 11")
                a(f"s_add_u32 s78, s78, {WS_OP}")
                a("v_and_b32 v31, 3, v0")
                a("v_lshlrev_b32 v31, 7, v31")
                a(f"s_mul_i32 s73, s73, {APITCH}")
                a("s_lshl_b32 s77, s77, 8")
                a("s_add_u32 s73, s73, s77")
                a(f"s_add_u32 s73, s73, {L_A}")
                a("v_lshlrev_b32 v30, 3, v0")
                a("v_add_u32 v30, s73, v30")
                a("s_getreg_b32 s74, hwreg(HW_REG_XCC_ID, 0, 4)")
            if role == "m":
                a("v_bfe_u32 v30, v0, 2, 1")
                a("v_lshlrev_b32 v30, 10, v30")
                a("v_bfe_u32 v31, v0, 3, 2")
                a("v_lshl_add_u32 v30, v31, 5, v30")
                a("v_and_b32 v31, 3, v0")
                a("v_lshl_add_u32 v30, v31, 3, v30")
                a("s_lshl_b32 s73, s59, 7")
                a("v_add_u32 v30, s73, v30")
                a("buffer_load_dwordx2 v[36:37], v30, s[4:7], 0 offen")
                a("buffer_load_dwordx4 v[32:35], v1, s[44:47], 0 offen")
                a(f"v_add_u32 v30, {L_HB}, v30")
                a("s_lshl_b32 s78, s59, 12")
                a(f"s_add_u32 s78, s78, {WS_ZX}")
        def consume(j):
            r = ringreg(j)
            st["cons"] = j
            if j < n:
                i = j & 15
                cnt = min(16, n - (j & ~15))
                if i == 0:
                    for k in range(cnt):
                        a(f"v_mov_b32 v{24+k}, 0")
                wait_kv(j)
                pump(1 if i == cnt - 1 else 0)
                for k in range(4):
                    a(f"v_dot2c_f32_bf16 v{24+i}, v{r+k}, v{8+k}")
                if i == cnt - 1:
                    reduce_scores(SC[j >> 4], cnt)
                if j == n - 1:
                    softmax_part()
            else:
                jj = j - n
                i = jj & 15
                pp = SC[jj >> 4]
                t = 12 + 4 * (i & 1)
                for k in range(4):
                    a(f"v_and_b32_dpp v{t+k}, v{pp}, v{4+k} row_newbcast:{i} row_mask:0xf bank_mask:0xf")
                wait_kv(j)
                pump()
                c = "0" if jj == 0 else "v[20:23]"
                a(f"v_mfma_f32_16x16x32_bf16 v[20:23], v[{t}:{t+3}], v[{r}:{r+3}], {c}")
                if jj == 12: role_prep()
                if j == NT - (go_back if role == "m" else go_back_r) and role != "p":
                    a("s_lshl_b32 s73, s59, 2")
                    a(f"s_add_u32 s73, s73, {L_KD}")
                    a("v_mov_b32 v38, s73")
                    a("v_mov_b32 v39, 0")
                    a("ds_write_b32 v38, v39")
        for j in range(NT):
            if j <= st["landed"] and j % CU == 0 and st["iss"] < NT and st["iss"] - ring < j:
                st["cons"] = j
                wait_kv(st["landed"] + 1)
                pump()
            consume(j)
        a("s_mov_b32 exec_hi, 0")
        a("ds_write_b128 v29, v[20:23]")
        a("s_mov_b64 exec, -1")
        stampat(5)

    kv_path("p", npl, 0, D)
    a("s_branch L_fin")

    a("L_kv_r:")
    kv_path("r", nr, npl + na, Dr)
    spin_head("pL")
    a("buffer_load_dwordx4 v[52:55], v31, s[24:27], s79 offen sc1")
    spin_bail("pL")
    a("s_waitcnt vmcnt(0)")
    a("v_xor_b32 v54, s29, v54")
    a("v_xor_b32 v55, s29, v55")
    a("v_lshrrev_b32 v56, 4, v55")
    a("v_or_b32 v54, v54, v56")
    a("v_cmp_ne_u32 vcc, 0, v54")
    a("s_cbranch_vccnz L_pL")
    a("L_pL_ok:")
    a("v_mov_b32 v56, v52")
    for m in ("quad_perm:[1,0,3,2]", "quad_perm:[2,3,0,1]"):
        a(f"v_max_f32_dpp v56, v56, v56 {m} row_mask:0xf bank_mask:0xf")
    a("v_sub_f32 v52, v52, v56")
    a(f"v_mul_f32 v52, {LOG2E:#x}, v52")
    a("v_exp_f32 v52, v52")
    a("v_mul_f32 v53, v53, v52")
    for m in ("quad_perm:[1,0,3,2]", "quad_perm:[2,3,0,1]"):
        a(f"v_add_f32_dpp v53, v53, v53 {m} row_mask:0xf bank_mask:0xf")
    a("v_rcp_f32 v53, v53")
    a("v_mul_f32 v52, v52, v53")
    a(f"v_mov_b32 v54, {WS_OS - WS_OP}")
    if local:
        a("v_cmp_ne_u32 vcc, s74, v55")
        a("v_cndmask_b32 v55, 0, v54, vcc")
    else:
        a("v_mov_b32 v55, v54")
    for src, d0 in ((52, 56), (55, 58)):
        a(f"v_mov_b32_dpp v{d0}, v{src} quad_perm:[0,0,0,0] row_mask:0x3 bank_mask:0xf")
        a(f"v_mov_b32_dpp v{d0+1}, v{src} quad_perm:[2,2,2,2] row_mask:0x3 bank_mask:0xf")
        a(f"v_mov_b32_dpp v{d0}, v{src} quad_perm:[1,1,1,1] row_mask:0xc bank_mask:0xf")
        a(f"v_mov_b32_dpp v{d0+1}, v{src} quad_perm:[3,3,3,3] row_mask:0xc bank_mask:0xf")
    a("v_add_u32 v58, v58, v1")
    a("v_add_u32 v59, v59, v1")
    if await_stage:
        a("v_and_b32 v61, 3, v0")
        a("v_lshlrev_b32 v61, 2, v61")
        a(f"v_add_u32 v61, {L_FL}, v61")
        lds_wait_zero("aws", 61, 62, 2)
    spin_head("pA")
    a("buffer_load_dwordx4 v[44:47], v58, s[24:27], s78 offen sc1")
    a("buffer_load_dwordx4 v[48:51], v59, s[24:27], s78 offen offset:1024 sc1")
    a(f"s_cmp_lg_u32 s75, {SPIN - 400}")
    a("s_cbranch_scc1 L_pA_nf")
    a("v_add_u32 v58, v54, v1")
    a("v_add_u32 v59, v54, v1")
    a("L_pA_nf:")
    spin_bail("pA")
    a("s_waitcnt vmcnt(0)")
    untag_check(list(range(44, 52)), 60, "pA")
    stampat(6)
    for r in range(4): a(f"v_mul_f32 v{44+r}, v{44+r}, v56")
    for r in range(4): a(f"v_fmac_f32 v{44+r}, v{48+r}, v57")
    swap_add([44, 45, 46, 47], 48, "v_permlane32_swap_b32")
    a("v_cvt_pk_bf16_f32 v44, v44, v45")
    a("v_cvt_pk_bf16_f32 v45, v46, v47")
    a("s_mov_b32 exec_hi, 0")
    a("ds_write_b64 v30, v[44:45]")
    a("s_waitcnt lgkmcnt(0)")
    a("s_barrier")
    stampat(7)
    a("s_mov_b64 exec, -1")
    a("s_branch L_fin")

    a("L_kv_m:")
    kv_path("m", na, npl, Dm)
    a(f"s_cmp_ge_u32 s2, {NMLP}")
    a("s_cbranch_scc1 L_fin")
    unpack(36, 60, 2)
    a("s_mov_b64 exec, 0xff")
    spin_head("pB0")
    a("s_sleep 2")
    a("buffer_load_dwordx4 v[40:43], v1, s[24:27], s78 offen sc1")
    spin_bail("pB0")
    a("s_waitcnt vmcnt(0)")
    untag_check([40, 41, 42, 43], 56, "pB0")
    a("s_mov_b64 exec, -1")
    if masked:
        masked_poll("pB", [(40 + 4*k, f"buffer_load_dwordx4 v[{40+4*k}:{43+4*k}], v1, s[24:27], s78 offen offset:{1024*k} sc1") for k in range(4)], 56)
    else:
        spin_head("pB")
        for k in range(4):
            a(f"buffer_load_dwordx4 v[{40+4*k}:{43+4*k}], v1, s[24:27], s78 offen offset:{1024*k} sc1")
        spin_bail("pB")
        a("s_waitcnt vmcnt(0)")
        untag_check(list(range(40, 56)), 56, "pB")
    stampat(6)
    for r in range(4):
        a(f"v_add_f32 v{40+r}, v{40+r}, v{44+r}")
        a(f"v_add_f32 v{48+r}, v{48+r}, v{52+r}")
    for r in range(4): a(f"v_add_f32 v{40+r}, v{40+r}, v{48+r}")
    swap_add([40, 41, 42, 43], 44, "v_permlane32_swap_b32")
    round4(40)
    for r in range(4): a(f"v_add_f32 v{40+r}, v{40+r}, v{60+r}")
    a("v_cvt_pk_bf16_f32 v40, v40, v41")
    a("v_cvt_pk_bf16_f32 v41, v42, v43")
    a("s_mov_b32 exec_hi, 0")
    a("ds_write_b64 v30, v[40:41]")
    a("s_mov_b64 exec, -1")
    a("s_lshl_b32 s73, s59, 10")
    a(f"s_add_u32 s73, s73, {L_HB}")
    a("v_add_u32 v52, s73, v1")
    a(f"s_mul_i32 s73, s59, {APITCH}")
    a(f"s_add_u32 s73, s73, {L_A}")
    a("v_add_u32 v53, s73, v1")
    a("s_waitcnt lgkmcnt(0)")
    a("s_barrier")
    a("s_cmp_ge_u32 s59, 2")
    a("s_cbranch_scc1 L_fin")
    a("ds_read_b128 v[96:99], v52")
    a("v_lshrrev_b32 v40, 2, v0")
    a("v_and_b32 v43, 3, v0")
    a("v_lshlrev_b32 v44, 7, v40")
    a("v_lshl_or_b32 v44, v43, 4, v44")
    a("s_min_u32 s78, s2, 31")
    a("s_mul_i32 s78, s78, 5504")
    a("s_lshl_b32 s73, s59, 6")
    a("s_add_u32 s78, s78, s73")
    a(f"s_add_u32 s78, s78, {WS_Y}")
    a("s_add_u32 s79, s78, 2048")
    a("s_add_u32 s77, s78, 4096")
    if warmc:
        for k, so in enumerate((78, 79, 77)):
            a(f"buffer_load_dwordx4 v[{12+4*k}:{15+4*k}], v44, s[24:27], s{so} offen sc1")
    a("s_waitcnt lgkmcnt(0)")
    unpack(96, 100)
    ln_sums(100, 108, 68, 69, 70)
    a("v_mov_b32 v118, s69")
    a("v_mov_b32 v119, s70")
    ln_finish("s68", 118, 119, 108)
    ln_apply(100, 108, 118, 119)
    for k in range(4):
        a(f"v_cvt_pk_bf16_f32 v{120+k}, v{108+2*k}, v{109+2*k}")
    a("ds_write_b128 v53, v[120:123]")
    a("s_waitcnt lgkmcnt(0)")
    a("s_barrier")
    stampat(7)
    a("s_cmp_ge_u32 s2, 32")
    a("s_cbranch_scc1 L_fin")
    a("v_mov_b32 v47, 0")
    for k in range(4):
        a(f"v_dot2c_f32_bf16 v47, v{120+k}, v{32+k}")
    wave_reduce([47])
    a("v_readlane_b32 s73, v47, 63")
    a("v_mov_b32 v47, s73")
    bf16r(47)
    a("v_mul_f32 v47, 0xbfb8aa3b, v47")
    a("v_exp_f32 v47, v47")
    a("v_add_f32 v47, 1.0, v47")
    a("v_rcp_f32 v47, v47")
    bf16r(47)
    a("s_lshl_b32 s73, s59, 2")
    a(f"s_add_u32 s73, s73, {L_ACT + 0x80}")
    a("v_mov_b32 v46, s73")
    a("ds_write_b32 v46, v47")
    a("s_lshl_b32 s74, s2, 5")
    a("s_lshl_b32 s73, s59, 4")
    a("s_add_u32 s76, s74, s73")
    a("v_lshlrev_b32 v45, 2, v43")
    a(f"s_add_u32 s73, s76, {L_HB}")
    a("v_add_u32 v46, s73, v45")
    a("ds_read_b32 v50, v46")
    a("ds_read_b32 v51, v46 offset:1024")
    a(f"s_add_u32 s73, s76, {L_A}")
    a("v_add_u32 v46, s73, v45")
    a("ds_read_b32 v48, v46")
    a(f"ds_read_b32 v49, v46 offset:{APITCH}")
    a(f"v_mov_b32 v46, {L_ACT + 0x80}")
    a("s_waitcnt lgkmcnt(0)")
    a("v_lshlrev_b32 v100, 16, v48"); a("v_lshlrev_b32 v101, 16, v49")
    a("v_and_b32 v102, 0xffff0000, v48"); a("v_and_b32 v103, 0xffff0000, v49")
    a("v_lshlrev_b32 v104, 16, v50"); a("v_lshlrev_b32 v105, 16, v51")
    a("v_and_b32 v106, 0xffff0000, v50"); a("v_and_b32 v107, 0xffff0000, v51")
    a("s_waitcnt vmcnt(0)")
    for r in range(4): a(f"v_mov_b32 v{20+r}, 0")
    a("s_barrier")
    stampat(8)
    a("ds_read_b64 v[46:47], v46")
    if cdelay: a(f"s_sleep {cdelay}")
    spin_head("pC")
    a("buffer_load_dwordx4 v[12:15], v44, s[24:27], s78 offen sc1")
    a("buffer_load_dwordx4 v[16:19], v44, s[24:27], s79 offen sc1")
    a("s_mov_b32 exec_hi, 0xfff")
    a("buffer_load_dwordx4 v[20:23], v44, s[24:27], s77 offen sc1")
    a("s_waitcnt vmcnt(0)")
    for r in range(4): a(f"v_xor_b32 v{20+r}, s{60+r}, v{20+r}")
    a("s_mov_b64 exec, -1")
    spin_bail("pC")
    untag_check(list(range(12, 24)), 24, "pC", pre={20, 21, 22, 23})
    stampat(4)
    for r in range(4): a(f"v_add_f32 v{12+r}, v{12+r}, v{16+r}")
    for r in range(4): a(f"v_add_f32 v{12+r}, v{12+r}, v{20+r}")
    for m in ("row_ror:4", "row_ror:8"):
        for r in range(4):
            a(f"v_add_f32_dpp v{12+r}, v{12+r}, v{12+r} {m} row_mask:0xf bank_mask:0xf")
    swap_add([12, 13, 14, 15], 16, "v_permlane16_swap_b32")
    swap_add([12, 13, 14, 15], 16, "v_permlane32_swap_b32")
    round4(12)
    a("s_waitcnt lgkmcnt(0)")
    for r in range(4): a(f"v_mul_f32 v{12+r}, v{12+r}, v{46 + (r & 1)}")
    round4(12)
    for r in range(4): a(f"v_add_f32 v{12+r}, v{12+r}, v{100+r}")
    round4(12)
    for r in range(4): a(f"v_add_f32 v{12+r}, v{12+r}, v{104+r}")
    a("v_cvt_pk_bf16_f32 v12, v12, v14")
    a("v_cvt_pk_bf16_f32 v13, v13, v15")
    a("s_mov_b64 exec, 0xf")
    a("buffer_store_dword v12, v45, s[48:51], s76 offen")
    a("buffer_store_dword v13, v45, s[48:51], s76 offen offset:1024")
    a("s_cmp_lg_u32 s76, 0")
    a("s_cbranch_scc1 L_noep")
    a("s_mov_b64 exec, 1")
    a("v_mov_b32 v14, s29")
    a("buffer_store_dword v14, v45, s[24:27], 0 offen")
    a("L_noep:")
    a("s_mov_b64 exec, -1")
    stampat(9)
    a("s_branch L_fin")

    a("L_aux:")
    a("s_and_b32 s55, s2, 31")
    a("s_bfe_u32 s56, s2, 0x10005")
    a("v_lshrrev_b32 v2, 4, v0")
    a("v_and_b32 v3, 15, v0")
    a("s_mov_b32 s10, 0x400000")
    a("s_mov_b32 s11, 0x20000")
    a("v_lshlrev_b32 v8, 18, v2")
    a("v_lshl_or_b32 v8, v3, 4, v8")
    a("s_lshl_b32 s54, s3, 20")
    a("s_lshl_b32 s53, s55, 8")
    a("s_or_b32 s54, s54, s53")
    a("v_lshlrev_b32 v10, 6, v2")
    a("s_lshl_b32 s52, s56, 10")
    a("s_lshl_b32 s53, s3, 8")
    a("s_add_u32 s53, s53, s52")
    a("s_movk_i32 s65, 0x2000")
    a("s_waitcnt lgkmcnt(0)")
    a("buffer_load_dwordx4 v[20:23], v1, s[4:7], s52 offen")
    for k in range(4):
        a(f"buffer_load_dwordx4 v[{56+4*k}:{59+4*k}], v10, s[4:7], s53 offen offset:{16*k}")
    QR = 24
    q = dict(iss=0, landed=-1)
    def qreg(i): return 72 + 4 * (i % QR)
    def ld_wq():
        i = q["iss"]
        r = qreg(i)
        a(f"buffer_load_dwordx4 v[{r}:{r+3}], v8, s[8:11], s54 offen {wq_aux}")
        if i < 31: a("s_add_u32 s54, s54, s65")
        q["iss"] += 1
    def wait_wq(i):
        if i <= q["landed"]: return
        a(f"s_waitcnt vmcnt({q['iss'] - 1 - i})")
        q["landed"] = i
    for i in range(DQ): ld_wq()
    epoch_load()
    srd(20, 32, 0x400000)
    srd(32, 56, 1409024)
    srd(36, 64, 1409024)
    srd(40, 72, 1409024)
    a("s_cmp_lg_u32 s3, 1")
    a("s_cbranch_scc1 L_noinit")
    for r in range(4): a(f"v_mov_b32 v{12+r}, -1")
    a(f"v_add_u32 v9, {L_INIT}, v1")
    for k in range(7):
        a(f"ds_write_b128 v9, v[12:15] offset:{1024*k}")
    for r in range(4): a(f"v_mov_b32 v{16+r}, 0")
    a(f"v_mov_b32 v9, {L_ZERO}")
    a("ds_write_b128 v9, v[16:19]")
    a("L_noinit:")
    a("s_waitcnt lgkmcnt(0)")
    a("s_barrier")
    a(f"s_waitcnt vmcnt({DQ})")
    mark = len(a.lines)
    masks(12, 13)
    epoch_calc()
    unpack(20, 24)
    ln_sums(24, 32, 68, 69, 70)
    a("v_mov_b32 v10, s69")
    a("v_mov_b32 v11, s70")
    ln_finish("s68", 10, 11, 9)
    unpack(56, 24, 16)
    ln_apply(24, 24, 10, 11, 32)
    for i in range(32):
        a(f"v_cvt_pk_bf16_f32 v{24+i}, v{24+i}, v{24+i}")
    body = a.lines[mark:]
    del a.lines[mark:]
    for k in range(0, len(body), chunk):
        if q["iss"] < QR:
            wait_wq(q["iss"] - DQ)
            ld_wq()
        for ln in body[k:k+chunk]: a(ln)
    for i in range(32):
        t = 12 + 4 * (i & 1)
        for r in range(4):
            a(f"v_and_b32 v{t+r}, v{24+i}, v{4+r}")
        if i <= q["landed"] and i % 4 == 0 and q["iss"] < 32 and q["iss"] - QR < i:
            wait_wq(q["landed"] + 1)
        wait_wq(i)
        while q["iss"] < 32 and q["iss"] - 1 - q["landed"] < DQ and q["iss"] - QR < i: ld_wq()
        c = "0" if i == 0 else "v[20:23]"
        a(f"v_mfma_f32_16x16x32_bf16 v[20:23], v[{t}:{t+3}], v[{qreg(i)}:{qreg(i)+3}], {c}")
    assert q["iss"] == 32
    a("s_lshl_b32 s52, s3, 9")
    a(f"s_add_u32 s52, s52, {L_QP}")
    a("v_lshlrev_b32 v8, 5, v3")
    a("v_lshl_add_u32 v8, v2, 4, v8")
    a("v_add_u32 v8, s52, v8")
    a("s_mov_b32 exec_hi, 0")
    a("ds_write_b128 v8, v[20:23]")
    a("s_mov_b64 exec, -1")
    stampat(1)
    a("s_cmp_lg_u32 s3, 0")
    a("s_cbranch_scc1 L_aux2")
    a("v_lshlrev_b32 v8, 3, v0")
    a(f"v_add_u32 v11, {L_QP}, v8")
    a("v_lshlrev_b32 v9, 2, v0")
    a(f"v_add_u32 v10, {L_QB}, v9")
    spin_head("pQ")
    for w in range(4):
        a(f"ds_read_b64 v[{12+2*w}:{13+2*w}], v11 offset:{512*w}")
    spin_bail("pQ")
    a("s_waitcnt lgkmcnt(0)")
    a("v_max3_u32 v20, v12, v13, v14")
    a("v_max3_u32 v21, v15, v16, v17")
    a("v_max3_u32 v20, v20, v18, v19")
    a("v_max_u32 v20, v20, v21")
    a("v_cmp_eq_u32 vcc, -1, v20")
    a("s_cbranch_vccnz L_pQ")
    a("L_pQ_ok:")
    for w in range(1, 4):
        a(f"v_add_f32 v12, v12, v{12+2*w}")
        a(f"v_add_f32 v13, v13, v{13+2*w}")
    a("v_cvt_pk_bf16_f32 v12, v12, v13")
    a("ds_write_b32 v10, v12")
    stampat(2)
    a("L_aux2:")
    if pretouch & 2:
        a("s_cmp_lg_u32 s3, 3")
        a("s_cbranch_scc1 L_npa")
        a("s_cmp_ge_u32 s57, 2")
        a("s_cbranch_scc1 L_npa")
        a("v_lshlrev_b32 v12, 18, v0")
        a("s_mov_b64 exec, 0x3f")
        for sr in (32, 36, 40):
            a(f"buffer_load_dword v13, v12, s[{sr}:{sr+3}], 0 offen")
        a("s_mov_b64 exec, 0xffff")
        a("buffer_load_dword v13, v12, s[20:23], 0 offen")
        a("s_mov_b64 exec, -1")
        a("L_npa:")
    a("v_lshrrev_b32 v33, 2, v3")
    a("v_lshl_add_u32 v33, v2, 3, v33")
    a("v_and_b32 v34, 3, v0")
    a("v_bfe_u32 v6, v3, 2, 1")
    a(f"v_mul_u32_u24 v6, {APITCH}, v6")
    a("v_lshl_add_u32 v6, v2, 4, v6")
    a(f"v_add_u32 v6, {L_A}, v6")
    a("v_lshlrev_b32 v35, 2, v34")
    a(f"v_add_u32 v35, {L_FL}, v35")
    def stage_loop(tag, sr, voff, depth, aux):
        a(f"L_st_{tag}:")
        a("s_mov_b32 m0, s54")
        if depth: a(f"s_waitcnt vmcnt({depth-1})")
        if not no_stage:
            a(f"buffer_load_dwordx4 v{voff}, s[{sr}:{sr+3}], s52 offen {aux} lds")
        a("s_add_u32 s52, s52, s53")
        a("s_add_u32 s54, s54, s58")
        a("s_sub_u32 s59, s59, 1")
        a("s_cmp_lg_u32 s59, 0")
        a(f"s_cbranch_scc1 L_st_{tag}")
    def set_flag():
        a("s_waitcnt vmcnt(0)")
        a("s_lshl_b32 s52, s3, 2")
        a(f"s_add_u32 s52, s52, {L_FL}")
        a("v_mov_b32 v8, s52")
        a("v_mov_b32 v9, 0")
        a("ds_write_b32 v8, v9")
        stampat(9)
    a("s_cmp_lg_u32 s3, 0")
    a("s_cbranch_scc1 L_aux3a")
    a("v_lshlrev_b32 v8, 3, v0")
    a(f"v_add_u32 v11, {L_OP}, v8")
    a("v_and_b32 v9, 7, v0")
    a("v_lshlrev_b32 v9, 3, v9")
    a(f"v_add_u32 v9, {L_MB}, v9")
    spin_head("pM")
    a("s_sleep 4")
    a("ds_read_b64 v[12:13], v9")
    spin_bail("pM")
    a("s_waitcnt lgkmcnt(0)")
    a("v_max_u32 v14, v12, v13")
    a("v_cmp_eq_u32 vcc, -1, v14")
    a("s_cbranch_vccnz L_pM")
    a("L_pM_ok:")
    oct_ = ("quad_perm:[1,0,3,2]", "quad_perm:[2,3,0,1]", "row_half_mirror")
    a("v_mov_b32 v16, v12")
    for m in oct_:
        a(f"v_max_f32_dpp v16, v16, v16 {m} row_mask:0xf bank_mask:0xf")
    a("v_sub_f32 v14, v12, v16")
    a(f"v_mul_f32 v14, {LOG2E:#x}, v14")
    a("v_exp_f32 v14, v14")
    a("v_mul_f32 v17, v13, v14")
    for m in oct_:
        a(f"v_add_f32_dpp v17, v17, v17 {m} row_mask:0xf bank_mask:0xf")
    a("s_getreg_b32 s53, hwreg(HW_REG_XCC_ID, 0, 4)")
    a("s_xor_b32 s53, s53, s29")
    a("v_mov_b32 v18, s29")
    a("v_mov_b32 v19, s53")
    a("s_lshl_b32 s52, s55, 1")
    a("s_add_u32 s52, s52, s56")
    a("s_lshl_b32 s52, s52, 2")
    a("s_add_u32 s52, s52, s57")
    a("s_lshl_b32 s53, s52, 7")
    a(f"s_add_u32 s53, s53, {WS_MLX}")
    a("s_lshl_b32 s52, s52, 9")
    a(f"s_add_u32 s52, s52, {WS_OP}")
    a("s_mov_b64 exec, 1")
    a("buffer_store_dwordx4 v[16:19], v8, s[24:27], s53 offen sc1")
    a("s_mov_b64 exec, -1")
    a(f"s_add_u32 s53, s52, {WS_OS - WS_OP}")
    stampat(3)
    for w in range(8):
        a(f"v_readlane_b32 s{44+w}, v14, {w}")
    a("v_and_b32 v9, 1, v0")
    a("v_lshlrev_b32 v9, 4, v9")
    a("v_lshrrev_b32 v9, v9, s29")
    a("v_bfe_u32 v10, v9, 8, 8")
    a("v_and_b32 v9, 0xff, v9")
    a("s_mov_b32 s71, s52")
    a("s_mov_b32 s72, s53")
    stampat(4)
    a("L_aux3a:")
    a("s_cmp_lg_u32 s57, 1")
    a("s_cbranch_scc1 L_aux3")
    a("v_lshrrev_b32 v36, 3, v0")
    a("v_and_b32 v37, 7, v0")
    a("v_lshlrev_b32 v36, 10, v36")
    a("v_lshl_or_b32 v36, v37, 4, v36")
    a("s_and_b32 s52, s2, 7")
    a("s_lshl_b32 s52, s52, 17")
    a("s_lshl_b32 s53, s3, 20")
    a("s_add_u32 s52, s52, s53")
    a("s_bfe_u32 s53, s2, 0x30003")
    a("s_lshl_b32 s53, s53, 7")
    a("s_add_u32 s52, s52, s53")
    a("s_lshl_b32 s54, s3, 14")
    a("s_movk_i32 s53, 0x2000")
    a("s_movk_i32 s58, 0x400")
    a("s_movk_i32 s59, 16")
    if rd_late:
        a("v_and_b32 v38, 7, v0")
        a("v_lshlrev_b32 v38, 2, v38")
        a(f"v_add_u32 v38, {L_KD}, v38")
        lds_wait_zero("kdr", 38, 39, 2)
        stampat(4)
    stage_loop("rd", 20, 36, DSR, wo_aux)
    a("L_aux3:")
    a("s_cmp_lg_u32 s3, 0")
    a("s_cbranch_scc1 L_aux4")
    spin_head("pO")
    if osleep: a(f"s_sleep {osleep}")
    for w in range(8):
        a(f"ds_read_b64 v[{12+2*w}:{13+2*w}], v11 offset:{512*w}")
    spin_bail("pO")
    a("s_waitcnt lgkmcnt(0)")
    a("v_max3_u32 v28, v12, v13, v14")
    a("v_max3_u32 v29, v15, v16, v17")
    a("v_max3_u32 v30, v18, v19, v20")
    a("v_max3_u32 v31, v21, v22, v23")
    a("v_max3_u32 v32, v24, v25, v26")
    a("v_max3_u32 v28, v28, v29, v30")
    a("v_max3_u32 v31, v31, v32, v27")
    a("v_max_u32 v28, v28, v31")
    a("v_cmp_eq_u32 vcc, -1, v28")
    a("s_cbranch_vccnz L_pO")
    a("L_pO_ok:")
    stampat(5)
    a("v_mul_f32 v12, s44, v12"); a("v_mul_f32 v13, s44, v13")
    a("v_mul_f32 v20, s48, v20"); a("v_mul_f32 v21, s48, v21")
    for w in range(1, 4):
        a(f"v_fmac_f32 v12, s{44+w}, v{12+2*w}"); a(f"v_fmac_f32 v13, s{44+w}, v{13+2*w}")
        a(f"v_fmac_f32 v20, s{48+w}, v{20+2*w}"); a(f"v_fmac_f32 v21, s{48+w}, v{21+2*w}")
    a("v_add_f32 v12, v12, v20"); a("v_add_f32 v13, v13, v21")
    a("v_and_or_b32 v12, v12, s31, v9")
    a("v_and_or_b32 v13, v13, s31, v10")
    if local:
        a("buffer_store_dwordx2 v[12:13], v8, s[24:27], s71 offen")
    a("buffer_store_dwordx2 v[12:13], v8, s[24:27], s72 offen sc1")
    stampat(6)
    a("L_aux4:")
    def gemm16(acc):
        for ks in range(12):
            a(f"ds_read_b128 v[{16+4*ks}:{19+4*ks}], v6 offset:{64*ks}")
        out = 12
        for ks in range(16):
            nxt = ks + 12
            a(f"s_waitcnt lgkmcnt({out - 1})")
            out -= 1
            ab = 16 + 4 * (ks % 12)
            c = "0" if ks == 0 else f"v[{acc}:{acc+3}]"
            a(f"v_mfma_f32_16x16x32_bf16 v[{acc}:{acc+3}], v[{ab}:{ab+3}], v[{64+4*ks}:{67+4*ks}], {c}")
            if nxt < 16:
                a(f"ds_read_b128 v[{ab}:{ab+3}], v6 offset:{64*nxt}")
                out += 1
    a("s_cmp_lg_u32 s57, 1")
    a("s_cbranch_scc1 L_aux5")
    set_flag()
    lds_wait_zero("flr", 35, 12, 1)
    a("v_lshlrev_b32 v10, 7, v33")
    a("v_lshl_add_u32 v10, v34, 3, v10")
    a("s_lshl_b32 s52, s3, 5")
    a("v_add_u32 v10, s52, v10")
    for ks in range(16):
        for hh in range(2):
            d = 64 + 4 * ks + 2 * hh
            a(f"ds_read_b64_tr_b16 v[{d}:{d+1}], v10 offset:{ks*4096 + hh*512}")
    a("v_lshlrev_b32 v7, 3, v34")
    a("v_lshrrev_b32 v7, v7, s29")
    a("v_and_b32 v7, 0xff, v7")
    a("v_lshlrev_b32 v5, 2, v0")
    a("s_and_b32 s70, s2, 63")
    a("s_lshl_b32 s70, s70, 2")
    a("s_add_u32 s70, s70, s3")
    a("s_lshl_b32 s70, s70, 7")
    a(f"s_add_u32 s70, s70, {WS_ZX}")
    a("s_waitcnt lgkmcnt(0)")
    stampat(7)
    a("s_barrier")
    gemm16(12)
    a("s_mov_b32 exec_hi, 0")
    a("v_and_or_b32 v12, v12, s31, v7")
    a("buffer_store_dword v12, v5, s[24:27], s70 offen sc1")
    a("s_mov_b64 exec, -1")
    stampat(8)
    if ackstamp:
        a("s_waitcnt vmcnt(0)")
        stampat(1)
    a("s_branch L_fin")
    a("L_aux5:")
    a(f"s_cmp_ge_u32 s2, {NMLP}")
    a("s_cbranch_scc1 L_fin")
    a("s_cmp_eq_u32 s3, 0")
    a("s_cbranch_scc1 L_staged")
    a("v_and_b32 v10, 7, v0")
    a("v_lshlrev_b32 v10, 2, v10")
    a(f"v_add_u32 v10, {L_KD}, v10")
    lds_wait_zero("kd", 10, 11, 2)
    stampat(3)
    a("s_movk_i32 s59, 32")
    a("s_cmp_eq_u32 s3, 3")
    a("s_cbranch_scc1 L_st_dn0")
    a("v_lshrrev_b32 v8, 2, v0")
    a("v_mul_u32_u24 v8, 2752, v8")
    a("v_lshl_add_u32 v8, v34, 4, v8")
    a("s_lshl_b32 s52, s2, 6")
    a("s_mov_b32 s53, 44032")
    a("s_movk_i32 s58, 0x400")
    a("s_mov_b32 s54, 0")
    a("s_cmp_eq_u32 s3, 2")
    a("s_cbranch_scc1 L_st_up0")
    stage_loop("g", 32, 8, 0, mlp_aux)
    a("s_branch L_staged")
    a("L_st_up0:")
    a(f"s_mov_b32 s54, {L_UP}")
    stage_loop("u", 36, 8, 0, mlp_aux)
    a("s_branch L_staged")
    a("L_st_dn0:")
    a("s_lshl_b32 s52, s2, 15")
    a("s_movk_i32 s53, 0x400")
    a(f"s_mov_b32 s54, {L_DN}")
    a(f"s_movk_i32 s58, {DNP}")
    stage_loop("d", 40, 1, 0, dn_aux)
    a("L_staged:")
    set_flag()
    lds_wait_zero("flm", 35, 12, 1)
    a("v_lshlrev_b32 v10, 6, v33")
    a("v_and_b32 v11, 1, v0")
    a("v_lshl_add_u32 v10, v11, 3, v10")
    a("v_bfe_u32 v11, v0, 1, 1")
    a(f"v_mul_u32_u24 v11, {L_UP}, v11")
    a("v_add_u32 v10, v11, v10")
    a("s_lshl_b32 s52, s3, 4")
    a("v_add_u32 v10, s52, v10")
    for ks in range(16):
        for hh in range(2):
            d = 64 + 4 * ks + 2 * hh
            a(f"ds_read_b64_tr_b16 v[{d}:{d+1}], v10 offset:{ks*2048 + hh*256}")
    a(f"v_mul_u32_u24 v10, {DNP}, v33")
    a("v_lshl_add_u32 v10, v34, 3, v10")
    a("s_lshl_b32 s52, s3, 8")
    a(f"s_add_u32 s52, s52, {L_DN}")
    a("v_add_u32 v10, s52, v10")
    for t in range(8):
        for hh in range(2):
            d = 128 + 4 * t + 2 * hh
            a(f"ds_read_b64_tr_b16 v[{d}:{d+1}], v10 offset:{hh*4*DNP + t*32}")
    a("v_and_b32 v4, 1, v2")
    a("v_lshlrev_b32 v4, 6, v4")
    a("v_lshl_add_u32 v4, v3, 1, v4")
    a("s_lshl_b32 s52, s3, 4")
    a(f"s_add_u32 s52, s52, {L_ACT}")
    a("v_add_u32 v4, s52, v4")
    a("v_and_b32 v10, 1, v3")
    a("v_lshlrev_b32 v10, 6, v10")
    a("v_lshl_add_u32 v10, v2, 4, v10")
    a(f"v_add_u32 v10, {L_ACT}, v10")
    a(f"v_mov_b32 v11, {L_ZERO}")
    a("v_lshrrev_b32 v9, 2, v3")
    for u in range(4):
        a(f"v_cmp_eq_u32 vcc, {u}, v9")
        a(f"v_cndmask_b32 v{160+u}, v11, v10, vcc")
    a("v_mul_u32_u24 v5, 5504, v2")
    a("v_lshl_add_u32 v5, v3, 3, v5")
    a("s_mul_i32 s52, s3, 44032")
    a("s_lshl_b32 s53, s2, 7")
    a("s_add_u32 s52, s52, s53")
    a(f"s_add_u32 s52, s52, {WS_Y}")
    a("s_add_u32 s53, s52, 22016")
    a("v_and_b32 v7, 1, v0")
    a("v_lshlrev_b32 v7, 4, v7")
    a("v_lshrrev_b32 v7, v7, s29")
    a("v_bfe_u32 v164, v7, 8, 8")
    a("v_and_b32 v7, 0xff, v7")
    a("s_waitcnt lgkmcnt(0)")
    stampat(7)
    a("s_barrier")
    a("s_barrier")
    gemm16(12)
    a("v_cvt_pk_bf16_f32 v12, v12, v12")
    a("v_lshlrev_b32 v12, 16, v12")
    a("v_mul_f32 v13, 0xbfb8aa3b, v12")
    a("v_exp_f32 v13, v13")
    a("v_add_f32 v13, 1.0, v13")
    a("v_rcp_f32 v13, v13")
    a("v_mul_f32 v13, v12, v13")
    bf16r(13)
    a("v_mul_f32_dpp v13, v12, v13 row_ror:8 row_mask:0xf bank_mask:0xf")
    a("v_cvt_pk_bf16_f32 v13, v13, v13")
    a("s_mov_b64 exec, 0x00ff00ff")
    a("ds_write_b16 v4, v13")
    a("s_mov_b64 exec, -1")
    a("s_waitcnt lgkmcnt(0)")
    a("s_barrier")
    for u in range(4):
        a(f"ds_read_b128 v[{16+4*u}:{19+4*u}], v{160+u}")
    for u in range(4):
        a(f"s_waitcnt lgkmcnt({3-u})")
        for hf in range(2):
            acc = 8 + 4 * hf
            t = hf * 4 + u
            c = "0" if u == 0 else f"v[{acc}:{acc+3}]"
            a(f"v_mfma_f32_16x16x32_bf16 v[{acc}:{acc+3}], v[{16+4*u}:{19+4*u}], v[{128+4*t}:{131+4*t}], {c}")
    for hf in range(2):
        r = 8 + 4 * hf
        a(f"v_and_or_b32 v{r}, v{r}, s31, v7")
        a(f"v_and_or_b32 v{r+1}, v{r+1}, s31, v164")
        a(f"buffer_store_dwordx2 v[{r}:{r+1}], v5, s[24:27], s{52+hf} offen sc1")
    stampat(8)
    if ackstamp:
        a("s_waitcnt vmcnt(0)")
        stampat(1)

    a("L_fin:")
    if stamps:
        a("s_waitcnt lgkmcnt(0)")
        a("s_mul_i32 s64, s3, 80")
        a(f"s_add_u32 s64, s64, {L_STAMP}")
        a("v_mov_b32 v40, s64")
        a("s_mov_b64 exec, 1")
        for i in range(10):
            a(f"v_mov_b32 v12, s{80+2*i}")
            a(f"v_mov_b32 v13, s{81+2*i}")
            a(f"ds_write_b64 v40, v[12:13] offset:{8*i}")
        a("s_mov_b64 exec, -1")
        a("s_waitcnt lgkmcnt(0)")
        a("s_cmp_lg_u32 s3, 1")
        a("s_cbranch_scc1 L_end")
        if hold_x is not None:
            a(f"s_cmp_lg_u32 s2, {128 + hold_x}")
            a("s_cbranch_scc1 L_end")
        a("L_hold:")
        a(f"s_sleep {32 if hold_x is None else 2}")
        a("s_memrealtime s[66:67]")
        a("s_waitcnt lgkmcnt(0)")
        a("s_sub_u32 s66, s66, s80")
        a("s_cmp_lt_u32 s66, 4500")
        a("s_cbranch_scc1 L_hold")
        a(f"v_add_u32 v40, {L_STAMP}, v1")
        a("ds_read_b128 v[12:15], v40")
        a("s_mul_i32 s64, s2, 1280")
        a(f"s_add_u32 s64, s64, {512<<20}")
        a("v_add_u32 v40, s64, v1")
        a("s_waitcnt lgkmcnt(0)")
        a("global_store_dwordx4 v40, v[12:15], s[24:25]")
    a("L_end:")
    a("s_endpgm")
    a('.section .rodata,"a"')
    a(".p2align 6")
    a(f".amdhsa_kernel {NAME}_kernel")
    a(f"  .amdhsa_next_free_vgpr {NVGPR}")
    a("  .amdhsa_next_free_sgpr 102")
    a(f"  .amdhsa_accum_offset {NVGPR}")
    a("  .amdhsa_group_segment_fixed_size 0")
    a("  .amdhsa_kernarg_size 104")
    a("  .amdhsa_user_sgpr_count 2")
    a("  .amdhsa_user_sgpr_kernarg_segment_ptr 1")
    a("  .amdhsa_system_sgpr_workgroup_id_x 1")
    a(".end_amdhsa_kernel")
    return a.finalize()

if __name__ == "__main__":
    out = sys.argv[1]
    kw = eval("dict(" + (sys.argv[2] if len(sys.argv) > 2 else "") + ")")
    open(out, "w").write(gen(**kw))
```

```python
import sys, json
from asmlib import Asm
from gen import HDR, NAME

WS_EP = 0
WS_MLX = 0x1000
WS_OP = 0x9000
WS_OS = 0x29000
WS_ZX = 0x49000
WS_Y = 0x51000
WS_SIZE = WS_Y + 43 * 4096
L_UP = 0x8020
L_DN = 0x10040
DNP = 1056
L_INIT = 0x18800
L_OP = L_INIT
L_QP = L_INIT + 0x1000
L_QB = L_INIT + 0x1800
L_MB = L_INIT + 0x1900
L_FL = L_INIT + 0x1940
L_ACT = L_INIT + 0x1980
L_SG = L_INIT + 0x1A00
L_ZERO = L_INIT + 0x1C00
L_A = L_INIT + 0x1D00
APITCH = 1088
L_ST = L_A + 0x900
L_STAMP = L_ST + 0x100
LDS_SIZE = L_STAMP + 0x400
NMLP = 43
SPIN = 100000
LOG2E = 0x3fb8aa3b
SCALE = 0x3db504f3
NVGPR = 168

def gen(stamps=False, D0=2, N0=18, D=3, Dm=4, Dr=4, NPRE=22, ring=31, DQ=4,
        gvec=(0,1,5,6,7,8,9), wbit=2, gx=((3,1),(4,5),(5,0)), kv_aux="nt", wq_aux="", wo_aux="", mlp_aux="", dn_aux="",
        no_stage=False, CU=4, chunk=24, cdelay=2, local=True, osleep=1, rot_m=8, rot_r=16, c3=96|24,
        bm_from=0, br_from=0, early_m=1, early_r=1, hold_x=None, hold_t=4500, bsleep=2, aux_prio=0, noround=False):
    a = Asm()
    n = 32
    def stampat(i):
        if stamps:
            a(f"s_memrealtime s[{80+2*i}:{81+2*i}]")

    a(HDR + f"; @launch grid=(256,1,1) block=(768,1,1) lds={LDS_SIZE}")
    a('.amdgcn_target "amdgcn-amd-amdhsa--gfx950"')
    a(".text")
    a(f".globl {NAME}_kernel")
    a(".p2align 8")
    a(f".type {NAME}_kernel,@function")
    a(f"{NAME}_kernel:")
    stampat(0)
    a("s_load_dwordx2 s[12:13], s[0:1], 8")
    a("s_load_dwordx2 s[4:5], s[0:1], 0")
    a("s_load_dwordx2 s[8:9], s[0:1], 24")
    a("s_load_dwordx2 s[24:25], s[0:1], 96")
    if stamps:
        for i in range(1, 10):
            a(f"s_mov_b64 s[{80+2*i}:{81+2*i}], 0")
    a("s_cmp_ge_u32 s2, 256")
    a("s_cbranch_scc1 L_end")
    a("v_lshrrev_b32 v2, 6, v0")
    a("v_and_b32 v0, 63, v0")
    a("v_readfirstlane_b32 s3, v2")
    a("v_lshlrev_b32 v1, 4, v0")
    a("s_mov_b32 s14, 0x10000000")
    a("s_mov_b32 s15, 0x20000")
    a("s_movk_i32 s6, 2048")
    a("s_mov_b32 s7, 0x20000")
    a(f"s_mov_b32 s26, {WS_SIZE}")
    a("s_mov_b32 s27, 0x20000")
    a("s_lshr_b32 s57, s2, 6")
    a("s_cmp_ge_u32 s3, 8")
    a("s_cbranch_scc1 L_aux")

    def epoch_load():
        a("s_load_dword s28, s[24:25], 0")
    def epoch_calc():
        a("s_and_b32 s29, s28, 0x7f7f7f7f")
        a("s_add_u32 s29, s29, 0x07050301")
        a("s_and_b32 s30, s28, 0x80808080")
        a("s_xor_b32 s29, s29, s30")
        for k in range(4):
            a(f"s_bfe_u32 s{60+k}, s29, {(8*k) | (8 << 16):#x}")
        a("s_mov_b32 s31, 0xffffff00")
    def srd(base, off, size):
        a(f"s_load_dwordx2 s[{base}:{base+1}], s[0:1], {off}")
        a(f"s_mov_b32 s{base+2}, {size}")
        a(f"s_mov_b32 s{base+3}, 0x20000")
    def masks(t0, t1):
        a(f"v_and_b32 v{t0}, 1, v0")
        a(f"v_lshlrev_b32 v{t0}, 4, v{t0}")
        a(f"v_mov_b32 v{t1}, 0xffff")
        a(f"v_lshlrev_b32 v{t0}, v{t0}, v{t1}")
        a(f"v_bfe_u32 v{t1}, v0, 1, 3")
        for r in range(4):
            a(f"v_cmp_eq_u32 vcc, {r}, v{t1}")
            a(f"v_cndmask_b32 v{4+r}, 0, v{t0}, vcc")
    def unpack(src, dst, n=4):
        for k in range(n):
            a(f"v_lshlrev_b32 v{dst+2*k}, 16, v{src+k}")
            a(f"v_and_b32 v{dst+2*k+1}, 0xffff0000, v{src+k}")
    def dpp_steps(regs, steps, op="v_add_f32"):
        for m in steps:
            for r in regs:
                a(f"{op}_dpp v{r}, v{r}, v{r} {m} row_mask:0xf bank_mask:0xf")
    def wave_reduce(regs, op="v_add_f32"):
        dpp_steps(regs, ("row_shr:1", "row_shr:2", "row_shr:4", "row_shr:8"), op)
        for r in regs:
            a(f"{op}_dpp v{r}, v{r}, v{r} row_bcast:15 row_mask:0xa bank_mask:0xf")
        for r in regs:
            a(f"{op}_dpp v{r}, v{r}, v{r} row_bcast:31 row_mask:0xc bank_mask:0xf")
    def bf16r(r):
        a(f"v_cvt_pk_bf16_f32 v{r}, v{r}, v{r}")
        a(f"v_lshlrev_b32 v{r}, 16, v{r}")
    def ln_sums(f, t, sc, o1, o2):
        a(f"v_readfirstlane_b32 s{sc}, v{f}")
        for i in range(8):
            a(f"v_subrev_f32 v{t+i}, s{sc}, v{f+i}")
        s1, s2 = t + 8, t + 9
        a(f"v_add_f32 v{s1}, v{t}, v{t+1}")
        a(f"v_mul_f32 v{s2}, v{t}, v{t}")
        a(f"v_fmac_f32 v{s2}, v{t+1}, v{t+1}")
        for i in range(2, 8):
            a(f"v_add_f32 v{s1}, v{s1}, v{t+i}")
            a(f"v_fmac_f32 v{s2}, v{t+i}, v{t+i}")
        wave_reduce([s1, s2])
        a(f"v_readlane_b32 s{o1}, v{s1}, 63")
        a(f"v_readlane_b32 s{o2}, v{s2}, 63")
    def ln_finish(c, mb, rs, t):
        a(f"v_mul_f32 v{mb}, 0x3b000000, v{mb}")
        a(f"v_mul_f32 v{rs}, 0x3b000000, v{rs}")
        a(f"v_fma_f32 v{rs}, -v{mb}, v{mb}, v{rs}")
        a(f"v_add_f32 v{mb}, {c}, v{mb}")
        a(f"v_max_f32 v{rs}, 0, v{rs}")
        a(f"v_cvt_pk_bf16_f32 v{t}, v{mb}, v{rs}")
        a(f"v_lshlrev_b32 v{mb}, 16, v{t}")
        a(f"v_and_b32 v{rs}, 0xffff0000, v{t}")
        a(f"v_add_f32 v{rs}, 0x3727c5ac, v{rs}")
        bf16r(rs)
        a(f"v_sqrt_f32 v{rs}, v{rs}")
        bf16r(rs)
        a(f"v_rcp_f32 v{rs}, v{rs}")
    def ln_apply(f, t, mb, rs, n=8):
        mbs = mb if isinstance(mb, (list, tuple)) else [mb] * n
        rss = rs if isinstance(rs, (list, tuple)) else [rs] * n
        for i in range(n):
            a(f"v_sub_f32 v{t+i}, v{f+i}, v{mbs[i]}")
        for k in range(n // 2):
            a(f"v_cvt_pk_bf16_f32 v{t+2*k+1}, v{t+2*k}, v{t+2*k+1}")
        for k in range(n // 2):
            a(f"v_lshlrev_b32 v{t+2*k}, 16, v{t+2*k+1}")
            a(f"v_and_b32 v{t+2*k+1}, 0xffff0000, v{t+2*k+1}")
        for i in range(n):
            a(f"v_mul_f32 v{t+i}, v{t+i}, v{rss[i]}")
    def spin_head(tag):
        a(f"s_mov_b32 s75, {SPIN}")
        a(f"L_{tag}:")
    def spin_bail(tag):
        a("s_sub_u32 s75, s75, 1")
        a(f"s_cbranch_scc1 L_{tag}_ok")
    def untag_check(regs, t, tag, pre=None):
        for i, r in enumerate(regs):
            if pre and r in pre: continue
            a(f"v_xor_b32 v{r}, s{60 + (i & 3)}, v{r}")
        rs = list(regs)
        a(f"v_or3_b32 v{t}, v{rs[0]}, v{rs[1]}, v{rs[2]}")
        rs = rs[3:]
        while len(rs) >= 2:
            a(f"v_or3_b32 v{t}, v{t}, v{rs[0]}, v{rs[1]}")
            rs = rs[2:]
        if rs:
            a(f"v_or_b32 v{t}, v{t}, v{rs[0]}")
        a(f"v_and_b32 v{t}, 0xff, v{t}")
        a(f"v_cmp_ne_u32 vcc, 0, v{t}")
        a(f"s_cbranch_vccnz L_{tag}")
        a(f"L_{tag}_ok:")
    def empty_check(regs, t, tag):
        rs = list(regs)
        if len(rs) == 1:
            a(f"v_cmp_eq_u32 vcc, -1, v{rs[0]}")
        else:
            if len(rs) >= 3:
                a(f"v_max3_u32 v{t}, v{rs[0]}, v{rs[1]}, v{rs[2]}"); rs = rs[3:]
            else:
                a(f"v_max_u32 v{t}, v{rs[0]}, v{rs[1]}"); rs = rs[2:]
            while len(rs) >= 2:
                a(f"v_max3_u32 v{t}, v{t}, v{rs[0]}, v{rs[1]}"); rs = rs[2:]
            if rs: a(f"v_max_u32 v{t}, v{t}, v{rs[0]}")
            a(f"v_cmp_eq_u32 vcc, -1, v{t}")
        a(f"s_cbranch_vccnz L_{tag}")
        a(f"L_{tag}_ok:")
    def swap_add(regs, tmp, sw):
        for i, r in enumerate(regs): a(f"v_mov_b32 v{tmp+i}, v{r}")
        for i, r in enumerate(regs): a(f"{sw} v{tmp+i}, v{r}")
        for i, r in enumerate(regs): a(f"v_add_f32 v{r}, v{r}, v{tmp+i}")
    def round4(base):
        a(f"v_cvt_pk_bf16_f32 v{base+1}, v{base}, v{base+1}")
        a(f"v_cvt_pk_bf16_f32 v{base+3}, v{base+2}, v{base+3}")
        a(f"v_lshlrev_b32 v{base}, 16, v{base+1}")
        a(f"v_and_b32 v{base+1}, 0xffff0000, v{base+1}")
        a(f"v_lshlrev_b32 v{base+2}, 16, v{base+3}")
        a(f"v_and_b32 v{base+3}, 0xffff0000, v{base+3}")
    def lds_wait(tag, addr, t, sleep, off=0):
        spin_head(tag)
        if sleep: a(f"s_sleep {sleep}")
        a(f"ds_read_b32 v{t}, v{addr} offset:{off}")
        spin_bail(tag)
        a("s_waitcnt lgkmcnt(0)")
        empty_check([t], t, tag)
    def P(G):
        r = 0
        for k, b in enumerate(gvec):
            if G >> k & 1: r ^= 1 << b
        return r

    a("s_and_b32 s52, s2, 63")
    a("s_lshl_b32 s52, s52, 2")
    a("s_add_u32 s52, s52, 3")
    a("s_lshl_b32 s52, s52, 20")
    a(f"s_lshl_b32 s53, s3, {10 + wbit}")
    a("s_xor_b32 s52, s52, s53")
    gl = list(gx)
    while gl:
        k, b = gl.pop(0)
        nn = 1
        while gl and gl[0] == (k + nn, b + nn):
            gl.pop(0); nn += 1
        a(f"s_bfe_u32 s53, s2, {k | (nn << 16):#x}")
        a(f"s_lshl_b32 s53, s53, {10 + b}")
        a("s_xor_b32 s52, s52, s53")
    a("s_lshl_b32 s53, s57, 18")
    a("s_xor_b32 s52, s52, s53")
    a("s_lshl_b32 s53, s57, 16")
    a("s_xor_b32 s52, s52, s53")
    assert tuple(gvec) == (0,1,5,6,7,8,9)
    RB = 44
    def ringreg(j): return RB + 4 * (j % ring)
    def ld_text(j):
        sr = 12 if j < n else 16
        p = P(j % n)
        r = ringreg(j)
        if p:
            a(f"s_xor_b32 s53, s52, {p << 10}")
            so = 53
        else:
            so = 52
        a(f"buffer_load_dwordx4 v[{r}:{r+3}], v1, s[{sr}:{sr+3}], s{so} offen {kv_aux}")
    a("s_waitcnt lgkmcnt(0)")
    for j in range(D0): ld_text(j)
    srd(16, 16, 0x10000000)
    epoch_load()
    a("s_mov_b32 s64, 0xcccccccc"); a("s_mov_b32 s65, 0xcccccccc")
    a("s_mov_b32 s66, 0xaaaaaaaa"); a("s_mov_b32 s67, 0xaaaaaaaa")
    masks(12, 13)
    a("v_and_b32 v12, 15, v0")
    a("v_lshlrev_b32 v12, 4, v12")
    a(f"v_add_u32 v12, {L_QB}, v12")
    a("s_barrier")
    for j in range(D0, N0):
        a(f"s_waitcnt vmcnt({D0-1})")
        ld_text(j)
    a(f"s_cmp_lt_u32 s2, {NMLP}")
    a("s_cbranch_scc1 L_kv_m")
    a("s_cmp_eq_u32 s57, 1")
    a("s_cbranch_scc1 L_kv_r")

    def kv_path(role, Dx, bfrom, early):
        st = dict(iss=N0, landed=N0 - D0 - 1, cons=0)
        order = list(range(N0))
        NT = 2 * n
        stage = []
        def depth(): return Dx if st["cons"] >= bfrom else D
        def ld_kv():
            j = st["iss"]
            ld_text(j)
            st["iss"] += 1
            order.append(j)
        def wait_kv(j):
            if j <= st["landed"]: return
            a(f"s_waitcnt vmcnt({len(order) - 1 - order.index(j)})")
            st["landed"] = j
        if role == "m":
            srd(44, 48, 1024); srd(48, 80, 2048); srd(32, 56, 1409024); srd(36, 64, 1409024); srd(40, 72, 1409024)
        if role == "r":
            srd(20, 32, 0x400000)
        while st["iss"] < NPRE:
            d = depth()
            if st["iss"] - 1 - st["landed"] >= d:
                wait_kv(st["iss"] - d)
            ld_kv()
        stampat(1)
        spin_head("wq" + role)
        a("ds_read_b128 v[8:11], v12")
        spin_bail("wq" + role)
        a("s_waitcnt lgkmcnt(0)")
        empty_check([8, 9, 10, 11], 13, "wq" + role)
        a("s_waitcnt lgkmcnt(0)")
        if role != "p": epoch_calc()
        stampat(2)
        def reduce_scores(dst):
            for i in range(8):
                a(f"v_add_f32_dpp v{24+i}, v{24+i}, v{24+i} row_ror:8 row_mask:0xf bank_mask:0x3")
            for i in range(8):
                a(f"v_add_f32_dpp v{24+i}, v{32+i}, v{32+i} row_ror:8 row_mask:0xf bank_mask:0xc")
            for i in range(4):
                a(f"v_add_f32_dpp v{24+i}, v{24+i}, v{24+i} row_half_mirror row_mask:0xf bank_mask:0x5")
            for i in range(4):
                a(f"v_add_f32_dpp v{24+i}, v{28+i}, v{28+i} row_half_mirror row_mask:0xf bank_mask:0xa")
            dpp_steps([24, 25, 26, 27], ("quad_perm:[2,3,0,1]",))
            a("v_cndmask_b32 v24, v24, v26, s[64:65]")
            a("v_cndmask_b32 v25, v25, v27, s[64:65]")
            dpp_steps([24, 25], ("quad_perm:[1,0,3,2]",))
            a(f"v_cndmask_b32 v{dst}, v24, v25, s[66:67]")
            if not noround: bf16r(dst)
            a(f"v_mul_f32 v{dst}, {SCALE:#x}, v{dst}")
            if not noround: bf16r(dst)
        def softmax_part():
            stampat(3)
            a("v_max_f32 v24, v2, v3")
            wave_reduce([24], "v_max_f32")
            a("v_readlane_b32 s72, v24, 63")
            for r in (2, 3): a(f"v_subrev_f32 v{r}, s72, v{r}")
            for r in (2, 3): a(f"v_mul_f32 v{r}, {LOG2E:#x}, v{r}")
            for r in (2, 3): a(f"v_exp_f32 v{r}, v{r}")
            a("v_add_f32 v25, v2, v3")
            for r in (2, 3): a(f"v_cvt_pk_bf16_f32 v{r}, v{r}, v{r}")
            wave_reduce([25])
            a("s_lshl_b32 s73, s3, 3")
            a(f"s_add_u32 s73, s73, {L_MB}")
            a("v_mov_b32 v26, s73")
            a("s_mov_b32 exec_lo, 0")
            a("s_mov_b32 exec_hi, 0x80000000")
            a("ds_write_b64 v26, v[24:25]")
            a("s_mov_b64 exec, -1")
            a("s_lshl_b32 s73, s3, 9")
            a(f"s_add_u32 s73, s73, {L_OP}")
            a("v_and_b32 v27, 15, v0")
            a("v_lshrrev_b32 v28, 4, v0")
            a("v_lshlrev_b32 v29, 5, v27")
            a("v_lshl_add_u32 v29, v28, 4, v29")
            a("v_add_u32 v29, s73, v29")
            stampat(4)
        def issue_stage():
            m0, voff, sr, so, aux = stage.pop(0)
            a(f"s_add_u32 m0, {m0}")
            a(f"s_add_u32 s53, {so}")
            if not no_stage:
                a(f"buffer_load_dwordx4 v{voff}, s[{sr}:{sr+3}], s53 offen {aux} lds")
                order.append("st")
        def pump(extra=0):
            while st["iss"] < NT and st["iss"] - 1 - st["landed"] < depth() + extra and st["iss"] - ring < st["cons"]:
                ld_kv()
            if st["iss"] == NT and stage and st["cons"] >= NT - early:
                issue_stage()
        def role_prep():
            if role == "r":
                a("s_and_b32 s76, s2, 7")
                a("s_lshr_b32 s77, s3, 1")
                a("s_lshl_b32 s78, s77, 3")
                a("s_add_u32 s78, s78, s76")
                a("s_lshl_b32 s68, s78, 17")
                a("s_lshl_b32 s78, s78, 1")
                a("s_and_b32 s73, s3, 1")
                a("s_add_u32 s78, s78, s73")
                a("s_lshl_b32 s79, s78, 9")
                a(f"s_add_u32 s79, s79, {WS_MLX}")
                a("s_lshl_b32 s78, s78, 11")
                a(f"s_add_u32 s78, s78, {WS_OP}")
                a("s_lshl_b32 s69, s73, 16")
                a("s_add_u32 s68, s68, s69")
                a("s_bfe_u32 s69, s2, 0x30003")
                a("s_lshl_b32 s69, s69, 7")
                a("s_add_u32 s68, s68, s69")
                a("s_lshl_b32 s69, s3, 13")
                a("v_and_b32 v31, 3, v0")
                a("v_lshlrev_b32 v31, 7, v31")
                a(f"s_mul_i32 s73, s73, {APITCH}")
                a("s_lshl_b32 s77, s77, 8")
                a("s_add_u32 s73, s73, s77")
                a(f"s_add_u32 s73, s73, {L_A}")
                a("v_lshlrev_b32 v30, 3, v0")
                a("v_add_u32 v30, s73, v30")
                a("s_getreg_b32 s74, hwreg(HW_REG_XCC_ID, 0, 4)")
                a("v_lshrrev_b32 v32, 3, v0")
                a("v_and_b32 v33, 7, v0")
                a("v_lshlrev_b32 v32, 10, v32")
                a("v_lshl_or_b32 v32, v33, 4, v32")
                for i in range(8):
                    stage.append((f"s69, {1024*i}", 32, 20, f"s68, {8192*i}", wo_aux))
            if role == "m":
                a("v_bfe_u32 v38, v0, 2, 1")
                a("v_bfe_u32 v31, v0, 3, 2")
                a("v_lshlrev_b32 v30, 5, v31")
                a("v_and_b32 v31, 3, v0")
                a("v_lshl_add_u32 v30, v31, 3, v30")
                a("s_lshl_b32 s73, s3, 7")
                a("v_add_u32 v30, s73, v30")
                a("v_lshl_add_u32 v39, v38, 10, v30")
                a("buffer_load_dwordx2 v[36:37], v39, s[4:7], 0 offen")
                a("v_lshlrev_b32 v39, 10, v38")
                a("buffer_load_ushort v41, v39, s[4:7], 0 offen")
                a("buffer_load_dwordx4 v[32:35], v1, s[44:47], 0 offen")
                order.extend(["x", "c", "wr"])
                a(f"v_mul_u32_u24 v39, {APITCH}, v38")
                a("v_add_u32 v30, v30, v39")
                a(f"v_add_u32 v30, {L_A}, v30")
                a("v_bfe_u32 v39, v0, 4, 1")
                a("v_lshlrev_b32 v39, 3, v39")
                a("v_lshl_add_u32 v39, v38, 7, v39")
                a("s_lshl_b32 s73, s3, 4")
                a(f"s_add_u32 s73, s73, {L_ST}")
                a("v_add_u32 v39, s73, v39")
                a("s_lshl_b32 s78, s3, 12")
                a(f"s_add_u32 s78, s78, {WS_ZX}")
                a("v_lshrrev_b32 v42, 2, v0")
                a("v_mul_u32_u24 v42, 2752, v42")
                a("v_lshl_add_u32 v42, v31, 4, v42")
                a("s_mul_i32 s68, s3, 176128")
                a("s_lshl_b32 s69, s2, 6")
                a("s_add_u32 s68, s68, s69")
                a("s_lshl_b32 s69, s3, 12")
                a("s_lshl_b32 s70, s2, 15")
                a("s_lshl_b32 s71, s3, 12")
                a("s_add_u32 s70, s70, s71")
                a(f"s_mul_i32 s71, s3, {4*DNP}")
                for i in range(4):
                    stage.append((f"s69, {1024*i}", 42, 32, f"s68, {44032*i}", mlp_aux))
                    stage.append((f"s69, {L_UP + 1024*i}", 42, 36, f"s68, {44032*i}", mlp_aux))
                for i in range(4):
                    stage.append((f"s71, {L_DN + DNP*i}", 1, 40, f"s70, {1024*i}", dn_aux))
        def consume(j):
            r = ringreg(j)
            st["cons"] = j
            if j < n:
                i = j & 15
                if i == 0:
                    for k in range(16):
                        a(f"v_mov_b32 v{24+k}, 0")
                wait_kv(j)
                pump(1 if i == 15 else 0)
                for k in range(4):
                    a(f"v_dot2c_f32_bf16 v{24+i}, v{r+k}, v{8+k}")
                if i == 15: reduce_scores(2 + (j >> 4))
                if j == n - 1: softmax_part()
            else:
                jj = j - n
                i = jj & 15
                pp = 2 + (jj >> 4)
                t = 12 + 4 * (i & 1)
                for k in range(4):
                    a(f"v_and_b32_dpp v{t+k}, v{pp}, v{4+k} row_newbcast:{i} row_mask:0xf bank_mask:0xf")
                wait_kv(j)
                if j < NT - 1: pump()
                c = "0" if jj == 0 else "v[20:23]"
                a(f"v_mfma_f32_16x16x32_bf16 v[20:23], v[{t}:{t+3}], v[{r}:{r+3}], {c}")
                if jj == 12: role_prep()
                if jj == 20 and role == "r":
                    a("buffer_load_dwordx4 v[40:43], v31, s[24:27], s79 offen sc1")
                    order.append("ml")
        for j in range(NT):
            if j <= st["landed"] and j % CU == 0 and st["iss"] < NT and st["iss"] - ring < j:
                st["cons"] = j
                wait_kv(st["landed"] + 1)
                pump()
            consume(j)
        a("s_mov_b32 exec_hi, 0")
        a("ds_write_b128 v29, v[20:23]")
        a("s_mov_b64 exec, -1")
        stampat(5)
        while stage: issue_stage()
    def stage_done():
        a("s_lshl_b32 s73, s3, 2")
        a(f"s_add_u32 s73, s73, {L_FL}")
        a("v_mov_b32 v26, s73")
        a("v_mov_b32 v27, 0")
        a("ds_write_b32 v26, v27")

    kv_path("p", D, 0, 0)
    a("s_branch L_fin")

    a("L_kv_r:")
    kv_path("r", Dr, br_from, early_r)
    a(f"s_mov_b32 s75, {SPIN}")
    a("s_branch L_pL_chk")
    a("L_pL:")
    a("buffer_load_dwordx4 v[40:43], v31, s[24:27], s79 offen sc1")
    spin_bail("pL")
    a("s_waitcnt vmcnt(0)")
    a("L_pL_chk:")
    a("v_xor_b32 v54, s29, v42")
    a("v_xor_b32 v55, s29, v43")
    a("v_lshrrev_b32 v56, 4, v55")
    a("v_or_b32 v54, v54, v56")
    a("v_cmp_ne_u32 vcc, 0, v54")
    a("s_cbranch_vccnz L_pL")
    a("L_pL_ok:")
    a("v_mov_b32 v52, v40")
    a("v_mov_b32 v53, v41")
    a("v_mov_b32 v56, v52")
    dpp_steps([56], ("quad_perm:[1,0,3,2]", "quad_perm:[2,3,0,1]"), "v_max_f32")
    a("v_sub_f32 v52, v52, v56")
    a(f"v_mul_f32 v52, {LOG2E:#x}, v52")
    a("v_exp_f32 v52, v52")
    a("v_mul_f32 v53, v53, v52")
    dpp_steps([53], ("quad_perm:[1,0,3,2]", "quad_perm:[2,3,0,1]"))
    a("v_rcp_f32 v53, v53")
    a("v_mul_f32 v52, v52, v53")
    a(f"v_mov_b32 v54, {WS_OS - WS_OP}")
    if local:
        a("v_cmp_ne_u32 vcc, s74, v55")
        a("v_cndmask_b32 v55, 0, v54, vcc")
    else:
        a("v_mov_b32 v55, v54")
    for src, d0 in ((52, 56), (55, 58)):
        a(f"v_mov_b32_dpp v{d0}, v{src} quad_perm:[0,0,0,0] row_mask:0x3 bank_mask:0xf")
        a(f"v_mov_b32_dpp v{d0+1}, v{src} quad_perm:[2,2,2,2] row_mask:0x3 bank_mask:0xf")
        a(f"v_mov_b32_dpp v{d0}, v{src} quad_perm:[1,1,1,1] row_mask:0xc bank_mask:0xf")
        a(f"v_mov_b32_dpp v{d0+1}, v{src} quad_perm:[3,3,3,3] row_mask:0xc bank_mask:0xf")
    a("v_add_u32 v58, v58, v1")
    a("v_add_u32 v59, v59, v1")
    a("s_lshl_b32 s73, s3, 2")
    a(f"s_add_u32 s73, s73, {L_FL}")
    a("v_mov_b32 v26, s73")
    a("v_mov_b32 v27, 0")
    spin_head("pA")
    a("buffer_load_dwordx4 v[44:47], v58, s[24:27], s78 offen sc1")
    a("buffer_load_dwordx4 v[48:51], v59, s[24:27], s78 offen offset:1024 sc1")
    a(f"s_cmp_lg_u32 s75, {SPIN - 400}")
    a("s_cbranch_scc1 L_pA_nf")
    a("v_add_u32 v58, v54, v1")
    a("v_add_u32 v59, v54, v1")
    a("L_pA_nf:")
    spin_bail("pA")
    a("s_waitcnt vmcnt(2)")
    a("ds_write_b32 v26, v27")
    a("s_waitcnt vmcnt(0)")
    untag_check(list(range(44, 52)), 60, "pA")
    stampat(6)
    for r in range(4): a(f"v_mul_f32 v{44+r}, v{44+r}, v56")
    for r in range(4): a(f"v_fmac_f32 v{44+r}, v{48+r}, v57")
    swap_add([44, 45, 46, 47], 48, "v_permlane32_swap_b32")
    a("v_cvt_pk_bf16_f32 v44, v44, v45")
    a("v_cvt_pk_bf16_f32 v45, v46, v47")
    a("s_mov_b32 exec_hi, 0")
    a("ds_write_b64 v30, v[44:45]")
    a("s_waitcnt lgkmcnt(0)")
    a("s_barrier")
    stampat(7)
    a("s_mov_b64 exec, -1")
    a("s_branch L_fin")

    a("L_kv_m:")
    kv_path("m", Dm, bm_from, early_m)
    unpack(36, 64, 2)
    a("v_lshlrev_b32 v41, 16, v41")
    a("s_waitcnt vmcnt(0)")
    stage_done()
    stampat(9)
    a("s_mov_b64 exec, 0xff")
    spin_head("pB0")
    if bsleep: a(f"s_sleep {bsleep}")
    a("buffer_load_dwordx4 v[44:47], v1, s[24:27], s78 offen sc1")
    spin_bail("pB0")
    a("s_waitcnt vmcnt(0)")
    untag_check([44, 45, 46, 47], 60, "pB0")
    a("s_mov_b64 exec, -1")
    spin_head("pB")
    for k in range(4):
        a(f"buffer_load_dwordx4 v[{44+4*k}:{47+4*k}], v1, s[24:27], s78 offen offset:{1024*k} sc1")
    spin_bail("pB")
    a("s_waitcnt vmcnt(0)")
    untag_check(list(range(44, 60)), 60, "pB")
    stampat(6)
    for r in range(4):
        a(f"v_add_f32 v{44+r}, v{44+r}, v{48+r}")
        a(f"v_add_f32 v{52+r}, v{52+r}, v{56+r}")
    for r in range(4): a(f"v_add_f32 v{44+r}, v{44+r}, v{52+r}")
    swap_add([44, 45, 46, 47], 48, "v_permlane32_swap_b32")
    round4(44)
    for r in range(4): a(f"v_add_f32 v{44+r}, v{44+r}, v{64+r}")
    a("v_cvt_pk_bf16_f32 v48, v44, v45")
    a("v_cvt_pk_bf16_f32 v49, v46, v47")
    a("s_mov_b32 exec_hi, 0")
    a("ds_write_b64 v30, v[48:49]")
    unpack(48, 44, 2)
    for r in range(4): a(f"v_sub_f32 v{44+r}, v{44+r}, v41")
    a("v_add_f32 v50, v44, v45"); a("v_mul_f32 v51, v44, v44")
    a("v_add_f32 v52, v46, v47"); a("v_mul_f32 v53, v46, v46")
    a("v_fmac_f32 v51, v45, v45"); a("v_fmac_f32 v53, v47, v47")
    a("v_add_f32 v50, v50, v52"); a("v_add_f32 v51, v51, v53")
    dpp_steps([50, 51], ("quad_perm:[1,0,3,2]", "quad_perm:[2,3,0,1]", "row_ror:8"))
    a("ds_write_b64 v39, v[50:51]")
    a("s_mov_b64 exec, -1")
    a("s_waitcnt lgkmcnt(0)")
    a("s_barrier")
    stampat(7)
    a("s_cmp_ge_u32 s3, 2")
    a("s_cbranch_scc1 L_fin")
    a("s_cmp_ge_u32 s2, 32")
    a("s_cbranch_scc1 L_fin")
    a(f"s_mul_i32 s73, s3, {APITCH}")
    a(f"s_add_u32 s73, s73, {L_A}")
    a("v_add_u32 v52, s73, v1")
    a("ds_read_b128 v[96:99], v52")
    a("v_lshrrev_b32 v40, 2, v0")
    a("v_and_b32 v43, 3, v0")
    a("v_lshlrev_b32 v44, 7, v40")
    a("v_lshl_or_b32 v44, v43, 4, v44")
    a("s_mul_i32 s78, s2, 5504")
    a("s_lshl_b32 s73, s3, 6")
    a("s_add_u32 s78, s78, s73")
    a(f"s_add_u32 s78, s78, {WS_Y}")
    a("s_add_u32 s79, s78, 2048")
    a("s_add_u32 s77, s78, 4096")
    a("s_lshl_b32 s74, s2, 5")
    a("s_lshl_b32 s73, s3, 4")
    a("s_add_u32 s76, s74, s73")
    a("v_lshlrev_b32 v45, 2, v43")
    a(f"s_add_u32 s73, s76, {L_A}")
    a("v_add_u32 v46, s73, v45")
    a("ds_read_b32 v50, v46")
    a(f"ds_read_b32 v51, v46 offset:{APITCH}")
    a("s_waitcnt lgkmcnt(0)")
    unpack(96, 100)
    ln_sums(100, 108, 68, 69, 70)
    a("v_mov_b32 v124, s69")
    a("v_mov_b32 v125, s70")
    ln_finish("s68", 124, 125, 108)
    ln_apply(100, 108, 124, 125)
    for k in range(4):
        a(f"v_cvt_pk_bf16_f32 v{120+k}, v{108+2*k}, v{109+2*k}")
    a("v_mov_b32 v126, 0")
    for k in range(4):
        a(f"v_dot2c_f32_bf16 v126, v{120+k}, v{32+k}")
    wave_reduce([126])
    a("v_readlane_b32 s73, v126, 63")
    a("v_mov_b32 v126, s73")
    bf16r(126)
    a("v_mul_f32 v126, 0xbfb8aa3b, v126")
    a("v_exp_f32 v126, v126")
    a("v_add_f32 v126, 1.0, v126")
    a("v_rcp_f32 v126, v126")
    bf16r(126)
    a("v_mov_b32 v127, 0")
    a("s_lshl_b32 s73, s3, 4")
    a(f"s_add_u32 s73, s73, {L_SG}")
    a("v_mov_b32 v46, s73")
    a("ds_write_b128 v46, v[124:127]")
    a(f"v_mov_b32 v46, {L_SG}")
    a("v_lshlrev_b32 v104, 16, v50"); a("v_lshlrev_b32 v105, 16, v51")
    a("v_and_b32 v106, 0xffff0000, v50"); a("v_and_b32 v107, 0xffff0000, v51")
    for r in range(4): a(f"v_mov_b32 v{20+r}, 0")
    spin_head("pS")
    a("ds_read_b128 v[112:115], v46")
    a("ds_read_b128 v[116:119], v46 offset:16")
    spin_bail("pS")
    a("s_waitcnt lgkmcnt(0)")
    empty_check([112, 113, 114, 116, 117, 118], 47, "pS")
    ln_apply(104, 100, [112, 116, 112, 116], [113, 117, 113, 117], 4)
    round4(100)
    a("v_and_b32 v46, 31, v0")
    a("v_lshlrev_b32 v46, 2, v46")
    a(f"v_add_u32 v46, {L_ACT}, v46")
    lds_wait("pT", 46, 47, 0)
    stampat(8)
    if cdelay: a(f"s_sleep {cdelay}")
    spin_head("pC")
    a("buffer_load_dwordx4 v[12:15], v44, s[24:27], s78 offen sc1")
    a("buffer_load_dwordx4 v[16:19], v44, s[24:27], s79 offen sc1")
    a("s_mov_b32 exec_hi, 0xfff")
    a("buffer_load_dwordx4 v[20:23], v44, s[24:27], s77 offen sc1")
    a("s_waitcnt vmcnt(0)")
    for r in range(4): a(f"v_xor_b32 v{20+r}, s{60+r}, v{20+r}")
    a("s_mov_b64 exec, -1")
    spin_bail("pC")
    untag_check(list(range(12, 24)), 24, "pC", pre={20, 21, 22, 23})
    stampat(4)
    for r in range(4): a(f"v_add_f32 v{12+r}, v{12+r}, v{16+r}")
    for r in range(4): a(f"v_add_f32 v{12+r}, v{12+r}, v{20+r}")
    dpp_steps([12, 13, 14, 15], ("row_ror:4", "row_ror:8"))
    swap_add([12, 13, 14, 15], 16, "v_permlane16_swap_b32")
    swap_add([12, 13, 14, 15], 16, "v_permlane32_swap_b32")
    round4(12)
    for r in range(4): a(f"v_mul_f32 v{12+r}, v{12+r}, v{114 + 4 * (r & 1)}")
    round4(12)
    for r in range(4): a(f"v_add_f32 v{12+r}, v{12+r}, v{100+r}")
    round4(12)
    for r in range(4): a(f"v_add_f32 v{12+r}, v{12+r}, v{104+r}")
    a("v_cvt_pk_bf16_f32 v12, v12, v14")
    a("v_cvt_pk_bf16_f32 v13, v13, v15")
    a("s_mov_b64 exec, 0xf")
    a("buffer_store_dword v12, v45, s[48:51], s76 offen")
    a("buffer_store_dword v13, v45, s[48:51], s76 offen offset:1024")
    a("s_cmp_lg_u32 s76, 0")
    a("s_cbranch_scc1 L_noep")
    a("s_mov_b64 exec, 1")
    a("v_mov_b32 v14, s29")
    a("buffer_store_dword v14, v45, s[24:27], 0 offen")
    a("L_noep:")
    a("s_mov_b64 exec, -1")
    stampat(3)
    a("s_branch L_fin")

    a("L_aux:")
    if aux_prio: a(f"s_setprio {aux_prio}")
    a("s_sub_u32 s59, s3, 8")
    a("s_and_b32 s55, s2, 31")
    a("s_bfe_u32 s56, s2, 0x10005")
    a("v_lshrrev_b32 v2, 4, v0")
    a("v_and_b32 v3, 15, v0")
    a("s_mov_b32 s10, 0x400000")
    a("s_mov_b32 s11, 0x20000")
    a("v_lshlrev_b32 v8, 18, v2")
    a("v_lshl_or_b32 v8, v3, 4, v8")
    a("s_lshl_b32 s54, s59, 20")
    a("s_lshl_b32 s53, s55, 8")
    a("s_or_b32 s54, s54, s53")
    a("v_lshlrev_b32 v10, 6, v2")
    a("s_lshl_b32 s52, s56, 10")
    a("s_lshl_b32 s53, s59, 8")
    a("s_add_u32 s53, s53, s52")
    a("s_movk_i32 s65, 0x2000")
    for r in range(4): a(f"v_mov_b32 v{12+r}, -1")
    a("s_lshl_b32 s58, s59, 11")
    a(f"s_add_u32 s58, s58, {L_INIT}")
    a("v_add_u32 v9, s58, v1")
    a("ds_write_b128 v9, v[12:15]")
    a("s_cmp_eq_u32 s59, 3")
    a("s_cbranch_scc0 L_i2")
    for r in range(4): a(f"v_mov_b32 v{12+r}, 0")
    a("s_mov_b64 exec, 1")
    a("L_i2:")
    a("ds_write_b128 v9, v[12:15] offset:1024")
    a("s_mov_b64 exec, -1")
    a("s_waitcnt lgkmcnt(0)")
    a("buffer_load_dwordx4 v[20:23], v1, s[4:7], s52 offen")
    for k in range(4):
        a(f"buffer_load_dwordx4 v[{56+4*k}:{59+4*k}], v10, s[4:7], s53 offen offset:{16*k}")
    QR = 24
    q = dict(iss=0, landed=-1)
    def qreg(i): return 72 + 4 * (i % QR)
    def ld_wq():
        i = q["iss"]
        r = qreg(i)
        a(f"buffer_load_dwordx4 v[{r}:{r+3}], v8, s[8:11], s54 offen {wq_aux}")
        if i < 31: a("s_add_u32 s54, s54, s65")
        q["iss"] += 1
    def wait_wq(i):
        if i <= q["landed"]: return
        a(f"s_waitcnt vmcnt({q['iss'] - 1 - i})")
        q["landed"] = i
    for i in range(DQ): ld_wq()
    epoch_load()
    a("s_barrier")
    a(f"s_waitcnt vmcnt({DQ}) lgkmcnt(0)")
    mark = len(a.lines)
    masks(12, 13)
    epoch_calc()
    unpack(20, 24)
    ln_sums(24, 32, 68, 69, 70)
    a("v_mov_b32 v10, s69")
    a("v_mov_b32 v11, s70")
    ln_finish("s68", 10, 11, 9)
    unpack(56, 24, 16)
    ln_apply(24, 24, 10, 11, 32)
    for i in range(32):
        a(f"v_cvt_pk_bf16_f32 v{24+i}, v{24+i}, v{24+i}")
    body = a.lines[mark:]
    del a.lines[mark:]
    for k in range(0, len(body), chunk):
        if q["iss"] < QR:
            wait_wq(q["iss"] - DQ)
            ld_wq()
        for ln in body[k:k+chunk]: a(ln)
    for i in range(32):
        t = 12 + 4 * (i & 1)
        for r in range(4):
            a(f"v_and_b32 v{t+r}, v{24+i}, v{4+r}")
        if i <= q["landed"] and i % 4 == 0 and q["iss"] < 32 and q["iss"] - QR < i:
            wait_wq(q["landed"] + 1)
        wait_wq(i)
        while q["iss"] < 32 and q["iss"] - 1 - q["landed"] < DQ and q["iss"] - QR < i: ld_wq()
        c = "0" if i == 0 else "v[20:23]"
        a(f"v_mfma_f32_16x16x32_bf16 v[20:23], v[{t}:{t+3}], v[{qreg(i)}:{qreg(i)+3}], {c}")
    assert q["iss"] == 32
    a("s_lshl_b32 s52, s59, 9")
    a(f"s_add_u32 s52, s52, {L_QP}")
    a("v_lshlrev_b32 v8, 5, v3")
    a("v_lshl_add_u32 v8, v2, 4, v8")
    a("v_add_u32 v8, s52, v8")
    a("s_mov_b32 exec_hi, 0")
    a("ds_write_b128 v8, v[20:23]")
    a("s_mov_b64 exec, -1")
    stampat(1)
    a("s_cmp_lg_u32 s59, 0")
    a("s_cbranch_scc1 L_aux4")
    a("v_lshlrev_b32 v8, 3, v0")
    a(f"v_add_u32 v11, {L_OP}, v8")
    a("v_lshlrev_b32 v9, 2, v0")
    a(f"v_add_u32 v10, {L_QB}, v9")
    spin_head("pQ")
    for w in range(4):
        a(f"ds_read_b64 v[{12+2*w}:{13+2*w}], v11 offset:{L_QP - L_OP + 512*w}")
    spin_bail("pQ")
    a("s_waitcnt lgkmcnt(0)")
    empty_check(list(range(12, 20)), 20, "pQ")
    for w in range(1, 4):
        a(f"v_add_f32 v12, v12, v{12+2*w}")
        a(f"v_add_f32 v13, v13, v{13+2*w}")
    a("v_cvt_pk_bf16_f32 v12, v12, v13")
    a("ds_write_b32 v10, v12")
    stampat(2)
    a("v_and_b32 v9, 7, v0")
    a("v_lshlrev_b32 v9, 3, v9")
    a(f"v_add_u32 v9, {L_MB}, v9")
    spin_head("pM")
    a("s_sleep 4")
    a("ds_read_b64 v[12:13], v9")
    spin_bail("pM")
    a("s_waitcnt lgkmcnt(0)")
    empty_check([12, 13], 14, "pM")
    oct_ = ("quad_perm:[1,0,3,2]", "quad_perm:[2,3,0,1]", "row_half_mirror")
    a("v_mov_b32 v16, v12")
    dpp_steps([16], oct_, "v_max_f32")
    a("v_sub_f32 v14, v12, v16")
    a(f"v_mul_f32 v14, {LOG2E:#x}, v14")
    a("v_exp_f32 v14, v14")
    a("v_mul_f32 v17, v13, v14")
    dpp_steps([17], oct_)
    a("s_getreg_b32 s53, hwreg(HW_REG_XCC_ID, 0, 4)")
    a("s_xor_b32 s53, s53, s29")
    a("v_mov_b32 v18, s29")
    a("v_mov_b32 v19, s53")
    a("s_lshl_b32 s52, s55, 1")
    a("s_add_u32 s52, s52, s56")
    a("s_lshl_b32 s52, s52, 2")
    a("s_add_u32 s52, s52, s57")
    a("s_lshl_b32 s53, s52, 7")
    a(f"s_add_u32 s53, s53, {WS_MLX}")
    a("s_lshl_b32 s52, s52, 9")
    a(f"s_add_u32 s52, s52, {WS_OP}")
    a("s_mov_b64 exec, 1")
    a("buffer_store_dwordx4 v[16:19], v8, s[24:27], s53 offen sc1")
    a("s_mov_b64 exec, -1")
    a(f"s_add_u32 s53, s52, {WS_OS - WS_OP}")
    stampat(3)
    for w in range(8):
        a(f"v_readlane_b32 s{44+w}, v14, {w}")
    a("v_and_b32 v9, 1, v0")
    a("v_lshlrev_b32 v9, 4, v9")
    a("v_lshrrev_b32 v9, v9, s29")
    a("v_bfe_u32 v10, v9, 8, 8")
    a("v_and_b32 v9, 0xff, v9")
    a("s_setprio 2")
    spin_head("pO")
    if osleep: a(f"s_sleep {osleep}")
    for w in range(8):
        a(f"ds_read_b64 v[{12+2*w}:{13+2*w}], v11 offset:{512*w}")
    spin_bail("pO")
    a("s_waitcnt lgkmcnt(0)")
    a("v_max3_u32 v28, v12, v13, v14")
    a("v_max3_u32 v29, v15, v16, v17")
    a("v_max3_u32 v30, v18, v19, v20")
    a("v_max3_u32 v31, v21, v22, v23")
    a("v_max3_u32 v32, v24, v25, v26")
    a("v_max3_u32 v28, v28, v29, v30")
    a("v_max3_u32 v31, v31, v32, v27")
    a("v_max_u32 v28, v28, v31")
    a("v_cmp_eq_u32 vcc, -1, v28")
    a("s_cbranch_vccnz L_pO")
    a("L_pO_ok:")
    stampat(5)
    a("v_mul_f32 v12, s44, v12"); a("v_mul_f32 v13, s44, v13")
    a("v_mul_f32 v20, s48, v20"); a("v_mul_f32 v21, s48, v21")
    for w in range(1, 4):
        a(f"v_fmac_f32 v12, s{44+w}, v{12+2*w}"); a(f"v_fmac_f32 v13, s{44+w}, v{13+2*w}")
        a(f"v_fmac_f32 v20, s{48+w}, v{20+2*w}"); a(f"v_fmac_f32 v21, s{48+w}, v{21+2*w}")
    a("v_add_f32 v12, v12, v20"); a("v_add_f32 v13, v13, v21")
    a("v_and_or_b32 v12, v12, s31, v9")
    a("v_and_or_b32 v13, v13, s31, v10")
    if local:
        a("buffer_store_dwordx2 v[12:13], v8, s[24:27], s52 offen")
    a("buffer_store_dwordx2 v[12:13], v8, s[24:27], s53 offen sc1")
    stampat(6)
    a("L_aux4:")
    a(f"s_cmp_lt_u32 s2, {NMLP}")
    a("s_cbranch_scc1 L_aux5")
    a("s_cmp_lg_u32 s57, 1")
    a("s_cbranch_scc1 L_fin")
    a("L_aux5:")
    a("s_setprio 3")
    a("v_lshrrev_b32 v33, 2, v3")
    a("v_lshl_add_u32 v33, v2, 3, v33")
    a("v_and_b32 v34, 3, v0")
    a("v_bfe_u32 v6, v3, 2, 1")
    a(f"v_mul_u32_u24 v6, {APITCH}, v6")
    a("v_lshl_add_u32 v6, v2, 4, v6")
    a(f"v_add_u32 v6, {L_A}, v6")
    a(f"v_mov_b32 v35, {L_FL}")
    def gemm16(acc, filler=()):
        filler = list(filler)
        for ks in range(12):
            a(f"ds_read_b128 v[{16+4*ks}:{19+4*ks}], v6 offset:{64*ks}")
        out = 12
        per = (len(filler) + 13) // 14 if filler else 0
        for ks in range(16):
            nxt = ks + 12
            a(f"s_waitcnt lgkmcnt({out - 1})")
            out -= 1
            ab = 16 + 4 * (ks % 12)
            c = "0" if ks == 0 else f"v[{acc}:{acc+3}]"
            a(f"v_mfma_f32_16x16x32_bf16 v[{acc}:{acc+3}], v[{ab}:{ab+3}], v[{64+4*ks}:{67+4*ks}], {c}")
            if nxt < 16:
                a(f"ds_read_b128 v[{ab}:{ab+3}], v6 offset:{64*nxt}")
                out += 1
            for _ in range(per):
                if filler: a(filler.pop(0))
        for ln in filler: a(ln)
    a(f"s_cmp_lt_u32 s2, {NMLP}")
    a("s_cbranch_scc1 L_aux_m")
    a("v_lshlrev_b32 v10, 7, v33")
    a("v_lshl_add_u32 v10, v34, 3, v10")
    a("s_lshl_b32 s52, s59, 5")
    a("v_add_u32 v10, s52, v10")
    a("v_lshlrev_b32 v7, 3, v34")
    a("v_lshrrev_b32 v7, v7, s29")
    a("v_and_b32 v7, 0xff, v7")
    a("v_lshlrev_b32 v5, 2, v0")
    a("s_and_b32 s70, s2, 63")
    a("s_lshl_b32 s70, s70, 2")
    a("s_add_u32 s70, s70, s59")
    a("s_lshl_b32 s70, s70, 7")
    a(f"s_add_u32 s70, s70, {WS_ZX}")
    for kw in range(8):
        lds_wait(f"fr{kw}", 35, 12, 2 if kw == 0 else 0, off=4*kw)
        for ks in (2*kw, 2*kw+1):
            for hh in range(2):
                d = 64 + 4 * ks + 2 * hh
                a(f"ds_read_b64_tr_b16 v[{d}:{d+1}], v10 offset:{ks*4096 + hh*512}")
    a("s_waitcnt lgkmcnt(0)")
    stampat(7)
    a("s_barrier")
    gemm16(12)
    a("s_mov_b32 exec_hi, 0")
    a("v_and_or_b32 v12, v12, s31, v7")
    a("buffer_store_dword v12, v5, s[24:27], s70 offen sc1")
    a("s_mov_b64 exec, -1")
    stampat(8)
    a("s_branch L_fin")
    a("L_aux_m:")
    a("v_lshlrev_b32 v10, 6, v33")
    a("v_and_b32 v11, 1, v0")
    a("v_lshl_add_u32 v10, v11, 3, v10")
    a("v_bfe_u32 v11, v0, 1, 1")
    a(f"v_mul_u32_u24 v11, {L_UP}, v11")
    a("v_add_u32 v10, v11, v10")
    a("s_lshl_b32 s52, s59, 4")
    a("v_add_u32 v10, s52, v10")
    a(f"v_mul_u32_u24 v36, {DNP}, v33")
    a("v_lshl_add_u32 v36, v34, 3, v36")
    a("s_lshl_b32 s52, s59, 8")
    a(f"s_add_u32 s52, s52, {L_DN}")
    a("v_add_u32 v36, s52, v36")
    a("v_and_b32 v4, 1, v2")
    a("v_lshlrev_b32 v9, 10, v4")
    a("buffer_load_ushort v165, v9, s[4:7], 0 offen")
    a("v_lshlrev_b32 v166, 7, v4")
    a("v_lshl_add_u32 v166, v3, 3, v166")
    a(f"v_add_u32 v166, {L_ST}, v166")
    a("v_lshlrev_b32 v4, 6, v4")
    a("v_lshl_add_u32 v4, v3, 1, v4")
    a("s_lshl_b32 s52, s59, 4")
    a(f"s_add_u32 s52, s52, {L_ACT}")
    a("v_add_u32 v4, s52, v4")
    a("v_and_b32 v8, 1, v3")
    a("v_lshlrev_b32 v8, 6, v8")
    a("v_lshl_add_u32 v8, v2, 4, v8")
    a(f"v_add_u32 v8, {L_ACT}, v8")
    a(f"v_mov_b32 v11, {L_ZERO}")
    a("v_lshrrev_b32 v9, 2, v3")
    for u in range(4):
        a(f"v_cmp_eq_u32 vcc, {u}, v9")
        a(f"v_cndmask_b32 v{160+u}, v11, v8, vcc")
    a("v_mul_u32_u24 v5, 5504, v2")
    a("v_lshl_add_u32 v5, v3, 3, v5")
    a("s_mul_i32 s52, s59, 44032")
    a("s_lshl_b32 s53, s2, 7")
    a("s_add_u32 s52, s52, s53")
    a(f"s_add_u32 s52, s52, {WS_Y}")
    a("s_add_u32 s53, s52, 22016")
    a("v_and_b32 v7, 1, v0")
    a("v_lshlrev_b32 v7, 4, v7")
    a("v_lshrrev_b32 v7, v7, s29")
    a("v_bfe_u32 v164, v7, 8, 8")
    a("v_and_b32 v7, 0xff, v7")
    for r in range(4): a(f"v_mov_b32 v{40+r}, 0x3f803f80")
    for kw in range(8):
        lds_wait(f"fm{kw}", 35, 12, 2 if kw == 0 else 0, off=4*kw)
        if kw > 0:
            for ks in (2*kw-2, 2*kw-1):
                c = "0" if ks == 0 else "v[44:47]"
                a(f"v_mfma_f32_16x16x32_bf16 v[44:47], v[40:43], v[{64+4*ks}:{67+4*ks}], {c}")
        for ks in (2*kw, 2*kw+1):
            for hh in range(2):
                d = 64 + 4 * ks + 2 * hh
                a(f"ds_read_b64_tr_b16 v[{d}:{d+1}], v10 offset:{ks*2048 + hh*256}")
    for t in range(8):
        for hh in range(2):
            d = 128 + 4 * t + 2 * hh
            a(f"ds_read_b64_tr_b16 v[{d}:{d+1}], v36 offset:{hh*4*DNP + t*32}")
    a("s_waitcnt lgkmcnt(15)")
    a("s_waitcnt lgkmcnt(0) vmcnt(0)")
    for ks in (14, 15):
        a(f"v_mfma_f32_16x16x32_bf16 v[44:47], v[40:43], v[{64+4*ks}:{67+4*ks}], v[44:47]")
    a("v_lshlrev_b32 v165, 16, v165")
    a("v_mov_b32 v167, v44")
    stampat(7)
    a("s_barrier")
    a("ds_read_b64 v[8:9], v166")
    mark = len(a.lines)
    dpp_steps([8, 9], ("quad_perm:[1,0,3,2]", "quad_perm:[2,3,0,1]", "row_half_mirror", "row_mirror"))
    ln_finish("v165", 8, 9, 10)
    fill = a.lines[mark:]
    del a.lines[mark:]
    gemm16(12, fill)
    a("v_fma_f32 v12, -v8, v167, v12")
    a("v_mul_f32 v12, v12, v9")
    bf16r(12)
    a("v_mul_f32 v13, 0xbfb8aa3b, v12")
    a("v_exp_f32 v13, v13")
    a("v_add_f32 v13, 1.0, v13")
    a("v_rcp_f32 v13, v13")
    a("v_mul_f32 v13, v12, v13")
    bf16r(13)
    a("v_mul_f32_dpp v13, v12, v13 row_ror:8 row_mask:0xf bank_mask:0xf")
    a("v_mov_b32_dpp v14, v13 quad_perm:[1,0,3,2] row_mask:0xf bank_mask:0xf")
    a("v_cvt_pk_bf16_f32 v13, v13, v14")
    a("s_mov_b64 exec, 0x00550055")
    a("ds_write_b32 v4, v13")
    a("s_mov_b64 exec, -1")
    stampat(9)
    spin_head("pG")
    for u in range(4):
        a(f"ds_read_b128 v[{16+4*u}:{19+4*u}], v{160+u}")
    spin_bail("pG")
    a("s_waitcnt lgkmcnt(0)")
    empty_check(list(range(16, 32)), 32, "pG")
    for u in range(4):
        for hf in range(2):
            acc = 8 + 4 * hf
            t = hf * 4 + u
            c = "0" if u == 0 else f"v[{acc}:{acc+3}]"
            a(f"v_mfma_f32_16x16x32_bf16 v[{acc}:{acc+3}], v[{16+4*u}:{19+4*u}], v[{128+4*t}:{131+4*t}], {c}")
    for hf in range(2):
        r = 8 + 4 * hf
        a(f"v_and_or_b32 v{r}, v{r}, s31, v7")
        a(f"v_and_or_b32 v{r+1}, v{r+1}, s31, v164")
        a(f"buffer_store_dwordx2 v[{r}:{r+1}], v5, s[24:27], s{52+hf} offen sc1")
    stampat(8)

    a("L_fin:")
    if stamps:
        a("s_waitcnt lgkmcnt(0)")
        a("s_mul_i32 s64, s3, 80")
        a(f"s_add_u32 s64, s64, {L_STAMP}")
        a("v_mov_b32 v40, s64")
        a("s_mov_b64 exec, 1")
        for i in range(10):
            a(f"v_mov_b32 v12, s{80+2*i}")
            a(f"v_mov_b32 v13, s{81+2*i}")
            a(f"ds_write_b64 v40, v[12:13] offset:{8*i}")
        a("s_mov_b64 exec, -1")
        a("s_waitcnt lgkmcnt(0)")
        a("s_cmp_lg_u32 s3, 9")
        a("s_cbranch_scc1 L_end")
        if hold_x is not None:
            a(f"s_cmp_lg_u32 s2, {128 + hold_x}")
            a("s_cbranch_scc1 L_end")
        a("L_hold:")
        a(f"s_sleep {32 if hold_x is None else 2}")
        a("s_memrealtime s[66:67]")
        a("s_waitcnt lgkmcnt(0)")
        a("s_sub_u32 s66, s66, s80")
        a(f"s_cmp_lt_u32 s66, {hold_t}")
        a("s_cbranch_scc1 L_hold")
        a(f"v_add_u32 v40, {L_STAMP}, v1")
        a("ds_read_b128 v[12:15], v40")
        a("s_mul_i32 s64, s2, 1280")
        a(f"s_add_u32 s64, s64, {512<<20}")
        a("v_add_u32 v40, s64, v1")
        a("s_waitcnt lgkmcnt(0)")
        a("global_store_dwordx4 v40, v[12:15], s[24:25]")
    a("L_end:")
    a("s_endpgm")
    a('.section .rodata,"a"')
    a(".p2align 6")
    a(f".amdhsa_kernel {NAME}_kernel")
    a(f"  .amdhsa_next_free_vgpr {NVGPR}")
    a("  .amdhsa_next_free_sgpr 102")
    a(f"  .amdhsa_accum_offset {NVGPR}")
    a("  .amdhsa_group_segment_fixed_size 0")
    a("  .amdhsa_kernarg_size 104")
    a("  .amdhsa_user_sgpr_count 2")
    a("  .amdhsa_user_sgpr_kernarg_segment_ptr 1")
    a("  .amdhsa_system_sgpr_workgroup_id_x 1")
    a(".end_amdhsa_kernel")
    return a.finalize()

if __name__ == "__main__":
    out = sys.argv[1]
    kw = eval("dict(" + (sys.argv[2] if len(sys.argv) > 2 else "") + ")")
    open(out, "w").write(gen(**kw))
```

```python
import sys, json
from asmlib import Asm
from gen import HDR, NAME

WS_EP = 0
WS_MLX = 0x1000
WS_OP = 0x9000
WS_OS = 0x29000
WS_ZX = 0x49000
WS_QX = 0x51000
WS_Y = 0x91000
WS_SIZE = WS_Y + 43 * 4096
L_UP = 0x8020
L_DN = 0x10040
DNP = 1056
L_INIT = 0x18800
L_OP = L_INIT
L_QP = L_INIT + 0x1000
L_QB = L_INIT + 0x1800
L_MB = L_INIT + 0x1900
L_FL = L_INIT + 0x1940
L_ACT = L_INIT + 0x1980
L_SG = L_INIT + 0x1A00
L_FB = L_INIT + 0x1A40
L_FD = L_FL + 0x20
L_ZERO = L_INIT + 0x1C00
L_A = L_INIT + 0x1D00
APITCH = 1088
L_ST = L_A + 0x900
L_STAMP = L_ST + 0x100
LDS_SIZE = L_STAMP + 0x400
NMLP = 43
SPIN = 100000
LOG2E = 0x3fb8aa3b
SCALE = 0x3db504f3
NVGPR = 168

def gen(stamps=False, D0=2, N0=4, D=3, Dm=4, Dr=4, NPRE=18, ring=31, DQ=6,
        gvec=(0,1,5,6,7,8,9), wbit=2, gx=((3,1),(4,5),(5,0)), kv_aux="nt", wq_aux="", wo_aux="", mlp_aux="", dn_aux="",
        no_stage=False, CU=4, chunk=24, cdelay=5, local=True, osleep=1, rot_m=8, rot_r=16, c3=96|24,
        bm_from=0, br_from=0, early_m=1, early_r=4, hold_x=None, hold_t=4500, bsleep=2, aux_prio=0, noround=False, zcopy=False, masked=False, ins_r=None, ins_m=None, prep_at=12, qtries=8, qsleep=8, force_fb=False, fmap=True, falt=False, dn_lead=2):
    a = Asm()
    n = 32
    def stampat(i):
        if stamps:
            a(f"s_memrealtime s[{80+2*i}:{81+2*i}]")

    a(HDR + f"; @launch grid=(256,1,1) block=(768,1,1) lds={LDS_SIZE}")
    a('.amdgcn_target "amdgcn-amd-amdhsa--gfx950"')
    a(".text")
    a(f".globl {NAME}_kernel")
    a(".p2align 8")
    a(f".type {NAME}_kernel,@function")
    a(f"{NAME}_kernel:")
    stampat(0)
    a("s_load_dwordx2 s[12:13], s[0:1], 8")
    a("s_load_dwordx2 s[4:5], s[0:1], 0")
    a("s_load_dwordx2 s[8:9], s[0:1], 24")
    a("s_load_dwordx2 s[24:25], s[0:1], 96")
    if stamps:
        for i in range(1, 10):
            a(f"s_mov_b64 s[{80+2*i}:{81+2*i}], 0")
    a("s_cmp_ge_u32 s2, 256")
    a("s_cbranch_scc1 L_end")
    a("v_lshrrev_b32 v2, 6, v0")
    a("v_and_b32 v0, 63, v0")
    a("v_readfirstlane_b32 s3, v2")
    a("v_lshlrev_b32 v1, 4, v0")
    a("s_mov_b32 s14, 0x10000000")
    a("s_mov_b32 s15, 0x20000")
    a("s_movk_i32 s6, 2048")
    a("s_mov_b32 s7, 0x20000")
    a(f"s_mov_b32 s26, {WS_SIZE}")
    a("s_mov_b32 s27, 0x20000")
    a("s_lshr_b32 s57, s2, 6")
    a("s_cmp_ge_u32 s3, 8")
    a("s_cbranch_scc1 L_aux")

    def epoch_load():
        a("s_load_dword s28, s[24:25], 0")
    def epoch_calc():
        a("s_and_b32 s29, s28, 0x7f7f7f7f")
        a("s_add_u32 s29, s29, 0x07050301")
        a("s_and_b32 s30, s28, 0x80808080")
        a("s_xor_b32 s29, s29, s30")
        for k in range(4):
            a(f"s_bfe_u32 s{60+k}, s29, {(8*k) | (8 << 16):#x}")
        a("s_mov_b32 s31, 0xffffff00")
    def srd(base, off, size):
        a(f"s_load_dwordx2 s[{base}:{base+1}], s[0:1], {off}")
        a(f"s_mov_b32 s{base+2}, {size}")
        a(f"s_mov_b32 s{base+3}, 0x20000")
    def masks(t0, t1):
        a(f"v_and_b32 v{t0}, 1, v0")
        a(f"v_lshlrev_b32 v{t0}, 4, v{t0}")
        a(f"v_mov_b32 v{t1}, 0xffff")
        a(f"v_lshlrev_b32 v{t0}, v{t0}, v{t1}")
        a(f"v_bfe_u32 v{t1}, v0, 1, 3")
        for r in range(4):
            a(f"v_cmp_eq_u32 vcc, {r}, v{t1}")
            a(f"v_cndmask_b32 v{4+r}, 0, v{t0}, vcc")
    def unpack(src, dst, n=4):
        for k in range(n):
            a(f"v_lshlrev_b32 v{dst+2*k}, 16, v{src+k}")
            a(f"v_and_b32 v{dst+2*k+1}, 0xffff0000, v{src+k}")
    def dpp_steps(regs, steps, op="v_add_f32"):
        for m in steps:
            for r in regs:
                a(f"{op}_dpp v{r}, v{r}, v{r} {m} row_mask:0xf bank_mask:0xf")
    def wave_reduce(regs, op="v_add_f32"):
        dpp_steps(regs, ("row_shr:1", "row_shr:2", "row_shr:4", "row_shr:8"), op)
        for r in regs:
            a(f"{op}_dpp v{r}, v{r}, v{r} row_bcast:15 row_mask:0xa bank_mask:0xf")
        for r in regs:
            a(f"{op}_dpp v{r}, v{r}, v{r} row_bcast:31 row_mask:0xc bank_mask:0xf")
    def bf16r(r):
        a(f"v_cvt_pk_bf16_f32 v{r}, v{r}, v{r}")
        a(f"v_lshlrev_b32 v{r}, 16, v{r}")
    def ln_sums(f, t, sc, o1, o2):
        a(f"v_readfirstlane_b32 s{sc}, v{f}")
        for i in range(8):
            a(f"v_subrev_f32 v{t+i}, s{sc}, v{f+i}")
        s1, s2 = t + 8, t + 9
        a(f"v_add_f32 v{s1}, v{t}, v{t+1}")
        a(f"v_mul_f32 v{s2}, v{t}, v{t}")
        a(f"v_fmac_f32 v{s2}, v{t+1}, v{t+1}")
        for i in range(2, 8):
            a(f"v_add_f32 v{s1}, v{s1}, v{t+i}")
            a(f"v_fmac_f32 v{s2}, v{t+i}, v{t+i}")
        wave_reduce([s1, s2])
        a(f"v_readlane_b32 s{o1}, v{s1}, 63")
        a(f"v_readlane_b32 s{o2}, v{s2}, 63")
    def ln_finish(c, mb, rs, t):
        a(f"v_mul_f32 v{mb}, 0x3b000000, v{mb}")
        a(f"v_mul_f32 v{rs}, 0x3b000000, v{rs}")
        a(f"v_fma_f32 v{rs}, -v{mb}, v{mb}, v{rs}")
        a(f"v_add_f32 v{mb}, {c}, v{mb}")
        a(f"v_max_f32 v{rs}, 0, v{rs}")
        a(f"v_cvt_pk_bf16_f32 v{t}, v{mb}, v{rs}")
        a(f"v_lshlrev_b32 v{mb}, 16, v{t}")
        a(f"v_and_b32 v{rs}, 0xffff0000, v{t}")
        a(f"v_add_f32 v{rs}, 0x3727c5ac, v{rs}")
        bf16r(rs)
        a(f"v_sqrt_f32 v{rs}, v{rs}")
        bf16r(rs)
        a(f"v_rcp_f32 v{rs}, v{rs}")
    def ln_apply(f, t, mb, rs, n=8):
        mbs = mb if isinstance(mb, (list, tuple)) else [mb] * n
        rss = rs if isinstance(rs, (list, tuple)) else [rs] * n
        for i in range(n):
            a(f"v_sub_f32 v{t+i}, v{f+i}, v{mbs[i]}")
        for k in range(n // 2):
            a(f"v_cvt_pk_bf16_f32 v{t+2*k+1}, v{t+2*k}, v{t+2*k+1}")
        for k in range(n // 2):
            a(f"v_lshlrev_b32 v{t+2*k}, 16, v{t+2*k+1}")
            a(f"v_and_b32 v{t+2*k+1}, 0xffff0000, v{t+2*k+1}")
        for i in range(n):
            a(f"v_mul_f32 v{t+i}, v{t+i}, v{rss[i]}")
    def spin_head(tag):
        a(f"s_mov_b32 s75, {SPIN}")
        a(f"L_{tag}:")
    def spin_bail(tag):
        a("s_sub_u32 s75, s75, 1")
        a(f"s_cbranch_scc1 L_{tag}_ok")
    def untag_check(regs, t, tag, pre=None):
        for i, r in enumerate(regs):
            if pre and r in pre: continue
            a(f"v_xor_b32 v{r}, s{60 + (i & 3)}, v{r}")
        rs = list(regs)
        a(f"v_or3_b32 v{t}, v{rs[0]}, v{rs[1]}, v{rs[2]}")
        rs = rs[3:]
        while len(rs) >= 2:
            a(f"v_or3_b32 v{t}, v{t}, v{rs[0]}, v{rs[1]}")
            rs = rs[2:]
        if rs:
            a(f"v_or_b32 v{t}, v{t}, v{rs[0]}")
        a(f"v_and_b32 v{t}, 0xff, v{t}")
        a(f"v_cmp_ne_u32 vcc, 0, v{t}")
        a(f"s_cbranch_vccnz L_{tag}")
        a(f"L_{tag}_ok:")
    def empty_check(regs, t, tag):
        rs = list(regs)
        if len(rs) == 1:
            a(f"v_cmp_eq_u32 vcc, -1, v{rs[0]}")
        else:
            if len(rs) >= 3:
                a(f"v_max3_u32 v{t}, v{rs[0]}, v{rs[1]}, v{rs[2]}"); rs = rs[3:]
            else:
                a(f"v_max_u32 v{t}, v{rs[0]}, v{rs[1]}"); rs = rs[2:]
            while len(rs) >= 2:
                a(f"v_max3_u32 v{t}, v{t}, v{rs[0]}, v{rs[1]}"); rs = rs[2:]
            if rs: a(f"v_max_u32 v{t}, v{t}, v{rs[0]}")
            a(f"v_cmp_eq_u32 vcc, -1, v{t}")
        a(f"s_cbranch_vccnz L_{tag}")
        a(f"L_{tag}_ok:")
    def masked_poll(tag, loads, t, mb=52):
        for k in range(len(loads)):
            a(f"s_mov_b64 s[{mb+2*k}:{mb+1+2*k}], -1")
        spin_head(tag)
        for k, (r, txt) in enumerate(loads):
            a(f"s_mov_b64 exec, s[{mb+2*k}:{mb+1+2*k}]")
            a(txt)
        spin_bail(tag)
        for k, (r, txt) in enumerate(loads):
            a(f"s_mov_b64 exec, s[{mb+2*k}:{mb+1+2*k}]")
            a(f"s_waitcnt vmcnt({len(loads)-1-k})")
            for i in range(4):
                a(f"v_xor_b32 v{r+i}, s{60+i}, v{r+i}")
            a(f"v_or3_b32 v{t}, v{r}, v{r+1}, v{r+2}")
            a(f"v_or_b32 v{t}, v{t}, v{r+3}")
            a(f"v_and_b32 v{t}, 0xff, v{t}")
            a(f"v_cmp_ne_u32 s[{mb+2*k}:{mb+1+2*k}], 0, v{t}")
        a(f"s_or_b64 s[64:65], s[{mb}:{mb+1}], s[{mb+2}:{mb+3}]")
        for k in range(2, len(loads)):
            a(f"s_or_b64 s[64:65], s[64:65], s[{mb+2*k}:{mb+1+2*k}]")
        a(f"s_cbranch_scc1 L_{tag}")
        a(f"L_{tag}_ok:")
        a("s_mov_b64 exec, -1")
    def swap_add(regs, tmp, sw):
        for i, r in enumerate(regs): a(f"v_mov_b32 v{tmp+i}, v{r}")
        for i, r in enumerate(regs): a(f"{sw} v{tmp+i}, v{r}")
        for i, r in enumerate(regs): a(f"v_add_f32 v{r}, v{r}, v{tmp+i}")
    def round4(base):
        a(f"v_cvt_pk_bf16_f32 v{base+1}, v{base}, v{base+1}")
        a(f"v_cvt_pk_bf16_f32 v{base+3}, v{base+2}, v{base+3}")
        a(f"v_lshlrev_b32 v{base}, 16, v{base+1}")
        a(f"v_and_b32 v{base+1}, 0xffff0000, v{base+1}")
        a(f"v_lshlrev_b32 v{base+2}, 16, v{base+3}")
        a(f"v_and_b32 v{base+3}, 0xffff0000, v{base+3}")
    def lds_wait(tag, addr, t, sleep, off=0):
        spin_head(tag)
        if sleep: a(f"s_sleep {sleep}")
        a(f"ds_read_b32 v{t}, v{addr} offset:{off}")
        spin_bail(tag)
        a("s_waitcnt lgkmcnt(0)")
        empty_check([t], t, tag)
    def P(G):
        r = 0
        for k, b in enumerate(gvec):
            if G >> k & 1: r ^= 1 << b
        return r

    a("s_and_b32 s52, s2, 63")
    a("s_lshl_b32 s52, s52, 2")
    a("s_add_u32 s52, s52, 3")
    a("s_lshl_b32 s52, s52, 20")
    a(f"s_lshl_b32 s53, s3, {10 + wbit}")
    a("s_xor_b32 s52, s52, s53")
    gl = list(gx)
    while gl:
        k, b = gl.pop(0)
        nn = 1
        while gl and gl[0] == (k + nn, b + nn):
            gl.pop(0); nn += 1
        a(f"s_bfe_u32 s53, s2, {k | (nn << 16):#x}")
        a(f"s_lshl_b32 s53, s53, {10 + b}")
        a("s_xor_b32 s52, s52, s53")
    a("s_lshl_b32 s53, s57, 18")
    a("s_xor_b32 s52, s52, s53")
    a("s_lshl_b32 s53, s57, 16")
    a("s_xor_b32 s52, s52, s53")
    assert tuple(gvec) == (0,1,5,6,7,8,9)
    RB = 44
    def ringreg(j): return RB + 4 * (j % ring)
    def ld_text(j):
        sr = 12 if j < n else 16
        p = P(j % n)
        r = ringreg(j)
        if p:
            a(f"s_xor_b32 s53, s52, {p << 10}")
            so = 53
        else:
            so = 52
        a(f"buffer_load_dwordx4 v[{r}:{r+3}], v1, s[{sr}:{sr+3}], s{so} offen {kv_aux}")
    a("s_waitcnt lgkmcnt(0)")
    for j in range(D0): ld_text(j)
    srd(16, 16, 0x10000000)
    epoch_load()
    a("s_mov_b32 s64, 0xcccccccc"); a("s_mov_b32 s65, 0xcccccccc")
    a("s_mov_b32 s66, 0xaaaaaaaa"); a("s_mov_b32 s67, 0xaaaaaaaa")
    masks(12, 13)
    a("v_and_b32 v12, 15, v0")
    a("v_lshlrev_b32 v12, 4, v12")
    a(f"v_add_u32 v12, {L_QB}, v12")
    a("s_barrier")
    for j in range(D0, N0):
        a(f"s_waitcnt vmcnt({D0-1})")
        ld_text(j)
    a(f"s_cmp_lt_u32 s2, {NMLP}")
    a("s_cbranch_scc1 L_kv_m")
    a("s_cmp_eq_u32 s57, 1")
    a("s_cbranch_scc1 L_kv_r")

    def stage_done(sr=3):
        a(f"s_lshl_b32 s73, s{sr}, 2")
        a(f"s_add_u32 s73, s73, {L_FL}")
        a("v_mov_b32 v26, s73")
        a("v_mov_b32 v27, 0")
        a("ds_write_b32 v26, v27")

    def kv_path(role, Dx, bfrom, early):
        st = dict(iss=N0, landed=N0 - D0 - 1, cons=0)
        order = list(range(N0))
        NT = 2 * n
        stage = []
        def depth(): return Dx if st["cons"] >= bfrom else D
        def ld_kv():
            j = st["iss"]
            ld_text(j)
            st["iss"] += 1
            order.append(j)
        def wait_kv(j):
            if j <= st["landed"]: return
            a(f"s_waitcnt vmcnt({len(order) - 1 - order.index(j)})")
            st["landed"] = j
        if role == "m":
            srd(44, 48, 1024); srd(48, 80, 2048); srd(32, 56, 1409024); srd(36, 64, 1409024); srd(40, 72, 1409024)
        if role == "r":
            srd(20, 32, 0x400000)
        while st["iss"] < NPRE:
            d = depth()
            if st["iss"] - 1 - st["landed"] >= d:
                wait_kv(st["iss"] - d)
            ld_kv()
        stampat(1)
        spin_head("wq" + role)
        a("ds_read_b128 v[8:11], v12")
        spin_bail("wq" + role)
        a("s_waitcnt lgkmcnt(0)")
        empty_check([8, 9, 10, 11], 13, "wq" + role)
        a("s_waitcnt lgkmcnt(0)")
        if role != "p": epoch_calc()
        stampat(2)
        def reduce_scores(dst):
            for i in range(8):
                a(f"v_add_f32_dpp v{24+i}, v{24+i}, v{24+i} row_ror:8 row_mask:0xf bank_mask:0x3")
            for i in range(8):
                a(f"v_add_f32_dpp v{24+i}, v{32+i}, v{32+i} row_ror:8 row_mask:0xf bank_mask:0xc")
            for i in range(4):
                a(f"v_add_f32_dpp v{24+i}, v{24+i}, v{24+i} row_half_mirror row_mask:0xf bank_mask:0x5")
            for i in range(4):
                a(f"v_add_f32_dpp v{24+i}, v{28+i}, v{28+i} row_half_mirror row_mask:0xf bank_mask:0xa")
            dpp_steps([24, 25, 26, 27], ("quad_perm:[2,3,0,1]",))
            a("v_cndmask_b32 v24, v24, v26, s[64:65]")
            a("v_cndmask_b32 v25, v25, v27, s[64:65]")
            dpp_steps([24, 25], ("quad_perm:[1,0,3,2]",))
            a(f"v_cndmask_b32 v{dst}, v24, v25, s[66:67]")
            if not noround: bf16r(dst)
            a(f"v_mul_f32 v{dst}, {SCALE:#x}, v{dst}")
            if not noround: bf16r(dst)
        def softmax_part():
            stampat(3)
            a("v_max_f32 v24, v2, v3")
            wave_reduce([24], "v_max_f32")
            a("v_readlane_b32 s72, v24, 63")
            for r in (2, 3): a(f"v_subrev_f32 v{r}, s72, v{r}")
            for r in (2, 3): a(f"v_mul_f32 v{r}, {LOG2E:#x}, v{r}")
            for r in (2, 3): a(f"v_exp_f32 v{r}, v{r}")
            a("v_add_f32 v25, v2, v3")
            for r in (2, 3): a(f"v_cvt_pk_bf16_f32 v{r}, v{r}, v{r}")
            wave_reduce([25])
            a("s_lshl_b32 s73, s3, 3")
            a(f"s_add_u32 s73, s73, {L_MB}")
            a("v_mov_b32 v26, s73")
            a("s_mov_b32 exec_lo, 0")
            a("s_mov_b32 exec_hi, 0x80000000")
            a("ds_write_b64 v26, v[24:25]")
            a("s_mov_b64 exec, -1")
            a("s_lshl_b32 s73, s3, 9")
            a(f"s_add_u32 s73, s73, {L_OP}")
            a("v_and_b32 v27, 15, v0")
            a("v_lshrrev_b32 v28, 4, v0")
            a("v_lshlrev_b32 v29, 5, v27")
            a("v_lshl_add_u32 v29, v28, 4, v29")
            a("v_add_u32 v29, s73, v29")
            stampat(4)
        def issue_stage():
            m0, voff, sr, so, aux = stage.pop(0)
            a(f"s_add_u32 m0, {m0}")
            a(f"s_add_u32 s53, {so}")
            if not no_stage:
                a(f"buffer_load_dwordx4 v{voff}, s[{sr}:{sr+3}], s53 offen {aux} lds")
                order.append("st")
        ins = {"r": ins_r, "m": ins_m}.get(role)
        ins = list(ins) if ins else []
        def inflight():
            pos = order.index(st["landed"])
            return sum(1 for x in order[pos+1:] if isinstance(x, int) or x == "st")
        def pump(extra=0):
            while st["iss"] < NT and inflight() < depth() + extra and st["iss"] - ring < st["cons"]:
                if ins and ins[0] <= st["iss"] and stage:
                    ins.pop(0)
                    issue_stage()
                    continue
                ld_kv()
            if st["iss"] == NT and stage and st["cons"] >= NT - early:
                issue_stage()
        def role_prep():
            if role == "r":
                a("s_and_b32 s76, s2, 7")
                a("s_lshr_b32 s77, s3, 1")
                a("s_lshl_b32 s78, s77, 3")
                a("s_add_u32 s78, s78, s76")
                a("s_lshl_b32 s68, s78, 17")
                a("s_lshl_b32 s78, s78, 1")
                a("s_and_b32 s73, s3, 1")
                a("s_add_u32 s78, s78, s73")
                a("s_lshl_b32 s79, s78, 9")
                a(f"s_add_u32 s79, s79, {WS_MLX}")
                a("s_lshl_b32 s78, s78, 11")
                a(f"s_add_u32 s78, s78, {WS_OP}")
                a("s_lshl_b32 s69, s73, 16")
                a("s_add_u32 s68, s68, s69")
                a("s_bfe_u32 s69, s2, 0x30003")
                a("s_lshl_b32 s69, s69, 7")
                a("s_add_u32 s68, s68, s69")
                a("s_lshl_b32 s69, s3, 13")
                a("v_and_b32 v31, 3, v0")
                a("v_lshlrev_b32 v31, 7, v31")
                a(f"s_mul_i32 s73, s73, {APITCH}")
                a("s_lshl_b32 s77, s77, 8")
                a("s_add_u32 s73, s73, s77")
                a(f"s_add_u32 s73, s73, {L_A}")
                a("v_lshlrev_b32 v30, 3, v0")
                a("v_add_u32 v30, s73, v30")
                a("s_getreg_b32 s74, hwreg(HW_REG_XCC_ID, 0, 4)")
                a("v_lshrrev_b32 v32, 3, v0")
                a("v_and_b32 v33, 7, v0")
                a("v_lshlrev_b32 v32, 10, v32")
                a("v_lshl_or_b32 v32, v33, 4, v32")
                for i in range(8):
                    stage.append((f"s69, {1024*i}", 32, 20, f"s68, {8192*i}", wo_aux))
            if role == "m":
                a("v_bfe_u32 v38, v0, 2, 1")
                a("v_bfe_u32 v31, v0, 3, 2")
                a("v_lshlrev_b32 v30, 5, v31")
                a("v_and_b32 v31, 3, v0")
                a("v_lshl_add_u32 v30, v31, 3, v30")
                a("s_lshl_b32 s73, s3, 7")
                a("v_add_u32 v30, s73, v30")
                a("v_lshl_add_u32 v39, v38, 10, v30")
                a("buffer_load_dwordx2 v[36:37], v39, s[4:7], 0 offen")
                a("v_lshlrev_b32 v39, 10, v38")
                a("buffer_load_ushort v41, v39, s[4:7], 0 offen")
                a("buffer_load_dwordx4 v[32:35], v1, s[44:47], 0 offen")
                order.extend(["x", "c", "wr"])
                a(f"v_mul_u32_u24 v39, {APITCH}, v38")
                a("v_add_u32 v30, v30, v39")
                a(f"v_add_u32 v30, {L_A}, v30")
                a("v_bfe_u32 v39, v0, 4, 1")
                a("v_lshlrev_b32 v39, 3, v39")
                a("v_lshl_add_u32 v39, v38, 7, v39")
                a("s_lshl_b32 s73, s3, 4")
                a(f"s_add_u32 s73, s73, {L_ST}")
                a("v_add_u32 v39, s73, v39")
                a("s_lshl_b32 s78, s3, 12")
                a(f"s_add_u32 s78, s78, {WS_ZX}")
                if zcopy:
                    a("s_getreg_b32 s73, hwreg(HW_REG_XCC_ID, 0, 3)")
                    a("s_lshl_b32 s73, s73, 15")
                    a("s_add_u32 s78, s78, s73")
                a("v_lshrrev_b32 v42, 2, v0")
                a("v_mul_u32_u24 v42, 2752, v42")
                a("v_lshl_add_u32 v42, v31, 4, v42")
                if fmap:
                    a("s_and_b32 s70, s2, 7")
                    a("s_min_u32 s71, s70, 3")
                    a("s_mul_i32 s70, s70, 5")
                    a("s_add_u32 s70, s70, s71")
                    a("s_lshr_b32 s71, s2, 3")
                    a("s_add_u32 s70, s70, s71")
                else:
                    a("s_mov_b32 s70, s2")
                if falt:
                    a("s_and_b32 s74, s70, 1")
                    a("s_lshl_b32 s74, s74, 2")
                    a("s_xor_b32 s74, s74, s3")
                else:
                    a("s_mov_b32 s74, s3")
                a("s_mul_i32 s68, s74, 176128")
                a("s_lshl_b32 s69, s70, 6")
                a("s_add_u32 s68, s68, s69")
                a("s_lshl_b32 s69, s74, 12")
                a("s_lshl_b32 s70, s70, 15")
                a("s_add_u32 s70, s70, s69")
                a(f"s_mul_i32 s71, s74, {4*DNP}")
                for i in range(4):
                    stage.append((f"s69, {1024*i}", 42, 32, f"s68, {44032*i}", mlp_aux))
                    stage.append((f"s69, {L_UP + 1024*i}", 42, 36, f"s68, {44032*i}", mlp_aux))
                for i in range(4):
                    stage.append((f"s71, {L_DN + DNP*i}", 1, 40, f"s70, {1024*i}", dn_aux))
        def consume(j):
            r = ringreg(j)
            st["cons"] = j
            if j < n:
                i = j & 15
                if i == 0:
                    for k in range(16):
                        a(f"v_mov_b32 v{24+k}, 0")
                wait_kv(j)
                pump(1 if i == 15 else 0)
                for k in range(4):
                    a(f"v_dot2c_f32_bf16 v{24+i}, v{r+k}, v{8+k}")
                if i == 15: reduce_scores(2 + (j >> 4))
                if j == n - 1: softmax_part()
            else:
                jj = j - n
                i = jj & 15
                pp = 2 + (jj >> 4)
                t = 12 + 4 * (i & 1)
                for k in range(4):
                    a(f"v_and_b32_dpp v{t+k}, v{pp}, v{4+k} row_newbcast:{i} row_mask:0xf bank_mask:0xf")
                pj = order.index(j)
                if pj > 0 and order[pj-1] == "st" and j > st["landed"] and st["iss"] < NT:
                    a(f"s_waitcnt vmcnt({len(order) - pj})")
                    pump(1)
                wait_kv(j)
                if j < NT - 1: pump()
                if jj > prep_at and not stage and "st" in order and not st.get("fl") and max(i for i, x in enumerate(order) if x == "st") < order.index(j):
                    stage_done(74 if role == "m" else 3); st["fl"] = True
                c = "0" if jj == 0 else "v[20:23]"
                a(f"v_mfma_f32_16x16x32_bf16 v[20:23], v[{t}:{t+3}], v[{r}:{r+3}], {c}")
                if jj == prep_at: role_prep()
                if jj == 20 and role == "r":
                    a("buffer_load_dwordx4 v[40:43], v31, s[24:27], s79 offen sc1")
                    order.append("ml")
        for j in range(NT):
            if j <= st["landed"] and j % CU == 0 and st["iss"] < NT and st["iss"] - ring < j:
                st["cons"] = j
                wait_kv(st["landed"] + 1)
                pump()
            consume(j)
        a("s_mov_b32 exec_hi, 0")
        a("ds_write_b128 v29, v[20:23]")
        a("s_mov_b64 exec, -1")
        stampat(5)
        keep = 4 if role == "m" else 0
        while len(stage) > keep: issue_stage()
        return lambda: [issue_stage() for _ in range(len(stage))]
    kv_path("p", D, 0, 0)
    a("s_branch L_fin")

    a("L_kv_r:")
    kv_path("r", Dr, br_from, early_r)
    a(f"s_mov_b32 s75, {SPIN}")
    a("s_branch L_pL_chk")
    a("L_pL:")
    a("buffer_load_dwordx4 v[40:43], v31, s[24:27], s79 offen sc1")
    spin_bail("pL")
    a("s_waitcnt vmcnt(0)")
    a("L_pL_chk:")
    a("v_xor_b32 v54, s29, v42")
    a("v_xor_b32 v55, s29, v43")
    a("v_lshrrev_b32 v56, 4, v55")
    a("v_or_b32 v54, v54, v56")
    a("v_cmp_ne_u32 vcc, 0, v54")
    a("s_cbranch_vccnz L_pL")
    a("L_pL_ok:")
    a("v_mov_b32 v52, v40")
    a("v_mov_b32 v53, v41")
    a("v_mov_b32 v56, v52")
    dpp_steps([56], ("quad_perm:[1,0,3,2]", "quad_perm:[2,3,0,1]"), "v_max_f32")
    a("v_sub_f32 v52, v52, v56")
    a(f"v_mul_f32 v52, {LOG2E:#x}, v52")
    a("v_exp_f32 v52, v52")
    a("v_mul_f32 v53, v53, v52")
    dpp_steps([53], ("quad_perm:[1,0,3,2]", "quad_perm:[2,3,0,1]"))
    a("v_rcp_f32 v53, v53")
    a("v_mul_f32 v52, v52, v53")
    a(f"v_mov_b32 v54, {WS_OS - WS_OP}")
    if local:
        a("v_cmp_ne_u32 vcc, s74, v55")
        a("v_cndmask_b32 v55, 0, v54, vcc")
    else:
        a("v_mov_b32 v55, v54")
    for src, d0 in ((52, 56), (55, 58)):
        a(f"v_mov_b32_dpp v{d0}, v{src} quad_perm:[0,0,0,0] row_mask:0x3 bank_mask:0xf")
        a(f"v_mov_b32_dpp v{d0+1}, v{src} quad_perm:[2,2,2,2] row_mask:0x3 bank_mask:0xf")
        a(f"v_mov_b32_dpp v{d0}, v{src} quad_perm:[1,1,1,1] row_mask:0xc bank_mask:0xf")
        a(f"v_mov_b32_dpp v{d0+1}, v{src} quad_perm:[3,3,3,3] row_mask:0xc bank_mask:0xf")
    a("v_add_u32 v58, v58, v1")
    a("v_add_u32 v59, v59, v1")
    a("s_lshl_b32 s73, s3, 2")
    a(f"s_add_u32 s73, s73, {L_FL}")
    a("v_mov_b32 v26, s73")
    a("v_mov_b32 v27, 0")
    spin_head("pA")
    a("buffer_load_dwordx4 v[44:47], v58, s[24:27], s78 offen sc1")
    a("buffer_load_dwordx4 v[48:51], v59, s[24:27], s78 offen offset:1024 sc1")
    a(f"s_cmp_lg_u32 s75, {SPIN - 400}")
    a("s_cbranch_scc1 L_pA_nf")
    a("v_add_u32 v58, v54, v1")
    a("v_add_u32 v59, v54, v1")
    a("L_pA_nf:")
    spin_bail("pA")
    a("s_waitcnt vmcnt(2)")
    a("ds_write_b32 v26, v27")
    a("s_waitcnt vmcnt(0)")
    untag_check(list(range(44, 52)), 60, "pA")
    stampat(6)
    for r in range(4): a(f"v_mul_f32 v{44+r}, v{44+r}, v56")
    for r in range(4): a(f"v_fmac_f32 v{44+r}, v{48+r}, v57")
    swap_add([44, 45, 46, 47], 48, "v_permlane32_swap_b32")
    a("v_cvt_pk_bf16_f32 v44, v44, v45")
    a("v_cvt_pk_bf16_f32 v45, v46, v47")
    a("s_mov_b32 exec_hi, 0")
    a("ds_write_b64 v30, v[44:45]")
    a("s_waitcnt lgkmcnt(0)")
    a("s_barrier")
    stampat(7)
    a("s_mov_b64 exec, -1")
    a("s_branch L_fin")

    a("L_kv_m:")
    rest = kv_path("m", Dm, bm_from, early_m)
    unpack(36, 64, 2)
    a("v_lshlrev_b32 v41, 16, v41")
    a(f"s_waitcnt vmcnt({dn_lead})")
    rest()
    a(f"s_waitcnt vmcnt({0 if no_stage else 4})")
    stage_done(74)
    stampat(9)
    a("s_mov_b64 exec, 0xff")
    spin_head("pB0")
    if bsleep: a(f"s_sleep {bsleep}")
    a("buffer_load_dwordx4 v[44:47], v1, s[24:27], s78 offen sc1")
    spin_bail("pB0")
    a("s_waitcnt vmcnt(1)")
    a(f"ds_write_b32 v26, v27 offset:{L_FD - L_FL}")
    a("s_waitcnt vmcnt(0)")
    untag_check([44, 45, 46, 47], 60, "pB0")
    a("s_mov_b64 exec, -1")
    if masked:
        masked_poll("pB", [(44 + 4*k, f"buffer_load_dwordx4 v[{44+4*k}:{47+4*k}], v1, s[24:27], s78 offen offset:{1024*k} sc1") for k in range(4)], 60)
    else:
        spin_head("pB")
        for k in range(4):
            a(f"buffer_load_dwordx4 v[{44+4*k}:{47+4*k}], v1, s[24:27], s78 offen offset:{1024*k} sc1")
        spin_bail("pB")
        a("s_waitcnt vmcnt(0)")
        untag_check(list(range(44, 60)), 60, "pB")
    stampat(6)
    for r in range(4):
        a(f"v_add_f32 v{44+r}, v{44+r}, v{48+r}")
        a(f"v_add_f32 v{52+r}, v{52+r}, v{56+r}")
    for r in range(4): a(f"v_add_f32 v{44+r}, v{44+r}, v{52+r}")
    swap_add([44, 45, 46, 47], 48, "v_permlane32_swap_b32")
    round4(44)
    for r in range(4): a(f"v_add_f32 v{44+r}, v{44+r}, v{64+r}")
    a("v_cvt_pk_bf16_f32 v48, v44, v45")
    a("v_cvt_pk_bf16_f32 v49, v46, v47")
    a("s_mov_b32 exec_hi, 0")
    a("ds_write_b64 v30, v[48:49]")
    unpack(48, 44, 2)
    for r in range(4): a(f"v_sub_f32 v{44+r}, v{44+r}, v41")
    a("v_add_f32 v50, v44, v45"); a("v_mul_f32 v51, v44, v44")
    a("v_add_f32 v52, v46, v47"); a("v_mul_f32 v53, v46, v46")
    a("v_fmac_f32 v51, v45, v45"); a("v_fmac_f32 v53, v47, v47")
    a("v_add_f32 v50, v50, v52"); a("v_add_f32 v51, v51, v53")
    dpp_steps([50, 51], ("quad_perm:[1,0,3,2]", "quad_perm:[2,3,0,1]", "row_ror:8"))
    a("ds_write_b64 v39, v[50:51]")
    a("s_mov_b64 exec, -1")
    a("s_waitcnt lgkmcnt(0)")
    a("s_barrier")
    stampat(7)
    a("s_cmp_ge_u32 s3, 2")
    a("s_cbranch_scc1 L_fin")
    a("s_cmp_ge_u32 s2, 32")
    a("s_cbranch_scc1 L_fin")
    a(f"s_mul_i32 s73, s3, {APITCH}")
    a(f"s_add_u32 s73, s73, {L_A}")
    a("v_add_u32 v52, s73, v1")
    a("ds_read_b128 v[96:99], v52")
    a("v_lshrrev_b32 v40, 2, v0")
    a("v_and_b32 v43, 3, v0")
    a("v_lshlrev_b32 v44, 7, v40")
    a("v_lshl_or_b32 v44, v43, 4, v44")
    a("s_mul_i32 s78, s2, 5504")
    a("s_lshl_b32 s73, s3, 6")
    a("s_add_u32 s78, s78, s73")
    a(f"s_add_u32 s78, s78, {WS_Y}")
    a("s_add_u32 s79, s78, 2048")
    a("s_add_u32 s77, s78, 4096")
    a("s_lshl_b32 s74, s2, 5")
    a("s_lshl_b32 s73, s3, 4")
    a("s_add_u32 s76, s74, s73")
    a("v_lshlrev_b32 v45, 2, v43")
    a(f"s_add_u32 s73, s76, {L_A}")
    a("v_add_u32 v46, s73, v45")
    a("ds_read_b32 v50, v46")
    a(f"ds_read_b32 v51, v46 offset:{APITCH}")
    a("s_waitcnt lgkmcnt(0)")
    unpack(96, 100)
    ln_sums(100, 108, 68, 69, 70)
    a("v_mov_b32 v124, s69")
    a("v_mov_b32 v125, s70")
    ln_finish("s68", 124, 125, 108)
    ln_apply(100, 108, 124, 125)
    for k in range(4):
        a(f"v_cvt_pk_bf16_f32 v{120+k}, v{108+2*k}, v{109+2*k}")
    a("v_mov_b32 v126, 0")
    for k in range(4):
        a(f"v_dot2c_f32_bf16 v126, v{120+k}, v{32+k}")
    wave_reduce([126])
    a("v_readlane_b32 s73, v126, 63")
    a("v_mov_b32 v126, s73")
    bf16r(126)
    a("v_mul_f32 v126, 0xbfb8aa3b, v126")
    a("v_exp_f32 v126, v126")
    a("v_add_f32 v126, 1.0, v126")
    a("v_rcp_f32 v126, v126")
    bf16r(126)
    a("v_mov_b32 v127, 0")
    a("s_lshl_b32 s73, s3, 4")
    a(f"s_add_u32 s73, s73, {L_SG}")
    a("v_mov_b32 v46, s73")
    a("ds_write_b128 v46, v[124:127]")
    a(f"v_mov_b32 v46, {L_SG}")
    a("v_lshlrev_b32 v104, 16, v50"); a("v_lshlrev_b32 v105, 16, v51")
    a("v_and_b32 v106, 0xffff0000, v50"); a("v_and_b32 v107, 0xffff0000, v51")
    for r in range(4): a(f"v_mov_b32 v{20+r}, 0")
    spin_head("pS")
    a("ds_read_b128 v[112:115], v46")
    a("ds_read_b128 v[116:119], v46 offset:16")
    spin_bail("pS")
    a("s_waitcnt lgkmcnt(0)")
    empty_check([112, 113, 114, 116, 117, 118], 47, "pS")
    ln_apply(104, 100, [112, 116, 112, 116], [113, 117, 113, 117], 4)
    round4(100)
    a("v_and_b32 v46, 31, v0")
    a("v_lshlrev_b32 v46, 2, v46")
    a(f"v_add_u32 v46, {L_ACT}, v46")
    lds_wait("pT", 46, 47, 0)
    stampat(8)
    if cdelay: a(f"s_sleep {cdelay}")
    spin_head("pC")
    a("buffer_load_dwordx4 v[12:15], v44, s[24:27], s78 offen sc1")
    a("buffer_load_dwordx4 v[16:19], v44, s[24:27], s79 offen sc1")
    a("s_mov_b32 exec_hi, 0xfff")
    a("buffer_load_dwordx4 v[20:23], v44, s[24:27], s77 offen sc1")
    a("s_waitcnt vmcnt(0)")
    for r in range(4): a(f"v_xor_b32 v{20+r}, s{60+r}, v{20+r}")
    a("s_mov_b64 exec, -1")
    spin_bail("pC")
    untag_check(list(range(12, 24)), 24, "pC", pre={20, 21, 22, 23})
    stampat(4)
    for r in range(4): a(f"v_add_f32 v{12+r}, v{12+r}, v{16+r}")
    for r in range(4): a(f"v_add_f32 v{12+r}, v{12+r}, v{20+r}")
    dpp_steps([12, 13, 14, 15], ("row_ror:4", "row_ror:8"))
    swap_add([12, 13, 14, 15], 16, "v_permlane16_swap_b32")
    swap_add([12, 13, 14, 15], 16, "v_permlane32_swap_b32")
    round4(12)
    for r in range(4): a(f"v_mul_f32 v{12+r}, v{12+r}, v{114 + 4 * (r & 1)}")
    round4(12)
    for r in range(4): a(f"v_add_f32 v{12+r}, v{12+r}, v{100+r}")
    round4(12)
    for r in range(4): a(f"v_add_f32 v{12+r}, v{12+r}, v{104+r}")
    a("v_cvt_pk_bf16_f32 v12, v12, v14")
    a("v_cvt_pk_bf16_f32 v13, v13, v15")
    a("s_mov_b64 exec, 0xf")
    a("buffer_store_dword v12, v45, s[48:51], s76 offen")
    a("buffer_store_dword v13, v45, s[48:51], s76 offen offset:1024")
    a("s_cmp_lg_u32 s76, 0")
    a("s_cbranch_scc1 L_noep")
    a("s_mov_b64 exec, 1")
    a("v_mov_b32 v14, s29")
    a("buffer_store_dword v14, v45, s[24:27], 0 offen")
    a("L_noep:")
    a("s_mov_b64 exec, -1")
    stampat(3)
    a("s_branch L_fin")

    a("L_aux:")
    if aux_prio: a(f"s_setprio {aux_prio}")
    a("s_sub_u32 s59, s3, 8")
    a("s_and_b32 s55, s2, 31")
    a("s_bfe_u32 s56, s2, 0x10005")
    a("v_lshrrev_b32 v2, 4, v0")
    a("v_and_b32 v3, 15, v0")
    a("s_mov_b32 s10, 0x400000")
    a("s_mov_b32 s11, 0x20000")
    a("v_lshlrev_b32 v8, 18, v2")
    a("v_lshl_or_b32 v8, v3, 4, v8")
    a("s_lshl_b32 s54, s59, 20")
    a("s_lshl_b32 s53, s55, 8")
    a("s_or_b32 s54, s54, s53")
    a("v_lshlrev_b32 v10, 6, v2")
    a("s_lshl_b32 s52, s56, 10")
    a("s_lshl_b32 s53, s59, 8")
    a("s_add_u32 s53, s53, s52")
    a("s_movk_i32 s65, 0x2000")
    for r in range(4): a(f"v_mov_b32 v{12+r}, -1")
    a("s_lshl_b32 s58, s59, 11")
    a(f"s_add_u32 s58, s58, {L_INIT}")
    a("v_add_u32 v9, s58, v1")
    a("ds_write_b128 v9, v[12:15]")
    a("s_cmp_eq_u32 s59, 3")
    a("s_cbranch_scc0 L_i2")
    for r in range(4): a(f"v_mov_b32 v{12+r}, 0")
    a("s_mov_b64 exec, 1")
    a("L_i2:")
    a("ds_write_b128 v9, v[12:15] offset:1024")
    a("s_mov_b64 exec, -1")
    a("s_waitcnt lgkmcnt(0)")
    epoch_load()
    a("s_cmp_eq_u32 s59, 0")
    a("s_cbranch_scc1 L_coop")
    a("s_barrier")
    a(f"v_mov_b32 v12, {L_QB}")
    a("s_waitcnt lgkmcnt(0)")
    epoch_calc()
    spin_head("fw")
    a("s_sleep 4")
    a(f"ds_read2_b32 v[14:15], v12 offset0:0 offset1:{(L_FB - L_QB) // 4}")
    spin_bail("fw")
    a("s_waitcnt lgkmcnt(0)")
    a("v_cmp_ne_u32 vcc, -1, v15")
    a("s_cbranch_vccnz L_fallback")
    a("v_cmp_eq_u32 vcc, -1, v14")
    a("s_cbranch_vccnz L_fw")
    a("L_fw_ok:")
    a("s_branch L_aux4")
    a("L_coop:")
    a("s_lshl_b32 s58, s56, 2")
    a("s_add_u32 s58, s58, s57")
    a("v_lshlrev_b32 v40, 17, v2")
    a("v_lshl_or_b32 v40, v3, 4, v40")
    a("s_lshl_b32 s71, s58, 19")
    a("s_lshl_b32 s72, s55, 8")
    a("s_or_b32 s71, s71, s72")
    a("v_lshrrev_b32 v41, 3, v3")
    a("v_lshlrev_b32 v42, 10, v41")
    a("v_lshl_add_u32 v42, v2, 5, v42")
    a("s_lshl_b32 s72, s58, 7")
    a("buffer_load_dwordx4 v[44:47], v1, s[4:7], 0 offen")
    a("buffer_load_dwordx4 v[48:51], v1, s[4:7], 0 offen offset:1024")
    a("buffer_load_dwordx4 v[52:55], v42, s[4:7], s72 offen")
    a("buffer_load_dwordx4 v[56:59], v42, s[4:7], s72 offen offset:16")
    for i in range(16):
        r = 72 + 4 * i
        a(f"buffer_load_dwordx4 v[{r}:{r+3}], v40, s[8:11], s71 offen {wq_aux}")
        if i < 15: a("s_add_u32 s71, s71, s65")
    a("s_barrier")
    a("v_and_b32 v12, 1, v0")
    a("v_lshlrev_b32 v12, 4, v12")
    a("v_mov_b32 v13, 0xffff")
    a("v_lshlrev_b32 v12, v12, v13")
    a("v_bfe_u32 v13, v0, 1, 2")
    for r in range(4):
        a(f"v_cmp_eq_u32 vcc, {r}, v13")
        a(f"v_cndmask_b32 v{4+r}, 0, v12, vcc")
    a("v_cmp_eq_u32 s[66:67], 1, v41")
    a("s_waitcnt vmcnt(18) lgkmcnt(0)")
    epoch_calc()
    unpack(44, 24)
    unpack(48, 60)
    m0 = len(a.lines)
    ln_sums(24, 12, 68, 69, 70)
    l1 = a.lines[m0:]; del a.lines[m0:]
    ln_sums(60, 32, 76, 77, 78)
    l2 = a.lines[m0:]; del a.lines[m0:]
    for x, y in zip(l1, l2):
        a(x); a(y)
    for k, d in enumerate((60, 61, 62)):
        a(f"v_mov_b32 v{d}, s{68+k}")
        a(f"v_mov_b32 v63, s{76+k}")
        a(f"v_cndmask_b32 v{d}, v{d}, v63, s[66:67]")
    ln_finish("v60", 61, 62, 63)
    a("s_waitcnt vmcnt(16)")
    unpack(52, 24, 8)
    ln_apply(24, 24, 61, 62, 16)
    for i in range(16):
        a(f"v_cvt_pk_bf16_f32 v{24+i}, v{24+i}, v{24+i}")
    for i in range(16):
        t = 12 + 4 * (i & 1)
        for r in range(4):
            a(f"v_and_b32 v{t+r}, v{24+i}, v{4+r}")
        a(f"s_waitcnt vmcnt({15-i})")
        c = "0" if i == 0 else "v[20:23]"
        a(f"v_mfma_f32_16x16x32_bf16 v[20:23], v[{t}:{t+3}], v[{72+4*i}:{75+4*i}], {c}")
    a("v_lshrrev_b32 v40, 5, v0")
    a("v_lshlrev_b32 v40, 12, v40")
    a("v_and_b32 v41, 31, v0")
    a("v_lshl_add_u32 v40, v41, 4, v40")
    a("s_lshl_b32 s71, s55, 13")
    a(f"s_add_u32 s71, s71, {WS_QX}")
    a("s_lshl_b32 s72, s58, 9")
    a("s_add_u32 s72, s72, s71")
    a("v_mov_b32 v12, s31")
    for r in range(4):
        a(f"v_add_u32 v{20+r}, 0x80, v{20+r}")
    for r in range(4):
        a(f"v_and_or_b32 v{20+r}, v{20+r}, v12, s{60+r}")
    if not force_fb:
        a("buffer_store_dwordx4 v[20:23], v40, s[24:27], s72 offen")
    stampat(1)
    a("s_lshl_b32 s72, s56, 12")
    a("s_add_u32 s71, s71, s72")
    a("v_and_b32 v41, 1, v2")
    a("v_lshlrev_b32 v41, 3, v41")
    a("v_lshl_add_u32 v41, v3, 4, v41")
    a(f"v_add_u32 v41, {L_QB}, v41")
    a(f"s_movk_i32 s75, {qtries}")
    a("L_pX:")
    if qsleep: a(f"s_sleep {qsleep}")
    for k in range(4):
        a(f"buffer_load_dwordx4 v[{44+4*k}:{47+4*k}], v1, s[24:27], s71 offen offset:{1024*k} sc1")
    a("s_sub_u32 s75, s75, 1")
    a("s_cbranch_scc1 L_giveup")
    a("s_waitcnt vmcnt(0)")
    untag_check(list(range(44, 60)), 60, "pX")
    for r in range(4):
        a(f"v_add_f32 v{44+r}, v{44+r}, v{48+r}")
        a(f"v_add_f32 v{52+r}, v{52+r}, v{56+r}")
    for r in range(4): a(f"v_add_f32 v{44+r}, v{44+r}, v{52+r}")
    swap_add([44, 45, 46, 47], 48, "v_permlane32_swap_b32")
    a("v_cvt_pk_bf16_f32 v44, v44, v45")
    a("v_cvt_pk_bf16_f32 v45, v46, v47")
    a("ds_write_b64 v41, v[44:45]")
    a("v_lshlrev_b32 v8, 3, v0")
    a(f"v_add_u32 v11, {L_OP}, v8")
    a("s_branch L_qdone")
    a("L_giveup:")
    a(f"v_mov_b32 v12, {L_FB}")
    a("v_mov_b32 v13, 1")
    a("ds_write_b32 v12, v13")
    a("s_waitcnt vmcnt(0)")
    a("L_fallback:")
    a("buffer_load_dwordx4 v[20:23], v1, s[4:7], s52 offen")
    for k in range(4):
        a(f"buffer_load_dwordx4 v[{56+4*k}:{59+4*k}], v10, s[4:7], s53 offen offset:{16*k}")
    QR = 24
    q = dict(iss=0, landed=-1)
    def qreg(i): return 72 + 4 * (i % QR)
    def ld_wq():
        i = q["iss"]
        r = qreg(i)
        a(f"buffer_load_dwordx4 v[{r}:{r+3}], v8, s[8:11], s54 offen {wq_aux}")
        if i < 31: a("s_add_u32 s54, s54, s65")
        q["iss"] += 1
    def wait_wq(i):
        if i <= q["landed"]: return
        a(f"s_waitcnt vmcnt({q['iss'] - 1 - i})")
        q["landed"] = i
    for i in range(DQ): ld_wq()
    a(f"s_waitcnt vmcnt({DQ})")
    mark = len(a.lines)
    masks(12, 13)
    unpack(20, 24)
    ln_sums(24, 32, 68, 69, 70)
    a("v_mov_b32 v10, s69")
    a("v_mov_b32 v11, s70")
    ln_finish("s68", 10, 11, 9)
    unpack(56, 24, 16)
    ln_apply(24, 24, 10, 11, 32)
    for i in range(32):
        a(f"v_cvt_pk_bf16_f32 v{24+i}, v{24+i}, v{24+i}")
    body = a.lines[mark:]
    del a.lines[mark:]
    for k in range(0, len(body), chunk):
        if q["iss"] < QR:
            wait_wq(q["iss"] - DQ)
            ld_wq()
        for ln in body[k:k+chunk]: a(ln)
    for i in range(32):
        t = 12 + 4 * (i & 1)
        for r in range(4):
            a(f"v_and_b32 v{t+r}, v{24+i}, v{4+r}")
        if i <= q["landed"] and i % 4 == 0 and q["iss"] < 32 and q["iss"] - QR < i:
            wait_wq(q["landed"] + 1)
        wait_wq(i)
        while q["iss"] < 32 and q["iss"] - 1 - q["landed"] < DQ and q["iss"] - QR < i: ld_wq()
        c = "0" if i == 0 else "v[20:23]"
        a(f"v_mfma_f32_16x16x32_bf16 v[20:23], v[{t}:{t+3}], v[{qreg(i)}:{qreg(i)+3}], {c}")
    assert q["iss"] == 32
    a("s_lshl_b32 s52, s59, 9")
    a(f"s_add_u32 s52, s52, {L_QP}")
    a("v_lshlrev_b32 v8, 5, v3")
    a("v_lshl_add_u32 v8, v2, 4, v8")
    a("v_add_u32 v8, s52, v8")
    a("s_mov_b32 exec_hi, 0")
    a("ds_write_b128 v8, v[20:23]")
    a("s_mov_b64 exec, -1")
    a("s_cmp_lg_u32 s59, 0")
    a("s_cbranch_scc1 L_aux4")
    a("v_lshlrev_b32 v8, 3, v0")
    a(f"v_add_u32 v11, {L_OP}, v8")
    a("v_lshlrev_b32 v9, 2, v0")
    a(f"v_add_u32 v10, {L_QB}, v9")
    spin_head("pQ")
    for w in range(4):
        a(f"ds_read_b64 v[{12+2*w}:{13+2*w}], v11 offset:{L_QP - L_OP + 512*w}")
    spin_bail("pQ")
    a("s_waitcnt lgkmcnt(0)")
    empty_check(list(range(12, 20)), 20, "pQ")
    for w in range(1, 4):
        a(f"v_add_f32 v12, v12, v{12+2*w}")
        a(f"v_add_f32 v13, v13, v{13+2*w}")
    a("v_cvt_pk_bf16_f32 v12, v12, v13")
    a("ds_write_b32 v10, v12")
    a("L_qdone:")
    stampat(2)
    a("v_and_b32 v9, 7, v0")
    a("v_lshlrev_b32 v9, 3, v9")
    a(f"v_add_u32 v9, {L_MB}, v9")
    spin_head("pM")
    a("s_sleep 4")
    a("ds_read_b64 v[12:13], v9")
    spin_bail("pM")
    a("s_waitcnt lgkmcnt(0)")
    empty_check([12, 13], 14, "pM")
    oct_ = ("quad_perm:[1,0,3,2]", "quad_perm:[2,3,0,1]", "row_half_mirror")
    a("v_mov_b32 v16, v12")
    dpp_steps([16], oct_, "v_max_f32")
    a("v_sub_f32 v14, v12, v16")
    a(f"v_mul_f32 v14, {LOG2E:#x}, v14")
    a("v_exp_f32 v14, v14")
    a("v_mul_f32 v17, v13, v14")
    dpp_steps([17], oct_)
    a("s_getreg_b32 s53, hwreg(HW_REG_XCC_ID, 0, 4)")
    a("s_xor_b32 s53, s53, s29")
    a("v_mov_b32 v18, s29")
    a("v_mov_b32 v19, s53")
    a("s_lshl_b32 s52, s55, 1")
    a("s_add_u32 s52, s52, s56")
    a("s_lshl_b32 s52, s52, 2")
    a("s_add_u32 s52, s52, s57")
    a("s_lshl_b32 s53, s52, 7")
    a(f"s_add_u32 s53, s53, {WS_MLX}")
    a("s_lshl_b32 s52, s52, 9")
    a(f"s_add_u32 s52, s52, {WS_OP}")
    a("s_mov_b64 exec, 1")
    a("buffer_store_dwordx4 v[16:19], v8, s[24:27], s53 offen sc1")
    a("s_mov_b64 exec, -1")
    a(f"s_add_u32 s53, s52, {WS_OS - WS_OP}")
    stampat(3)
    for w in range(8):
        a(f"v_readlane_b32 s{44+w}, v14, {w}")
    a("v_and_b32 v9, 1, v0")
    a("v_lshlrev_b32 v9, 4, v9")
    a("v_lshrrev_b32 v9, v9, s29")
    a("v_bfe_u32 v10, v9, 8, 8")
    a("v_and_b32 v9, 0xff, v9")
    a("s_setprio 2")
    spin_head("pO")
    if osleep: a(f"s_sleep {osleep}")
    for w in range(8):
        a(f"ds_read_b64 v[{12+2*w}:{13+2*w}], v11 offset:{512*w}")
    spin_bail("pO")
    a("s_waitcnt lgkmcnt(0)")
    a("v_max3_u32 v28, v12, v13, v14")
    a("v_max3_u32 v29, v15, v16, v17")
    a("v_max3_u32 v30, v18, v19, v20")
    a("v_max3_u32 v31, v21, v22, v23")
    a("v_max3_u32 v32, v24, v25, v26")
    a("v_max3_u32 v28, v28, v29, v30")
    a("v_max3_u32 v31, v31, v32, v27")
    a("v_max_u32 v28, v28, v31")
    a("v_cmp_eq_u32 vcc, -1, v28")
    a("s_cbranch_vccnz L_pO")
    a("L_pO_ok:")
    stampat(5)
    a("v_mul_f32 v12, s44, v12"); a("v_mul_f32 v13, s44, v13")
    a("v_mul_f32 v20, s48, v20"); a("v_mul_f32 v21, s48, v21")
    for w in range(1, 4):
        a(f"v_fmac_f32 v12, s{44+w}, v{12+2*w}"); a(f"v_fmac_f32 v13, s{44+w}, v{13+2*w}")
        a(f"v_fmac_f32 v20, s{48+w}, v{20+2*w}"); a(f"v_fmac_f32 v21, s{48+w}, v{21+2*w}")
    a("v_add_f32 v12, v12, v20"); a("v_add_f32 v13, v13, v21")
    a("v_and_or_b32 v12, v12, s31, v9")
    a("v_and_or_b32 v13, v13, s31, v10")
    if local:
        a("buffer_store_dwordx2 v[12:13], v8, s[24:27], s52 offen")
    a("buffer_store_dwordx2 v[12:13], v8, s[24:27], s53 offen sc1")
    stampat(6)
    a("L_aux4:")
    a(f"s_cmp_lt_u32 s2, {NMLP}")
    a("s_cbranch_scc1 L_aux5")
    a("s_cmp_lg_u32 s57, 1")
    a("s_cbranch_scc1 L_fin")
    a("L_aux5:")
    a("s_setprio 3")
    a("v_lshrrev_b32 v33, 2, v3")
    a("v_lshl_add_u32 v33, v2, 3, v33")
    a("v_and_b32 v34, 3, v0")
    a("v_bfe_u32 v6, v3, 2, 1")
    a(f"v_mul_u32_u24 v6, {APITCH}, v6")
    a("v_lshl_add_u32 v6, v2, 4, v6")
    a(f"v_add_u32 v6, {L_A}, v6")
    a(f"v_mov_b32 v35, {L_FL}")
    def gemm16(acc, filler=()):
        filler = list(filler)
        for ks in range(12):
            a(f"ds_read_b128 v[{16+4*ks}:{19+4*ks}], v6 offset:{64*ks}")
        out = 12
        per = (len(filler) + 13) // 14 if filler else 0
        for ks in range(16):
            nxt = ks + 12
            a(f"s_waitcnt lgkmcnt({out - 1})")
            out -= 1
            ab = 16 + 4 * (ks % 12)
            c = "0" if ks == 0 else f"v[{acc}:{acc+3}]"
            a(f"v_mfma_f32_16x16x32_bf16 v[{acc}:{acc+3}], v[{ab}:{ab+3}], v[{64+4*ks}:{67+4*ks}], {c}")
            if nxt < 16:
                a(f"ds_read_b128 v[{ab}:{ab+3}], v6 offset:{64*nxt}")
                out += 1
            for _ in range(per):
                if filler: a(filler.pop(0))
        for ln in filler: a(ln)
    a(f"s_cmp_lt_u32 s2, {NMLP}")
    a("s_cbranch_scc1 L_aux_m")
    a("v_lshlrev_b32 v10, 7, v33")
    a("v_lshl_add_u32 v10, v34, 3, v10")
    a("s_lshl_b32 s52, s59, 5")
    a("v_add_u32 v10, s52, v10")
    a("v_lshlrev_b32 v7, 3, v34")
    a("v_lshrrev_b32 v7, v7, s29")
    a("v_and_b32 v7, 0xff, v7")
    a("v_lshlrev_b32 v5, 2, v0")
    a("s_and_b32 s70, s2, 63")
    a("s_lshl_b32 s70, s70, 2")
    a("s_add_u32 s70, s70, s59")
    a("s_lshl_b32 s70, s70, 7")
    a(f"s_add_u32 s70, s70, {WS_ZX}")
    if zcopy:
        a("v_and_b32 v5, 31, v0")
        a("v_lshlrev_b32 v5, 2, v5")
        a("v_lshrrev_b32 v11, 5, v0")
        a("v_lshl_add_u32 v5, v11, 15, v5")
        for k in range(1, 4):
            a(f"s_add_u32 s{70+k}, s70, {k * 0x10000}")
    for kw in range(8):
        lds_wait(f"fr{kw}", 35, 12, 2 if kw == 0 else 0, off=4*kw)
        for ks in (2*kw, 2*kw+1):
            for hh in range(2):
                d = 64 + 4 * ks + 2 * hh
                a(f"ds_read_b64_tr_b16 v[{d}:{d+1}], v10 offset:{ks*4096 + hh*512}")
    a("s_waitcnt lgkmcnt(0)")
    stampat(7)
    a("s_barrier")
    gemm16(12)
    if zcopy:
        a("v_and_or_b32 v12, v12, s31, v7")
        for k in range(4):
            a(f"buffer_store_dword v12, v5, s[24:27], s{70+k} offen sc1")
    else:
        a("s_mov_b32 exec_hi, 0")
        a("v_and_or_b32 v12, v12, s31, v7")
        a("buffer_store_dword v12, v5, s[24:27], s70 offen sc1")
        a("s_mov_b64 exec, -1")
    stampat(8)
    a("s_branch L_fin")
    a("L_aux_m:")
    a("v_lshlrev_b32 v10, 6, v33")
    a("v_and_b32 v11, 1, v0")
    a("v_lshl_add_u32 v10, v11, 3, v10")
    a("v_bfe_u32 v11, v0, 1, 1")
    a(f"v_mul_u32_u24 v11, {L_UP}, v11")
    a("v_add_u32 v10, v11, v10")
    a("s_lshl_b32 s52, s59, 4")
    a("v_add_u32 v10, s52, v10")
    a(f"v_mul_u32_u24 v36, {DNP}, v33")
    a("v_lshl_add_u32 v36, v34, 3, v36")
    a("s_lshl_b32 s52, s59, 8")
    a(f"s_add_u32 s52, s52, {L_DN}")
    a("v_add_u32 v36, s52, v36")
    a("v_and_b32 v4, 1, v2")
    a("v_lshlrev_b32 v9, 10, v4")
    a("buffer_load_ushort v165, v9, s[4:7], 0 offen")
    a("v_lshlrev_b32 v166, 7, v4")
    a("v_lshl_add_u32 v166, v3, 3, v166")
    a(f"v_add_u32 v166, {L_ST}, v166")
    a("v_lshlrev_b32 v4, 6, v4")
    a("v_lshl_add_u32 v4, v3, 1, v4")
    a("s_lshl_b32 s52, s59, 4")
    a(f"s_add_u32 s52, s52, {L_ACT}")
    a("v_add_u32 v4, s52, v4")
    a("v_and_b32 v8, 1, v3")
    a("v_lshlrev_b32 v8, 6, v8")
    a("v_lshl_add_u32 v8, v2, 4, v8")
    a(f"v_add_u32 v8, {L_ACT}, v8")
    a(f"v_mov_b32 v11, {L_ZERO}")
    a("v_lshrrev_b32 v9, 2, v3")
    for u in range(4):
        a(f"v_cmp_eq_u32 vcc, {u}, v9")
        a(f"v_cndmask_b32 v{160+u}, v11, v8, vcc")
    a("v_mul_u32_u24 v5, 5504, v2")
    a("v_lshl_add_u32 v5, v3, 3, v5")
    a("s_mul_i32 s52, s59, 44032")
    a("s_lshl_b32 s53, s2, 7")
    a("s_add_u32 s52, s52, s53")
    a(f"s_add_u32 s52, s52, {WS_Y}")
    a("s_add_u32 s53, s52, 22016")
    a("v_and_b32 v7, 1, v0")
    a("v_lshlrev_b32 v7, 4, v7")
    a("v_lshrrev_b32 v7, v7, s29")
    a("v_bfe_u32 v164, v7, 8, 8")
    a("v_and_b32 v7, 0xff, v7")
    for r in range(4): a(f"v_mov_b32 v{40+r}, 0x3f803f80")
    for kw in range(8):
        lds_wait(f"fm{kw}", 35, 12, 2 if kw == 0 else 0, off=4*kw)
        if kw > 0:
            for ks in (2*kw-2, 2*kw-1):
                c = "0" if ks == 0 else "v[44:47]"
                a(f"v_mfma_f32_16x16x32_bf16 v[44:47], v[40:43], v[{64+4*ks}:{67+4*ks}], {c}")
        for ks in (2*kw, 2*kw+1):
            for hh in range(2):
                d = 64 + 4 * ks + 2 * hh
                a(f"ds_read_b64_tr_b16 v[{d}:{d+1}], v10 offset:{ks*2048 + hh*256}")
    a("s_waitcnt lgkmcnt(0) vmcnt(0)")
    for ks in (14, 15):
        a(f"v_mfma_f32_16x16x32_bf16 v[44:47], v[40:43], v[{64+4*ks}:{67+4*ks}], v[44:47]")
    a("v_lshlrev_b32 v165, 16, v165")
    a("v_mov_b32 v167, v44")
    a("v_and_b32 v11, 7, v0")
    a("v_lshlrev_b32 v11, 2, v11")
    a(f"v_add_u32 v11, {L_FD}, v11")
    lds_wait("fd", 11, 12, 0)
    for t in range(8):
        for hh in range(2):
            d = 128 + 4 * t + 2 * hh
            a(f"ds_read_b64_tr_b16 v[{d}:{d+1}], v36 offset:{hh*4*DNP + t*32}")
    a("s_waitcnt lgkmcnt(0)")
    stampat(7)
    a("s_barrier")
    a("ds_read_b64 v[8:9], v166")
    mark = len(a.lines)
    dpp_steps([8, 9], ("quad_perm:[1,0,3,2]", "quad_perm:[2,3,0,1]", "row_half_mirror", "row_mirror"))
    ln_finish("v165", 8, 9, 10)
    fill = a.lines[mark:]
    del a.lines[mark:]
    gemm16(12, fill)
    a("v_fma_f32 v12, -v8, v167, v12")
    a("v_mul_f32 v12, v12, v9")
    bf16r(12)
    a("v_mul_f32 v13, 0xbfb8aa3b, v12")
    a("v_exp_f32 v13, v13")
    a("v_add_f32 v13, 1.0, v13")
    a("v_rcp_f32 v13, v13")
    a("v_mul_f32 v13, v12, v13")
    bf16r(13)
    a("v_mul_f32_dpp v13, v12, v13 row_ror:8 row_mask:0xf bank_mask:0xf")
    a("v_mov_b32_dpp v14, v13 quad_perm:[1,0,3,2] row_mask:0xf bank_mask:0xf")
    a("v_cvt_pk_bf16_f32 v13, v13, v14")
    a("s_mov_b64 exec, 0x00550055")
    a("ds_write_b32 v4, v13")
    a("s_mov_b64 exec, -1")
    stampat(9)
    spin_head("pG")
    for u in range(4):
        a(f"ds_read_b128 v[{16+4*u}:{19+4*u}], v{160+u}")
    spin_bail("pG")
    a("s_waitcnt lgkmcnt(0)")
    empty_check(list(range(16, 32)), 32, "pG")
    for u in range(4):
        for hf in range(2):
            acc = 8 + 4 * hf
            t = hf * 4 + u
            c = "0" if u == 0 else f"v[{acc}:{acc+3}]"
            a(f"v_mfma_f32_16x16x32_bf16 v[{acc}:{acc+3}], v[{16+4*u}:{19+4*u}], v[{128+4*t}:{131+4*t}], {c}")
    for hf in range(2):
        r = 8 + 4 * hf
        a(f"v_and_or_b32 v{r}, v{r}, s31, v7")
        a(f"v_and_or_b32 v{r+1}, v{r+1}, s31, v164")
        a(f"buffer_store_dwordx2 v[{r}:{r+1}], v5, s[24:27], s{52+hf} offen sc1")
    stampat(8)

    a("L_fin:")
    if stamps:
        a("s_waitcnt lgkmcnt(0)")
        a("s_mul_i32 s64, s3, 80")
        a(f"s_add_u32 s64, s64, {L_STAMP}")
        a("v_mov_b32 v40, s64")
        a("s_mov_b64 exec, 1")
        for i in range(10):
            a(f"v_mov_b32 v12, s{80+2*i}")
            a(f"v_mov_b32 v13, s{81+2*i}")
            a(f"ds_write_b64 v40, v[12:13] offset:{8*i}")
        a("s_mov_b64 exec, -1")
        a("s_waitcnt lgkmcnt(0)")
        a("s_cmp_lg_u32 s3, 9")
        a("s_cbranch_scc1 L_end")
        if hold_x is not None:
            a(f"s_cmp_lg_u32 s2, {128 + hold_x}")
            a("s_cbranch_scc1 L_end")
        a("L_hold:")
        a(f"s_sleep {32 if hold_x is None else 2}")
        a("s_memrealtime s[66:67]")
        a("s_waitcnt lgkmcnt(0)")
        a("s_sub_u32 s66, s66, s80")
        a(f"s_cmp_lt_u32 s66, {hold_t}")
        a("s_cbranch_scc1 L_hold")
        a(f"v_add_u32 v40, {L_STAMP}, v1")
        a("ds_read_b128 v[12:15], v40")
        a("s_mul_i32 s64, s2, 1280")
        a(f"s_add_u32 s64, s64, {512<<20}")
        a("v_add_u32 v40, s64, v1")
        a("s_waitcnt lgkmcnt(0)")
        a("global_store_dwordx4 v40, v[12:15], s[24:25]")
    a("L_end:")
    a("s_endpgm")
    a('.section .rodata,"a"')
    a(".p2align 6")
    a(f".amdhsa_kernel {NAME}_kernel")
    a(f"  .amdhsa_next_free_vgpr {NVGPR}")
    a("  .amdhsa_next_free_sgpr 102")
    a(f"  .amdhsa_accum_offset {NVGPR}")
    a("  .amdhsa_group_segment_fixed_size 0")
    a("  .amdhsa_kernarg_size 104")
    a("  .amdhsa_user_sgpr_count 2")
    a("  .amdhsa_user_sgpr_kernarg_segment_ptr 1")
    a("  .amdhsa_system_sgpr_workgroup_id_x 1")
    a(".end_amdhsa_kernel")
    return a.finalize()

if __name__ == "__main__":
    out = sys.argv[1]
    kw = eval("dict(" + (sys.argv[2] if len(sys.argv) > 2 else "") + ")")
    open(out, "w").write(gen(**kw))
```

```python
import sys, json
from asmlib import Asm
from gen import HDR, NAME

WS_EP = 0
WS_MLX = 0x1000
WS_OP = 0x9000
WS_OS = 0x29000
WS_ZX = 0x49000
WS_QX = 0x51000
WS_Y = 0x91000
WS_SIZE = WS_Y + 43 * 4096
L_UP = 0x8020
L_DN = 0x10040
DNP = 1056
L_INIT = 0x18800
L_OP = L_INIT
L_QP = L_INIT + 0x1000
L_QB = L_INIT + 0x1800
L_MB = L_INIT + 0x1900
L_FL = L_INIT + 0x1940
L_ACT = L_INIT + 0x1980
L_SG = L_INIT + 0x1A00
L_FB = L_INIT + 0x1A40
L_FD = L_FL + 0x20
L_ZERO = L_INIT + 0x1C00
L_A = L_INIT + 0x1D00
APITCH = 1088
L_ST = L_A + 0x900
L_STAMP = L_ST + 0x100
LDS_SIZE = L_STAMP + 0x400
NMLP = 43
SPIN = 100000
LOG2E = 0x3fb8aa3b
SCALE = 0x3db504f3
NVGPR = 168

def gen(stamps=False, D0=2, N0=4, D=3, Dm=4, Dr=4, NPRE=18, ring=31, DQ=6,
        gvec=(0,1,5,6,7,8,9), wbit=2, gx=((3,1),(4,5),(5,0)), kv_aux="nt", wq_aux="", wo_aux="", mlp_aux="", dn_aux="",
        no_stage=False, CU=4, chunk=24, cdelay=5, local=True, osleep=1, rot_m=8, rot_r=16, c3=96|24,
        bm_from=0, br_from=0, early_m=1, early_r=4, hold_x=None, hold_t=4500, bsleep=2, aux_prio=0, noround=False, zcopy=False, masked=False, ins_r=None, ins_m=None, prep_at=12, qtries=8, qsleep=8, force_fb=False, fmap=True, falt=False, dn_lead=2, href=None):
    a = Asm()
    n = 32
    def stampat(i):
        if stamps:
            a(f"s_memrealtime s[{80+2*i}:{81+2*i}]")

    a(HDR + f"; @launch grid=(256,1,1) block=(768,1,1) lds={LDS_SIZE}")
    a('.amdgcn_target "amdgcn-amd-amdhsa--gfx950"')
    a(".text")
    a(f".globl {NAME}_kernel")
    a(".p2align 8")
    a(f".type {NAME}_kernel,@function")
    a(f"{NAME}_kernel:")
    stampat(0)
    a("s_load_dwordx2 s[12:13], s[0:1], 8")
    a("s_load_dwordx2 s[4:5], s[0:1], 0")
    a("s_load_dwordx2 s[8:9], s[0:1], 24")
    a("s_load_dwordx2 s[24:25], s[0:1], 96")
    if stamps:
        for i in range(1, 10):
            a(f"s_mov_b64 s[{80+2*i}:{81+2*i}], 0")
    a("s_cmp_ge_u32 s2, 256")
    a("s_cbranch_scc1 L_end")
    a("v_lshrrev_b32 v2, 6, v0")
    a("v_and_b32 v0, 63, v0")
    a("v_readfirstlane_b32 s3, v2")
    a("v_lshlrev_b32 v1, 4, v0")
    a("s_mov_b32 s14, 0x10000000")
    a("s_mov_b32 s15, 0x20000")
    a("s_movk_i32 s6, 2048")
    a("s_mov_b32 s7, 0x20000")
    a(f"s_mov_b32 s26, {WS_SIZE}")
    a("s_mov_b32 s27, 0x20000")
    a("s_lshr_b32 s57, s2, 6")
    a("s_cmp_ge_u32 s3, 8")
    a("s_cbranch_scc1 L_aux")

    def epoch_load():
        a("s_load_dword s28, s[24:25], 0")
    def epoch_calc():
        a("s_and_b32 s29, s28, 0x7f7f7f7f")
        a("s_add_u32 s29, s29, 0x07050301")
        a("s_and_b32 s30, s28, 0x80808080")
        a("s_xor_b32 s29, s29, s30")
        for k in range(4):
            a(f"s_bfe_u32 s{60+k}, s29, {(8*k) | (8 << 16):#x}")
        a("s_mov_b32 s31, 0xffffff00")
    def srd(base, off, size):
        a(f"s_load_dwordx2 s[{base}:{base+1}], s[0:1], {off}")
        a(f"s_mov_b32 s{base+2}, {size}")
        a(f"s_mov_b32 s{base+3}, 0x20000")
    def masks(t0, t1):
        a(f"v_and_b32 v{t0}, 1, v0")
        a(f"v_lshlrev_b32 v{t0}, 4, v{t0}")
        a(f"v_mov_b32 v{t1}, 0xffff")
        a(f"v_lshlrev_b32 v{t0}, v{t0}, v{t1}")
        a(f"v_bfe_u32 v{t1}, v0, 1, 3")
        for r in range(4):
            a(f"v_cmp_eq_u32 vcc, {r}, v{t1}")
            a(f"v_cndmask_b32 v{4+r}, 0, v{t0}, vcc")
    def unpack(src, dst, n=4):
        for k in range(n):
            a(f"v_lshlrev_b32 v{dst+2*k}, 16, v{src+k}")
            a(f"v_and_b32 v{dst+2*k+1}, 0xffff0000, v{src+k}")
    def dpp_steps(regs, steps, op="v_add_f32"):
        for m in steps:
            for r in regs:
                a(f"{op}_dpp v{r}, v{r}, v{r} {m} row_mask:0xf bank_mask:0xf")
    def wave_reduce(regs, op="v_add_f32"):
        dpp_steps(regs, ("row_shr:1", "row_shr:2", "row_shr:4", "row_shr:8"), op)
        for r in regs:
            a(f"{op}_dpp v{r}, v{r}, v{r} row_bcast:15 row_mask:0xa bank_mask:0xf")
        for r in regs:
            a(f"{op}_dpp v{r}, v{r}, v{r} row_bcast:31 row_mask:0xc bank_mask:0xf")
    def bf16r(r):
        a(f"v_cvt_pk_bf16_f32 v{r}, v{r}, v{r}")
        a(f"v_lshlrev_b32 v{r}, 16, v{r}")
    def ln_sums(f, t, sc, o1, o2):
        a(f"v_readfirstlane_b32 s{sc}, v{f}")
        for i in range(8):
            a(f"v_subrev_f32 v{t+i}, s{sc}, v{f+i}")
        s1, s2 = t + 8, t + 9
        a(f"v_add_f32 v{s1}, v{t}, v{t+1}")
        a(f"v_mul_f32 v{s2}, v{t}, v{t}")
        a(f"v_fmac_f32 v{s2}, v{t+1}, v{t+1}")
        for i in range(2, 8):
            a(f"v_add_f32 v{s1}, v{s1}, v{t+i}")
            a(f"v_fmac_f32 v{s2}, v{t+i}, v{t+i}")
        wave_reduce([s1, s2])
        a(f"v_readlane_b32 s{o1}, v{s1}, 63")
        a(f"v_readlane_b32 s{o2}, v{s2}, 63")
    def ln_finish(c, mb, rs, t):
        a(f"v_mul_f32 v{mb}, 0x3b000000, v{mb}")
        a(f"v_mul_f32 v{rs}, 0x3b000000, v{rs}")
        a(f"v_fma_f32 v{rs}, -v{mb}, v{mb}, v{rs}")
        a(f"v_add_f32 v{mb}, {c}, v{mb}")
        a(f"v_max_f32 v{rs}, 0, v{rs}")
        a(f"v_cvt_pk_bf16_f32 v{t}, v{mb}, v{rs}")
        a(f"v_lshlrev_b32 v{mb}, 16, v{t}")
        a(f"v_and_b32 v{rs}, 0xffff0000, v{t}")
        a(f"v_add_f32 v{rs}, 0x3727c5ac, v{rs}")
        bf16r(rs)
        a(f"v_sqrt_f32 v{rs}, v{rs}")
        bf16r(rs)
        a(f"v_rcp_f32 v{rs}, v{rs}")
    def ln_apply(f, t, mb, rs, n=8):
        mbs = mb if isinstance(mb, (list, tuple)) else [mb] * n
        rss = rs if isinstance(rs, (list, tuple)) else [rs] * n
        for i in range(n):
            a(f"v_sub_f32 v{t+i}, v{f+i}, v{mbs[i]}")
        for k in range(n // 2):
            a(f"v_cvt_pk_bf16_f32 v{t+2*k+1}, v{t+2*k}, v{t+2*k+1}")
        for k in range(n // 2):
            a(f"v_lshlrev_b32 v{t+2*k}, 16, v{t+2*k+1}")
            a(f"v_and_b32 v{t+2*k+1}, 0xffff0000, v{t+2*k+1}")
        for i in range(n):
            a(f"v_mul_f32 v{t+i}, v{t+i}, v{rss[i]}")
    def spin_head(tag):
        a(f"s_mov_b32 s75, {SPIN}")
        a(f"L_{tag}:")
    def spin_bail(tag):
        a("s_sub_u32 s75, s75, 1")
        a(f"s_cbranch_scc1 L_{tag}_ok")
    def untag_check(regs, t, tag, pre=None):
        for i, r in enumerate(regs):
            if pre and r in pre: continue
            a(f"v_xor_b32 v{r}, s{60 + (i & 3)}, v{r}")
        rs = list(regs)
        a(f"v_or3_b32 v{t}, v{rs[0]}, v{rs[1]}, v{rs[2]}")
        rs = rs[3:]
        while len(rs) >= 2:
            a(f"v_or3_b32 v{t}, v{t}, v{rs[0]}, v{rs[1]}")
            rs = rs[2:]
        if rs:
            a(f"v_or_b32 v{t}, v{t}, v{rs[0]}")
        a(f"v_and_b32 v{t}, 0xff, v{t}")
        a(f"v_cmp_ne_u32 vcc, 0, v{t}")
        a(f"s_cbranch_vccnz L_{tag}")
        a(f"L_{tag}_ok:")
    def empty_check(regs, t, tag):
        rs = list(regs)
        if len(rs) == 1:
            a(f"v_cmp_eq_u32 vcc, -1, v{rs[0]}")
        else:
            if len(rs) >= 3:
                a(f"v_max3_u32 v{t}, v{rs[0]}, v{rs[1]}, v{rs[2]}"); rs = rs[3:]
            else:
                a(f"v_max_u32 v{t}, v{rs[0]}, v{rs[1]}"); rs = rs[2:]
            while len(rs) >= 2:
                a(f"v_max3_u32 v{t}, v{t}, v{rs[0]}, v{rs[1]}"); rs = rs[2:]
            if rs: a(f"v_max_u32 v{t}, v{t}, v{rs[0]}")
            a(f"v_cmp_eq_u32 vcc, -1, v{t}")
        a(f"s_cbranch_vccnz L_{tag}")
        a(f"L_{tag}_ok:")
    def masked_poll(tag, loads, t, mb=52):
        for k in range(len(loads)):
            a(f"s_mov_b64 s[{mb+2*k}:{mb+1+2*k}], -1")
        spin_head(tag)
        for k, (r, txt) in enumerate(loads):
            a(f"s_mov_b64 exec, s[{mb+2*k}:{mb+1+2*k}]")
            a(txt)
        spin_bail(tag)
        for k, (r, txt) in enumerate(loads):
            a(f"s_mov_b64 exec, s[{mb+2*k}:{mb+1+2*k}]")
            a(f"s_waitcnt vmcnt({len(loads)-1-k})")
            for i in range(4):
                a(f"v_xor_b32 v{r+i}, s{60+i}, v{r+i}")
            a(f"v_or3_b32 v{t}, v{r}, v{r+1}, v{r+2}")
            a(f"v_or_b32 v{t}, v{t}, v{r+3}")
            a(f"v_and_b32 v{t}, 0xff, v{t}")
            a(f"v_cmp_ne_u32 s[{mb+2*k}:{mb+1+2*k}], 0, v{t}")
        a(f"s_or_b64 s[64:65], s[{mb}:{mb+1}], s[{mb+2}:{mb+3}]")
        for k in range(2, len(loads)):
            a(f"s_or_b64 s[64:65], s[64:65], s[{mb+2*k}:{mb+1+2*k}]")
        a(f"s_cbranch_scc1 L_{tag}")
        a(f"L_{tag}_ok:")
        a("s_mov_b64 exec, -1")
    def swap_add(regs, tmp, sw):
        for i, r in enumerate(regs): a(f"v_mov_b32 v{tmp+i}, v{r}")
        for i, r in enumerate(regs): a(f"{sw} v{tmp+i}, v{r}")
        for i, r in enumerate(regs): a(f"v_add_f32 v{r}, v{r}, v{tmp+i}")
    def round4(base):
        a(f"v_cvt_pk_bf16_f32 v{base+1}, v{base}, v{base+1}")
        a(f"v_cvt_pk_bf16_f32 v{base+3}, v{base+2}, v{base+3}")
        a(f"v_lshlrev_b32 v{base}, 16, v{base+1}")
        a(f"v_and_b32 v{base+1}, 0xffff0000, v{base+1}")
        a(f"v_lshlrev_b32 v{base+2}, 16, v{base+3}")
        a(f"v_and_b32 v{base+3}, 0xffff0000, v{base+3}")
    def lds_wait(tag, addr, t, sleep, off=0):
        spin_head(tag)
        if sleep: a(f"s_sleep {sleep}")
        a(f"ds_read_b32 v{t}, v{addr} offset:{off}")
        spin_bail(tag)
        a("s_waitcnt lgkmcnt(0)")
        empty_check([t], t, tag)
    def P(G):
        r = 0
        for k, b in enumerate(gvec):
            if G >> k & 1: r ^= 1 << b
        return r

    a("s_and_b32 s52, s2, 63")
    a("s_lshl_b32 s52, s52, 2")
    a("s_add_u32 s52, s52, 3")
    a("s_lshl_b32 s52, s52, 20")
    a(f"s_lshl_b32 s53, s3, {10 + wbit}")
    a("s_xor_b32 s52, s52, s53")
    gl = list(gx)
    while gl:
        k, b = gl.pop(0)
        nn = 1
        while gl and gl[0] == (k + nn, b + nn):
            gl.pop(0); nn += 1
        a(f"s_bfe_u32 s53, s2, {k | (nn << 16):#x}")
        a(f"s_lshl_b32 s53, s53, {10 + b}")
        a("s_xor_b32 s52, s52, s53")
    a("s_lshl_b32 s53, s57, 18")
    a("s_xor_b32 s52, s52, s53")
    a("s_lshl_b32 s53, s57, 16")
    a("s_xor_b32 s52, s52, s53")
    assert tuple(gvec) == (0,1,5,6,7,8,9)
    RB = 44
    def ringreg(j): return RB + 4 * (j % ring)
    def ld_text(j):
        sr = 12 if j < n else 16
        p = P(j % n)
        r = ringreg(j)
        if p:
            a(f"s_xor_b32 s53, s52, {p << 10}")
            so = 53
        else:
            so = 52
        a(f"buffer_load_dwordx4 v[{r}:{r+3}], v1, s[{sr}:{sr+3}], s{so} offen {kv_aux}")
    a("s_waitcnt lgkmcnt(0)")
    for j in range(D0): ld_text(j)
    srd(16, 16, 0x10000000)
    epoch_load()
    a("s_mov_b32 s64, 0xcccccccc"); a("s_mov_b32 s65, 0xcccccccc")
    a("s_mov_b32 s66, 0xaaaaaaaa"); a("s_mov_b32 s67, 0xaaaaaaaa")
    masks(12, 13)
    a("v_and_b32 v12, 15, v0")
    a("v_lshlrev_b32 v12, 4, v12")
    a(f"v_add_u32 v12, {L_QB}, v12")
    a("s_barrier")
    for j in range(D0, N0):
        a(f"s_waitcnt vmcnt({D0-1})")
        ld_text(j)
    a(f"s_cmp_lt_u32 s2, {NMLP}")
    a("s_cbranch_scc1 L_kv_m")
    a("s_cmp_eq_u32 s57, 1")
    a("s_cbranch_scc1 L_kv_r")

    def stage_done(sr=3):
        a(f"s_lshl_b32 s73, s{sr}, 2")
        a(f"s_add_u32 s73, s73, {L_FL}")
        a("v_mov_b32 v26, s73")
        a("v_mov_b32 v27, 0")
        a("ds_write_b32 v26, v27")

    def kv_path(role, Dx, bfrom, early):
        st = dict(iss=N0, landed=N0 - D0 - 1, cons=0)
        order = list(range(N0))
        NT = 2 * n
        stage = []
        def depth(): return Dx if st["cons"] >= bfrom else D
        def ld_kv():
            j = st["iss"]
            ld_text(j)
            st["iss"] += 1
            order.append(j)
        def wait_kv(j):
            if j <= st["landed"]: return
            a(f"s_waitcnt vmcnt({len(order) - 1 - order.index(j)})")
            st["landed"] = j
        if role == "m":
            srd(44, 48, 1024); srd(48, 80, 2048); srd(32, 56, 1409024); srd(36, 64, 1409024); srd(40, 72, 1409024)
        if role == "r":
            srd(20, 32, 0x400000)
        while st["iss"] < NPRE:
            d = depth()
            if st["iss"] - 1 - st["landed"] >= d:
                wait_kv(st["iss"] - d)
            ld_kv()
        stampat(1)
        spin_head("wq" + role)
        a("ds_read_b128 v[8:11], v12")
        spin_bail("wq" + role)
        a("s_waitcnt lgkmcnt(0)")
        empty_check([8, 9, 10, 11], 13, "wq" + role)
        a("s_waitcnt lgkmcnt(0)")
        if role != "p": epoch_calc()
        stampat(2)
        def reduce_scores(dst):
            for i in range(8):
                a(f"v_add_f32_dpp v{24+i}, v{24+i}, v{24+i} row_ror:8 row_mask:0xf bank_mask:0x3")
            for i in range(8):
                a(f"v_add_f32_dpp v{24+i}, v{32+i}, v{32+i} row_ror:8 row_mask:0xf bank_mask:0xc")
            for i in range(4):
                a(f"v_add_f32_dpp v{24+i}, v{24+i}, v{24+i} row_half_mirror row_mask:0xf bank_mask:0x5")
            for i in range(4):
                a(f"v_add_f32_dpp v{24+i}, v{28+i}, v{28+i} row_half_mirror row_mask:0xf bank_mask:0xa")
            dpp_steps([24, 25, 26, 27], ("quad_perm:[2,3,0,1]",))
            a("v_cndmask_b32 v24, v24, v26, s[64:65]")
            a("v_cndmask_b32 v25, v25, v27, s[64:65]")
            dpp_steps([24, 25], ("quad_perm:[1,0,3,2]",))
            a(f"v_cndmask_b32 v{dst}, v24, v25, s[66:67]")
            if not noround: bf16r(dst)
            a(f"v_mul_f32 v{dst}, {SCALE:#x}, v{dst}")
            if not noround: bf16r(dst)
        def softmax_part():
            stampat(3)
            a("v_max_f32 v24, v2, v3")
            wave_reduce([24], "v_max_f32")
            a("v_readlane_b32 s72, v24, 63")
            for r in (2, 3): a(f"v_subrev_f32 v{r}, s72, v{r}")
            for r in (2, 3): a(f"v_mul_f32 v{r}, {LOG2E:#x}, v{r}")
            for r in (2, 3): a(f"v_exp_f32 v{r}, v{r}")
            a("v_add_f32 v25, v2, v3")
            for r in (2, 3): a(f"v_cvt_pk_bf16_f32 v{r}, v{r}, v{r}")
            wave_reduce([25])
            a("s_lshl_b32 s73, s3, 3")
            a(f"s_add_u32 s73, s73, {L_MB}")
            a("v_mov_b32 v26, s73")
            a("s_mov_b32 exec_lo, 0")
            a("s_mov_b32 exec_hi, 0x80000000")
            a("ds_write_b64 v26, v[24:25]")
            a("s_mov_b64 exec, -1")
            a("s_lshl_b32 s73, s3, 9")
            a(f"s_add_u32 s73, s73, {L_OP}")
            a("v_and_b32 v27, 15, v0")
            a("v_lshrrev_b32 v28, 4, v0")
            a("v_lshlrev_b32 v29, 5, v27")
            a("v_lshl_add_u32 v29, v28, 4, v29")
            a("v_add_u32 v29, s73, v29")
            stampat(4)
        def issue_stage():
            m0, voff, sr, so, aux = stage.pop(0)
            a(f"s_add_u32 m0, {m0}")
            a(f"s_add_u32 s53, {so}")
            if not no_stage:
                a(f"buffer_load_dwordx4 v{voff}, s[{sr}:{sr+3}], s53 offen {aux} lds")
                order.append("st")
        ins = {"r": ins_r, "m": ins_m}.get(role)
        ins = list(ins) if ins else []
        def inflight():
            pos = order.index(st["landed"])
            return sum(1 for x in order[pos+1:] if isinstance(x, int) or x == "st")
        def pump(extra=0):
            while st["iss"] < NT and inflight() < depth() + extra and st["iss"] - ring < st["cons"]:
                if ins and ins[0] <= st["iss"] and stage:
                    ins.pop(0)
                    issue_stage()
                    continue
                ld_kv()
            if st["iss"] == NT and stage and st["cons"] >= NT - early:
                issue_stage()
        def role_prep():
            if role == "r":
                a("s_and_b32 s76, s2, 7")
                a("s_lshr_b32 s77, s3, 1")
                a("s_lshl_b32 s78, s77, 3")
                a("s_add_u32 s78, s78, s76")
                a("s_lshl_b32 s68, s78, 17")
                a("s_lshl_b32 s78, s78, 1")
                a("s_and_b32 s73, s3, 1")
                a("s_add_u32 s78, s78, s73")
                a("s_lshl_b32 s79, s78, 9")
                a(f"s_add_u32 s79, s79, {WS_MLX}")
                a("s_lshl_b32 s78, s78, 11")
                a(f"s_add_u32 s78, s78, {WS_OP}")
                a("s_lshl_b32 s69, s73, 16")
                a("s_add_u32 s68, s68, s69")
                a("s_bfe_u32 s69, s2, 0x30003")
                a("s_lshl_b32 s69, s69, 7")
                a("s_add_u32 s68, s68, s69")
                a("s_lshl_b32 s69, s3, 13")
                a("v_and_b32 v31, 3, v0")
                a("v_lshlrev_b32 v31, 7, v31")
                a(f"s_mul_i32 s73, s73, {APITCH}")
                a("s_lshl_b32 s77, s77, 8")
                a("s_add_u32 s73, s73, s77")
                a(f"s_add_u32 s73, s73, {L_A}")
                a("v_lshlrev_b32 v30, 3, v0")
                a("v_add_u32 v30, s73, v30")
                a("s_getreg_b32 s74, hwreg(HW_REG_XCC_ID, 0, 4)")
                a("v_lshrrev_b32 v32, 3, v0")
                a("v_and_b32 v33, 7, v0")
                a("v_lshlrev_b32 v32, 10, v32")
                a("v_lshl_or_b32 v32, v33, 4, v32")
                for i in range(8):
                    stage.append((f"s69, {1024*i}", 32, 20, f"s68, {8192*i}", wo_aux))
            if role == "m":
                a("v_bfe_u32 v38, v0, 2, 1")
                a("v_bfe_u32 v31, v0, 3, 2")
                a("v_lshlrev_b32 v30, 5, v31")
                a("v_and_b32 v31, 3, v0")
                a("v_lshl_add_u32 v30, v31, 3, v30")
                a("s_lshl_b32 s73, s3, 7")
                a("v_add_u32 v30, s73, v30")
                a("v_lshl_add_u32 v39, v38, 10, v30")
                a("buffer_load_dwordx2 v[36:37], v39, s[4:7], 0 offen")
                a("v_lshlrev_b32 v39, 10, v38")
                a("buffer_load_ushort v41, v39, s[4:7], 0 offen")
                a("buffer_load_dwordx4 v[32:35], v1, s[44:47], 0 offen")
                order.extend(["x", "c", "wr"])
                a(f"v_mul_u32_u24 v39, {APITCH}, v38")
                a("v_add_u32 v30, v30, v39")
                a(f"v_add_u32 v30, {L_A}, v30")
                a("v_bfe_u32 v39, v0, 4, 1")
                a("v_lshlrev_b32 v39, 3, v39")
                a("v_lshl_add_u32 v39, v38, 7, v39")
                a("s_lshl_b32 s73, s3, 4")
                a(f"s_add_u32 s73, s73, {L_ST}")
                a("v_add_u32 v39, s73, v39")
                a("s_lshl_b32 s78, s3, 12")
                a(f"s_add_u32 s78, s78, {WS_ZX}")
                if zcopy:
                    a("s_getreg_b32 s73, hwreg(HW_REG_XCC_ID, 0, 3)")
                    a("s_lshl_b32 s73, s73, 15")
                    a("s_add_u32 s78, s78, s73")
                a("v_lshrrev_b32 v42, 2, v0")
                a("v_mul_u32_u24 v42, 2752, v42")
                a("v_lshl_add_u32 v42, v31, 4, v42")
                if fmap:
                    a("s_and_b32 s70, s2, 7")
                    a("s_min_u32 s71, s70, 3")
                    a("s_mul_i32 s70, s70, 5")
                    a("s_add_u32 s70, s70, s71")
                    a("s_lshr_b32 s71, s2, 3")
                    a("s_add_u32 s70, s70, s71")
                else:
                    a("s_mov_b32 s70, s2")
                if falt:
                    a("s_and_b32 s74, s70, 1")
                    a("s_lshl_b32 s74, s74, 2")
                    a("s_xor_b32 s74, s74, s3")
                else:
                    a("s_mov_b32 s74, s3")
                a("s_mul_i32 s68, s74, 176128")
                a("s_lshl_b32 s69, s70, 6")
                a("s_add_u32 s68, s68, s69")
                a("s_lshl_b32 s69, s74, 12")
                a("s_lshl_b32 s70, s70, 15")
                a("s_add_u32 s70, s70, s69")
                a(f"s_mul_i32 s71, s74, {4*DNP}")
                for i in range(4):
                    stage.append((f"s69, {1024*i}", 42, 32, f"s68, {44032*i}", mlp_aux))
                    stage.append((f"s69, {L_UP + 1024*i}", 42, 36, f"s68, {44032*i}", mlp_aux))
                for i in range(4):
                    stage.append((f"s71, {L_DN + DNP*i}", 1, 40, f"s70, {1024*i}", dn_aux))
        def consume(j):
            r = ringreg(j)
            st["cons"] = j
            if j < n:
                i = j & 15
                if i == 0:
                    for k in range(16):
                        a(f"v_mov_b32 v{24+k}, 0")
                wait_kv(j)
                pump(1 if i == 15 else 0)
                for k in range(4):
                    a(f"v_dot2c_f32_bf16 v{24+i}, v{r+k}, v{8+k}")
                if i == 15: reduce_scores(2 + (j >> 4))
                if j == n - 1: softmax_part()
            else:
                jj = j - n
                i = jj & 15
                pp = 2 + (jj >> 4)
                t = 12 + 4 * (i & 1)
                for k in range(4):
                    a(f"v_and_b32_dpp v{t+k}, v{pp}, v{4+k} row_newbcast:{i} row_mask:0xf bank_mask:0xf")
                pj = order.index(j)
                if pj > 0 and order[pj-1] == "st" and j > st["landed"] and st["iss"] < NT:
                    a(f"s_waitcnt vmcnt({len(order) - pj})")
                    pump(1)
                wait_kv(j)
                if j < NT - 1: pump()
                if jj > prep_at and not stage and "st" in order and not st.get("fl") and max(i for i, x in enumerate(order) if x == "st") < order.index(j):
                    stage_done(74 if role == "m" else 3); st["fl"] = True
                c = "0" if jj == 0 else "v[20:23]"
                a(f"v_mfma_f32_16x16x32_bf16 v[20:23], v[{t}:{t+3}], v[{r}:{r+3}], {c}")
                if jj == prep_at: role_prep()
                if jj == 20 and role == "r":
                    a("buffer_load_dwordx4 v[40:43], v31, s[24:27], s79 offen sc1")
                    order.append("ml")
        for j in range(NT):
            if j <= st["landed"] and j % CU == 0 and st["iss"] < NT and st["iss"] - ring < j:
                st["cons"] = j
                wait_kv(st["landed"] + 1)
                pump()
            consume(j)
        a("s_mov_b32 exec_hi, 0")
        a("ds_write_b128 v29, v[20:23]")
        a("s_mov_b64 exec, -1")
        stampat(5)
        keep = 4 if role == "m" else 0
        while len(stage) > keep: issue_stage()
        return lambda: [issue_stage() for _ in range(len(stage))]
    kv_path("p", D, 0, 0)
    a("s_branch L_fin")

    a("L_kv_r:")
    kv_path("r", Dr, br_from, early_r)
    a(f"s_mov_b32 s75, {SPIN}")
    a("s_branch L_pL_chk")
    a("L_pL:")
    a("buffer_load_dwordx4 v[40:43], v31, s[24:27], s79 offen sc1")
    spin_bail("pL")
    a("s_waitcnt vmcnt(0)")
    a("L_pL_chk:")
    a("v_xor_b32 v54, s29, v42")
    a("v_xor_b32 v55, s29, v43")
    a("v_lshrrev_b32 v56, 4, v55")
    a("v_or_b32 v54, v54, v56")
    a("v_cmp_ne_u32 vcc, 0, v54")
    a("s_cbranch_vccnz L_pL")
    a("L_pL_ok:")
    a("v_mov_b32 v52, v40")
    a("v_mov_b32 v53, v41")
    a("v_mov_b32 v56, v52")
    dpp_steps([56], ("quad_perm:[1,0,3,2]", "quad_perm:[2,3,0,1]"), "v_max_f32")
    a("v_sub_f32 v52, v52, v56")
    a(f"v_mul_f32 v52, {LOG2E:#x}, v52")
    a("v_exp_f32 v52, v52")
    a("v_mul_f32 v53, v53, v52")
    dpp_steps([53], ("quad_perm:[1,0,3,2]", "quad_perm:[2,3,0,1]"))
    a("v_rcp_f32 v53, v53")
    a("v_mul_f32 v52, v52, v53")
    a(f"v_mov_b32 v54, {WS_OS - WS_OP}")
    if local:
        a("v_cmp_ne_u32 vcc, s74, v55")
        a("v_cndmask_b32 v55, 0, v54, vcc")
    else:
        a("v_mov_b32 v55, v54")
    for src, d0 in ((52, 56), (55, 58)):
        a(f"v_mov_b32_dpp v{d0}, v{src} quad_perm:[0,0,0,0] row_mask:0x3 bank_mask:0xf")
        a(f"v_mov_b32_dpp v{d0+1}, v{src} quad_perm:[2,2,2,2] row_mask:0x3 bank_mask:0xf")
        a(f"v_mov_b32_dpp v{d0}, v{src} quad_perm:[1,1,1,1] row_mask:0xc bank_mask:0xf")
        a(f"v_mov_b32_dpp v{d0+1}, v{src} quad_perm:[3,3,3,3] row_mask:0xc bank_mask:0xf")
    a("v_add_u32 v58, v58, v1")
    a("v_add_u32 v59, v59, v1")
    a("s_lshl_b32 s73, s3, 2")
    a(f"s_add_u32 s73, s73, {L_FL}")
    a("v_mov_b32 v26, s73")
    a("v_mov_b32 v27, 0")
    spin_head("pA")
    a("buffer_load_dwordx4 v[44:47], v58, s[24:27], s78 offen sc1")
    a("buffer_load_dwordx4 v[48:51], v59, s[24:27], s78 offen offset:1024 sc1")
    a(f"s_cmp_lg_u32 s75, {SPIN - 400}")
    a("s_cbranch_scc1 L_pA_nf")
    a("v_add_u32 v58, v54, v1")
    a("v_add_u32 v59, v54, v1")
    a("L_pA_nf:")
    spin_bail("pA")
    a("s_waitcnt vmcnt(2)")
    a("ds_write_b32 v26, v27")
    a("s_waitcnt vmcnt(0)")
    untag_check(list(range(44, 52)), 60, "pA")
    stampat(6)
    for r in range(4): a(f"v_mul_f32 v{44+r}, v{44+r}, v56")
    for r in range(4): a(f"v_fmac_f32 v{44+r}, v{48+r}, v57")
    swap_add([44, 45, 46, 47], 48, "v_permlane32_swap_b32")
    a("v_cvt_pk_bf16_f32 v44, v44, v45")
    a("v_cvt_pk_bf16_f32 v45, v46, v47")
    a("s_mov_b32 exec_hi, 0")
    a("ds_write_b64 v30, v[44:45]")
    a("s_waitcnt lgkmcnt(0)")
    a("s_barrier")
    stampat(7)
    a("s_mov_b64 exec, -1")
    a("s_branch L_fin")

    a("L_kv_m:")
    rest = kv_path("m", Dm, bm_from, early_m)
    unpack(36, 64, 2)
    a("v_lshlrev_b32 v41, 16, v41")
    a(f"s_waitcnt vmcnt({dn_lead})")
    rest()
    a(f"s_waitcnt vmcnt({0 if no_stage else 4})")
    stage_done(74)
    stampat(9)
    a("s_mov_b64 exec, 0xff")
    spin_head("pB0")
    if bsleep: a(f"s_sleep {bsleep}")
    a("buffer_load_dwordx4 v[44:47], v1, s[24:27], s78 offen sc1")
    spin_bail("pB0")
    a("s_waitcnt vmcnt(1)")
    a(f"ds_write_b32 v26, v27 offset:{L_FD - L_FL}")
    a("s_waitcnt vmcnt(0)")
    untag_check([44, 45, 46, 47], 60, "pB0")
    a("s_mov_b64 exec, -1")
    if masked:
        masked_poll("pB", [(44 + 4*k, f"buffer_load_dwordx4 v[{44+4*k}:{47+4*k}], v1, s[24:27], s78 offen offset:{1024*k} sc1") for k in range(4)], 60)
    else:
        spin_head("pB")
        for k in range(4):
            a(f"buffer_load_dwordx4 v[{44+4*k}:{47+4*k}], v1, s[24:27], s78 offen offset:{1024*k} sc1")
        spin_bail("pB")
        a("s_waitcnt vmcnt(0)")
        untag_check(list(range(44, 60)), 60, "pB")
    stampat(6)
    for r in range(4):
        a(f"v_add_f32 v{44+r}, v{44+r}, v{48+r}")
        a(f"v_add_f32 v{52+r}, v{52+r}, v{56+r}")
    for r in range(4): a(f"v_add_f32 v{44+r}, v{44+r}, v{52+r}")
    swap_add([44, 45, 46, 47], 48, "v_permlane32_swap_b32")
    round4(44)
    for r in range(4): a(f"v_add_f32 v{44+r}, v{44+r}, v{64+r}")
    a("v_cvt_pk_bf16_f32 v48, v44, v45")
    a("v_cvt_pk_bf16_f32 v49, v46, v47")
    a("s_mov_b32 exec_hi, 0")
    a("ds_write_b64 v30, v[48:49]")
    unpack(48, 44, 2)
    for r in range(4): a(f"v_sub_f32 v{44+r}, v{44+r}, v41")
    a("v_add_f32 v50, v44, v45"); a("v_mul_f32 v51, v44, v44")
    a("v_add_f32 v52, v46, v47"); a("v_mul_f32 v53, v46, v46")
    a("v_fmac_f32 v51, v45, v45"); a("v_fmac_f32 v53, v47, v47")
    a("v_add_f32 v50, v50, v52"); a("v_add_f32 v51, v51, v53")
    dpp_steps([50, 51], ("quad_perm:[1,0,3,2]", "quad_perm:[2,3,0,1]", "row_ror:8"))
    a("ds_write_b64 v39, v[50:51]")
    a("s_mov_b64 exec, -1")
    a("s_waitcnt lgkmcnt(0)")
    a("s_barrier")
    stampat(7)
    a("s_cmp_ge_u32 s3, 2")
    a("s_cbranch_scc1 L_fin")
    a("s_cmp_ge_u32 s2, 32")
    a("s_cbranch_scc1 L_fin")
    a(f"s_mul_i32 s73, s3, {APITCH}")
    a(f"s_add_u32 s73, s73, {L_A}")
    a("v_add_u32 v52, s73, v1")
    a("ds_read_b128 v[96:99], v52")
    a("v_lshrrev_b32 v40, 2, v0")
    a("v_and_b32 v43, 3, v0")
    a("v_lshlrev_b32 v44, 7, v40")
    a("v_lshl_or_b32 v44, v43, 4, v44")
    a("s_mul_i32 s78, s2, 5504")
    a("s_lshl_b32 s73, s3, 6")
    a("s_add_u32 s78, s78, s73")
    a(f"s_add_u32 s78, s78, {WS_Y}")
    a("s_add_u32 s79, s78, 2048")
    a("s_add_u32 s77, s78, 4096")
    a("s_lshl_b32 s74, s2, 5")
    a("s_lshl_b32 s73, s3, 4")
    a("s_add_u32 s76, s74, s73")
    a("v_lshlrev_b32 v45, 2, v43")
    a(f"s_add_u32 s73, s76, {L_A}")
    a("v_add_u32 v46, s73, v45")
    a("ds_read_b32 v50, v46")
    a(f"ds_read_b32 v51, v46 offset:{APITCH}")
    a("s_waitcnt lgkmcnt(0)")
    unpack(96, 100)
    ln_sums(100, 108, 68, 69, 70)
    a("v_mov_b32 v124, s69")
    a("v_mov_b32 v125, s70")
    ln_finish("s68", 124, 125, 108)
    ln_apply(100, 108, 124, 125)
    for k in range(4):
        a(f"v_cvt_pk_bf16_f32 v{120+k}, v{108+2*k}, v{109+2*k}")
    a("v_mov_b32 v126, 0")
    for k in range(4):
        a(f"v_dot2c_f32_bf16 v126, v{120+k}, v{32+k}")
    wave_reduce([126])
    a("v_readlane_b32 s73, v126, 63")
    a("v_mov_b32 v126, s73")
    bf16r(126)
    a("v_mul_f32 v126, 0xbfb8aa3b, v126")
    a("v_exp_f32 v126, v126")
    a("v_add_f32 v126, 1.0, v126")
    a("v_rcp_f32 v126, v126")
    bf16r(126)
    a("v_mov_b32 v127, 0")
    a("s_lshl_b32 s73, s3, 4")
    a(f"s_add_u32 s73, s73, {L_SG}")
    a("v_mov_b32 v46, s73")
    a("ds_write_b128 v46, v[124:127]")
    a(f"v_mov_b32 v46, {L_SG}")
    a("v_lshlrev_b32 v104, 16, v50"); a("v_lshlrev_b32 v105, 16, v51")
    a("v_and_b32 v106, 0xffff0000, v50"); a("v_and_b32 v107, 0xffff0000, v51")
    for r in range(4): a(f"v_mov_b32 v{20+r}, 0")
    spin_head("pS")
    a("ds_read_b128 v[112:115], v46")
    a("ds_read_b128 v[116:119], v46 offset:16")
    spin_bail("pS")
    a("s_waitcnt lgkmcnt(0)")
    empty_check([112, 113, 114, 116, 117, 118], 47, "pS")
    ln_apply(104, 100, [112, 116, 112, 116], [113, 117, 113, 117], 4)
    round4(100)
    a("v_and_b32 v46, 31, v0")
    a("v_lshlrev_b32 v46, 2, v46")
    a(f"v_add_u32 v46, {L_ACT}, v46")
    lds_wait("pT", 46, 47, 0)
    stampat(8)
    if cdelay: a(f"s_sleep {cdelay}")
    spin_head("pC")
    a("buffer_load_dwordx4 v[12:15], v44, s[24:27], s78 offen sc1")
    a("buffer_load_dwordx4 v[16:19], v44, s[24:27], s79 offen sc1")
    a("s_mov_b32 exec_hi, 0xfff")
    a("buffer_load_dwordx4 v[20:23], v44, s[24:27], s77 offen sc1")
    a("s_waitcnt vmcnt(0)")
    for r in range(4): a(f"v_xor_b32 v{20+r}, s{60+r}, v{20+r}")
    a("s_mov_b64 exec, -1")
    spin_bail("pC")
    untag_check(list(range(12, 24)), 24, "pC", pre={20, 21, 22, 23})
    stampat(4)
    for r in range(4): a(f"v_add_f32 v{12+r}, v{12+r}, v{16+r}")
    for r in range(4): a(f"v_add_f32 v{12+r}, v{12+r}, v{20+r}")
    dpp_steps([12, 13, 14, 15], ("row_ror:4", "row_ror:8"))
    swap_add([12, 13, 14, 15], 16, "v_permlane16_swap_b32")
    swap_add([12, 13, 14, 15], 16, "v_permlane32_swap_b32")
    round4(12)
    for r in range(4): a(f"v_mul_f32 v{12+r}, v{12+r}, v{114 + 4 * (r & 1)}")
    round4(12)
    for r in range(4): a(f"v_add_f32 v{12+r}, v{12+r}, v{100+r}")
    round4(12)
    for r in range(4): a(f"v_add_f32 v{12+r}, v{12+r}, v{104+r}")
    a("v_cvt_pk_bf16_f32 v12, v12, v14")
    a("v_cvt_pk_bf16_f32 v13, v13, v15")
    a("s_mov_b64 exec, 0xf")
    a("buffer_store_dword v12, v45, s[48:51], s76 offen")
    a("buffer_store_dword v13, v45, s[48:51], s76 offen offset:1024")
    a("s_cmp_lg_u32 s76, 0")
    a("s_cbranch_scc1 L_noep")
    a("s_mov_b64 exec, 1")
    a("v_mov_b32 v14, s29")
    a("buffer_store_dword v14, v45, s[24:27], 0 offen")
    a("L_noep:")
    a("s_mov_b64 exec, -1")
    stampat(3)
    a("s_branch L_fin")

    a("L_aux:")
    if aux_prio: a(f"s_setprio {aux_prio}")
    a("s_sub_u32 s59, s3, 8")
    a("s_and_b32 s55, s2, 31")
    a("s_bfe_u32 s56, s2, 0x10005")
    a("v_lshrrev_b32 v2, 4, v0")
    a("v_and_b32 v3, 15, v0")
    a("s_mov_b32 s10, 0x400000")
    a("s_mov_b32 s11, 0x20000")
    a("v_lshlrev_b32 v8, 18, v2")
    a("v_lshl_or_b32 v8, v3, 4, v8")
    a("s_lshl_b32 s54, s59, 20")
    a("s_lshl_b32 s53, s55, 8")
    a("s_or_b32 s54, s54, s53")
    a("v_lshlrev_b32 v10, 6, v2")
    a("s_lshl_b32 s52, s56, 10")
    a("s_lshl_b32 s53, s59, 8")
    a("s_add_u32 s53, s53, s52")
    a("s_movk_i32 s65, 0x2000")
    for r in range(4): a(f"v_mov_b32 v{12+r}, -1")
    a("s_lshl_b32 s58, s59, 11")
    a(f"s_add_u32 s58, s58, {L_INIT}")
    a("v_add_u32 v9, s58, v1")
    a("ds_write_b128 v9, v[12:15]")
    a("s_cmp_eq_u32 s59, 3")
    a("s_cbranch_scc0 L_i2")
    for r in range(4): a(f"v_mov_b32 v{12+r}, 0")
    a("s_mov_b64 exec, 1")
    a("L_i2:")
    a("ds_write_b128 v9, v[12:15] offset:1024")
    a("s_mov_b64 exec, -1")
    a("s_waitcnt lgkmcnt(0)")
    epoch_load()
    a("s_cmp_eq_u32 s59, 0")
    a("s_cbranch_scc1 L_coop")
    a("s_barrier")
    a(f"v_mov_b32 v12, {L_QB}")
    a("s_waitcnt lgkmcnt(0)")
    epoch_calc()
    spin_head("fw")
    a("s_sleep 4")
    a(f"ds_read2_b32 v[14:15], v12 offset0:0 offset1:{(L_FB - L_QB) // 4}")
    spin_bail("fw")
    a("s_waitcnt lgkmcnt(0)")
    a("v_cmp_ne_u32 vcc, -1, v15")
    a("s_cbranch_vccnz L_fallback")
    a("v_cmp_eq_u32 vcc, -1, v14")
    a("s_cbranch_vccnz L_fw")
    a("L_fw_ok:")
    a("s_branch L_aux4")
    a("L_coop:")
    a("s_lshl_b32 s58, s56, 2")
    a("s_add_u32 s58, s58, s57")
    a("v_lshlrev_b32 v40, 17, v2")
    a("v_lshl_or_b32 v40, v3, 4, v40")
    a("s_lshl_b32 s71, s58, 19")
    a("s_lshl_b32 s72, s55, 8")
    a("s_or_b32 s71, s71, s72")
    a("v_lshrrev_b32 v41, 3, v3")
    a("v_lshlrev_b32 v42, 10, v41")
    a("v_lshl_add_u32 v42, v2, 5, v42")
    a("s_lshl_b32 s72, s58, 7")
    a("buffer_load_dwordx4 v[44:47], v1, s[4:7], 0 offen")
    a("buffer_load_dwordx4 v[48:51], v1, s[4:7], 0 offen offset:1024")
    a("buffer_load_dwordx4 v[52:55], v42, s[4:7], s72 offen")
    a("buffer_load_dwordx4 v[56:59], v42, s[4:7], s72 offen offset:16")
    for i in range(16):
        r = 72 + 4 * i
        a(f"buffer_load_dwordx4 v[{r}:{r+3}], v40, s[8:11], s71 offen {wq_aux}")
        if i < 15: a("s_add_u32 s71, s71, s65")
    a("s_barrier")
    a("v_and_b32 v12, 1, v0")
    a("v_lshlrev_b32 v12, 4, v12")
    a("v_mov_b32 v13, 0xffff")
    a("v_lshlrev_b32 v12, v12, v13")
    a("v_bfe_u32 v13, v0, 1, 2")
    for r in range(4):
        a(f"v_cmp_eq_u32 vcc, {r}, v13")
        a(f"v_cndmask_b32 v{4+r}, 0, v12, vcc")
    a("v_cmp_eq_u32 s[66:67], 1, v41")
    a("s_waitcnt vmcnt(18) lgkmcnt(0)")
    epoch_calc()
    unpack(44, 24)
    unpack(48, 60)
    m0 = len(a.lines)
    ln_sums(24, 12, 68, 69, 70)
    l1 = a.lines[m0:]; del a.lines[m0:]
    ln_sums(60, 32, 76, 77, 78)
    l2 = a.lines[m0:]; del a.lines[m0:]
    for x, y in zip(l1, l2):
        a(x); a(y)
    for k, d in enumerate((60, 61, 62)):
        a(f"v_mov_b32 v{d}, s{68+k}")
        a(f"v_mov_b32 v63, s{76+k}")
        a(f"v_cndmask_b32 v{d}, v{d}, v63, s[66:67]")
    ln_finish("v60", 61, 62, 63)
    a("s_waitcnt vmcnt(16)")
    unpack(52, 24, 8)
    ln_apply(24, 24, 61, 62, 16)
    for i in range(16):
        a(f"v_cvt_pk_bf16_f32 v{24+i}, v{24+i}, v{24+i}")
    for i in range(16):
        t = 12 + 4 * (i & 1)
        for r in range(4):
            a(f"v_and_b32 v{t+r}, v{24+i}, v{4+r}")
        a(f"s_waitcnt vmcnt({15-i})")
        c = "0" if i == 0 else "v[20:23]"
        a(f"v_mfma_f32_16x16x32_bf16 v[20:23], v[{t}:{t+3}], v[{72+4*i}:{75+4*i}], {c}")
    a("v_lshrrev_b32 v40, 5, v0")
    a("v_lshlrev_b32 v40, 12, v40")
    a("v_and_b32 v41, 31, v0")
    a("v_lshl_add_u32 v40, v41, 4, v40")
    a("s_lshl_b32 s71, s55, 13")
    a(f"s_add_u32 s71, s71, {WS_QX}")
    a("s_lshl_b32 s72, s58, 9")
    a("s_add_u32 s72, s72, s71")
    a("v_mov_b32 v12, s31")
    for r in range(4):
        a(f"v_add_u32 v{20+r}, 0x80, v{20+r}")
    for r in range(4):
        a(f"v_and_or_b32 v{20+r}, v{20+r}, v12, s{60+r}")
    if not force_fb:
        a("buffer_store_dwordx4 v[20:23], v40, s[24:27], s72 offen")
    stampat(1)
    a("s_lshl_b32 s72, s56, 12")
    a("s_add_u32 s71, s71, s72")
    a("v_and_b32 v41, 1, v2")
    a("v_lshlrev_b32 v41, 3, v41")
    a("v_lshl_add_u32 v41, v3, 4, v41")
    a(f"v_add_u32 v41, {L_QB}, v41")
    a(f"s_movk_i32 s75, {qtries}")
    a("L_pX:")
    if qsleep: a(f"s_sleep {qsleep}")
    for k in range(4):
        a(f"buffer_load_dwordx4 v[{44+4*k}:{47+4*k}], v1, s[24:27], s71 offen offset:{1024*k} sc1")
    a("s_sub_u32 s75, s75, 1")
    a("s_cbranch_scc1 L_giveup")
    a("s_waitcnt vmcnt(0)")
    untag_check(list(range(44, 60)), 60, "pX")
    for r in range(4):
        a(f"v_add_f32 v{44+r}, v{44+r}, v{48+r}")
        a(f"v_add_f32 v{52+r}, v{52+r}, v{56+r}")
    for r in range(4): a(f"v_add_f32 v{44+r}, v{44+r}, v{52+r}")
    swap_add([44, 45, 46, 47], 48, "v_permlane32_swap_b32")
    a("v_cvt_pk_bf16_f32 v44, v44, v45")
    a("v_cvt_pk_bf16_f32 v45, v46, v47")
    a("ds_write_b64 v41, v[44:45]")
    a("v_lshlrev_b32 v8, 3, v0")
    a(f"v_add_u32 v11, {L_OP}, v8")
    a("s_branch L_qdone")
    a("L_giveup:")
    a(f"v_mov_b32 v12, {L_FB}")
    a("v_mov_b32 v13, 1")
    a("ds_write_b32 v12, v13")
    a("s_waitcnt vmcnt(0)")
    a("L_fallback:")
    a("buffer_load_dwordx4 v[20:23], v1, s[4:7], s52 offen")
    for k in range(4):
        a(f"buffer_load_dwordx4 v[{56+4*k}:{59+4*k}], v10, s[4:7], s53 offen offset:{16*k}")
    QR = 24
    q = dict(iss=0, landed=-1)
    def qreg(i): return 72 + 4 * (i % QR)
    def ld_wq():
        i = q["iss"]
        r = qreg(i)
        a(f"buffer_load_dwordx4 v[{r}:{r+3}], v8, s[8:11], s54 offen {wq_aux}")
        if i < 31: a("s_add_u32 s54, s54, s65")
        q["iss"] += 1
    def wait_wq(i):
        if i <= q["landed"]: return
        a(f"s_waitcnt vmcnt({q['iss'] - 1 - i})")
        q["landed"] = i
    for i in range(DQ): ld_wq()
    a(f"s_waitcnt vmcnt({DQ})")
    mark = len(a.lines)
    masks(12, 13)
    unpack(20, 24)
    ln_sums(24, 32, 68, 69, 70)
    a("v_mov_b32 v10, s69")
    a("v_mov_b32 v11, s70")
    ln_finish("s68", 10, 11, 9)
    unpack(56, 24, 16)
    ln_apply(24, 24, 10, 11, 32)
    for i in range(32):
        a(f"v_cvt_pk_bf16_f32 v{24+i}, v{24+i}, v{24+i}")
    body = a.lines[mark:]
    del a.lines[mark:]
    for k in range(0, len(body), chunk):
        if q["iss"] < QR:
            wait_wq(q["iss"] - DQ)
            ld_wq()
        for ln in body[k:k+chunk]: a(ln)
    for i in range(32):
        t = 12 + 4 * (i & 1)
        for r in range(4):
            a(f"v_and_b32 v{t+r}, v{24+i}, v{4+r}")
        if i <= q["landed"] and i % 4 == 0 and q["iss"] < 32 and q["iss"] - QR < i:
            wait_wq(q["landed"] + 1)
        wait_wq(i)
        while q["iss"] < 32 and q["iss"] - 1 - q["landed"] < DQ and q["iss"] - QR < i: ld_wq()
        c = "0" if i == 0 else "v[20:23]"
        a(f"v_mfma_f32_16x16x32_bf16 v[20:23], v[{t}:{t+3}], v[{qreg(i)}:{qreg(i)+3}], {c}")
    assert q["iss"] == 32
    a("s_lshl_b32 s52, s59, 9")
    a(f"s_add_u32 s52, s52, {L_QP}")
    a("v_lshlrev_b32 v8, 5, v3")
    a("v_lshl_add_u32 v8, v2, 4, v8")
    a("v_add_u32 v8, s52, v8")
    a("s_mov_b32 exec_hi, 0")
    a("ds_write_b128 v8, v[20:23]")
    a("s_mov_b64 exec, -1")
    a("s_cmp_lg_u32 s59, 0")
    a("s_cbranch_scc1 L_aux4")
    a("v_lshlrev_b32 v8, 3, v0")
    a(f"v_add_u32 v11, {L_OP}, v8")
    a("v_lshlrev_b32 v9, 2, v0")
    a(f"v_add_u32 v10, {L_QB}, v9")
    spin_head("pQ")
    for w in range(4):
        a(f"ds_read_b64 v[{12+2*w}:{13+2*w}], v11 offset:{L_QP - L_OP + 512*w}")
    spin_bail("pQ")
    a("s_waitcnt lgkmcnt(0)")
    empty_check(list(range(12, 20)), 20, "pQ")
    for w in range(1, 4):
        a(f"v_add_f32 v12, v12, v{12+2*w}")
        a(f"v_add_f32 v13, v13, v{13+2*w}")
    a("v_cvt_pk_bf16_f32 v12, v12, v13")
    a("ds_write_b32 v10, v12")
    a("L_qdone:")
    stampat(2)
    a("v_and_b32 v9, 7, v0")
    a("v_lshlrev_b32 v9, 3, v9")
    a(f"v_add_u32 v9, {L_MB}, v9")
    spin_head("pM")
    a("s_sleep 4")
    a("ds_read_b64 v[12:13], v9")
    spin_bail("pM")
    a("s_waitcnt lgkmcnt(0)")
    empty_check([12, 13], 14, "pM")
    oct_ = ("quad_perm:[1,0,3,2]", "quad_perm:[2,3,0,1]", "row_half_mirror")
    a("v_mov_b32 v16, v12")
    dpp_steps([16], oct_, "v_max_f32")
    a("v_sub_f32 v14, v12, v16")
    a(f"v_mul_f32 v14, {LOG2E:#x}, v14")
    a("v_exp_f32 v14, v14")
    a("v_mul_f32 v17, v13, v14")
    dpp_steps([17], oct_)
    a("s_getreg_b32 s53, hwreg(HW_REG_XCC_ID, 0, 4)")
    a("s_xor_b32 s53, s53, s29")
    a("v_mov_b32 v18, s29")
    a("v_mov_b32 v19, s53")
    a("s_lshl_b32 s52, s55, 1")
    a("s_add_u32 s52, s52, s56")
    a("s_lshl_b32 s52, s52, 2")
    a("s_add_u32 s52, s52, s57")
    a("s_lshl_b32 s53, s52, 7")
    a(f"s_add_u32 s53, s53, {WS_MLX}")
    a("s_lshl_b32 s52, s52, 9")
    a(f"s_add_u32 s52, s52, {WS_OP}")
    a("s_mov_b64 exec, 1")
    a("buffer_store_dwordx4 v[16:19], v8, s[24:27], s53 offen sc1")
    a("s_mov_b64 exec, -1")
    a(f"s_add_u32 s53, s52, {WS_OS - WS_OP}")
    stampat(3)
    for w in range(8):
        a(f"v_readlane_b32 s{44+w}, v14, {w}")
    a("v_and_b32 v9, 1, v0")
    a("v_lshlrev_b32 v9, 4, v9")
    a("v_lshrrev_b32 v9, v9, s29")
    a("v_bfe_u32 v10, v9, 8, 8")
    a("v_and_b32 v9, 0xff, v9")
    a("s_setprio 2")
    spin_head("pO")
    if osleep: a(f"s_sleep {osleep}")
    for w in range(8):
        a(f"ds_read_b64 v[{12+2*w}:{13+2*w}], v11 offset:{512*w}")
    spin_bail("pO")
    a("s_waitcnt lgkmcnt(0)")
    a("v_max3_u32 v28, v12, v13, v14")
    a("v_max3_u32 v29, v15, v16, v17")
    a("v_max3_u32 v30, v18, v19, v20")
    a("v_max3_u32 v31, v21, v22, v23")
    a("v_max3_u32 v32, v24, v25, v26")
    a("v_max3_u32 v28, v28, v29, v30")
    a("v_max3_u32 v31, v31, v32, v27")
    a("v_max_u32 v28, v28, v31")
    a("v_cmp_eq_u32 vcc, -1, v28")
    a("s_cbranch_vccnz L_pO")
    a("L_pO_ok:")
    stampat(5)
    a("v_mul_f32 v12, s44, v12"); a("v_mul_f32 v13, s44, v13")
    a("v_mul_f32 v20, s48, v20"); a("v_mul_f32 v21, s48, v21")
    for w in range(1, 4):
        a(f"v_fmac_f32 v12, s{44+w}, v{12+2*w}"); a(f"v_fmac_f32 v13, s{44+w}, v{13+2*w}")
        a(f"v_fmac_f32 v20, s{48+w}, v{20+2*w}"); a(f"v_fmac_f32 v21, s{48+w}, v{21+2*w}")
    a("v_add_f32 v12, v12, v20"); a("v_add_f32 v13, v13, v21")
    a("v_and_or_b32 v12, v12, s31, v9")
    a("v_and_or_b32 v13, v13, s31, v10")
    if local:
        a("buffer_store_dwordx2 v[12:13], v8, s[24:27], s52 offen")
    a("buffer_store_dwordx2 v[12:13], v8, s[24:27], s53 offen sc1")
    stampat(6)
    a("L_aux4:")
    a(f"s_cmp_lt_u32 s2, {NMLP}")
    a("s_cbranch_scc1 L_aux5")
    a("s_cmp_lg_u32 s57, 1")
    a("s_cbranch_scc1 L_fin")
    a("L_aux5:")
    a("s_setprio 3")
    a("v_lshrrev_b32 v33, 2, v3")
    a("v_lshl_add_u32 v33, v2, 3, v33")
    a("v_and_b32 v34, 3, v0")
    a("v_bfe_u32 v6, v3, 2, 1")
    a(f"v_mul_u32_u24 v6, {APITCH}, v6")
    a("v_lshl_add_u32 v6, v2, 4, v6")
    a(f"v_add_u32 v6, {L_A}, v6")
    a(f"v_mov_b32 v35, {L_FL}")
    def gemm16(acc, filler=()):
        filler = list(filler)
        for ks in range(12):
            a(f"ds_read_b128 v[{16+4*ks}:{19+4*ks}], v6 offset:{64*ks}")
        out = 12
        per = (len(filler) + 13) // 14 if filler else 0
        for ks in range(16):
            nxt = ks + 12
            a(f"s_waitcnt lgkmcnt({out - 1})")
            out -= 1
            ab = 16 + 4 * (ks % 12)
            c = "0" if ks == 0 else f"v[{acc}:{acc+3}]"
            a(f"v_mfma_f32_16x16x32_bf16 v[{acc}:{acc+3}], v[{ab}:{ab+3}], v[{64+4*ks}:{67+4*ks}], {c}")
            if nxt < 16:
                a(f"ds_read_b128 v[{ab}:{ab+3}], v6 offset:{64*nxt}")
                out += 1
            for _ in range(per):
                if filler: a(filler.pop(0))
        for ln in filler: a(ln)
    a(f"s_cmp_lt_u32 s2, {NMLP}")
    a("s_cbranch_scc1 L_aux_m")
    a("v_lshlrev_b32 v10, 7, v33")
    a("v_lshl_add_u32 v10, v34, 3, v10")
    a("s_lshl_b32 s52, s59, 5")
    a("v_add_u32 v10, s52, v10")
    a("v_lshlrev_b32 v7, 3, v34")
    a("v_lshrrev_b32 v7, v7, s29")
    a("v_and_b32 v7, 0xff, v7")
    a("v_lshlrev_b32 v5, 2, v0")
    a("s_and_b32 s70, s2, 63")
    a("s_lshl_b32 s70, s70, 2")
    a("s_add_u32 s70, s70, s59")
    a("s_lshl_b32 s70, s70, 7")
    a(f"s_add_u32 s70, s70, {WS_ZX}")
    if zcopy:
        a("v_and_b32 v5, 31, v0")
        a("v_lshlrev_b32 v5, 2, v5")
        a("v_lshrrev_b32 v11, 5, v0")
        a("v_lshl_add_u32 v5, v11, 15, v5")
        for k in range(1, 4):
            a(f"s_add_u32 s{70+k}, s70, {k * 0x10000}")
    for kw in range(8):
        lds_wait(f"fr{kw}", 35, 12, 2 if kw == 0 else 0, off=4*kw)
        for ks in (2*kw, 2*kw+1):
            for hh in range(2):
                d = 64 + 4 * ks + 2 * hh
                a(f"ds_read_b64_tr_b16 v[{d}:{d+1}], v10 offset:{ks*4096 + hh*512}")
    a("s_waitcnt lgkmcnt(0)")
    stampat(7)
    a("s_barrier")
    gemm16(12)
    if zcopy:
        a("v_and_or_b32 v12, v12, s31, v7")
        for k in range(4):
            a(f"buffer_store_dword v12, v5, s[24:27], s{70+k} offen sc1")
    else:
        a("s_mov_b32 exec_hi, 0")
        a("v_and_or_b32 v12, v12, s31, v7")
        a("buffer_store_dword v12, v5, s[24:27], s70 offen sc1")
        a("s_mov_b64 exec, -1")
    stampat(8)
    a("s_branch L_fin")
    a("L_aux_m:")
    a("v_lshlrev_b32 v10, 6, v33")
    a("v_and_b32 v11, 1, v0")
    a("v_lshl_add_u32 v10, v11, 3, v10")
    a("v_bfe_u32 v11, v0, 1, 1")
    a(f"v_mul_u32_u24 v11, {L_UP}, v11")
    a("v_add_u32 v10, v11, v10")
    a("s_lshl_b32 s52, s59, 4")
    a("v_add_u32 v10, s52, v10")
    a(f"v_mul_u32_u24 v36, {DNP}, v33")
    a("v_lshl_add_u32 v36, v34, 3, v36")
    a("s_lshl_b32 s52, s59, 8")
    a(f"s_add_u32 s52, s52, {L_DN}")
    a("v_add_u32 v36, s52, v36")
    a("v_and_b32 v4, 1, v2")
    a("v_lshlrev_b32 v9, 10, v4")
    a("buffer_load_ushort v165, v9, s[4:7], 0 offen")
    a("v_lshlrev_b32 v166, 7, v4")
    a("v_lshl_add_u32 v166, v3, 3, v166")
    a(f"v_add_u32 v166, {L_ST}, v166")
    a("v_lshlrev_b32 v4, 6, v4")
    a("v_lshl_add_u32 v4, v3, 1, v4")
    a("s_lshl_b32 s52, s59, 4")
    a(f"s_add_u32 s52, s52, {L_ACT}")
    a("v_add_u32 v4, s52, v4")
    a("v_and_b32 v8, 1, v3")
    a("v_lshlrev_b32 v8, 6, v8")
    a("v_lshl_add_u32 v8, v2, 4, v8")
    a(f"v_add_u32 v8, {L_ACT}, v8")
    a(f"v_mov_b32 v11, {L_ZERO}")
    a("v_lshrrev_b32 v9, 2, v3")
    for u in range(4):
        a(f"v_cmp_eq_u32 vcc, {u}, v9")
        a(f"v_cndmask_b32 v{160+u}, v11, v8, vcc")
    a("v_mul_u32_u24 v5, 5504, v2")
    a("v_lshl_add_u32 v5, v3, 3, v5")
    a("s_mul_i32 s52, s59, 44032")
    a("s_lshl_b32 s53, s2, 7")
    a("s_add_u32 s52, s52, s53")
    a(f"s_add_u32 s52, s52, {WS_Y}")
    a("s_add_u32 s53, s52, 22016")
    a("v_and_b32 v7, 1, v0")
    a("v_lshlrev_b32 v7, 4, v7")
    a("v_lshrrev_b32 v7, v7, s29")
    a("v_bfe_u32 v164, v7, 8, 8")
    a("v_and_b32 v7, 0xff, v7")
    for r in range(4): a(f"v_mov_b32 v{40+r}, 0x3f803f80")
    for kw in range(8):
        lds_wait(f"fm{kw}", 35, 12, 2 if kw == 0 else 0, off=4*kw)
        if kw > 0:
            for ks in (2*kw-2, 2*kw-1):
                c = "0" if ks == 0 else "v[44:47]"
                a(f"v_mfma_f32_16x16x32_bf16 v[44:47], v[40:43], v[{64+4*ks}:{67+4*ks}], {c}")
        for ks in (2*kw, 2*kw+1):
            for hh in range(2):
                d = 64 + 4 * ks + 2 * hh
                a(f"ds_read_b64_tr_b16 v[{d}:{d+1}], v10 offset:{ks*2048 + hh*256}")
    a("s_waitcnt lgkmcnt(0) vmcnt(0)")
    for ks in (14, 15):
        a(f"v_mfma_f32_16x16x32_bf16 v[44:47], v[40:43], v[{64+4*ks}:{67+4*ks}], v[44:47]")
    a("v_lshlrev_b32 v165, 16, v165")
    a("v_mov_b32 v167, v44")
    a("v_and_b32 v11, 7, v0")
    a("v_lshlrev_b32 v11, 2, v11")
    a(f"v_add_u32 v11, {L_FD}, v11")
    lds_wait("fd", 11, 12, 0)
    for t in range(8):
        for hh in range(2):
            d = 128 + 4 * t + 2 * hh
            a(f"ds_read_b64_tr_b16 v[{d}:{d+1}], v36 offset:{hh*4*DNP + t*32}")
    a("s_waitcnt lgkmcnt(0)")
    stampat(7)
    a("s_barrier")
    a("ds_read_b64 v[8:9], v166")
    mark = len(a.lines)
    dpp_steps([8, 9], ("quad_perm:[1,0,3,2]", "quad_perm:[2,3,0,1]", "row_half_mirror", "row_mirror"))
    ln_finish("v165", 8, 9, 10)
    fill = a.lines[mark:]
    del a.lines[mark:]
    gemm16(12, fill)
    a("v_fma_f32 v12, -v8, v167, v12")
    a("v_mul_f32 v12, v12, v9")
    bf16r(12)
    a("v_mul_f32 v13, 0xbfb8aa3b, v12")
    a("v_exp_f32 v13, v13")
    a("v_add_f32 v13, 1.0, v13")
    a("v_rcp_f32 v13, v13")
    a("v_mul_f32 v13, v12, v13")
    bf16r(13)
    a("v_mul_f32_dpp v13, v12, v13 row_ror:8 row_mask:0xf bank_mask:0xf")
    a("v_mov_b32_dpp v14, v13 quad_perm:[1,0,3,2] row_mask:0xf bank_mask:0xf")
    a("v_cvt_pk_bf16_f32 v13, v13, v14")
    a("s_mov_b64 exec, 0x00550055")
    a("ds_write_b32 v4, v13")
    a("s_mov_b64 exec, -1")
    stampat(9)
    spin_head("pG")
    for u in range(4):
        a(f"ds_read_b128 v[{16+4*u}:{19+4*u}], v{160+u}")
    spin_bail("pG")
    a("s_waitcnt lgkmcnt(0)")
    empty_check(list(range(16, 32)), 32, "pG")
    for u in range(4):
        for hf in range(2):
            acc = 8 + 4 * hf
            t = hf * 4 + u
            c = "0" if u == 0 else f"v[{acc}:{acc+3}]"
            a(f"v_mfma_f32_16x16x32_bf16 v[{acc}:{acc+3}], v[{16+4*u}:{19+4*u}], v[{128+4*t}:{131+4*t}], {c}")
    for hf in range(2):
        r = 8 + 4 * hf
        a(f"v_and_or_b32 v{r}, v{r}, s31, v7")
        a(f"v_and_or_b32 v{r+1}, v{r+1}, s31, v164")
        a(f"buffer_store_dwordx2 v[{r}:{r+1}], v5, s[24:27], s{52+hf} offen sc1")
    stampat(8)

    a("L_fin:")
    if stamps:
        a("s_waitcnt lgkmcnt(0)")
        a("s_mul_i32 s64, s3, 80")
        a(f"s_add_u32 s64, s64, {L_STAMP}")
        a("v_mov_b32 v40, s64")
        a("s_mov_b64 exec, 1")
        for i in range(10):
            a(f"v_mov_b32 v12, s{80+2*i}")
            a(f"v_mov_b32 v13, s{81+2*i}")
            a(f"ds_write_b64 v40, v[12:13] offset:{8*i}")
        a("s_mov_b64 exec, -1")
        a("s_waitcnt lgkmcnt(0)")
        if href:
            a(f"s_cmp_lg_u32 s3, {href[0]}")
            a("s_cbranch_scc1 L_end")
            a("s_cmp_lt_u32 s2, 128")
            a("s_cbranch_scc1 L_end")
            a("L_hold2:")
            a("s_sleep 2")
            a("s_memrealtime s[66:67]")
            a("s_waitcnt lgkmcnt(0)")
            a(f"s_sub_u32 s66, s66, s{80 + 2 * href[1]}")
            a("s_cmp_lt_u32 s66, 3000")
            a("s_cbranch_scc1 L_hold2")
            a("s_branch L_end")
        a("s_cmp_lg_u32 s3, 9")
        a("s_cbranch_scc1 L_end")
        if hold_x is not None:
            a(f"s_cmp_lg_u32 s2, {128 + hold_x}")
            a("s_cbranch_scc1 L_end")
        a("L_hold:")
        a(f"s_sleep {32 if hold_x is None else 2}")
        a("s_memrealtime s[66:67]")
        a("s_waitcnt lgkmcnt(0)")
        a("s_sub_u32 s66, s66, s80")
        a(f"s_cmp_lt_u32 s66, {hold_t}")
        a("s_cbranch_scc1 L_hold")
        a(f"v_add_u32 v40, {L_STAMP}, v1")
        a("ds_read_b128 v[12:15], v40")
        a("s_mul_i32 s64, s2, 1280")
        a(f"s_add_u32 s64, s64, {512<<20}")
        a("v_add_u32 v40, s64, v1")
        a("s_waitcnt lgkmcnt(0)")
        a("global_store_dwordx4 v40, v[12:15], s[24:25]")
    a("L_end:")
    a("s_endpgm")
    a('.section .rodata,"a"')
    a(".p2align 6")
    a(f".amdhsa_kernel {NAME}_kernel")
    a(f"  .amdhsa_next_free_vgpr {NVGPR}")
    a("  .amdhsa_next_free_sgpr 102")
    a(f"  .amdhsa_accum_offset {NVGPR}")
    a("  .amdhsa_group_segment_fixed_size 0")
    a("  .amdhsa_kernarg_size 104")
    a("  .amdhsa_user_sgpr_count 2")
    a("  .amdhsa_user_sgpr_kernarg_segment_ptr 1")
    a("  .amdhsa_system_sgpr_workgroup_id_x 1")
    a(".end_amdhsa_kernel")
    return a.finalize()

if __name__ == "__main__":
    out = sys.argv[1]
    kw = eval("dict(" + (sys.argv[2] if len(sys.argv) > 2 else "") + ")")
    open(out, "w").write(gen(**kw))
```

```python
import re

def _regs(tok):
    tok = tok.strip()
    tok = re.sub(r"^-|^abs\(|\)$|^\||\|$", "", tok)
    m = re.fullmatch(r"([vsa])(\d+)", tok)
    if m:
        return {(m.group(1), int(m.group(2)))}
    m = re.fullmatch(r"([vsa])\[(\d+):(\d+)\]", tok)
    if m:
        return {(m.group(1), i) for i in range(int(m.group(2)), int(m.group(3)) + 1)}
    if tok == "vcc":
        return {("s", 106), ("s", 107)}
    if tok == "vcc_lo": return {("s", 106)}
    if tok == "vcc_hi": return {("s", 107)}
    if tok == "exec":
        return {("s", 126), ("s", 127)}
    if tok == "exec_lo": return {("s", 126)}
    if tok == "exec_hi": return {("s", 127)}
    if tok == "m0":
        return {("s", 124)}
    return set()

TRANS = ("v_exp_f32", "v_log_f32", "v_rcp_f32", "v_rsq_f32", "v_sqrt_f32", "v_sin_f32", "v_cos_f32")

class Ins:
    def __init__(self, text):
        self.text = text
        t = text.split(";")[0].strip()
        self.label = t.endswith(":")
        self.directive = t.startswith(".")
        self.empty = (t == "")
        parts = t.split(None, 1)
        self.op = parts[0] if parts else ""
        rest = parts[1] if len(parts) > 1 else ""
        ops, depth, cur = [], 0, ""
        for ch in rest:
            if ch == "[": depth += 1
            if ch == "]": depth -= 1
            if ch == "," and depth == 0:
                ops.append(cur.strip()); cur = ""
            else:
                cur += ch
        if cur.strip():
            ops.append(cur.strip())
        self.mods = ""
        if ops:
            sp = ops[-1].split(None, 1)
            ops[-1] = sp[0]
            self.mods = sp[1] if len(sp) > 1 else ""
        self.ops = ops
        op = self.op
        self.valu = op.startswith("v_")
        self.mfma = op.startswith("v_mfma")
        self.dot = op.startswith("v_dot")
        self.trans = any(op.startswith(x) for x in TRANS)
        self.dpp = "_dpp" in op
        self.perm = op.startswith("v_permlane")
        self.rdlane = op.startswith("v_readlane") or op.startswith("v_readfirstlane")
        self.vmem = op.startswith("buffer_") or op.startswith("global_")
        self.ds = op.startswith("ds_")
        self.salu = op.startswith("s_")
        self.wr, self.rd = set(), set()
        R = [_regs(o) for o in ops]
        if self.valu:
            if op.startswith("v_cmp"):
                self.wr = R[0]; self.rd = set().union(*R[1:])
            elif self.perm:
                self.wr = R[0] | R[1]; self.rd = R[0] | R[1]
            elif "_co_" in op:
                self.wr = R[0] | R[1]; self.rd = set().union(*R[2:])
            else:
                self.wr = R[0] if R else set(); self.rd = set().union(*R[1:]) if len(R) > 1 else set()
                if op.startswith("v_fmac") or op.startswith("v_dot2c") or self.dpp or op.startswith("v_writelane"):
                    self.rd |= R[0]
                if op.startswith("v_cndmask") and len(R) == 3:
                    self.rd |= _regs("vcc")
            if self.mfma:
                self.srcC = R[3]; self.srcAB = R[1] | R[2]
        elif self.vmem:
            lds = " lds" in (" " + self.mods) or "load_lds" in op
            if "load" in op and not lds:
                self.wr = R[0]; self.rd = set().union(*R[1:])
            elif "atomic" in op and "sc0" in self.mods and op.startswith("global"):
                self.wr = R[0]; self.rd = set().union(*R[1:])
            elif "atomic" in op and "sc0" in self.mods:
                self.wr = R[0]; self.rd = set().union(*R)
            else:
                self.rd = set().union(*R) if R else set()
            self.ldsdma = lds
            self.widestore = ("store" in op) and ("x3" in op or "x4" in op)
            if self.widestore:
                self.sdata = R[0] if op.startswith("buffer") else R[1]
        elif self.ds:
            if "read" in op or "permute" in op or "swizzle" in op:
                self.wr = R[0]; self.rd = set().union(*R[1:])
            else:
                self.rd = set().union(*R)
        elif self.salu:
            if op.startswith("s_cmp") or op.startswith("s_cbranch") or op.startswith("s_branch") or op in ("s_waitcnt", "s_nop", "s_barrier", "s_endpgm", "s_sleep", "s_setprio") or op.startswith("s_bitcmp"):
                self.rd = set().union(*R) if R else set()
            else:
                self.wr = R[0] if R else set(); self.rd = set().union(*R[1:]) if len(R) > 1 else set()
                if "saveexec" in op:
                    self.wr |= _regs("exec")

    def states(self):
        if self.op == "s_nop":
            return int(self.ops[0], 0) + 1
        return 1

def mfma_passes(op):
    if "16x16x32" in op: return 4
    if "32x32x16" in op: return 8
    raise ValueError(op)

def need(prod, cons):
    n = 0
    V = lambda s: {r for r in s if r[0] in "va"}
    S = lambda s: {r for r in s if r[0] == "s"}
    if prod.valu and not prod.mfma:
        w = V(prod.wr)
        if cons.dpp and cons.valu and (w & cons.rd): n = max(n, 2)
        if cons.perm and (w & cons.rd): n = max(n, 2)
        if cons.rdlane and (w & cons.rd): n = max(n, 1)
        if cons.mfma and (w & cons.rd): n = max(n, 2)
        if prod.trans and cons.valu and not cons.trans and (w & cons.rd): n = max(n, 1)
        if prod.trans and (cons.vmem or cons.ds) and (w & cons.rd): n = max(n, 1)
        if prod.dot:
            if w & (cons.rd | cons.wr):
                same = cons.op.replace("_e32", "") == prod.op.replace("_e32", "")
                if same and cons.dot:
                    ab = set().union(*[_regs(o) for o in cons.ops[1:3]])
                    if w & ab: n = max(n, 3)
                else:
                    n = max(n, 3)
        ws = S(prod.wr)
        if ws:
            if cons.valu and (ws & cons.rd):
                n = max(n, 4 if cons.rdlane or cons.op.startswith("v_writelane") else 2)
            if cons.vmem and (ws & cons.rd): n = max(n, 5)
            if cons.salu and (ws & cons.rd): n = max(n, 1)
        if "sdwa" in prod.op and cons.valu and (w & cons.rd): n = max(n, 1)
    if prod.mfma:
        p = mfma_passes(prod.op)
        d = prod.wr
        if cons.mfma:
            if d & cons.srcAB: n = max(n, {4: 8, 8: 12}[p])
            if d & cons.srcC and not (cons.srcC == d and cons.op == prod.op): n = max(n, {4: 6, 8: 10}[p])
        elif (cons.valu or cons.vmem or cons.ds) and (d & (cons.rd | cons.wr)):
            n = max(n, {4: 8, 8: 12}[p])
        if cons.valu and not cons.mfma and (prod.srcC & cons.wr): n = max(n, {4: 3, 8: 7}[p])
    if prod.vmem and getattr(prod, "widestore", False):
        if (prod.sdata & cons.wr): n = max(n, 2)
    if prod.salu and (("s", 124) in prod.wr) and cons.vmem and getattr(cons, "ldsdma", False): n = max(n, 1)
    return n

class Asm:
    def __init__(self):
        self.lines = []
    def __call__(self, s):
        for ln in s.split("\n"):
            self.lines.append(ln)
    def finalize(self):
        out = []
        hist = []
        for ln in self.lines:
            ins = Ins(ln)
            if ins.empty or ins.directive or ins.label:
                out.append(ln)
                continue
            req = 0
            dist = 0
            for prev in reversed(hist):
                r = need(prev, ins) - dist
                req = max(req, r)
                dist += prev.states()
                if dist > 20: break
            while req > 0:
                k = min(req, 16)
                nop = Ins(f"s_nop {k-1}")
                out.append(f"  s_nop {k-1}")
                hist.append(nop)
                req -= k
            out.append(ln if ln.startswith(" ") else "  " + ln)
            hist.append(ins)
            hist = hist[-24:]
        return "\n".join(out) + "\n"


import subprocess, tempfile, os
def _sizes(text):
    with tempfile.TemporaryDirectory() as d:
        p = os.path.join(d, "a.s"); o = os.path.join(d, "a.o")
        open(p, "w").write(text)
        subprocess.run(["clang", "-x", "assembler", "-target", "amdgcn-amd-amdhsa", "-mcpu=gfx950", "-c", p, "-o", o], check=True)
        out = subprocess.run(["llvm-objdump", "-d", "--mcpu=gfx950", o], capture_output=True, text=True, check=True).stdout
    sz = []
    for ln in out.splitlines():
        m = re.search(r"//\s*[0-9A-F]{12}:((?: [0-9A-F]{8})+)\s*(<.*)?$", ln)
        if m: sz.append(4 * len(m.group(1).split()))
    return sz

def add_pads(text, line=64):
    lines = text.split("\n")
    names = re.findall(r";@warm (\w+) (\w+)", text)
    pl = []
    for l in lines:
        pl.append(l)
        if ";@warm " in l:
            pl.append("L_w_" + l.split()[1] + "_0:")
    prov = "\n".join(pl)
    sz = _sizes(prov)
    out, addr, k = [], 0, 0
    cur = None
    for l in lines:
        m = re.match(r"\s*;@warm (\w+) (\w+)", l)
        if m:
            cur = dict(name=m.group(1), exit=m.group(2), n=0, blk=-1, last=None)
            out.append(l); continue
        if re.match(r"\s*;@endwarm", l):
            out[cur["last"]] = f"  s_cbranch_execz {cur['exit']}"
            cur = None
            out.append(l); continue
        ins = Ins(l)
        if ins.empty or ins.directive or ins.label:
            out.append(l); continue
        if cur is not None and addr // line != cur["blk"]:
            cur["blk"] = addr // line
            out.append(f"L_w_{cur['name']}_{cur['n']}:")
            out.append(f"  s_cbranch_execz L_w_{cur['name']}_{cur['n']+1}")
            cur["last"] = len(out) - 1
            cur["n"] += 1
            addr += 4
        out.append(l)
        addr += sz[k]; k += 1
    assert k == len(sz), (k, len(sz))
    return "\n".join(out)
```

```python
import sys, json
from asmlib import Asm, add_pads
from gen import HDR, NAME

WS_EP = 0
WS_MLX = 0x1000
WS_OP = 0x9000
WS_OS = 0x29000
WS_ZX = 0x49000
WS_QX = 0x51000
WS_Y = 0x91000
WS_SIZE = WS_Y + 43 * 4096
L_UP = 0x8020
L_DN = 0x10040
DNP = 1056
L_INIT = 0x18800
L_OP = L_INIT
L_QP = L_INIT + 0x1000
L_QB = L_INIT + 0x1800
L_MB = L_INIT + 0x1900
L_FL = L_INIT + 0x1940
L_ACT = L_INIT + 0x1980
L_SG = L_INIT + 0x1A00
L_FB = L_INIT + 0x1A40
L_FD = L_FL + 0x20
L_ZERO = L_INIT + 0x1C00
L_A = L_INIT + 0x1D00
APITCH = 1088
L_ST = L_A + 0x900
L_STAMP = L_ST + 0x200
LDS_SIZE = L_STAMP + 0x400
NMLP = 43
SPIN = 100000
LOG2E = 0x3fb8aa3b
SCALE = 0x3db504f3
NVGPR = 168

def gen(stamps=False, D0=2, N0=4, D=3, Dm=4, Dr=4, NPRE=18, ring=31, DQ=6,
        gvec=(0,1,5,6,7,8,9), wbit=2, gx=((3,1),(4,5),(5,0)), kv_aux="nt", wq_aux="", wo_aux="", mlp_aux="", dn_aux="",
        no_stage=False, CU=4, chunk=24, cdelay=5, local=True, osleep=1, rot_m=8, rot_r=16, c3=96|24,
        bm_from=0, br_from=0, early_m=1, early_r=4, hold_x=None, hold_t=4500, bsleep=2, aux_prio=0, noround=False, zcopy=False, masked=False, ins_r=None, ins_m=None, prep_at=12, qtries=8, qsleep=8, force_fb=False, fmap=True, falt=False, dn_lead=2, href=None, warm=64, acc2=False, wgrp=1):
    a = Asm()
    n = 32
    def stampat(i):
        if stamps:
            a(f"s_memrealtime s[{80+2*i}:{81+2*i}]")

    a(HDR + f"; @launch grid=(256,1,1) block=(768,1,1) lds={LDS_SIZE}")
    a('.amdgcn_target "amdgcn-amd-amdhsa--gfx950"')
    a(".text")
    a(f".globl {NAME}_kernel")
    a(".p2align 8")
    a(f".type {NAME}_kernel,@function")
    a(f"{NAME}_kernel:")
    stampat(0)
    a("s_load_dwordx2 s[12:13], s[0:1], 8")
    a("s_load_dwordx2 s[4:5], s[0:1], 0")
    a("s_load_dwordx2 s[8:9], s[0:1], 24")
    a("s_load_dwordx2 s[24:25], s[0:1], 96")
    if stamps:
        for i in range(1, 10):
            a(f"s_mov_b64 s[{80+2*i}:{81+2*i}], 0")
    a("s_cmp_ge_u32 s2, 256")
    a("s_cbranch_scc1 L_end")
    a("v_lshrrev_b32 v2, 6, v0")
    a("v_and_b32 v0, 63, v0")
    a("v_readfirstlane_b32 s3, v2")
    a("v_lshlrev_b32 v1, 4, v0")
    a("s_mov_b32 s14, 0x10000000")
    a("s_mov_b32 s15, 0x20000")
    a("s_movk_i32 s6, 2048")
    a("s_mov_b32 s7, 0x20000")
    a(f"s_mov_b32 s26, {WS_SIZE}")
    a("s_mov_b32 s27, 0x20000")
    a("s_lshr_b32 s57, s2, 6")
    a("s_cmp_ge_u32 s3, 8")
    a("s_cbranch_scc1 L_aux")

    def epoch_load():
        a("s_load_dword s28, s[24:25], 0")
    def epoch_calc():
        a("s_and_b32 s29, s28, 0x7f7f7f7f")
        a("s_add_u32 s29, s29, 0x07050301")
        a("s_and_b32 s30, s28, 0x80808080")
        a("s_xor_b32 s29, s29, s30")
        for k in range(4):
            a(f"s_bfe_u32 s{60+k}, s29, {(8*k) | (8 << 16):#x}")
        a("s_mov_b32 s31, 0xffffff00")
    def srd(base, off, size):
        a(f"s_load_dwordx2 s[{base}:{base+1}], s[0:1], {off}")
        a(f"s_mov_b32 s{base+2}, {size}")
        a(f"s_mov_b32 s{base+3}, 0x20000")
    def masks(t0, t1):
        a(f"v_and_b32 v{t0}, 1, v0")
        a(f"v_lshlrev_b32 v{t0}, 4, v{t0}")
        a(f"v_mov_b32 v{t1}, 0xffff")
        a(f"v_lshlrev_b32 v{t0}, v{t0}, v{t1}")
        a(f"v_bfe_u32 v{t1}, v0, 1, 3")
        for r in range(4):
            a(f"v_cmp_eq_u32 vcc, {r}, v{t1}")
            a(f"v_cndmask_b32 v{4+r}, 0, v{t0}, vcc")
    def unpack(src, dst, n=4):
        for k in range(n):
            a(f"v_lshlrev_b32 v{dst+2*k}, 16, v{src+k}")
            a(f"v_and_b32 v{dst+2*k+1}, 0xffff0000, v{src+k}")
    def dpp_steps(regs, steps, op="v_add_f32"):
        for m in steps:
            for r in regs:
                a(f"{op}_dpp v{r}, v{r}, v{r} {m} row_mask:0xf bank_mask:0xf")
    def wave_reduce(regs, op="v_add_f32"):
        dpp_steps(regs, ("row_shr:1", "row_shr:2", "row_shr:4", "row_shr:8"), op)
        for r in regs:
            a(f"{op}_dpp v{r}, v{r}, v{r} row_bcast:15 row_mask:0xa bank_mask:0xf")
        for r in regs:
            a(f"{op}_dpp v{r}, v{r}, v{r} row_bcast:31 row_mask:0xc bank_mask:0xf")
    def bf16r(r):
        a(f"v_cvt_pk_bf16_f32 v{r}, v{r}, v{r}")
        a(f"v_lshlrev_b32 v{r}, 16, v{r}")
    def ln_sums(f, t, sc, o1, o2):
        a(f"v_readfirstlane_b32 s{sc}, v{f}")
        for i in range(8):
            a(f"v_subrev_f32 v{t+i}, s{sc}, v{f+i}")
        s1, s2 = t + 8, t + 9
        a(f"v_add_f32 v{s1}, v{t}, v{t+1}")
        a(f"v_mul_f32 v{s2}, v{t}, v{t}")
        a(f"v_fmac_f32 v{s2}, v{t+1}, v{t+1}")
        for i in range(2, 8):
            a(f"v_add_f32 v{s1}, v{s1}, v{t+i}")
            a(f"v_fmac_f32 v{s2}, v{t+i}, v{t+i}")
        wave_reduce([s1, s2])
        a(f"v_readlane_b32 s{o1}, v{s1}, 63")
        a(f"v_readlane_b32 s{o2}, v{s2}, 63")
    def ln_finish(c, mb, rs, t):
        a(f"v_mul_f32 v{mb}, 0x3b000000, v{mb}")
        a(f"v_mul_f32 v{rs}, 0x3b000000, v{rs}")
        a(f"v_fma_f32 v{rs}, -v{mb}, v{mb}, v{rs}")
        a(f"v_add_f32 v{mb}, {c}, v{mb}")
        a(f"v_max_f32 v{rs}, 0, v{rs}")
        a(f"v_cvt_pk_bf16_f32 v{t}, v{mb}, v{rs}")
        a(f"v_lshlrev_b32 v{mb}, 16, v{t}")
        a(f"v_and_b32 v{rs}, 0xffff0000, v{t}")
        a(f"v_add_f32 v{rs}, 0x3727c5ac, v{rs}")
        bf16r(rs)
        a(f"v_sqrt_f32 v{rs}, v{rs}")
        bf16r(rs)
        a(f"v_rcp_f32 v{rs}, v{rs}")
    def ln_apply(f, t, mb, rs, n=8):
        mbs = mb if isinstance(mb, (list, tuple)) else [mb] * n
        rss = rs if isinstance(rs, (list, tuple)) else [rs] * n
        for i in range(n):
            a(f"v_sub_f32 v{t+i}, v{f+i}, v{mbs[i]}")
        for k in range(n // 2):
            a(f"v_cvt_pk_bf16_f32 v{t+2*k+1}, v{t+2*k}, v{t+2*k+1}")
        for k in range(n // 2):
            a(f"v_lshlrev_b32 v{t+2*k}, 16, v{t+2*k+1}")
            a(f"v_and_b32 v{t+2*k+1}, 0xffff0000, v{t+2*k+1}")
        for i in range(n):
            a(f"v_mul_f32 v{t+i}, v{t+i}, v{rss[i]}")
    def spin_head(tag):
        a(f"s_mov_b32 s75, {SPIN}")
        a(f"L_{tag}:")
    def spin_bail(tag):
        a("s_sub_u32 s75, s75, 1")
        a(f"s_cbranch_scc1 L_{tag}_ok")
    def untag_check(regs, t, tag, pre=None):
        for i, r in enumerate(regs):
            if pre and r in pre: continue
            a(f"v_xor_b32 v{r}, s{60 + (i & 3)}, v{r}")
        rs = list(regs)
        a(f"v_or3_b32 v{t}, v{rs[0]}, v{rs[1]}, v{rs[2]}")
        rs = rs[3:]
        while len(rs) >= 2:
            a(f"v_or3_b32 v{t}, v{t}, v{rs[0]}, v{rs[1]}")
            rs = rs[2:]
        if rs:
            a(f"v_or_b32 v{t}, v{t}, v{rs[0]}")
        a(f"v_and_b32 v{t}, 0xff, v{t}")
        a(f"v_cmp_ne_u32 vcc, 0, v{t}")
        a(f"s_cbranch_vccnz L_{tag}")
        a(f"L_{tag}_ok:")
    def empty_check(regs, t, tag):
        rs = list(regs)
        if len(rs) == 1:
            a(f"v_cmp_eq_u32 vcc, -1, v{rs[0]}")
        else:
            if len(rs) >= 3:
                a(f"v_max3_u32 v{t}, v{rs[0]}, v{rs[1]}, v{rs[2]}"); rs = rs[3:]
            else:
                a(f"v_max_u32 v{t}, v{rs[0]}, v{rs[1]}"); rs = rs[2:]
            while len(rs) >= 2:
                a(f"v_max3_u32 v{t}, v{t}, v{rs[0]}, v{rs[1]}"); rs = rs[2:]
            if rs: a(f"v_max_u32 v{t}, v{t}, v{rs[0]}")
            a(f"v_cmp_eq_u32 vcc, -1, v{t}")
        a(f"s_cbranch_vccnz L_{tag}")
        a(f"L_{tag}_ok:")
    def masked_poll(tag, loads, t, mb=52):
        for k in range(len(loads)):
            a(f"s_mov_b64 s[{mb+2*k}:{mb+1+2*k}], -1")
        spin_head(tag)
        for k, (r, txt) in enumerate(loads):
            a(f"s_mov_b64 exec, s[{mb+2*k}:{mb+1+2*k}]")
            a(txt)
        spin_bail(tag)
        for k, (r, txt) in enumerate(loads):
            a(f"s_mov_b64 exec, s[{mb+2*k}:{mb+1+2*k}]")
            a(f"s_waitcnt vmcnt({len(loads)-1-k})")
            for i in range(4):
                a(f"v_xor_b32 v{r+i}, s{60+i}, v{r+i}")
            a(f"v_or3_b32 v{t}, v{r}, v{r+1}, v{r+2}")
            a(f"v_or_b32 v{t}, v{t}, v{r+3}")
            a(f"v_and_b32 v{t}, 0xff, v{t}")
            a(f"v_cmp_ne_u32 s[{mb+2*k}:{mb+1+2*k}], 0, v{t}")
        a(f"s_or_b64 s[64:65], s[{mb}:{mb+1}], s[{mb+2}:{mb+3}]")
        for k in range(2, len(loads)):
            a(f"s_or_b64 s[64:65], s[64:65], s[{mb+2*k}:{mb+1+2*k}]")
        a(f"s_cbranch_scc1 L_{tag}")
        a(f"L_{tag}_ok:")
        a("s_mov_b64 exec, -1")
    def swap_add(regs, tmp, sw):
        for i, r in enumerate(regs): a(f"v_mov_b32 v{tmp+i}, v{r}")
        for i, r in enumerate(regs): a(f"{sw} v{tmp+i}, v{r}")
        for i, r in enumerate(regs): a(f"v_add_f32 v{r}, v{r}, v{tmp+i}")
    def round4(base):
        a(f"v_cvt_pk_bf16_f32 v{base+1}, v{base}, v{base+1}")
        a(f"v_cvt_pk_bf16_f32 v{base+3}, v{base+2}, v{base+3}")
        a(f"v_lshlrev_b32 v{base}, 16, v{base+1}")
        a(f"v_and_b32 v{base+1}, 0xffff0000, v{base+1}")
        a(f"v_lshlrev_b32 v{base+2}, 16, v{base+3}")
        a(f"v_and_b32 v{base+3}, 0xffff0000, v{base+3}")
    def lds_wait(tag, addr, t, sleep, off=0):
        spin_head(tag)
        if sleep: a(f"s_sleep {sleep}")
        a(f"ds_read_b32 v{t}, v{addr} offset:{off}")
        spin_bail(tag)
        a("s_waitcnt lgkmcnt(0)")
        empty_check([t], t, tag)
    def P(G):
        r = 0
        for k, b in enumerate(gvec):
            if G >> k & 1: r ^= 1 << b
        return r

    a("s_and_b32 s52, s2, 63")
    a("s_lshl_b32 s52, s52, 2")
    a("s_add_u32 s52, s52, 3")
    a("s_lshl_b32 s52, s52, 20")
    a(f"s_lshl_b32 s53, s3, {10 + wbit}")
    a("s_xor_b32 s52, s52, s53")
    gl = list(gx)
    while gl:
        k, b = gl.pop(0)
        nn = 1
        while gl and gl[0] == (k + nn, b + nn):
            gl.pop(0); nn += 1
        a(f"s_bfe_u32 s53, s2, {k | (nn << 16):#x}")
        a(f"s_lshl_b32 s53, s53, {10 + b}")
        a("s_xor_b32 s52, s52, s53")
    a("s_lshl_b32 s53, s57, 18")
    a("s_xor_b32 s52, s52, s53")
    a("s_lshl_b32 s53, s57, 16")
    a("s_xor_b32 s52, s52, s53")
    assert tuple(gvec) == (0,1,5,6,7,8,9)
    RB = 44
    def ringreg(j): return RB + 4 * (j % ring)
    def ld_text(j):
        sr = 12 if j < n else 16
        p = P(j % n)
        r = ringreg(j)
        if p:
            a(f"s_xor_b32 s53, s52, {p << 10}")
            so = 53
        else:
            so = 52
        a(f"buffer_load_dwordx4 v[{r}:{r+3}], v1, s[{sr}:{sr+3}], s{so} offen {kv_aux}")
    a("s_waitcnt lgkmcnt(0)")
    for j in range(D0): ld_text(j)
    srd(16, 16, 0x10000000)
    epoch_load()
    a("s_mov_b32 s64, 0xcccccccc"); a("s_mov_b32 s65, 0xcccccccc")
    a("s_mov_b32 s66, 0xaaaaaaaa"); a("s_mov_b32 s67, 0xaaaaaaaa")
    masks(12, 13)
    a("v_and_b32 v12, 15, v0")
    a("v_lshlrev_b32 v12, 4, v12")
    a(f"v_add_u32 v12, {L_QB}, v12")
    a("s_barrier")
    for j in range(D0, N0):
        a(f"s_waitcnt vmcnt({D0-1})")
        ld_text(j)
    a(f"s_cmp_lt_u32 s2, {NMLP}")
    a("s_cbranch_scc1 L_kv_m")
    a("s_cmp_eq_u32 s57, 1")
    a("s_cbranch_scc1 L_kv_r")

    def stage_done(sr=3):
        a(f"s_lshl_b32 s73, s{sr}, 2")
        a(f"s_add_u32 s73, s73, {L_FL}")
        a("v_mov_b32 v26, s73")
        a("v_mov_b32 v27, 0")
        a("ds_write_b32 v26, v27")

    def kv_path(role, Dx, bfrom, early):
        st = dict(iss=N0, landed=N0 - D0 - 1, cons=0)
        order = list(range(N0))
        NT = 2 * n
        stage = []
        def depth(): return Dx if st["cons"] >= bfrom else D
        def ld_kv():
            j = st["iss"]
            ld_text(j)
            st["iss"] += 1
            order.append(j)
        def wait_kv(j):
            if j <= st["landed"]: return
            a(f"s_waitcnt vmcnt({len(order) - 1 - order.index(j)})")
            st["landed"] = j
        if role == "m":
            srd(44, 48, 1024); srd(48, 80, 2048); srd(32, 56, 1409024); srd(36, 64, 1409024); srd(40, 72, 1409024)
        if role == "r":
            srd(20, 32, 0x400000)
        while st["iss"] < NPRE:
            d = depth()
            if st["iss"] - 1 - st["landed"] >= d:
                wait_kv(st["iss"] - d)
            ld_kv()
        stampat(1)
        spin_head("wq" + role)
        a("ds_read_b128 v[8:11], v12")
        spin_bail("wq" + role)
        a("s_waitcnt lgkmcnt(0)")
        empty_check([8, 9, 10, 11], 13, "wq" + role)
        a("s_waitcnt lgkmcnt(0)")
        if role != "p": epoch_calc()
        stampat(2)
        def reduce_scores(dst):
            for i in range(8):
                a(f"v_add_f32_dpp v{24+i}, v{24+i}, v{24+i} row_ror:8 row_mask:0xf bank_mask:0x3")
            for i in range(8):
                a(f"v_add_f32_dpp v{24+i}, v{32+i}, v{32+i} row_ror:8 row_mask:0xf bank_mask:0xc")
            for i in range(4):
                a(f"v_add_f32_dpp v{24+i}, v{24+i}, v{24+i} row_half_mirror row_mask:0xf bank_mask:0x5")
            for i in range(4):
                a(f"v_add_f32_dpp v{24+i}, v{28+i}, v{28+i} row_half_mirror row_mask:0xf bank_mask:0xa")
            dpp_steps([24, 25, 26, 27], ("quad_perm:[2,3,0,1]",))
            a("v_cndmask_b32 v24, v24, v26, s[64:65]")
            a("v_cndmask_b32 v25, v25, v27, s[64:65]")
            dpp_steps([24, 25], ("quad_perm:[1,0,3,2]",))
            a(f"v_cndmask_b32 v{dst}, v24, v25, s[66:67]")
            if not noround: bf16r(dst)
            a(f"v_mul_f32 v{dst}, {SCALE:#x}, v{dst}")
            if not noround: bf16r(dst)
        def softmax_part():
            stampat(3)
            a("v_max_f32 v24, v2, v3")
            wave_reduce([24], "v_max_f32")
            a("v_readlane_b32 s72, v24, 63")
            for r in (2, 3): a(f"v_subrev_f32 v{r}, s72, v{r}")
            for r in (2, 3): a(f"v_mul_f32 v{r}, {LOG2E:#x}, v{r}")
            for r in (2, 3): a(f"v_exp_f32 v{r}, v{r}")
            a("v_add_f32 v25, v2, v3")
            for r in (2, 3): a(f"v_cvt_pk_bf16_f32 v{r}, v{r}, v{r}")
            wave_reduce([25])
            a("s_lshl_b32 s73, s3, 3")
            a(f"s_add_u32 s73, s73, {L_MB}")
            a("v_mov_b32 v26, s73")
            a("s_mov_b32 exec_lo, 0")
            a("s_mov_b32 exec_hi, 0x80000000")
            a("ds_write_b64 v26, v[24:25]")
            a("s_mov_b64 exec, -1")
            a("s_lshl_b32 s73, s3, 9")
            a(f"s_add_u32 s73, s73, {L_OP}")
            a("v_and_b32 v27, 15, v0")
            a("v_lshrrev_b32 v28, 4, v0")
            a("v_lshlrev_b32 v29, 5, v27")
            a("v_lshl_add_u32 v29, v28, 4, v29")
            a("v_add_u32 v29, s73, v29")
            stampat(4)
        def issue_stage():
            m0, voff, sr, so, aux = stage.pop(0)
            a(f"s_add_u32 m0, {m0}")
            a(f"s_add_u32 s53, {so}")
            if not no_stage:
                a(f"buffer_load_dwordx4 v{voff}, s[{sr}:{sr+3}], s53 offen {aux} lds")
                order.append("st")
        ins = {"r": ins_r, "m": ins_m}.get(role)
        ins = list(ins) if ins else []
        def inflight():
            pos = order.index(st["landed"])
            return sum(1 for x in order[pos+1:] if isinstance(x, int) or x == "st")
        def pump(extra=0):
            while st["iss"] < NT and inflight() < depth() + extra and st["iss"] - ring < st["cons"]:
                if ins and ins[0] <= st["iss"] and stage:
                    ins.pop(0)
                    issue_stage()
                    continue
                ld_kv()
            if st["iss"] == NT and stage and st["cons"] >= NT - early:
                issue_stage()
        def role_prep():
            if role == "r":
                a("s_and_b32 s76, s2, 7")
                a("s_lshr_b32 s77, s3, 1")
                a("s_lshl_b32 s78, s77, 3")
                a("s_add_u32 s78, s78, s76")
                a("s_lshl_b32 s68, s78, 17")
                a("s_lshl_b32 s78, s78, 1")
                a("s_and_b32 s73, s3, 1")
                a("s_add_u32 s78, s78, s73")
                a("s_lshl_b32 s79, s78, 9")
                a(f"s_add_u32 s79, s79, {WS_MLX}")
                a("s_lshl_b32 s78, s78, 11")
                a(f"s_add_u32 s78, s78, {WS_OP}")
                a("s_lshl_b32 s69, s73, 16")
                a("s_add_u32 s68, s68, s69")
                a("s_bfe_u32 s69, s2, 0x30003")
                a("s_lshl_b32 s69, s69, 7")
                a("s_add_u32 s68, s68, s69")
                a("s_lshl_b32 s69, s3, 13")
                a("v_and_b32 v31, 3, v0")
                a("v_lshlrev_b32 v31, 7, v31")
                a(f"s_mul_i32 s73, s73, {APITCH}")
                a("s_lshl_b32 s77, s77, 8")
                a("s_add_u32 s73, s73, s77")
                a(f"s_add_u32 s73, s73, {L_A}")
                a("v_and_b32 v30, 31, v0")
                a("v_lshlrev_b32 v30, 3, v30")
                a("v_lshrrev_b32 v32, 5, v0")
                a("v_lshl_add_u32 v30, v32, 2, v30")
                a("v_add_u32 v30, s73, v30")
                a("s_getreg_b32 s74, hwreg(HW_REG_XCC_ID, 0, 4)")
                a("v_lshrrev_b32 v32, 3, v0")
                a("v_and_b32 v33, 7, v0")
                a("v_lshlrev_b32 v32, 10, v32")
                a("v_lshl_or_b32 v32, v33, 4, v32")
                for i in range(8):
                    stage.append((f"s69, {1024*i}", 32, 20, f"s68, {8192*i}", wo_aux))
            if role == "m":
                a("v_bfe_u32 v38, v0, 2, 1")
                a("v_bfe_u32 v31, v0, 3, 2")
                a("v_lshlrev_b32 v30, 5, v31")
                a("v_and_b32 v31, 3, v0")
                a("v_lshl_add_u32 v30, v31, 3, v30")
                a("s_lshl_b32 s73, s3, 7")
                a("v_add_u32 v30, s73, v30")
                a("v_lshrrev_b32 v39, 5, v0")
                a("v_lshl_add_u32 v30, v39, 2, v30")
                a("v_lshl_add_u32 v39, v38, 10, v30")
                a("buffer_load_dword v36, v39, s[4:7], 0 offen")
                a("v_lshlrev_b32 v39, 10, v38")
                a("buffer_load_ushort v41, v39, s[4:7], 0 offen")
                a("buffer_load_dwordx4 v[32:35], v1, s[44:47], 0 offen")
                order.extend(["x", "c", "wr"])
                a(f"v_mul_u32_u24 v39, {APITCH}, v38")
                a("v_add_u32 v30, v30, v39")
                a(f"v_add_u32 v30, {L_A}, v30")
                a("v_lshrrev_b32 v39, 4, v0")
                a("v_lshlrev_b32 v39, 3, v39")
                a("v_lshl_add_u32 v39, v38, 8, v39")
                a("s_lshl_b32 s73, s3, 5")
                a(f"s_add_u32 s73, s73, {L_ST}")
                a("v_add_u32 v39, s73, v39")
                a("s_lshl_b32 s78, s3, 12")
                a(f"s_add_u32 s78, s78, {WS_ZX}")
                if zcopy:
                    a("s_getreg_b32 s73, hwreg(HW_REG_XCC_ID, 0, 3)")
                    a("s_lshl_b32 s73, s73, 15")
                    a("s_add_u32 s78, s78, s73")
                a("v_lshrrev_b32 v42, 2, v0")
                a("v_mul_u32_u24 v42, 2752, v42")
                a("v_lshl_add_u32 v42, v31, 4, v42")
                if fmap:
                    a("s_and_b32 s70, s2, 7")
                    a("s_min_u32 s71, s70, 3")
                    a("s_mul_i32 s70, s70, 5")
                    a("s_add_u32 s70, s70, s71")
                    a("s_lshr_b32 s71, s2, 3")
                    a("s_add_u32 s70, s70, s71")
                else:
                    a("s_mov_b32 s70, s2")
                if falt:
                    a("s_and_b32 s74, s70, 1")
                    a("s_lshl_b32 s74, s74, 2")
                    a("s_xor_b32 s74, s74, s3")
                else:
                    a("s_mov_b32 s74, s3")
                a("s_mul_i32 s68, s74, 176128")
                a("s_lshl_b32 s69, s70, 6")
                a("s_add_u32 s68, s68, s69")
                a("s_lshl_b32 s69, s74, 12")
                a("s_lshl_b32 s70, s70, 15")
                a("s_add_u32 s70, s70, s69")
                a(f"s_mul_i32 s71, s74, {4*DNP}")
                for i in range(4):
                    stage.append((f"s69, {1024*i}", 42, 32, f"s68, {44032*i}", mlp_aux))
                    stage.append((f"s69, {L_UP + 1024*i}", 42, 36, f"s68, {44032*i}", mlp_aux))
                for i in range(4):
                    stage.append((f"s71, {L_DN + DNP*i}", 1, 40, f"s70, {1024*i}", dn_aux))
        def consume(j):
            r = ringreg(j)
            st["cons"] = j
            if j < n:
                i = j & 15
                if i == 0:
                    for k in range(16):
                        a(f"v_mov_b32 v{24+k}, 0")
                wait_kv(j)
                pump(1 if i == 15 else 0)
                for k in range(4):
                    a(f"v_dot2c_f32_bf16 v{24+i}, v{r+k}, v{8+k}")
                if i == 15: reduce_scores(2 + (j >> 4))
                if j == n - 1: softmax_part()
            else:
                jj = j - n
                i = jj & 15
                pp = 2 + (jj >> 4)
                t = 12 + 4 * (i & 1)
                for k in range(4):
                    a(f"v_and_b32_dpp v{t+k}, v{pp}, v{4+k} row_newbcast:{i} row_mask:0xf bank_mask:0xf")
                pj = order.index(j)
                if pj > 0 and order[pj-1] == "st" and j > st["landed"] and st["iss"] < NT:
                    a(f"s_waitcnt vmcnt({len(order) - pj})")
                    pump(1)
                wait_kv(j)
                if j < NT - 1: pump()
                if jj > prep_at and not stage and "st" in order and not st.get("fl") and max(i for i, x in enumerate(order) if x == "st") < order.index(j):
                    stage_done(74 if role == "m" else 3); st["fl"] = True
                c = "0" if jj == 0 else "v[20:23]"
                a(f"v_mfma_f32_16x16x32_bf16 v[20:23], v[{t}:{t+3}], v[{r}:{r+3}], {c}")
                if jj == prep_at: role_prep()
                if jj == 20 and role == "r":
                    a("buffer_load_dwordx4 v[40:43], v31, s[24:27], s79 offen sc1")
                    order.append("ml")
        for j in range(NT):
            if j <= st["landed"] and j % CU == 0 and st["iss"] < NT and st["iss"] - ring < j:
                st["cons"] = j
                wait_kv(st["landed"] + 1)
                pump()
            consume(j)
        a("s_mov_b32 exec_hi, 0")
        a("ds_write_b128 v29, v[20:23]")
        a("s_mov_b64 exec, -1")
        stampat(5)
        keep = 4 if role == "m" else 0
        while len(stage) > keep: issue_stage()
        return lambda: [issue_stage() for _ in range(len(stage))]
    kv_path("p", D, 0, 0)
    a("s_branch L_fin")

    a("L_kv_r:")
    kv_path("r", Dr, br_from, early_r)
    if warm: a(";@warm rk L_wret")
    a(f"s_mov_b32 s75, {SPIN}")
    a("s_branch L_pL_chk")
    a("L_pL:")
    a("buffer_load_dwordx4 v[40:43], v31, s[24:27], s79 offen sc1")
    spin_bail("pL")
    a("s_waitcnt vmcnt(0)")
    a("L_pL_chk:")
    a("v_xor_b32 v54, s29, v42")
    a("v_xor_b32 v55, s29, v43")
    a("v_lshrrev_b32 v56, 4, v55")
    a("v_or_b32 v54, v54, v56")
    a("v_cmp_ne_u32 vcc, 0, v54")
    a("s_cbranch_vccnz L_pL")
    a("L_pL_ok:")
    a("v_mov_b32 v52, v40")
    a("v_mov_b32 v53, v41")
    a("v_mov_b32 v56, v52")
    dpp_steps([56], ("quad_perm:[1,0,3,2]", "quad_perm:[2,3,0,1]"), "v_max_f32")
    a("v_sub_f32 v52, v52, v56")
    a(f"v_mul_f32 v52, {LOG2E:#x}, v52")
    a("v_exp_f32 v52, v52")
    a("v_mul_f32 v53, v53, v52")
    dpp_steps([53], ("quad_perm:[1,0,3,2]", "quad_perm:[2,3,0,1]"))
    a("v_rcp_f32 v53, v53")
    a("v_mul_f32 v52, v52, v53")
    a(f"v_mov_b32 v54, {WS_OS - WS_OP}")
    if local:
        a("v_cmp_ne_u32 vcc, s74, v55")
        a("v_cndmask_b32 v55, 0, v54, vcc")
    else:
        a("v_mov_b32 v55, v54")
    for src, d0 in ((52, 56), (55, 58)):
        a(f"v_mov_b32_dpp v{d0}, v{src} quad_perm:[0,0,0,0] row_mask:0x3 bank_mask:0xf")
        a(f"v_mov_b32_dpp v{d0+1}, v{src} quad_perm:[2,2,2,2] row_mask:0x3 bank_mask:0xf")
        a(f"v_mov_b32_dpp v{d0}, v{src} quad_perm:[1,1,1,1] row_mask:0xc bank_mask:0xf")
        a(f"v_mov_b32_dpp v{d0+1}, v{src} quad_perm:[3,3,3,3] row_mask:0xc bank_mask:0xf")
    a("v_add_u32 v58, v58, v1")
    a("v_add_u32 v59, v59, v1")
    a("s_lshl_b32 s73, s3, 2")
    a(f"s_add_u32 s73, s73, {L_FL}")
    a("v_mov_b32 v26, s73")
    a("v_mov_b32 v27, 0")
    spin_head("pA")
    a("buffer_load_dwordx4 v[44:47], v58, s[24:27], s78 offen sc1")
    a("buffer_load_dwordx4 v[48:51], v59, s[24:27], s78 offen offset:1024 sc1")
    a(f"s_cmp_lg_u32 s75, {SPIN - 400}")
    a("s_cbranch_scc1 L_pA_nf")
    a("v_add_u32 v58, v54, v1")
    a("v_add_u32 v59, v54, v1")
    a("L_pA_nf:")
    spin_bail("pA")
    a("s_waitcnt vmcnt(2)")
    a("ds_write_b32 v26, v27")
    a("s_waitcnt vmcnt(0)")
    untag_check(list(range(44, 52)), 60, "pA")
    stampat(6)
    for r in range(4): a(f"v_mul_f32 v{44+r}, v{44+r}, v56")
    for r in range(4): a(f"v_fmac_f32 v{44+r}, v{48+r}, v57")
    a("v_permlane32_swap_b32 v44, v46")
    a("v_permlane32_swap_b32 v45, v47")
    a("v_add_f32 v44, v44, v46")
    a("v_add_f32 v45, v45, v47")
    a("v_cvt_pk_bf16_f32 v44, v44, v45")
    a("ds_write_b32 v30, v44")
    a("s_waitcnt lgkmcnt(0)")
    a("s_barrier")
    if warm: a(";@endwarm")
    stampat(7)
    a("s_mov_b64 exec, -1")
    a("s_branch L_fin")

    a("L_kv_m:")
    rest = kv_path("m", Dm, bm_from, early_m)
    unpack(36, 64, 1)
    a("v_lshlrev_b32 v41, 16, v41")
    a(f"s_waitcnt vmcnt({dn_lead})")
    rest()
    a(f"s_waitcnt vmcnt({0 if no_stage else 4})")
    stage_done(74)
    stampat(9)
    if warm: a(";@warm mk L_wret")
    a("s_mov_b64 exec, 0xff")
    spin_head("pB0")
    if bsleep: a(f"s_sleep {bsleep}")
    a("buffer_load_dwordx4 v[44:47], v1, s[24:27], s78 offen sc1")
    spin_bail("pB0")
    a("s_waitcnt vmcnt(1)")
    a(f"ds_write_b32 v26, v27 offset:{L_FD - L_FL}")
    a("s_waitcnt vmcnt(0)")
    untag_check([44, 45, 46, 47], 60, "pB0")
    a("s_mov_b64 exec, -1")
    if masked:
        masked_poll("pB", [(44 + 4*k, f"buffer_load_dwordx4 v[{44+4*k}:{47+4*k}], v1, s[24:27], s78 offen offset:{1024*k} sc1") for k in range(4)], 60)
    else:
        spin_head("pB")
        for k in range(4):
            a(f"buffer_load_dwordx4 v[{44+4*k}:{47+4*k}], v1, s[24:27], s78 offen offset:{1024*k} sc1")
        spin_bail("pB")
        a("s_waitcnt vmcnt(0)")
        untag_check(list(range(44, 60)), 60, "pB")
    stampat(6)
    for r in range(4):
        a(f"v_add_f32 v{44+r}, v{44+r}, v{48+r}")
        a(f"v_add_f32 v{52+r}, v{52+r}, v{56+r}")
    for r in range(4): a(f"v_add_f32 v{44+r}, v{44+r}, v{52+r}")
    a("v_permlane32_swap_b32 v44, v46")
    a("v_permlane32_swap_b32 v45, v47")
    a("v_add_f32 v44, v44, v64")
    a("v_add_f32 v45, v45, v65")
    a("v_add_f32 v44, v44, v46")
    a("v_add_f32 v45, v45, v47")
    a("v_cvt_pk_bf16_f32 v48, v44, v45")
    a("ds_write_b32 v30, v48")
    unpack(48, 44, 1)
    a("v_sub_f32 v44, v44, v41")
    a("v_sub_f32 v45, v45, v41")
    a("v_mul_f32 v51, v44, v44")
    a("v_add_f32 v50, v44, v45")
    a("v_fmac_f32 v51, v45, v45")
    dpp_steps([50, 51], ("quad_perm:[1,0,3,2]", "quad_perm:[2,3,0,1]", "row_ror:8"))
    a("ds_write_b64 v39, v[50:51]")
    a("s_waitcnt lgkmcnt(0)")
    a("s_barrier")
    stampat(7)
    a("s_cmp_ge_u32 s3, 2")
    a("s_cbranch_scc1 L_fin")
    a("s_cmp_ge_u32 s2, 32")
    a("s_cbranch_scc1 L_fin")
    a(f"s_mul_i32 s73, s3, {APITCH}")
    a(f"s_add_u32 s73, s73, {L_A}")
    a("v_add_u32 v52, s73, v1")
    a("ds_read_b128 v[96:99], v52")
    a("v_lshrrev_b32 v40, 2, v0")
    a("v_and_b32 v43, 3, v0")
    a("v_lshlrev_b32 v44, 7, v40")
    a("v_lshl_or_b32 v44, v43, 4, v44")
    a("s_mul_i32 s78, s2, 5504")
    a("s_lshl_b32 s73, s3, 6")
    a("s_add_u32 s78, s78, s73")
    a(f"s_add_u32 s78, s78, {WS_Y}")
    a("s_add_u32 s79, s78, 2048")
    a("s_add_u32 s77, s78, 4096")
    a("s_lshl_b32 s74, s2, 5")
    a("s_lshl_b32 s73, s3, 4")
    a("s_add_u32 s76, s74, s73")
    a("v_lshlrev_b32 v45, 2, v43")
    a("v_lshrrev_b32 v47, 5, v0")
    a("v_lshl_add_u32 v45, v47, 1, v45")
    a("v_bfe_u32 v47, v0, 4, 1")
    a(f"v_mul_u32_u24 v46, {APITCH}, v47")
    a("v_add_u32 v46, v46, v45")
    a(f"s_add_u32 s73, s76, {L_A}")
    a("v_add_u32 v46, s73, v46")
    a("ds_read_u16 v50, v46")
    a("v_lshl_add_u32 v45, v47, 10, v45")
    a("v_lshlrev_b32 v51, 4, v47")
    a(f"v_add_u32 v51, {L_SG}, v51")
    a("s_waitcnt lgkmcnt(0)")
    unpack(96, 100)
    ln_sums(100, 108, 68, 69, 70)
    a("v_mov_b32 v124, s69")
    a("v_mov_b32 v125, s70")
    ln_finish("s68", 124, 125, 108)
    ln_apply(100, 108, 124, 125)
    for k in range(4):
        a(f"v_cvt_pk_bf16_f32 v{120+k}, v{108+2*k}, v{109+2*k}")
    if warm: a(";@endwarm")
    if warm: a(";@warm mk2 L_wret")
    a("v_mov_b32 v126, 0")
    for k in range(4):
        a(f"v_dot2c_f32_bf16 v126, v{120+k}, v{32+k}")
    wave_reduce([126])
    a("v_readlane_b32 s73, v126, 63")
    a("v_mov_b32 v126, s73")
    bf16r(126)
    a("v_mul_f32 v126, 0xbfb8aa3b, v126")
    a("v_exp_f32 v126, v126")
    a("v_add_f32 v126, 1.0, v126")
    a("v_rcp_f32 v126, v126")
    bf16r(126)
    a("v_mov_b32 v127, 0")
    a("s_lshl_b32 s73, s3, 4")
    a(f"s_add_u32 s73, s73, {L_SG}")
    a("v_mov_b32 v46, s73")
    a("ds_write_b128 v46, v[124:127]")
    a("v_lshlrev_b32 v104, 16, v50")
    for r in range(4): a(f"v_mov_b32 v{20+r}, 0")
    spin_head("pS")
    a("ds_read_b128 v[112:115], v51")
    spin_bail("pS")
    a("s_waitcnt lgkmcnt(0)")
    empty_check([112, 113, 114], 47, "pS")
    a("v_sub_f32 v100, v104, v112")
    bf16r(100)
    a("v_mul_f32 v100, v100, v113")
    bf16r(100)
    a("v_add_f32 v100, v100, v104")
    a("v_and_b32 v46, 31, v0")
    a("v_lshlrev_b32 v46, 2, v46")
    a(f"v_add_u32 v46, {L_ACT}, v46")
    lds_wait("pT", 46, 47, 0)
    stampat(8)
    if cdelay: a(f"s_sleep {cdelay}")
    spin_head("pC")
    a("buffer_load_dwordx4 v[12:15], v44, s[24:27], s78 offen sc1")
    a("buffer_load_dwordx4 v[16:19], v44, s[24:27], s79 offen sc1")
    a("s_mov_b32 exec_hi, 0xfff")
    a("buffer_load_dwordx4 v[20:23], v44, s[24:27], s77 offen sc1")
    a("s_waitcnt vmcnt(0)")
    for r in range(4): a(f"v_xor_b32 v{20+r}, s{60+r}, v{20+r}")
    a("s_mov_b64 exec, -1")
    spin_bail("pC")
    untag_check(list(range(12, 24)), 24, "pC", pre={20, 21, 22, 23})
    stampat(4)
    for r in range(4): a(f"v_add_f32 v{12+r}, v{12+r}, v{16+r}")
    for r in range(4): a(f"v_add_f32 v{12+r}, v{12+r}, v{20+r}")
    a("v_permlane32_swap_b32 v12, v14")
    a("v_permlane32_swap_b32 v13, v15")
    a("v_add_f32 v12, v12, v14")
    a("v_add_f32 v13, v13, v15")
    a("v_permlane16_swap_b32 v12, v13")
    a("v_add_f32 v12, v12, v13")
    dpp_steps([12], ("row_ror:4", "row_ror:8"))
    a("v_fmac_f32 v100, v12, v114")
    a("v_cvt_pk_bf16_f32 v12, v100, v100")
    a("s_mov_b32 exec_lo, 0x000f000f")
    a("s_mov_b32 exec_hi, 0x000f000f")
    a("buffer_store_short v12, v45, s[48:51], s76 offen")
    a("s_cmp_lg_u32 s76, 0")
    a("s_cbranch_scc1 L_noep")
    a("s_mov_b64 exec, 1")
    a("v_mov_b32 v14, s29")
    a("buffer_store_dword v14, v45, s[24:27], 0 offen")
    a("L_noep:")
    if warm: a(";@endwarm")
    a("s_mov_b64 exec, -1")
    stampat(3)
    a("s_branch L_fin")

    a("L_aux:")
    if aux_prio: a(f"s_setprio {aux_prio}")
    a("s_sub_u32 s59, s3, 8")
    a("s_and_b32 s55, s2, 31")
    a("s_bfe_u32 s56, s2, 0x10005")
    a("v_lshrrev_b32 v2, 4, v0")
    a("v_and_b32 v3, 15, v0")
    a("s_mov_b32 s10, 0x400000")
    a("s_mov_b32 s11, 0x20000")
    a("v_lshlrev_b32 v8, 18, v2")
    a("v_lshl_or_b32 v8, v3, 4, v8")
    a("s_lshl_b32 s54, s59, 20")
    a("s_lshl_b32 s53, s55, 8")
    a("s_or_b32 s54, s54, s53")
    a("v_lshlrev_b32 v10, 6, v2")
    a("s_lshl_b32 s52, s56, 10")
    a("s_lshl_b32 s53, s59, 8")
    a("s_add_u32 s53, s53, s52")
    a("s_movk_i32 s65, 0x2000")
    for r in range(4): a(f"v_mov_b32 v{12+r}, -1")
    a("s_lshl_b32 s58, s59, 11")
    a(f"s_add_u32 s58, s58, {L_INIT}")
    a("v_add_u32 v9, s58, v1")
    a("ds_write_b128 v9, v[12:15]")
    a("s_cmp_eq_u32 s59, 3")
    a("s_cbranch_scc0 L_i2")
    for r in range(4): a(f"v_mov_b32 v{12+r}, 0")
    a("s_mov_b64 exec, 1")
    a("L_i2:")
    a("ds_write_b128 v9, v[12:15] offset:1024")
    a("s_mov_b64 exec, -1")
    a("s_waitcnt lgkmcnt(0)")
    epoch_load()
    a("s_cmp_eq_u32 s59, 0")
    a("s_cbranch_scc1 L_coop")
    a("s_barrier")
    a(f"v_mov_b32 v12, {L_QB}")
    a("s_waitcnt lgkmcnt(0)")
    epoch_calc()
    spin_head("fw")
    a("s_sleep 4")
    a(f"ds_read2_b32 v[14:15], v12 offset0:0 offset1:{(L_FB - L_QB) // 4}")
    spin_bail("fw")
    a("s_waitcnt lgkmcnt(0)")
    a("v_cmp_ne_u32 vcc, -1, v15")
    a("s_cbranch_vccnz L_fallback")
    a("v_cmp_eq_u32 vcc, -1, v14")
    a("s_cbranch_vccnz L_fw")
    a("L_fw_ok:")
    if warm:
        a("s_mov_b64 exec, 0")
        a("s_cmp_eq_u32 s59, 1")
        a("s_cbranch_scc1 L_w_ct_0")
        a("L_wret1:")
        a(f"s_cmp_lt_u32 s2, {NMLP}")
        a("s_cbranch_scc1 L_wm")
        a("s_cmp_lg_u32 s57, 1")
        a("s_cbranch_scc1 L_wret")
        a("s_cmp_eq_u32 s59, 2")
        a("s_cbranch_scc1 L_w_rk_0")
        a("s_cmp_eq_u32 s59, 3")
        a("s_cbranch_scc1 L_w_ra_0")
        a("s_branch L_wret")
        a("L_wm:")
        a("s_cmp_eq_u32 s59, 1")
        a("s_cbranch_scc1 L_w_ma_0")
        a("s_cmp_eq_u32 s59, 2")
        a("s_cbranch_scc1 L_w_mk_0")
        a("s_branch L_w_mk2_0")
        a("L_wret:")
        a("s_mov_b64 exec, -1")
        stampat(2)
    a("s_branch L_aux4")
    a("L_coop:")
    a("s_lshl_b32 s58, s56, 2")
    a("s_add_u32 s58, s58, s57")
    a("v_lshlrev_b32 v40, 17, v2")
    a("v_lshl_or_b32 v40, v3, 4, v40")
    a("s_lshl_b32 s71, s58, 19")
    a("s_lshl_b32 s72, s55, 8")
    a("s_or_b32 s71, s71, s72")
    a("v_lshrrev_b32 v41, 3, v3")
    a("v_lshlrev_b32 v42, 10, v41")
    a("v_lshl_add_u32 v42, v2, 5, v42")
    a("s_lshl_b32 s72, s58, 7")
    a("buffer_load_dwordx4 v[44:47], v1, s[4:7], 0 offen")
    a("buffer_load_dwordx4 v[48:51], v1, s[4:7], 0 offen offset:1024")
    a("buffer_load_dwordx4 v[52:55], v42, s[4:7], s72 offen")
    a("buffer_load_dwordx4 v[56:59], v42, s[4:7], s72 offen offset:16")
    for i in range(16):
        r = 72 + 4 * i
        a(f"buffer_load_dwordx4 v[{r}:{r+3}], v40, s[8:11], s71 offen {wq_aux}")
        if i < 15: a("s_add_u32 s71, s71, s65")
    a("s_barrier")
    a("v_and_b32 v12, 1, v0")
    a("v_lshlrev_b32 v12, 4, v12")
    a("v_mov_b32 v13, 0xffff")
    a("v_lshlrev_b32 v12, v12, v13")
    a("v_bfe_u32 v13, v0, 1, 2")
    for r in range(4):
        a(f"v_cmp_eq_u32 vcc, {r}, v13")
        a(f"v_cndmask_b32 v{4+r}, 0, v12, vcc")
    a("v_cmp_eq_u32 s[66:67], 1, v41")
    a("s_waitcnt vmcnt(18) lgkmcnt(0)")
    epoch_calc()
    unpack(44, 24)
    unpack(48, 60)
    m0 = len(a.lines)
    ln_sums(24, 12, 68, 69, 70)
    l1 = a.lines[m0:]; del a.lines[m0:]
    ln_sums(60, 32, 76, 77, 78)
    l2 = a.lines[m0:]; del a.lines[m0:]
    for x, y in zip(l1, l2):
        a(x); a(y)
    for k, d in enumerate((60, 61, 62)):
        a(f"v_mov_b32 v{d}, s{68+k}")
        a(f"v_mov_b32 v63, s{76+k}")
        a(f"v_cndmask_b32 v{d}, v{d}, v63, s[66:67]")
    ln_finish("v60", 61, 62, 63)
    a("s_waitcnt vmcnt(16)")
    unpack(52, 24, 8)
    ln_apply(24, 24, 61, 62, 16)
    for i in range(16):
        a(f"v_cvt_pk_bf16_f32 v{24+i}, v{24+i}, v{24+i}")
    for i in range(16):
        t = 12 + 4 * (i & 1)
        for r in range(4):
            a(f"v_and_b32 v{t+r}, v{24+i}, v{4+r}")
        a(f"s_waitcnt vmcnt({15-i})")
        c = "0" if i == 0 else "v[20:23]"
        a(f"v_mfma_f32_16x16x32_bf16 v[20:23], v[{t}:{t+3}], v[{72+4*i}:{75+4*i}], {c}")
    a("v_lshrrev_b32 v40, 5, v0")
    a("v_lshlrev_b32 v40, 12, v40")
    a("v_and_b32 v41, 31, v0")
    a("v_lshl_add_u32 v40, v41, 4, v40")
    a("s_lshl_b32 s71, s55, 13")
    a(f"s_add_u32 s71, s71, {WS_QX}")
    a("s_lshl_b32 s72, s58, 9")
    a("s_add_u32 s72, s72, s71")
    a("v_mov_b32 v12, s31")
    for r in range(4):
        a(f"v_add_u32 v{20+r}, 0x80, v{20+r}")
    for r in range(4):
        a(f"v_and_or_b32 v{20+r}, v{20+r}, v12, s{60+r}")
    if not force_fb:
        a("buffer_store_dwordx4 v[20:23], v40, s[24:27], s72 offen")
    stampat(1)
    a("s_lshl_b32 s72, s56, 12")
    a("s_add_u32 s71, s71, s72")
    a("v_and_b32 v41, 1, v2")
    a("v_lshlrev_b32 v41, 3, v41")
    a("v_lshl_add_u32 v41, v3, 4, v41")
    a(f"v_add_u32 v41, {L_QB}, v41")
    a(f"s_movk_i32 s75, {qtries}")
    a("L_pX:")
    if qsleep: a(f"s_sleep {qsleep}")
    for k in range(4):
        a(f"buffer_load_dwordx4 v[{44+4*k}:{47+4*k}], v1, s[24:27], s71 offen offset:{1024*k} sc1")
    a("s_sub_u32 s75, s75, 1")
    a("s_cbranch_scc1 L_giveup")
    a("s_waitcnt vmcnt(0)")
    untag_check(list(range(44, 60)), 60, "pX")
    for r in range(4):
        a(f"v_add_f32 v{44+r}, v{44+r}, v{48+r}")
        a(f"v_add_f32 v{52+r}, v{52+r}, v{56+r}")
    for r in range(4): a(f"v_add_f32 v{44+r}, v{44+r}, v{52+r}")
    swap_add([44, 45, 46, 47], 48, "v_permlane32_swap_b32")
    a("v_cvt_pk_bf16_f32 v44, v44, v45")
    a("v_cvt_pk_bf16_f32 v45, v46, v47")
    a("ds_write_b64 v41, v[44:45]")
    a("v_lshlrev_b32 v8, 3, v0")
    a(f"v_add_u32 v11, {L_OP}, v8")
    a("s_branch L_qdone")
    a("L_giveup:")
    a(f"v_mov_b32 v12, {L_FB}")
    a("v_mov_b32 v13, 1")
    a("ds_write_b32 v12, v13")
    a("s_waitcnt vmcnt(0)")
    a("L_fallback:")
    a("buffer_load_dwordx4 v[20:23], v1, s[4:7], s52 offen")
    for k in range(4):
        a(f"buffer_load_dwordx4 v[{56+4*k}:{59+4*k}], v10, s[4:7], s53 offen offset:{16*k}")
    QR = 24
    q = dict(iss=0, landed=-1)
    def qreg(i): return 72 + 4 * (i % QR)
    def ld_wq():
        i = q["iss"]
        r = qreg(i)
        a(f"buffer_load_dwordx4 v[{r}:{r+3}], v8, s[8:11], s54 offen {wq_aux}")
        if i < 31: a("s_add_u32 s54, s54, s65")
        q["iss"] += 1
    def wait_wq(i):
        if i <= q["landed"]: return
        a(f"s_waitcnt vmcnt({q['iss'] - 1 - i})")
        q["landed"] = i
    for i in range(DQ): ld_wq()
    a(f"s_waitcnt vmcnt({DQ})")
    mark = len(a.lines)
    masks(12, 13)
    unpack(20, 24)
    ln_sums(24, 32, 68, 69, 70)
    a("v_mov_b32 v10, s69")
    a("v_mov_b32 v11, s70")
    ln_finish("s68", 10, 11, 9)
    unpack(56, 24, 16)
    ln_apply(24, 24, 10, 11, 32)
    for i in range(32):
        a(f"v_cvt_pk_bf16_f32 v{24+i}, v{24+i}, v{24+i}")
    body = a.lines[mark:]
    del a.lines[mark:]
    for k in range(0, len(body), chunk):
        if q["iss"] < QR:
            wait_wq(q["iss"] - DQ)
            ld_wq()
        for ln in body[k:k+chunk]: a(ln)
    for i in range(32):
        t = 12 + 4 * (i & 1)
        for r in range(4):
            a(f"v_and_b32 v{t+r}, v{24+i}, v{4+r}")
        if i <= q["landed"] and i % 4 == 0 and q["iss"] < 32 and q["iss"] - QR < i:
            wait_wq(q["landed"] + 1)
        wait_wq(i)
        while q["iss"] < 32 and q["iss"] - 1 - q["landed"] < DQ and q["iss"] - QR < i: ld_wq()
        c = "0" if i == 0 else "v[20:23]"
        a(f"v_mfma_f32_16x16x32_bf16 v[20:23], v[{t}:{t+3}], v[{qreg(i)}:{qreg(i)+3}], {c}")
    assert q["iss"] == 32
    a("s_lshl_b32 s52, s59, 9")
    a(f"s_add_u32 s52, s52, {L_QP}")
    a("v_lshlrev_b32 v8, 5, v3")
    a("v_lshl_add_u32 v8, v2, 4, v8")
    a("v_add_u32 v8, s52, v8")
    a("s_mov_b32 exec_hi, 0")
    a("ds_write_b128 v8, v[20:23]")
    a("s_mov_b64 exec, -1")
    a("s_cmp_lg_u32 s59, 0")
    a("s_cbranch_scc1 L_aux4")
    a("v_lshlrev_b32 v8, 3, v0")
    a(f"v_add_u32 v11, {L_OP}, v8")
    a("v_lshlrev_b32 v9, 2, v0")
    a(f"v_add_u32 v10, {L_QB}, v9")
    spin_head("pQ")
    for w in range(4):
        a(f"ds_read_b64 v[{12+2*w}:{13+2*w}], v11 offset:{L_QP - L_OP + 512*w}")
    spin_bail("pQ")
    a("s_waitcnt lgkmcnt(0)")
    empty_check(list(range(12, 20)), 20, "pQ")
    for w in range(1, 4):
        a(f"v_add_f32 v12, v12, v{12+2*w}")
        a(f"v_add_f32 v13, v13, v{13+2*w}")
    a("v_cvt_pk_bf16_f32 v12, v12, v13")
    a("ds_write_b32 v10, v12")
    a("L_qdone:")
    stampat(2)
    a("v_and_b32 v9, 7, v0")
    a("v_lshlrev_b32 v9, 3, v9")
    a(f"v_add_u32 v9, {L_MB}, v9")
    spin_head("pM")
    a("s_sleep 4")
    a("ds_read_b64 v[12:13], v9")
    spin_bail("pM")
    a("s_waitcnt lgkmcnt(0)")
    empty_check([12, 13], 14, "pM")
    oct_ = ("quad_perm:[1,0,3,2]", "quad_perm:[2,3,0,1]", "row_half_mirror")
    a("v_mov_b32 v16, v12")
    dpp_steps([16], oct_, "v_max_f32")
    a("v_sub_f32 v14, v12, v16")
    a(f"v_mul_f32 v14, {LOG2E:#x}, v14")
    a("v_exp_f32 v14, v14")
    a("v_mul_f32 v17, v13, v14")
    dpp_steps([17], oct_)
    a("s_getreg_b32 s53, hwreg(HW_REG_XCC_ID, 0, 4)")
    a("s_xor_b32 s53, s53, s29")
    a("v_mov_b32 v18, s29")
    a("v_mov_b32 v19, s53")
    a("s_lshl_b32 s52, s55, 1")
    a("s_add_u32 s52, s52, s56")
    a("s_lshl_b32 s52, s52, 2")
    a("s_add_u32 s52, s52, s57")
    a("s_lshl_b32 s53, s52, 7")
    a(f"s_add_u32 s53, s53, {WS_MLX}")
    a("s_lshl_b32 s52, s52, 9")
    a(f"s_add_u32 s52, s52, {WS_OP}")
    a("s_mov_b64 exec, 1")
    a("buffer_store_dwordx4 v[16:19], v8, s[24:27], s53 offen sc1")
    a("s_mov_b64 exec, -1")
    a(f"s_add_u32 s53, s52, {WS_OS - WS_OP}")
    stampat(3)
    for w in range(8):
        a(f"v_readlane_b32 s{44+w}, v14, {w}")
    a("v_and_b32 v9, 1, v0")
    a("v_lshlrev_b32 v9, 4, v9")
    a("v_lshrrev_b32 v9, v9, s29")
    a("v_bfe_u32 v10, v9, 8, 8")
    a("v_and_b32 v9, 0xff, v9")
    a("s_setprio 2")
    spin_head("pO")
    if osleep: a(f"s_sleep {osleep}")
    for w in range(8):
        a(f"ds_read_b64 v[{12+2*w}:{13+2*w}], v11 offset:{512*w}")
    spin_bail("pO")
    a("s_waitcnt lgkmcnt(0)")
    a("v_max3_u32 v28, v12, v14, v16")
    a("v_max3_u32 v29, v18, v20, v22")
    a("v_max3_u32 v28, v28, v24, v26")
    a("v_max_u32 v28, v28, v29")
    a("v_cmp_eq_u32 vcc, -1, v28")
    a("s_cbranch_vccnz L_pO")
    a("L_pO_ok:")
    if warm: a(";@warm ct L_wret1")
    stampat(5)
    a("v_mul_f32 v12, s44, v12"); a("v_mul_f32 v13, s44, v13")
    a("v_mul_f32 v20, s48, v20"); a("v_mul_f32 v21, s48, v21")
    for w in range(1, 4):
        a(f"v_fmac_f32 v12, s{44+w}, v{12+2*w}"); a(f"v_fmac_f32 v13, s{44+w}, v{13+2*w}")
        a(f"v_fmac_f32 v20, s{48+w}, v{20+2*w}"); a(f"v_fmac_f32 v21, s{48+w}, v{21+2*w}")
    a("v_add_f32 v12, v12, v20"); a("v_add_f32 v13, v13, v21")
    a("v_and_or_b32 v12, v12, s31, v9")
    a("v_and_or_b32 v13, v13, s31, v10")
    if local:
        a("buffer_store_dwordx2 v[12:13], v8, s[24:27], s52 offen")
    a("buffer_store_dwordx2 v[12:13], v8, s[24:27], s53 offen sc1")
    if warm: a(";@endwarm")
    stampat(6)
    a("L_aux4:")
    a(f"s_cmp_lt_u32 s2, {NMLP}")
    a("s_cbranch_scc1 L_aux5")
    a("s_cmp_lg_u32 s57, 1")
    a("s_cbranch_scc1 L_fin")
    a("L_aux5:")
    a("s_setprio 3")
    a("v_lshrrev_b32 v33, 2, v3")
    a("v_lshl_add_u32 v33, v2, 3, v33")
    a("v_and_b32 v34, 3, v0")
    a("v_bfe_u32 v6, v3, 2, 1")
    a(f"v_mul_u32_u24 v6, {APITCH}, v6")
    a("v_lshl_add_u32 v6, v2, 4, v6")
    a(f"v_add_u32 v6, {L_A}, v6")
    a(f"v_mov_b32 v35, {L_FL}")
    def gemm16(acc, filler=()):
        filler = list(filler)
        NB = 11 if acc2 else 12
        for ks in range(NB):
            a(f"ds_read_b128 v[{16+4*ks}:{19+4*ks}], v6 offset:{64*ks}")
        issued = NB
        per = (len(filler) + 13) // 14 if filler else 0
        waited = -1
        for ks in range(16):
            if ks > waited:
                tgt = min(ks + (wgrp - 1 if ks else 0), issued - 1)
                a(f"s_waitcnt lgkmcnt({issued - 1 - tgt})")
                waited = tgt
            ab = 16 + 4 * (ks % NB)
            ac = 60 if (acc2 and ks & 1) else acc
            c = "0" if ks < (2 if acc2 else 1) else f"v[{ac}:{ac+3}]"
            a(f"v_mfma_f32_16x16x32_bf16 v[{ac}:{ac+3}], v[{ab}:{ab+3}], v[{64+4*ks}:{67+4*ks}], {c}")
            if issued < 16:
                a(f"ds_read_b128 v[{ab}:{ab+3}], v6 offset:{64*issued}")
                issued += 1
            for _ in range(per):
                if filler: a(filler.pop(0))
        for ln in filler: a(ln)
        if acc2: a(f"v_add_f32 v{acc}, v{acc}, v60")
    a(f"s_cmp_lt_u32 s2, {NMLP}")
    a("s_cbranch_scc1 L_aux_m")
    a("v_lshlrev_b32 v10, 7, v33")
    a("v_lshl_add_u32 v10, v34, 3, v10")
    a("s_lshl_b32 s52, s59, 5")
    a("v_add_u32 v10, s52, v10")
    a("v_lshlrev_b32 v7, 3, v34")
    a("v_lshrrev_b32 v7, v7, s29")
    a("v_and_b32 v7, 0xff, v7")
    a("v_lshlrev_b32 v5, 2, v0")
    a("s_and_b32 s70, s2, 63")
    a("s_lshl_b32 s70, s70, 2")
    a("s_add_u32 s70, s70, s59")
    a("s_lshl_b32 s70, s70, 7")
    a(f"s_add_u32 s70, s70, {WS_ZX}")
    if zcopy:
        a("v_and_b32 v5, 31, v0")
        a("v_lshlrev_b32 v5, 2, v5")
        a("v_lshrrev_b32 v11, 5, v0")
        a("v_lshl_add_u32 v5, v11, 15, v5")
        for k in range(1, 4):
            a(f"s_add_u32 s{70+k}, s70, {k * 0x10000}")
    for kw in range(8):
        lds_wait(f"fr{kw}", 35, 12, 2 if kw == 0 else 0, off=4*kw)
        for ks in (2*kw, 2*kw+1):
            for hh in range(2):
                d = 64 + 4 * ks + 2 * hh
                a(f"ds_read_b64_tr_b16 v[{d}:{d+1}], v10 offset:{ks*4096 + hh*512}")
    a("s_waitcnt lgkmcnt(0)")
    stampat(7)
    if warm: a(";@warm ra L_wret")
    a("s_barrier")
    gemm16(12)
    if zcopy:
        a("v_and_or_b32 v12, v12, s31, v7")
        for k in range(4):
            a(f"buffer_store_dword v12, v5, s[24:27], s{70+k} offen sc1")
    else:
        a("s_mov_b32 exec_hi, 0")
        a("v_and_or_b32 v12, v12, s31, v7")
        a("buffer_store_dword v12, v5, s[24:27], s70 offen sc1")
        a("s_mov_b64 exec, -1")
    if warm: a(";@endwarm")
    stampat(8)
    a("s_branch L_fin")
    a("L_aux_m:")
    a("v_lshlrev_b32 v10, 6, v33")
    a("v_and_b32 v11, 1, v0")
    a("v_lshl_add_u32 v10, v11, 3, v10")
    a("v_bfe_u32 v11, v0, 1, 1")
    a(f"v_mul_u32_u24 v11, {L_UP}, v11")
    a("v_add_u32 v10, v11, v10")
    a("s_lshl_b32 s52, s59, 4")
    a("v_add_u32 v10, s52, v10")
    a(f"v_mul_u32_u24 v36, {DNP}, v33")
    a("v_lshl_add_u32 v36, v34, 3, v36")
    a("s_lshl_b32 s52, s59, 8")
    a(f"s_add_u32 s52, s52, {L_DN}")
    a("v_add_u32 v36, s52, v36")
    a("v_and_b32 v4, 1, v2")
    a("v_lshlrev_b32 v9, 10, v4")
    a("buffer_load_ushort v165, v9, s[4:7], 0 offen")
    a("v_lshlrev_b32 v166, 8, v4")
    a("v_lshl_add_u32 v166, v3, 4, v166")
    a(f"v_add_u32 v166, {L_ST}, v166")
    a("v_lshlrev_b32 v4, 6, v4")
    a("v_lshl_add_u32 v4, v3, 1, v4")
    a("s_lshl_b32 s52, s59, 4")
    a(f"s_add_u32 s52, s52, {L_ACT}")
    a("v_add_u32 v4, s52, v4")
    a("v_and_b32 v8, 1, v3")
    a("v_lshlrev_b32 v8, 6, v8")
    a("v_lshl_add_u32 v8, v2, 4, v8")
    a(f"v_add_u32 v8, {L_ACT}, v8")
    a(f"v_mov_b32 v11, {L_ZERO}")
    a("v_lshrrev_b32 v9, 2, v3")
    for u in range(4):
        a(f"v_cmp_eq_u32 vcc, {u}, v9")
        a(f"v_cndmask_b32 v{160+u}, v11, v8, vcc")
    a("v_mul_u32_u24 v5, 5504, v2")
    a("v_lshl_add_u32 v5, v3, 3, v5")
    a("s_mul_i32 s52, s59, 44032")
    a("s_lshl_b32 s53, s2, 7")
    a("s_add_u32 s52, s52, s53")
    a(f"s_add_u32 s52, s52, {WS_Y}")
    a("s_add_u32 s53, s52, 22016")
    a("v_and_b32 v7, 1, v0")
    a("v_lshlrev_b32 v7, 4, v7")
    a("v_lshrrev_b32 v7, v7, s29")
    a("v_bfe_u32 v164, v7, 8, 8")
    a("v_and_b32 v7, 0xff, v7")
    for r in range(4): a(f"v_mov_b32 v{40+r}, 0x3f803f80")
    for kw in range(8):
        lds_wait(f"fm{kw}", 35, 12, 2 if kw == 0 else 0, off=4*kw)
        if kw > 0:
            for ks in (2*kw-2, 2*kw-1):
                c = "0" if ks == 0 else "v[44:47]"
                a(f"v_mfma_f32_16x16x32_bf16 v[44:47], v[40:43], v[{64+4*ks}:{67+4*ks}], {c}")
        for ks in (2*kw, 2*kw+1):
            for hh in range(2):
                d = 64 + 4 * ks + 2 * hh
                a(f"ds_read_b64_tr_b16 v[{d}:{d+1}], v10 offset:{ks*2048 + hh*256}")
    a("s_waitcnt lgkmcnt(0) vmcnt(0)")
    for ks in (14, 15):
        a(f"v_mfma_f32_16x16x32_bf16 v[44:47], v[40:43], v[{64+4*ks}:{67+4*ks}], v[44:47]")
    a("v_lshlrev_b32 v165, 16, v165")
    a("v_mov_b32 v167, v44")
    a("v_and_b32 v11, 7, v0")
    a("v_lshlrev_b32 v11, 2, v11")
    a(f"v_add_u32 v11, {L_FD}, v11")
    lds_wait("fd", 11, 12, 0)
    for t in range(8):
        for hh in range(2):
            d = 128 + 4 * t + 2 * hh
            a(f"ds_read_b64_tr_b16 v[{d}:{d+1}], v36 offset:{hh*4*DNP + t*32}")
    a("s_waitcnt lgkmcnt(0)")
    stampat(7)
    if warm: a(";@warm ma L_wret")
    a("s_barrier")
    a("ds_read_b128 v[8:11], v166")
    mark = len(a.lines)
    a("v_add_f32 v8, v8, v10")
    a("v_add_f32 v9, v9, v11")
    dpp_steps([8, 9], ("quad_perm:[1,0,3,2]", "quad_perm:[2,3,0,1]", "row_half_mirror", "row_mirror"))
    ln_finish("v165", 8, 9, 10)
    a("v_and_b32 v166, 31, v0")
    a("v_lshlrev_b32 v166, 2, v166")
    a(f"v_add_u32 v166, {L_ACT}, v166")
    fill = a.lines[mark:]
    del a.lines[mark:]
    gemm16(12, fill)
    a("v_fma_f32 v12, -v8, v167, v12")
    a("v_mul_f32 v12, v12, v9")
    a("v_mul_f32 v13, 0xbfb8aa3b, v12")
    a("v_exp_f32 v13, v13")
    a("v_mul_f32_dpp v14, v12, v12 row_ror:8 row_mask:0xf bank_mask:0xf")
    a("v_add_f32 v13, 1.0, v13")
    a("v_rcp_f32 v13, v13")
    a("v_mul_f32 v13, v14, v13")
    a("v_mov_b32_dpp v14, v13 quad_perm:[1,0,3,2] row_mask:0xf bank_mask:0xf")
    a("v_cvt_pk_bf16_f32 v13, v13, v14")
    a("s_mov_b64 exec, 0x00550055")
    a("ds_write_b32 v4, v13")
    a("s_mov_b64 exec, -1")
    stampat(9)
    spin_head("pG")
    a("ds_read_b32 v32, v166")
    for u in range(4):
        a(f"ds_read_b128 v[{16+4*u}:{19+4*u}], v{160+u}")
    spin_bail("pG")
    a("s_waitcnt lgkmcnt(4)" if not stamps else "s_waitcnt lgkmcnt(0)")
    empty_check([32], 32, "pG")
    for u in range(4):
        a(f"s_waitcnt lgkmcnt({3-u})")
        for hf in range(2):
            acc = 8 + 4 * hf
            t = hf * 4 + u
            c = "0" if u == 0 else f"v[{acc}:{acc+3}]"
            a(f"v_mfma_f32_16x16x32_bf16 v[{acc}:{acc+3}], v[{16+4*u}:{19+4*u}], v[{128+4*t}:{131+4*t}], {c}")
    for hf in range(2):
        r = 8 + 4 * hf
        a(f"v_and_or_b32 v{r}, v{r}, s31, v7")
        a(f"v_and_or_b32 v{r+1}, v{r+1}, s31, v164")
        a(f"buffer_store_dwordx2 v[{r}:{r+1}], v5, s[24:27], s{52+hf} offen sc1")
    if warm: a(";@endwarm")
    stampat(8)

    a("L_fin:")
    if stamps:
        a("s_waitcnt lgkmcnt(0)")
        a("s_mul_i32 s64, s3, 80")
        a(f"s_add_u32 s64, s64, {L_STAMP}")
        a("v_mov_b32 v40, s64")
        a("s_mov_b64 exec, 1")
        for i in range(10):
            a(f"v_mov_b32 v12, s{80+2*i}")
            a(f"v_mov_b32 v13, s{81+2*i}")
            a(f"ds_write_b64 v40, v[12:13] offset:{8*i}")
        a("s_mov_b64 exec, -1")
        a("s_waitcnt lgkmcnt(0)")
        if href:
            a(f"s_cmp_lg_u32 s3, {href[0]}")
            a("s_cbranch_scc1 L_end")
            a("s_cmp_lt_u32 s2, 128")
            a("s_cbranch_scc1 L_end")
            a("L_hold2:")
            a("s_sleep 2")
            a("s_memrealtime s[66:67]")
            a("s_waitcnt lgkmcnt(0)")
            a(f"s_sub_u32 s66, s66, s{80 + 2 * href[1]}")
            a("s_cmp_lt_u32 s66, 3000")
            a("s_cbranch_scc1 L_hold2")
            a("s_branch L_end")
        a("s_cmp_lg_u32 s3, 9")
        a("s_cbranch_scc1 L_end")
        if hold_x is not None:
            a(f"s_cmp_lg_u32 s2, {128 + hold_x}")
            a("s_cbranch_scc1 L_end")
        a("L_hold:")
        a(f"s_sleep {32 if hold_x is None else 2}")
        a("s_memrealtime s[66:67]")
        a("s_waitcnt lgkmcnt(0)")
        a("s_sub_u32 s66, s66, s80")
        a(f"s_cmp_lt_u32 s66, {hold_t}")
        a("s_cbranch_scc1 L_hold")
        a(f"v_add_u32 v40, {L_STAMP}, v1")
        a("ds_read_b128 v[12:15], v40")
        a("s_mul_i32 s64, s2, 1280")
        a(f"s_add_u32 s64, s64, {512<<20}")
        a("v_add_u32 v40, s64, v1")
        a("s_waitcnt lgkmcnt(0)")
        a("global_store_dwordx4 v40, v[12:15], s[24:25]")
    a("L_end:")
    a("s_endpgm")
    a('.section .rodata,"a"')
    a(".p2align 6")
    a(f".amdhsa_kernel {NAME}_kernel")
    a(f"  .amdhsa_next_free_vgpr {NVGPR}")
    a("  .amdhsa_next_free_sgpr 102")
    a(f"  .amdhsa_accum_offset {NVGPR}")
    a("  .amdhsa_group_segment_fixed_size 0")
    a("  .amdhsa_kernarg_size 104")
    a("  .amdhsa_user_sgpr_count 2")
    a("  .amdhsa_user_sgpr_kernarg_segment_ptr 1")
    a("  .amdhsa_system_sgpr_workgroup_id_x 1")
    a(".end_amdhsa_kernel")
    return add_pads(a.finalize(), warm) if warm else a.finalize()

if __name__ == "__main__":
    out = sys.argv[1]
    kw = eval("dict(" + (sys.argv[2] if len(sys.argv) > 2 else "") + ")")
    open(out, "w").write(gen(**kw))
```

```python
import re

def _regs(tok):
    tok = tok.strip()
    tok = re.sub(r"^-|^abs\(|\)$|^\||\|$", "", tok)
    m = re.fullmatch(r"([vsa])(\d+)", tok)
    if m:
        return {(m.group(1), int(m.group(2)))}
    m = re.fullmatch(r"([vsa])\[(\d+):(\d+)\]", tok)
    if m:
        return {(m.group(1), i) for i in range(int(m.group(2)), int(m.group(3)) + 1)}
    if tok == "vcc":
        return {("s", 106), ("s", 107)}
    if tok == "vcc_lo": return {("s", 106)}
    if tok == "vcc_hi": return {("s", 107)}
    if tok == "exec":
        return {("s", 126), ("s", 127)}
    if tok == "exec_lo": return {("s", 126)}
    if tok == "exec_hi": return {("s", 127)}
    if tok == "m0":
        return {("s", 124)}
    return set()

TRANS = ("v_exp_f32", "v_log_f32", "v_rcp_f32", "v_rsq_f32", "v_sqrt_f32", "v_sin_f32", "v_cos_f32")

class Ins:
    def __init__(self, text):
        self.text = text
        t = text.split(";")[0].strip()
        self.label = t.endswith(":")
        self.directive = t.startswith(".")
        self.empty = (t == "")
        parts = t.split(None, 1)
        self.op = parts[0] if parts else ""
        rest = parts[1] if len(parts) > 1 else ""
        ops, depth, cur = [], 0, ""
        for ch in rest:
            if ch == "[": depth += 1
            if ch == "]": depth -= 1
            if ch == "," and depth == 0:
                ops.append(cur.strip()); cur = ""
            else:
                cur += ch
        if cur.strip():
            ops.append(cur.strip())
        self.mods = ""
        if ops:
            sp = ops[-1].split(None, 1)
            ops[-1] = sp[0]
            self.mods = sp[1] if len(sp) > 1 else ""
        self.ops = ops
        op = self.op
        self.valu = op.startswith("v_")
        self.mfma = op.startswith("v_mfma")
        self.dot = op.startswith("v_dot")
        self.trans = any(op.startswith(x) for x in TRANS)
        self.dpp = "_dpp" in op
        self.perm = op.startswith("v_permlane")
        self.rdlane = op.startswith("v_readlane") or op.startswith("v_readfirstlane")
        self.vmem = op.startswith("buffer_") or op.startswith("global_")
        self.ds = op.startswith("ds_")
        self.salu = op.startswith("s_")
        self.wr, self.rd = set(), set()
        R = [_regs(o) for o in ops]
        if self.valu:
            if op.startswith("v_cmp"):
                self.wr = R[0]; self.rd = set().union(*R[1:])
            elif self.perm:
                self.wr = R[0] | R[1]; self.rd = R[0] | R[1]
            elif "_co_" in op:
                self.wr = R[0] | R[1]; self.rd = set().union(*R[2:])
            else:
                self.wr = R[0] if R else set(); self.rd = set().union(*R[1:]) if len(R) > 1 else set()
                if op.startswith("v_fmac") or op.startswith("v_dot2c") or self.dpp or op.startswith("v_writelane"):
                    self.rd |= R[0]
                if op.startswith("v_cndmask") and len(R) == 3:
                    self.rd |= _regs("vcc")
            if self.mfma:
                self.srcC = R[3]; self.srcAB = R[1] | R[2]
        elif self.vmem:
            lds = " lds" in (" " + self.mods) or "load_lds" in op
            if "load" in op and not lds:
                self.wr = R[0]; self.rd = set().union(*R[1:])
            elif "atomic" in op and "sc0" in self.mods and op.startswith("global"):
                self.wr = R[0]; self.rd = set().union(*R[1:])
            elif "atomic" in op and "sc0" in self.mods:
                self.wr = R[0]; self.rd = set().union(*R)
            else:
                self.rd = set().union(*R) if R else set()
            self.ldsdma = lds
            self.widestore = ("store" in op) and ("x3" in op or "x4" in op)
            if self.widestore:
                self.sdata = R[0] if op.startswith("buffer") else R[1]
        elif self.ds:
            if "read" in op or "permute" in op or "swizzle" in op:
                self.wr = R[0]; self.rd = set().union(*R[1:])
            else:
                self.rd = set().union(*R)
        elif self.salu:
            if op.startswith("s_cmp") or op.startswith("s_cbranch") or op.startswith("s_branch") or op in ("s_waitcnt", "s_nop", "s_barrier", "s_endpgm", "s_sleep", "s_setprio") or op.startswith("s_bitcmp"):
                self.rd = set().union(*R) if R else set()
            else:
                self.wr = R[0] if R else set(); self.rd = set().union(*R[1:]) if len(R) > 1 else set()
                if "saveexec" in op:
                    self.wr |= _regs("exec")

    def states(self):
        if self.op == "s_nop":
            return int(self.ops[0], 0) + 1
        return 1

def mfma_passes(op):
    if "16x16x32" in op: return 4
    if "32x32x16" in op: return 8
    raise ValueError(op)

def need(prod, cons):
    n = 0
    V = lambda s: {r for r in s if r[0] in "va"}
    S = lambda s: {r for r in s if r[0] == "s"}
    if prod.valu and not prod.mfma:
        w = V(prod.wr)
        if cons.dpp and cons.valu and (w & cons.rd): n = max(n, 2)
        if cons.perm and (w & cons.rd): n = max(n, 2)
        if cons.rdlane and (w & cons.rd): n = max(n, 1)
        if cons.mfma and (w & cons.rd): n = max(n, 2)
        if prod.trans and cons.valu and not cons.trans and (w & cons.rd): n = max(n, 1)
        if prod.trans and (cons.vmem or cons.ds) and (w & cons.rd): n = max(n, 1)
        if prod.dot:
            if w & (cons.rd | cons.wr):
                same = cons.op.replace("_e32", "") == prod.op.replace("_e32", "")
                if same and cons.dot:
                    ab = set().union(*[_regs(o) for o in cons.ops[1:3]])
                    if w & ab: n = max(n, 3)
                else:
                    n = max(n, 3)
        ws = S(prod.wr)
        if ws:
            if cons.valu and (ws & cons.rd):
                n = max(n, 4 if cons.rdlane or cons.op.startswith("v_writelane") else 2)
            if cons.vmem and (ws & cons.rd): n = max(n, 5)
            if cons.salu and (ws & cons.rd): n = max(n, 1)
        if "sdwa" in prod.op and cons.valu and (w & cons.rd): n = max(n, 1)
    if prod.mfma:
        p = mfma_passes(prod.op)
        d = prod.wr
        if cons.mfma:
            if d & cons.srcAB: n = max(n, {4: 8, 8: 12}[p])
            if d & cons.srcC and not (cons.srcC == d and cons.op == prod.op): n = max(n, {4: 6, 8: 10}[p])
        elif (cons.valu or cons.vmem or cons.ds) and (d & (cons.rd | cons.wr)):
            n = max(n, {4: 8, 8: 12}[p])
        if cons.valu and not cons.mfma and (prod.srcC & cons.wr): n = max(n, {4: 3, 8: 7}[p])
    if prod.vmem and getattr(prod, "widestore", False):
        if (prod.sdata & cons.wr): n = max(n, 2)
    if prod.salu and (("s", 124) in prod.wr) and cons.vmem and getattr(cons, "ldsdma", False): n = max(n, 1)
    return n

class Asm:
    def __init__(self):
        self.lines = []
    def __call__(self, s):
        for ln in s.split("\n"):
            self.lines.append(ln)
    def finalize(self):
        out = []
        hist = []
        for ln in self.lines:
            ins = Ins(ln)
            if ins.empty or ins.directive or ins.label:
                out.append(ln)
                continue
            req = 0
            dist = 0
            for prev in reversed(hist):
                r = need(prev, ins) - dist
                req = max(req, r)
                dist += prev.states()
                if dist > 20: break
            while req > 0:
                k = min(req, 16)
                nop = Ins(f"s_nop {k-1}")
                out.append(f"  s_nop {k-1}")
                hist.append(nop)
                req -= k
            out.append(ln if ln.startswith(" ") else "  " + ln)
            hist.append(ins)
            hist = hist[-24:]
        return "\n".join(out) + "\n"


import subprocess, tempfile, os
def _sizes(text):
    with tempfile.TemporaryDirectory() as d:
        p = os.path.join(d, "a.s"); o = os.path.join(d, "a.o")
        open(p, "w").write(text)
        subprocess.run(["clang", "-x", "assembler", "-target", "amdgcn-amd-amdhsa", "-mcpu=gfx950", "-c", p, "-o", o], check=True)
        out = subprocess.run(["llvm-objdump", "-d", "--mcpu=gfx950", o], capture_output=True, text=True, check=True).stdout
    sz = []
    for ln in out.splitlines():
        m = re.search(r"//\s*[0-9A-F]{12}:((?: [0-9A-F]{8})+)\s*(<.*)?$", ln)
        if m: sz.append(4 * len(m.group(1).split()))
    return sz

def add_pads(text, line=64):
    lines = text.split("\n")
    line0 = line
    names = re.findall(r";@warm (\w+) (\w+)", text)
    pl = []
    for l in lines:
        pl.append(l)
        if ";@warm " in l:
            pl.append("L_w_" + l.split()[1] + "_0:")
    prov = "\n".join(pl)
    sz = _sizes(prov)
    out, addr, k = [], 0, 0
    cur = None
    risky = False
    for l in lines:
        m = re.match(r"\s*;@warm (\w+) (\w+)", l)
        if m:
            cur = dict(name=m.group(1), exit=m.group(2), n=0, blk=-1, last=None)
            line = int(l.split()[3]) if len(l.split()) > 3 else line0
            out.append(l); continue
        if re.match(r"\s*;@endwarm", l):
            out[cur["last"]] = f"  s_cbranch_execz {cur['exit']}"
            cur = None
            out.append(l); continue
        ins = Ins(l)
        if ins.empty or ins.directive or ins.label:
            out.append(l); continue
        if cur is not None and addr // line != cur["blk"] and not risky:
            cur["blk"] = addr // line
            out.append(f"L_w_{cur['name']}_{cur['n']}:")
            out.append(f"  s_cbranch_execz L_w_{cur['name']}_{cur['n']+1}")
            cur["last"] = len(out) - 1
            cur["n"] += 1
            addr += 4
        out.append(l)
        if ("s", 126) in ins.wr or ("s", 127) in ins.wr:
            risky = any(r[0] == "s" for r in ins.rd) or ins.ops[-1] in ("0", "0x0")
        addr += sz[k]; k += 1
    assert k == len(sz), (k, len(sz))
    return "\n".join(out)
```

```python
import sys, json
from asmlib import Asm, add_pads
from gen import HDR, NAME

WS_EP = 0
WS_MLX = 0x1000
WS_OP = 0x9000
WS_OS = 0x29000
WS_ZX = 0x49000
WS_QX = 0x51000
WS_Y = 0x91000
WS_SIZE = WS_Y + 43 * 4096
L_UP = 0x8020
L_DN = 0x10040
DNP = 1056
L_INIT = 0x18800
L_OP = L_INIT
L_QP = L_INIT + 0x1000
L_QB = L_INIT + 0x1800
L_MB = L_INIT + 0x1900
L_FL = L_INIT + 0x1940
L_ACT = L_INIT + 0x1980
L_SG = L_INIT + 0x1A00
L_FB = L_INIT + 0x1A40
L_HF = L_INIT + 0x1A60
L_FD = L_FL + 0x20
L_ZERO = L_INIT + 0x1C00
L_A = L_INIT + 0x1D00
APITCH = 1088
L_ST = L_A + 0x900
L_STAMP = L_ST + 0x200
LDS_SIZE = L_STAMP + 0x400
NMLP = 43
SPIN = 100000
LOG2E = 0x3fb8aa3b
SCALE = 0x3db504f3
NVGPR = 168

def gen(stamps=False, D0=2, N0=4, D=3, Dm=4, Dr=4, NPRE=24, ring=31, DQ=6,
        gvec=(0,1,5,6,7,8,9), wbit=2, gx=((3,0),(4,1),(5,5)), kv_aux="nt", wq_aux="", wo_aux="", mlp_aux="", dn_aux="",
        no_stage=False, CU=4, chunk=24, cdelay=0, local=True, osleep=0, rot_m=8, rot_r=16, c3=96|24,
        bm_from=0, br_from=0, early_m=1, early_r=4, hold_x=None, hold_t=4500, bsleep=2, aux_prio=0, noround=False, zcopy=False, masked=False, ins_r=None, ins_m=None, prep_at=12, qtries=8, qsleep=8, force_fb=False, fmap=True, falt=False, dn_lead=2, href=None, warm=64, acc2=False, wgrp=4, Dp=3, bp_from=64, pf=False, pf_delay=0, pf_cnt=8, yprio=0, yskip=(), maskA=False, heads=False, hdelay=0, phases=None, kvwarm=0, nosent=False, psleep=0):
    a = Asm()
    n = 32
    def stampat(i):
        if stamps:
            a(f"s_memrealtime s[{80+2*i}:{81+2*i}]")

    a(HDR + f"; @launch grid=(256,1,1) block=(768,1,1) lds={LDS_SIZE}")
    a('.amdgcn_target "amdgcn-amd-amdhsa--gfx950"')
    a(".text")
    a(f".globl {NAME}_kernel")
    a(".p2align 8")
    a(f".type {NAME}_kernel,@function")
    a(f"{NAME}_kernel:")
    stampat(0)
    a("s_load_dwordx2 s[12:13], s[0:1], 8")
    a("s_load_dwordx2 s[4:5], s[0:1], 0")
    a("s_load_dwordx2 s[8:9], s[0:1], 24")
    a("s_load_dwordx2 s[24:25], s[0:1], 96")
    if stamps:
        for i in range(1, 10):
            a(f"s_mov_b64 s[{80+2*i}:{81+2*i}], 0")
    a("s_cmp_ge_u32 s2, 256")
    a("s_cbranch_scc1 L_end")
    a("v_lshrrev_b32 v2, 6, v0")
    a("v_and_b32 v0, 63, v0")
    a("v_readfirstlane_b32 s3, v2")
    a("v_lshlrev_b32 v1, 4, v0")
    a("s_mov_b32 s14, 0x10000000")
    a("s_mov_b32 s15, 0x20000")
    a("s_movk_i32 s6, 2048")
    a("s_mov_b32 s7, 0x20000")
    a(f"s_mov_b32 s26, {WS_SIZE}")
    a("s_mov_b32 s27, 0x20000")
    a("s_lshr_b32 s57, s2, 6")
    a("s_cmp_ge_u32 s3, 8")
    a("s_cbranch_scc1 L_aux")

    def epoch_load():
        a("s_load_dword s28, s[24:25], 0")
    def epoch_calc():
        a("s_and_b32 s29, s28, 0x7f7f7f7f")
        a("s_add_u32 s29, s29, 0x07050301")
        a("s_and_b32 s30, s28, 0x80808080")
        a("s_xor_b32 s29, s29, s30")
        for k in range(4):
            a(f"s_bfe_u32 s{60+k}, s29, {(8*k) | (8 << 16):#x}")
        a("s_mov_b32 s31, 0xffffff00")
    def srd(base, off, size):
        a(f"s_load_dwordx2 s[{base}:{base+1}], s[0:1], {off}")
        a(f"s_mov_b32 s{base+2}, {size}")
        a(f"s_mov_b32 s{base+3}, 0x20000")
    def masks(t0, t1):
        a(f"v_and_b32 v{t0}, 1, v0")
        a(f"v_lshlrev_b32 v{t0}, 4, v{t0}")
        a(f"v_mov_b32 v{t1}, 0xffff")
        a(f"v_lshlrev_b32 v{t0}, v{t0}, v{t1}")
        a(f"v_bfe_u32 v{t1}, v0, 1, 3")
        for r in range(4):
            a(f"v_cmp_eq_u32 vcc, {r}, v{t1}")
            a(f"v_cndmask_b32 v{4+r}, 0, v{t0}, vcc")
    def unpack(src, dst, n=4):
        for k in range(n):
            a(f"v_lshlrev_b32 v{dst+2*k}, 16, v{src+k}")
            a(f"v_and_b32 v{dst+2*k+1}, 0xffff0000, v{src+k}")
    def dpp_steps(regs, steps, op="v_add_f32"):
        for m in steps:
            for r in regs:
                a(f"{op}_dpp v{r}, v{r}, v{r} {m} row_mask:0xf bank_mask:0xf")
    def wave_reduce(regs, op="v_add_f32"):
        dpp_steps(regs, ("row_shr:1", "row_shr:2", "row_shr:4", "row_shr:8"), op)
        for r in regs:
            a(f"{op}_dpp v{r}, v{r}, v{r} row_bcast:15 row_mask:0xa bank_mask:0xf")
        for r in regs:
            a(f"{op}_dpp v{r}, v{r}, v{r} row_bcast:31 row_mask:0xc bank_mask:0xf")
    def bf16r(r):
        a(f"v_cvt_pk_bf16_f32 v{r}, v{r}, v{r}")
        a(f"v_lshlrev_b32 v{r}, 16, v{r}")
    def ln_sums(f, t, sc, o1, o2):
        a(f"v_readfirstlane_b32 s{sc}, v{f}")
        for i in range(8):
            a(f"v_subrev_f32 v{t+i}, s{sc}, v{f+i}")
        s1, s2 = t + 8, t + 9
        a(f"v_add_f32 v{s1}, v{t}, v{t+1}")
        a(f"v_mul_f32 v{s2}, v{t}, v{t}")
        a(f"v_fmac_f32 v{s2}, v{t+1}, v{t+1}")
        for i in range(2, 8):
            a(f"v_add_f32 v{s1}, v{s1}, v{t+i}")
            a(f"v_fmac_f32 v{s2}, v{t+i}, v{t+i}")
        wave_reduce([s1, s2])
        a(f"v_readlane_b32 s{o1}, v{s1}, 63")
        a(f"v_readlane_b32 s{o2}, v{s2}, 63")
    def ln_finish(c, mb, rs, t):
        a(f"v_mul_f32 v{mb}, 0x3b000000, v{mb}")
        a(f"v_mul_f32 v{rs}, 0x3b000000, v{rs}")
        a(f"v_fma_f32 v{rs}, -v{mb}, v{mb}, v{rs}")
        a(f"v_add_f32 v{mb}, {c}, v{mb}")
        a(f"v_max_f32 v{rs}, 0, v{rs}")
        a(f"v_cvt_pk_bf16_f32 v{t}, v{mb}, v{rs}")
        a(f"v_lshlrev_b32 v{mb}, 16, v{t}")
        a(f"v_and_b32 v{rs}, 0xffff0000, v{t}")
        a(f"v_add_f32 v{rs}, 0x3727c5ac, v{rs}")
        bf16r(rs)
        a(f"v_sqrt_f32 v{rs}, v{rs}")
        bf16r(rs)
        a(f"v_rcp_f32 v{rs}, v{rs}")
    def ln_apply(f, t, mb, rs, n=8):
        mbs = mb if isinstance(mb, (list, tuple)) else [mb] * n
        rss = rs if isinstance(rs, (list, tuple)) else [rs] * n
        for i in range(n):
            a(f"v_sub_f32 v{t+i}, v{f+i}, v{mbs[i]}")
        for k in range(n // 2):
            a(f"v_cvt_pk_bf16_f32 v{t+2*k+1}, v{t+2*k}, v{t+2*k+1}")
        for k in range(n // 2):
            a(f"v_lshlrev_b32 v{t+2*k}, 16, v{t+2*k+1}")
            a(f"v_and_b32 v{t+2*k+1}, 0xffff0000, v{t+2*k+1}")
        for i in range(n):
            a(f"v_mul_f32 v{t+i}, v{t+i}, v{rss[i]}")
    def spin_head(tag):
        a(f"s_mov_b32 s75, {SPIN}")
        a(f"L_{tag}:")
    def spin_bail(tag):
        a("s_sub_u32 s75, s75, 1")
        a(f"s_cbranch_scc1 L_{tag}_ok")
    def untag_check(regs, t, tag, pre=None):
        for i, r in enumerate(regs):
            if pre and r in pre: continue
            a(f"v_xor_b32 v{r}, s{60 + (i & 3)}, v{r}")
        rs = list(regs)
        a(f"v_or3_b32 v{t}, v{rs[0]}, v{rs[1]}, v{rs[2]}")
        rs = rs[3:]
        while len(rs) >= 2:
            a(f"v_or3_b32 v{t}, v{t}, v{rs[0]}, v{rs[1]}")
            rs = rs[2:]
        if rs:
            a(f"v_or_b32 v{t}, v{t}, v{rs[0]}")
        a(f"v_and_b32 v{t}, 0xff, v{t}")
        a(f"v_cmp_ne_u32 vcc, 0, v{t}")
        a(f"s_cbranch_vccnz L_{tag}")
        a(f"L_{tag}_ok:")
    def empty_check(regs, t, tag):
        rs = list(regs)
        if len(rs) == 1:
            a(f"v_cmp_eq_u32 vcc, -1, v{rs[0]}")
        else:
            if len(rs) >= 3:
                a(f"v_max3_u32 v{t}, v{rs[0]}, v{rs[1]}, v{rs[2]}"); rs = rs[3:]
            else:
                a(f"v_max_u32 v{t}, v{rs[0]}, v{rs[1]}"); rs = rs[2:]
            while len(rs) >= 2:
                a(f"v_max3_u32 v{t}, v{t}, v{rs[0]}, v{rs[1]}"); rs = rs[2:]
            if rs: a(f"v_max_u32 v{t}, v{t}, v{rs[0]}")
            a(f"v_cmp_eq_u32 vcc, -1, v{t}")
        a(f"s_cbranch_vccnz L_{tag}")
        a(f"L_{tag}_ok:")
    def masked_poll(tag, loads, t, mb=52):
        for k in range(len(loads)):
            a(f"s_mov_b64 s[{mb+2*k}:{mb+1+2*k}], -1")
        spin_head(tag)
        for k, (r, txt) in enumerate(loads):
            a(f"s_mov_b64 exec, s[{mb+2*k}:{mb+1+2*k}]")
            a(txt)
        spin_bail(tag)
        for k, (r, txt) in enumerate(loads):
            a(f"s_mov_b64 exec, s[{mb+2*k}:{mb+1+2*k}]")
            a(f"s_waitcnt vmcnt({len(loads)-1-k})")
            for i in range(4):
                a(f"v_xor_b32 v{r+i}, s{60+i}, v{r+i}")
            a(f"v_or3_b32 v{t}, v{r}, v{r+1}, v{r+2}")
            a(f"v_or_b32 v{t}, v{t}, v{r+3}")
            a(f"v_and_b32 v{t}, 0xff, v{t}")
            a(f"v_cmp_ne_u32 s[{mb+2*k}:{mb+1+2*k}], 0, v{t}")
        a(f"s_or_b64 s[64:65], s[{mb}:{mb+1}], s[{mb+2}:{mb+3}]")
        for k in range(2, len(loads)):
            a(f"s_or_b64 s[64:65], s[64:65], s[{mb+2*k}:{mb+1+2*k}]")
        a(f"s_cbranch_scc1 L_{tag}")
        a(f"L_{tag}_ok:")
        a("s_mov_b64 exec, -1")
    def swap_add(regs, tmp, sw):
        for i, r in enumerate(regs): a(f"v_mov_b32 v{tmp+i}, v{r}")
        for i, r in enumerate(regs): a(f"{sw} v{tmp+i}, v{r}")
        for i, r in enumerate(regs): a(f"v_add_f32 v{r}, v{r}, v{tmp+i}")
    def round4(base):
        a(f"v_cvt_pk_bf16_f32 v{base+1}, v{base}, v{base+1}")
        a(f"v_cvt_pk_bf16_f32 v{base+3}, v{base+2}, v{base+3}")
        a(f"v_lshlrev_b32 v{base}, 16, v{base+1}")
        a(f"v_and_b32 v{base+1}, 0xffff0000, v{base+1}")
        a(f"v_lshlrev_b32 v{base+2}, 16, v{base+3}")
        a(f"v_and_b32 v{base+3}, 0xffff0000, v{base+3}")
    def lds_wait(tag, addr, t, sleep, off=0):
        spin_head(tag)
        if sleep: a(f"s_sleep {sleep}")
        a(f"ds_read_b32 v{t}, v{addr} offset:{off}")
        spin_bail(tag)
        a("s_waitcnt lgkmcnt(0)")
        empty_check([t], t, tag)
    def P(G):
        r = 0
        for k, b in enumerate(gvec):
            if G >> k & 1: r ^= 1 << b
        return r

    a("s_and_b32 s52, s2, 63")
    a("s_lshl_b32 s52, s52, 2")
    a("s_add_u32 s52, s52, 3")
    a("s_lshl_b32 s52, s52, 20")
    a(f"s_lshl_b32 s53, s3, {10 + wbit}")
    a("s_xor_b32 s52, s52, s53")
    gl = list(gx)
    while gl:
        k, b = gl.pop(0)
        nn = 1
        while gl and gl[0] == (k + nn, b + nn):
            gl.pop(0); nn += 1
        a(f"s_bfe_u32 s53, s2, {k | (nn << 16):#x}")
        a(f"s_lshl_b32 s53, s53, {10 + b}")
        a("s_xor_b32 s52, s52, s53")
    a("s_lshl_b32 s53, s57, 18")
    a("s_xor_b32 s52, s52, s53")
    if phases is None:
        a("s_lshl_b32 s53, s57, 16")
    else:
        tab = sum((ph >> 2) << (8 * i) for i, ph in enumerate(phases))
        a("s_lshl_b32 s53, s57, 3")
        a(f"s_lshr_b32 s53, {tab:#x}, s53")
        a("s_and_b32 s53, s53, 7")
        a("s_lshl_b32 s53, s53, 15")
    a("s_xor_b32 s52, s52, s53")
    assert tuple(gvec) == (0,1,5,6,7,8,9)
    RB = 44
    def ringreg(j): return RB + 4 * (j % ring)
    def ld_text(j, rot=0):
        sr = 12 if j < n else 16
        p = P(((j + rot) % n) ^ rot)
        r = ringreg(j)
        if p:
            a(f"s_xor_b32 s53, s52, {p << 10}")
            so = 53
        else:
            so = 52
        a(f"buffer_load_dwordx4 v[{r}:{r+3}], v1, s[{sr}:{sr+3}], s{so} offen {kv_aux}")
    a("s_waitcnt lgkmcnt(0)")
    for j in range(D0): ld_text(j)
    srd(16, 16, 0x10000000)
    epoch_load()
    a("s_mov_b32 s64, 0xcccccccc"); a("s_mov_b32 s65, 0xcccccccc")
    a("s_mov_b32 s66, 0xaaaaaaaa"); a("s_mov_b32 s67, 0xaaaaaaaa")
    masks(12, 13)
    a("v_and_b32 v12, 15, v0")
    a("v_lshlrev_b32 v12, 4, v12")
    a(f"v_add_u32 v12, {L_QB}, v12")
    if yprio or yskip:
        a("s_cmp_ge_u32 s3, 4")
        a("s_cselect_b64 vcc, -1, 0")
    if yprio:
        a("s_cbranch_scc0 L_np")
        a(f"s_setprio {yprio}")
        a("L_np:")
    a("s_barrier")
    for j in range(D0, N0):
        a(f"s_waitcnt vmcnt({D0-1})")
        ld_text(j)
    a(f"s_cmp_lt_u32 s2, {NMLP}")
    a("s_cbranch_scc1 L_kv_m")
    a("s_cmp_eq_u32 s57, 1")
    a("s_cbranch_scc1 L_kv_r")

    def stage_done(sr=3):
        a(f"s_lshl_b32 s73, s{sr}, 2")
        a(f"s_add_u32 s73, s73, {L_FL}")
        a("v_mov_b32 v26, s73")
        a("v_mov_b32 v27, 0")
        a("ds_write_b32 v26, v27")

    def kv_path(role, Dx, bfrom, early):
        st = dict(iss=N0, landed=N0 - D0 - 1, cons=0)
        order = list(range(N0))
        NT = 2 * n
        stage = []
        def depth(): return Dx if st["cons"] >= bfrom else D
        def ld_kv():
            j = st["iss"]
            ld_text(j, 0 if phases is None else {"p": 0, "m": phases[0], "r": phases[1]}[role])
            st["iss"] += 1
            order.append(j)
        def wait_kv(j):
            if j <= st["landed"]: return
            a(f"s_waitcnt vmcnt({len(order) - 1 - order.index(j)})")
            st["landed"] = j
        if role == "m":
            srd(44, 48, 1024); srd(48, 80, 2048); srd(32, 56, 1409024); srd(36, 64, 1409024); srd(40, 72, 1409024)
        if role == "r":
            srd(20, 32, 0x400000)
        while st["iss"] < NPRE:
            d = depth()
            if st["iss"] in yskip and role == "p":
                wait_kv(st["iss"] - d - 1)
                a(f"s_cbranch_vccnz L_ys{st['iss']}")
                a(f"s_waitcnt vmcnt({d-1})")
                a(f"L_ys{st['iss']}:")
            elif st["iss"] - 1 - st["landed"] >= d:
                wait_kv(st["iss"] - d)
            ld_kv()
        stampat(1)
        if kvwarm: a(f";@warm kv{role} L_kret {kvwarm}")
        spin_head("wq" + role)
        a("ds_read_b128 v[8:11], v12")
        spin_bail("wq" + role)
        a("s_waitcnt lgkmcnt(0)")
        empty_check([8, 9, 10, 11], 13, "wq" + role)
        a("s_waitcnt lgkmcnt(0)")
        if role != "p": epoch_calc()
        stampat(2)
        def reduce_scores(dst):
            for i in range(8):
                a(f"v_add_f32_dpp v{24+i}, v{24+i}, v{24+i} row_ror:8 row_mask:0xf bank_mask:0x3")
            for i in range(8):
                a(f"v_add_f32_dpp v{24+i}, v{32+i}, v{32+i} row_ror:8 row_mask:0xf bank_mask:0xc")
            for i in range(4):
                a(f"v_add_f32_dpp v{24+i}, v{24+i}, v{24+i} row_half_mirror row_mask:0xf bank_mask:0x5")
            for i in range(4):
                a(f"v_add_f32_dpp v{24+i}, v{28+i}, v{28+i} row_half_mirror row_mask:0xf bank_mask:0xa")
            dpp_steps([24, 25, 26, 27], ("quad_perm:[2,3,0,1]",))
            a("v_cndmask_b32 v24, v24, v26, s[64:65]")
            a("v_cndmask_b32 v25, v25, v27, s[64:65]")
            dpp_steps([24, 25], ("quad_perm:[1,0,3,2]",))
            a(f"v_cndmask_b32 v{dst}, v24, v25, s[66:67]")
            if not noround: bf16r(dst)
            a(f"v_mul_f32 v{dst}, {SCALE:#x}, v{dst}")
            if not noround: bf16r(dst)
        def softmax_part():
            stampat(3)
            a("v_max_f32 v24, v2, v3")
            wave_reduce([24], "v_max_f32")
            a("v_readlane_b32 s72, v24, 63")
            for r in (2, 3): a(f"v_subrev_f32 v{r}, s72, v{r}")
            for r in (2, 3): a(f"v_mul_f32 v{r}, {LOG2E:#x}, v{r}")
            for r in (2, 3): a(f"v_exp_f32 v{r}, v{r}")
            a("v_add_f32 v25, v2, v3")
            for r in (2, 3): a(f"v_cvt_pk_bf16_f32 v{r}, v{r}, v{r}")
            wave_reduce([25])
            a("s_lshl_b32 s73, s3, 3")
            a(f"s_add_u32 s73, s73, {L_MB}")
            a("v_mov_b32 v26, s73")
            a("s_mov_b32 exec_lo, 0")
            a("s_mov_b32 exec_hi, 0x80000000")
            a("ds_write_b64 v26, v[24:25]")
            a("s_mov_b64 exec, -1")
            a("s_lshl_b32 s73, s3, 9")
            a(f"s_add_u32 s73, s73, {L_OP}")
            a("v_and_b32 v27, 15, v0")
            a("v_lshrrev_b32 v28, 4, v0")
            a("v_lshlrev_b32 v29, 5, v27")
            a("v_lshl_add_u32 v29, v28, 4, v29")
            a("v_add_u32 v29, s73, v29")
            stampat(4)
        def issue_stage():
            m0, voff, sr, so, aux = stage.pop(0)
            a(f"s_add_u32 m0, {m0}")
            a(f"s_add_u32 s53, {so}")
            if not no_stage:
                a(f"buffer_load_dwordx4 v{voff}, s[{sr}:{sr+3}], s53 offen {aux} lds")
                order.append("st")
        ins = {"r": ins_r, "m": ins_m}.get(role)
        ins = list(ins) if ins else []
        def inflight():
            pos = order.index(st["landed"])
            return sum(1 for x in order[pos+1:] if isinstance(x, int) or x == "st")
        def pump(extra=0):
            while st["iss"] < NT and inflight() < depth() + extra and st["iss"] - ring < st["cons"]:
                if ins and ins[0] <= st["iss"] and stage:
                    ins.pop(0)
                    issue_stage()
                    continue
                ld_kv()
            if st["iss"] == NT and stage and st["cons"] >= NT - early:
                issue_stage()
        def role_prep():
            if role == "r":
                a("s_and_b32 s76, s2, 7")
                a("s_lshr_b32 s77, s3, 1")
                a("s_lshl_b32 s78, s77, 3")
                a("s_add_u32 s78, s78, s76")
                a("s_lshl_b32 s68, s78, 17")
                a("s_lshl_b32 s78, s78, 1")
                a("s_and_b32 s73, s3, 1")
                a("s_add_u32 s78, s78, s73")
                a("s_lshl_b32 s79, s78, 9")
                a(f"s_add_u32 s79, s79, {WS_MLX}")
                a("s_lshl_b32 s78, s78, 11")
                a(f"s_add_u32 s78, s78, {WS_OP}")
                a("s_lshl_b32 s69, s73, 16")
                a("s_add_u32 s68, s68, s69")
                a("s_bfe_u32 s69, s2, 0x30003")
                a("s_lshl_b32 s69, s69, 7")
                a("s_add_u32 s68, s68, s69")
                a("s_lshl_b32 s69, s3, 13")
                a("v_and_b32 v31, 3, v0")
                a("v_lshlrev_b32 v31, 7, v31")
                a(f"s_mul_i32 s73, s73, {APITCH}")
                a("s_lshl_b32 s77, s77, 8")
                a("s_add_u32 s73, s73, s77")
                a(f"s_add_u32 s73, s73, {L_A}")
                a("v_and_b32 v30, 31, v0")
                a("v_lshlrev_b32 v30, 3, v30")
                a("v_lshrrev_b32 v32, 5, v0")
                a("v_lshl_add_u32 v30, v32, 2, v30")
                a("v_add_u32 v30, s73, v30")
                a("s_getreg_b32 s74, hwreg(HW_REG_XCC_ID, 0, 4)")
                a("v_lshrrev_b32 v32, 3, v0")
                a("v_and_b32 v33, 7, v0")
                a("v_lshlrev_b32 v32, 10, v32")
                a("v_lshl_or_b32 v32, v33, 4, v32")
                for i in range(8):
                    stage.append((f"s69, {1024*i}", 32, 20, f"s68, {8192*i}", wo_aux))
            if role == "m":
                a("v_bfe_u32 v38, v0, 2, 1")
                a("v_bfe_u32 v31, v0, 3, 2")
                a("v_lshlrev_b32 v30, 5, v31")
                a("v_and_b32 v31, 3, v0")
                a("v_lshl_add_u32 v30, v31, 3, v30")
                a("s_lshl_b32 s73, s3, 7")
                a("v_add_u32 v30, s73, v30")
                a("v_lshrrev_b32 v39, 5, v0")
                a("v_lshl_add_u32 v30, v39, 2, v30")
                a("v_lshl_add_u32 v39, v38, 10, v30")
                a("buffer_load_dword v36, v39, s[4:7], 0 offen")
                a("v_lshlrev_b32 v39, 10, v38")
                a("buffer_load_ushort v41, v39, s[4:7], 0 offen")
                a("buffer_load_dwordx4 v[32:35], v1, s[44:47], 0 offen")
                order.extend(["x", "c", "wr"])
                a(f"v_mul_u32_u24 v39, {APITCH}, v38")
                a("v_add_u32 v30, v30, v39")
                a(f"v_add_u32 v30, {L_A}, v30")
                a("v_lshrrev_b32 v39, 4, v0")
                a("v_lshlrev_b32 v39, 3, v39")
                a("v_lshl_add_u32 v39, v38, 8, v39")
                a("s_lshl_b32 s73, s3, 5")
                a(f"s_add_u32 s73, s73, {L_ST}")
                a("v_add_u32 v39, s73, v39")
                a("s_lshl_b32 s78, s3, 12")
                a(f"s_add_u32 s78, s78, {WS_ZX}")
                if zcopy:
                    a("s_getreg_b32 s73, hwreg(HW_REG_XCC_ID, 0, 3)")
                    a("s_lshl_b32 s73, s73, 15")
                    a("s_add_u32 s78, s78, s73")
                a("v_lshrrev_b32 v42, 2, v0")
                a("v_mul_u32_u24 v42, 2752, v42")
                a("v_lshl_add_u32 v42, v31, 4, v42")
                if fmap:
                    a("s_and_b32 s70, s2, 7")
                    a("s_min_u32 s71, s70, 3")
                    a("s_mul_i32 s70, s70, 5")
                    a("s_add_u32 s70, s70, s71")
                    a("s_lshr_b32 s71, s2, 3")
                    a("s_add_u32 s70, s70, s71")
                else:
                    a("s_mov_b32 s70, s2")
                if falt:
                    a("s_and_b32 s74, s70, 1")
                    a("s_lshl_b32 s74, s74, 2")
                    a("s_xor_b32 s74, s74, s3")
                else:
                    a("s_mov_b32 s74, s3")
                a("s_mul_i32 s68, s74, 176128")
                a("s_lshl_b32 s69, s70, 6")
                a("s_add_u32 s68, s68, s69")
                a("s_lshl_b32 s69, s74, 12")
                a("s_lshl_b32 s70, s70, 15")
                a("s_add_u32 s70, s70, s69")
                a(f"s_mul_i32 s71, s74, {4*DNP}")
                for i in range(4):
                    stage.append((f"s69, {1024*i}", 42, 32, f"s68, {44032*i}", mlp_aux))
                    stage.append((f"s69, {L_UP + 1024*i}", 42, 36, f"s68, {44032*i}", mlp_aux))
                for i in range(4):
                    stage.append((f"s71, {L_DN + DNP*i}", 1, 40, f"s70, {1024*i}", dn_aux))
        def consume(j):
            r = ringreg(j)
            st["cons"] = j
            if j < n:
                i = j & 15
                if i == 0:
                    for k in range(16):
                        a(f"v_mov_b32 v{24+k}, 0")
                wait_kv(j)
                pump(1 if i == 15 else 0)
                for k in range(4):
                    a(f"v_dot2c_f32_bf16 v{24+i}, v{r+k}, v{8+k}")
                if i == 15: reduce_scores(2 + (j >> 4))
                if j == n - 1: softmax_part()
            else:
                jj = j - n
                i = jj & 15
                pp = 2 + (jj >> 4)
                t = 12 + 4 * (i & 1)
                for k in range(4):
                    a(f"v_and_b32_dpp v{t+k}, v{pp}, v{4+k} row_newbcast:{i} row_mask:0xf bank_mask:0xf")
                pj = order.index(j)
                if pj > 0 and order[pj-1] == "st" and j > st["landed"] and st["iss"] < NT:
                    a(f"s_waitcnt vmcnt({len(order) - pj})")
                    pump(1)
                wait_kv(j)
                if j < NT - 1: pump()
                if jj > prep_at and not stage and "st" in order and not st.get("fl") and max(i for i, x in enumerate(order) if x == "st") < order.index(j):
                    stage_done(74 if role == "m" else 3); st["fl"] = True
                c = "0" if jj == 0 else "v[20:23]"
                a(f"v_mfma_f32_16x16x32_bf16 v[20:23], v[{t}:{t+3}], v[{r}:{r+3}], {c}")
                if jj == prep_at: role_prep()
                if jj == 20 and role == "r":
                    a("buffer_load_dwordx4 v[40:43], v31, s[24:27], s79 offen sc1")
                    order.append("ml")
        for j in range(NT):
            if j <= st["landed"] and j % CU == 0 and st["iss"] < NT and st["iss"] - ring < j:
                st["cons"] = j
                wait_kv(st["landed"] + 1)
                pump()
            consume(j)
        if kvwarm: a(";@endwarm")
        a("s_mov_b32 exec_hi, 0")
        a("ds_write_b128 v29, v[20:23]")
        a("s_mov_b64 exec, -1")
        stampat(5)
        keep = 4 if role == "m" else 0
        while len(stage) > keep: issue_stage()
        return lambda: [issue_stage() for _ in range(len(stage))]
    kv_path("p", Dp, bp_from, 0)
    a("s_branch L_fin")

    a("L_kv_r:")
    kv_path("r", Dr, br_from, early_r)
    if warm: a(";@warm rk L_wret")
    a(f"s_mov_b32 s75, {SPIN}")
    a("s_branch L_pL_chk")
    a("L_pL:")
    a("buffer_load_dwordx4 v[40:43], v31, s[24:27], s79 offen sc1")
    spin_bail("pL")
    a("s_waitcnt vmcnt(0)")
    a("L_pL_chk:")
    a("v_xor_b32 v54, s29, v42")
    a("v_xor_b32 v55, s29, v43")
    a("v_lshrrev_b32 v56, 4, v55")
    a("v_or_b32 v54, v54, v56")
    a("v_cmp_ne_u32 vcc, 0, v54")
    a("s_cbranch_vccnz L_pL")
    a("L_pL_ok:")
    a("v_mov_b32 v52, v40")
    a("v_mov_b32 v53, v41")
    a("v_mov_b32 v56, v52")
    dpp_steps([56], ("quad_perm:[1,0,3,2]", "quad_perm:[2,3,0,1]"), "v_max_f32")
    a("v_sub_f32 v52, v52, v56")
    a(f"v_mul_f32 v52, {LOG2E:#x}, v52")
    a("v_exp_f32 v52, v52")
    a("v_mul_f32 v53, v53, v52")
    dpp_steps([53], ("quad_perm:[1,0,3,2]", "quad_perm:[2,3,0,1]"))
    a("v_rcp_f32 v53, v53")
    a("v_mul_f32 v52, v52, v53")
    a(f"v_mov_b32 v54, {WS_OS - WS_OP}")
    if local:
        a("v_cmp_ne_u32 vcc, s74, v55")
        a("v_cndmask_b32 v55, 0, v54, vcc")
    else:
        a("v_mov_b32 v55, v54")
    for src, d0 in ((52, 56), (55, 58)):
        a(f"v_mov_b32_dpp v{d0}, v{src} quad_perm:[0,0,0,0] row_mask:0x3 bank_mask:0xf")
        a(f"v_mov_b32_dpp v{d0+1}, v{src} quad_perm:[2,2,2,2] row_mask:0x3 bank_mask:0xf")
        a(f"v_mov_b32_dpp v{d0}, v{src} quad_perm:[1,1,1,1] row_mask:0xc bank_mask:0xf")
        a(f"v_mov_b32_dpp v{d0+1}, v{src} quad_perm:[3,3,3,3] row_mask:0xc bank_mask:0xf")
    a("v_add_u32 v58, v58, v1")
    a("v_add_u32 v59, v59, v1")
    a("s_lshl_b32 s73, s3, 2")
    a(f"s_add_u32 s73, s73, {L_FL}")
    a("v_mov_b32 v26, s73")
    a("v_mov_b32 v27, 0")
    a("s_mov_b32 s68, 0x0c0c0400")
    a("s_mov_b32 s69, 0x04000c0c")
    if maskA:
        a("s_waitcnt vmcnt(0)")
        a("ds_write_b32 v26, v27")
        a("s_mov_b64 s[52:53], -1"); a("s_mov_b64 s[54:55], -1")
        spin_head("pA")
        a("s_mov_b64 exec, s[52:53]")
        a("buffer_load_dwordx4 v[44:47], v58, s[24:27], s78 offen sc1")
        a("s_mov_b64 exec, s[54:55]")
        a("buffer_load_dwordx4 v[48:51], v59, s[24:27], s78 offen offset:1024 sc1")
        a("s_mov_b64 exec, -1")
        a(f"s_cmp_lg_u32 s75, {SPIN - 400}")
        a("s_cbranch_scc1 L_pA_nf")
        a("v_add_u32 v58, v54, v1")
        a("v_add_u32 v59, v54, v1")
        a("L_pA_nf:")
        spin_bail("pA")
        a("s_waitcnt vmcnt(0)")
        for k, r in enumerate((44, 48)):
            a(f"v_perm_b32 v{60+2*k}, v{r+1}, v{r}, s68")
            a(f"v_perm_b32 v{61+2*k}, v{r+3}, v{r+2}, s69")
        a("v_or_b32 v60, v60, v61")
        a("v_or_b32 v62, v62, v63")
        a("v_cmp_ne_u32 s[52:53], s29, v60")
        a("v_cmp_ne_u32 s[54:55], s29, v62")
        a("s_or_b64 s[64:65], s[52:53], s[54:55]")
        a("s_cbranch_scc1 L_pA")
        a("L_pA_ok:")
        for r in range(44, 52): a(f"v_and_b32 v{r}, s31, v{r}")
    else:
        spin_head("pA")
        a("buffer_load_dwordx4 v[44:47], v58, s[24:27], s78 offen sc1")
        a("buffer_load_dwordx4 v[48:51], v59, s[24:27], s78 offen offset:1024 sc1")
        a(f"s_cmp_lg_u32 s75, {SPIN - 400}")
        a("s_cbranch_scc1 L_pA_nf")
        a("v_add_u32 v58, v54, v1")
        a("v_add_u32 v59, v54, v1")
        a("L_pA_nf:")
        spin_bail("pA")
        a("s_waitcnt vmcnt(2)")
        a("ds_write_b32 v26, v27")
        a("s_waitcnt vmcnt(0)")
        untag_check(list(range(44, 52)), 60, "pA")
    stampat(6)
    for r in range(4): a(f"v_mul_f32 v{44+r}, v{44+r}, v56")
    for r in range(4): a(f"v_fmac_f32 v{44+r}, v{48+r}, v57")
    a("v_permlane32_swap_b32 v44, v46")
    a("v_permlane32_swap_b32 v45, v47")
    a("v_add_f32 v44, v44, v46")
    a("v_add_f32 v45, v45, v47")
    a("v_cvt_pk_bf16_f32 v44, v44, v45")
    a("ds_write_b32 v30, v44")
    a("s_waitcnt lgkmcnt(0)")
    a("s_barrier")
    if warm: a(";@endwarm")
    stampat(7)
    a("s_mov_b64 exec, -1")
    a("s_branch L_fin")

    a("L_kv_m:")
    rest = kv_path("m", Dm, bm_from, early_m)
    unpack(36, 64, 1)
    a("v_lshlrev_b32 v41, 16, v41")
    a(f"s_waitcnt vmcnt({dn_lead})")
    rest()
    a(f"s_waitcnt vmcnt({0 if no_stage else 4})")
    stage_done(74)
    stampat(9)
    if warm: a(";@warm mk L_wret")
    if heads:
        a("v_lshrrev_b32 v61, 3, v0")
        a("v_lshlrev_b32 v61, 15, v61")
        a("v_and_b32 v62, 7, v0")
        a("v_lshl_add_u32 v61, v62, 9, v61")
        a("s_lshl_b32 s79, s3, 12")
        a(f"s_add_u32 s79, s79, {WS_OS}")
        a("s_and_b32 s73, s3, 1")
        a("s_lshl_b32 s73, s73, 4")
        a("s_lshr_b32 s77, s3, 1")
        a("s_lshl_b32 s77, s77, 2")
        a("s_add_u32 s73, s73, s77")
        a(f"s_add_u32 s73, s73, {L_HF}")
        a("v_mov_b32 v66, s73")
        a("v_lshrrev_b32 v67, 5, v0")
        a("v_lshlrev_b32 v67, 4, v67")
        a(f"v_add_u32 v67, {L_HF}, v67")
        for k in range(4): a(f"s_mov_b64 s[{52+2*k}:{53+2*k}], -1")
        a("s_mov_b32 exec_hi, 0")
        spin_head("pH")
        a("buffer_load_dwordx2 v[62:63], v61, s[24:27], s79 offen sc1")
        spin_bail("pH")
        a("s_waitcnt vmcnt(1)")
        a(f"ds_write_b32 v26, v27 offset:{L_FD - L_FL}")
        a("s_waitcnt vmcnt(0)")
        a("v_xor_b32 v62, s60, v62")
        a("v_xor_b32 v63, s61, v63")
        a("v_or_b32 v62, v62, v63")
        a("v_and_b32 v62, 0xff, v62")
        a("v_cmp_ne_u32 vcc, 0, v62")
        a("s_cbranch_vccz L_pH_ok")
        a("s_mov_b64 exec, vcc")
        a("s_branch L_pH")
        a("L_pH_ok:")
        a("s_mov_b64 exec, -1")
        if hdelay: a(f"s_sleep {hdelay}")
        a("ds_write_b32 v66, v27")
        stampat(1)
        spin_head("pB")
        a("ds_read_b128 v[68:71], v67")
        spin_bail("pB")
        a("s_waitcnt lgkmcnt(0)")
        for k in range(4):
            a(f"v_cmp_eq_u32 s[{64+2*k}:{65+2*k}], 0, v{68+k}")
        for k in range(4):
            a(f"s_and_b64 s[{64+2*k}:{65+2*k}], s[{64+2*k}:{65+2*k}], s[{52+2*k}:{53+2*k}]")
            a(f"s_mov_b64 exec, s[{64+2*k}:{65+2*k}]")
            a(f"buffer_load_dwordx4 v[{44+4*k}:{47+4*k}], v1, s[24:27], s78 offen offset:{1024*k} sc1")
        for k in range(4):
            r = 44 + 4 * k
            a(f"s_mov_b64 exec, s[{64+2*k}:{65+2*k}]")
            a(f"s_andn2_b64 s[{52+2*k}:{53+2*k}], s[{52+2*k}:{53+2*k}], exec")
            a(f"s_waitcnt vmcnt({3-k})")
            for i in range(4):
                a(f"v_xor_b32 v{r+i}, s{60+i}, v{r+i}")
            a(f"v_or3_b32 v60, v{r}, v{r+1}, v{r+2}")
            a(f"v_or_b32 v60, v60, v{r+3}")
            a("v_and_b32 v60, 0xff, v60")
            a("v_cmp_ne_u32 vcc, 0, v60")
            a(f"s_or_b64 s[{52+2*k}:{53+2*k}], s[{52+2*k}:{53+2*k}], vcc")
        a("s_mov_b64 exec, -1")
        a("s_or_b64 s[64:65], s[52:53], s[54:55]")
        a("s_or_b64 s[66:67], s[56:57], s[58:59]")
        a("s_or_b64 s[64:65], s[64:65], s[66:67]")
        a("s_cbranch_scc1 L_pB")
        a("L_pB_ok:")
    else:
        if nosent:
            a("s_waitcnt vmcnt(0)")
            a(f"ds_write_b32 v26, v27 offset:{L_FD - L_FL}")
        else:
            a("s_mov_b64 exec, 0xff")
            spin_head("pB0")
            if bsleep: a(f"s_sleep {bsleep}")
            a("buffer_load_dwordx4 v[44:47], v1, s[24:27], s78 offen sc1")
            spin_bail("pB0")
            a("s_waitcnt vmcnt(1)")
            a(f"ds_write_b32 v26, v27 offset:{L_FD - L_FL}")
            a("s_waitcnt vmcnt(0)")
            untag_check([44, 45, 46, 47], 60, "pB0")
            a("s_mov_b64 exec, -1")
        if masked:
            masked_poll("pB", [(44 + 4*k, f"buffer_load_dwordx4 v[{44+4*k}:{47+4*k}], v1, s[24:27], s78 offen offset:{1024*k} sc1") for k in range(4)], 60)
        else:
            spin_head("pB")
            if psleep: a(f"s_sleep {psleep}")
            for k in range(4):
                a(f"buffer_load_dwordx4 v[{44+4*k}:{47+4*k}], v1, s[24:27], s78 offen offset:{1024*k} sc1")
            spin_bail("pB")
            a("s_waitcnt vmcnt(0)")
            untag_check(list(range(44, 60)), 60, "pB")
    stampat(6)
    for r in range(4):
        a(f"v_add_f32 v{44+r}, v{44+r}, v{48+r}")
        a(f"v_add_f32 v{52+r}, v{52+r}, v{56+r}")
    for r in range(4): a(f"v_add_f32 v{44+r}, v{44+r}, v{52+r}")
    a("v_permlane32_swap_b32 v44, v46")
    a("v_permlane32_swap_b32 v45, v47")
    a("v_add_f32 v44, v44, v64")
    a("v_add_f32 v45, v45, v65")
    a("v_add_f32 v44, v44, v46")
    a("v_add_f32 v45, v45, v47")
    a("v_cvt_pk_bf16_f32 v48, v44, v45")
    a("ds_write_b32 v30, v48")
    unpack(48, 44, 1)
    a("v_sub_f32 v44, v44, v41")
    a("v_sub_f32 v45, v45, v41")
    a("v_mul_f32 v51, v44, v44")
    a("v_add_f32 v50, v44, v45")
    a("v_fmac_f32 v51, v45, v45")
    dpp_steps([50, 51], ("quad_perm:[1,0,3,2]", "quad_perm:[2,3,0,1]", "row_ror:8"))
    a("ds_write_b64 v39, v[50:51]")
    a("s_waitcnt lgkmcnt(0)")
    a("s_barrier")
    stampat(7)
    a("s_cmp_ge_u32 s3, 2")
    a("s_cbranch_scc1 L_fin")
    a("s_cmp_ge_u32 s2, 32")
    a("s_cbranch_scc1 L_fin")
    a(f"s_mul_i32 s73, s3, {APITCH}")
    a(f"s_add_u32 s73, s73, {L_A}")
    a("v_add_u32 v52, s73, v1")
    a("ds_read_b128 v[96:99], v52")
    a("v_lshrrev_b32 v40, 2, v0")
    a("v_and_b32 v43, 3, v0")
    a("v_lshlrev_b32 v44, 7, v40")
    a("v_lshl_or_b32 v44, v43, 4, v44")
    a("s_mul_i32 s78, s2, 5504")
    a("s_lshl_b32 s73, s3, 6")
    a("s_add_u32 s78, s78, s73")
    a(f"s_add_u32 s78, s78, {WS_Y}")
    a("s_add_u32 s79, s78, 2048")
    a("s_add_u32 s77, s78, 4096")
    a("s_lshl_b32 s74, s2, 5")
    a("s_lshl_b32 s73, s3, 4")
    a("s_add_u32 s76, s74, s73")
    a("v_lshlrev_b32 v45, 2, v43")
    a("v_lshrrev_b32 v47, 5, v0")
    a("v_lshl_add_u32 v45, v47, 1, v45")
    a("v_bfe_u32 v47, v0, 4, 1")
    a(f"v_mul_u32_u24 v46, {APITCH}, v47")
    a("v_add_u32 v46, v46, v45")
    a(f"s_add_u32 s73, s76, {L_A}")
    a("v_add_u32 v46, s73, v46")
    a("ds_read_u16 v50, v46")
    a("v_lshl_add_u32 v45, v47, 10, v45")
    a("v_lshlrev_b32 v51, 4, v47")
    a(f"v_add_u32 v51, {L_SG}, v51")
    a("s_waitcnt lgkmcnt(0)")
    unpack(96, 100)
    ln_sums(100, 108, 68, 69, 70)
    a("v_mov_b32 v124, s69")
    a("v_mov_b32 v125, s70")
    ln_finish("s68", 124, 125, 108)
    ln_apply(100, 108, 124, 125)
    for k in range(4):
        a(f"v_cvt_pk_bf16_f32 v{120+k}, v{108+2*k}, v{109+2*k}")
    if warm: a(";@endwarm")
    if warm: a(";@warm mk2 L_wret")
    a("v_mov_b32 v126, 0")
    for k in range(4):
        a(f"v_dot2c_f32_bf16 v126, v{120+k}, v{32+k}")
    wave_reduce([126])
    a("v_readlane_b32 s73, v126, 63")
    a("v_mov_b32 v126, s73")
    bf16r(126)
    a("v_mul_f32 v126, 0xbfb8aa3b, v126")
    a("v_exp_f32 v126, v126")
    a("v_add_f32 v126, 1.0, v126")
    a("v_rcp_f32 v126, v126")
    bf16r(126)
    a("v_mov_b32 v127, 0")
    a("s_lshl_b32 s73, s3, 4")
    a(f"s_add_u32 s73, s73, {L_SG}")
    a("v_mov_b32 v46, s73")
    a("ds_write_b128 v46, v[124:127]")
    a("v_lshlrev_b32 v104, 16, v50")
    for r in range(4): a(f"v_mov_b32 v{20+r}, 0")
    spin_head("pS")
    a("ds_read_b128 v[112:115], v51")
    spin_bail("pS")
    a("s_waitcnt lgkmcnt(0)")
    empty_check([112, 113, 114], 47, "pS")
    a("v_sub_f32 v100, v104, v112")
    bf16r(100)
    a("v_mul_f32 v100, v100, v113")
    bf16r(100)
    a("v_add_f32 v100, v100, v104")
    a("v_and_b32 v46, 31, v0")
    a("v_lshlrev_b32 v46, 2, v46")
    a(f"v_add_u32 v46, {L_ACT}, v46")
    lds_wait("pT", 46, 47, 0)
    stampat(8)
    spin_head("pC")
    if cdelay: a(f"s_sleep {cdelay}")
    a("buffer_load_dwordx4 v[12:15], v44, s[24:27], s78 offen sc1")
    a("buffer_load_dwordx4 v[16:19], v44, s[24:27], s79 offen sc1")
    a("s_mov_b32 exec_hi, 0xfff")
    a("buffer_load_dwordx4 v[20:23], v44, s[24:27], s77 offen sc1")
    a("s_waitcnt vmcnt(0)")
    for r in range(4): a(f"v_xor_b32 v{20+r}, s{60+r}, v{20+r}")
    a("s_mov_b64 exec, -1")
    spin_bail("pC")
    untag_check(list(range(12, 24)), 24, "pC", pre={20, 21, 22, 23})
    stampat(4)
    for r in range(4): a(f"v_add_f32 v{12+r}, v{12+r}, v{16+r}")
    for r in range(4): a(f"v_add_f32 v{12+r}, v{12+r}, v{20+r}")
    a("v_permlane32_swap_b32 v12, v14")
    a("v_permlane32_swap_b32 v13, v15")
    a("v_add_f32 v12, v12, v14")
    a("v_add_f32 v13, v13, v15")
    a("v_permlane16_swap_b32 v12, v13")
    a("v_add_f32 v12, v12, v13")
    dpp_steps([12], ("row_ror:4", "row_ror:8"))
    a("v_fmac_f32 v100, v12, v114")
    a("v_cvt_pk_bf16_f32 v12, v100, v100")
    a("s_mov_b32 exec_lo, 0x000f000f")
    a("s_mov_b32 exec_hi, 0x000f000f")
    a("buffer_store_short v12, v45, s[48:51], s76 offen")
    a("s_cmp_lg_u32 s76, 0")
    a("s_cbranch_scc1 L_noep")
    a("s_mov_b64 exec, 1")
    a("v_mov_b32 v14, s29")
    a("buffer_store_dword v14, v45, s[24:27], 0 offen")
    a("L_noep:")
    if warm: a(";@endwarm")
    a("s_mov_b64 exec, -1")
    stampat(3)
    a("s_branch L_fin")

    a("L_aux:")
    if aux_prio: a(f"s_setprio {aux_prio}")
    a("s_sub_u32 s59, s3, 8")
    a("s_and_b32 s55, s2, 31")
    a("s_bfe_u32 s56, s2, 0x10005")
    a("v_lshrrev_b32 v2, 4, v0")
    a("v_and_b32 v3, 15, v0")
    a("s_mov_b32 s10, 0x400000")
    a("s_mov_b32 s11, 0x20000")
    a("v_lshlrev_b32 v8, 18, v2")
    a("v_lshl_or_b32 v8, v3, 4, v8")
    a("s_lshl_b32 s54, s59, 20")
    a("s_lshl_b32 s53, s55, 8")
    a("s_or_b32 s54, s54, s53")
    a("v_lshlrev_b32 v10, 6, v2")
    a("s_lshl_b32 s52, s56, 10")
    a("s_lshl_b32 s53, s59, 8")
    a("s_add_u32 s53, s53, s52")
    a("s_movk_i32 s65, 0x2000")
    for r in range(4): a(f"v_mov_b32 v{12+r}, -1")
    a("s_lshl_b32 s58, s59, 11")
    a(f"s_add_u32 s58, s58, {L_INIT}")
    a("v_add_u32 v9, s58, v1")
    a("ds_write_b128 v9, v[12:15]")
    a("s_cmp_eq_u32 s59, 3")
    a("s_cbranch_scc0 L_i2")
    for r in range(4): a(f"v_mov_b32 v{12+r}, 0")
    a("s_mov_b64 exec, 1")
    a("L_i2:")
    a("ds_write_b128 v9, v[12:15] offset:1024")
    a("s_mov_b64 exec, -1")
    a("s_waitcnt lgkmcnt(0)")
    epoch_load()
    a("s_cmp_eq_u32 s59, 0")
    a("s_cbranch_scc1 L_coop")
    a("s_barrier")
    a(f"v_mov_b32 v12, {L_QB}")
    a("s_waitcnt lgkmcnt(0)")
    epoch_calc()
    if kvwarm:
        a("s_cmp_lg_u32 s59, 3")
        a("s_cbranch_scc1 L_kret")
        a("s_mov_b64 exec, 0")
        a(f"s_cmp_lt_u32 s2, {NMLP}")
        a("s_cbranch_scc1 L_w_kvm_0")
        a("s_cmp_eq_u32 s57, 1")
        a("s_cbranch_scc1 L_w_kvr_0")
        a("s_branch L_w_kvp_0")
        a("L_kret:")
        a("s_mov_b64 exec, -1")
    spin_head("fw")
    a("s_sleep 4")
    a(f"ds_read2_b32 v[14:15], v12 offset0:0 offset1:{(L_FB - L_QB) // 4}")
    spin_bail("fw")
    a("s_waitcnt lgkmcnt(0)")
    a("v_cmp_ne_u32 vcc, -1, v15")
    a("s_cbranch_vccnz L_fallback")
    a("v_cmp_eq_u32 vcc, -1, v14")
    a("s_cbranch_vccnz L_fw")
    a("L_fw_ok:")
    if warm:
        a("s_mov_b64 exec, 0")
        a("s_cmp_eq_u32 s59, 1")
        a("s_cbranch_scc1 L_w_ct_0")
        a("L_wret1:")
        a(f"s_cmp_lt_u32 s2, {NMLP}")
        a("s_cbranch_scc1 L_wm")
        a("s_cmp_lg_u32 s57, 1")
        a("s_cbranch_scc1 L_wret")
        a("s_cmp_eq_u32 s59, 2")
        a("s_cbranch_scc1 L_w_rk_0")
        a("s_cmp_eq_u32 s59, 3")
        a("s_cbranch_scc1 L_w_ra_0")
        a("s_branch L_wret")
        a("L_wm:")
        a("s_cmp_eq_u32 s59, 1")
        a("s_cbranch_scc1 L_w_ma_0")
        a("s_cmp_eq_u32 s59, 2")
        a("s_cbranch_scc1 L_w_mk_0")
        a("s_branch L_w_mk2_0")
        a("L_wret:")
        a("s_mov_b64 exec, -1")
        stampat(2)
    if pf:
        a("s_cmp_lg_u32 s59, 2")
        a("s_cbranch_scc1 L_aux4")
        srd(32, 56, 1409024); srd(36, 64, 1409024); srd(40, 72, 1409024)
        a("s_and_b32 s64, s2, 7")
        a("s_min_u32 s66, s64, 3")
        a("s_mul_i32 s67, s64, 5")
        a("s_add_u32 s66, s66, s67")
        a("s_cmp_lt_u32 s64, 3")
        a("s_cselect_b32 s67, 6, 5")
        a("s_lshr_b32 s69, s2, 3")
        a("v_and_b32 v41, 7, v0")
        a("v_lshrrev_b32 v40, 3, v0")
        a("v_mul_u32_u24 v40, 2752, v40")
        a("v_lshl_add_u32 v40, v41, 6, v40")
        a("s_mul_i32 s52, s69, 44032")
        a("s_lshl_b32 s53, s66, 6")
        a("s_add_u32 s52, s52, s53")
        a("s_add_u32 s53, s52, 22016")
        a("v_cmp_gt_u32 s[72:73], s67, v41")
        a("s_lshl_b32 s54, s66, 15")
        a("s_mul_i32 s58, s69, s67")
        a("s_lshl_b32 s58, s58, 10")
        a("s_add_u32 s54, s54, s58")
        a("s_add_u32 s58, s54, 0x1000")
        a("v_lshlrev_b32 v46, 6, v0")
        a("s_cmp_eq_u32 s67, 6")
        a("s_cselect_b32 s70, -1, 0xffff")
        a(f"v_min_u32 v39, {pf_cnt - 1}, v41")
        a("v_lshlrev_b32 v39, 9, v39")
        a(f"v_add_u32 v39, {L_OP}, v39")
        lds_wait("k2", 39, 41, 2)
        if pf_delay: a(f"s_sleep {pf_delay}")
        a("s_mov_b64 exec, s[72:73]")
        for k, (sr, so) in enumerate(((32, 52), (36, 52), (32, 53), (36, 53))):
            a(f"buffer_load_dword v{42+k}, v40, s[{sr}:{sr+3}], s{so} offen")
        a("s_mov_b64 exec, -1")
        a("buffer_load_dword v47, v46, s[40:43], s54 offen")
        a("s_mov_b32 exec_lo, s70")
        a("s_mov_b32 exec_hi, 0")
        a("buffer_load_dword v48, v46, s[40:43], s58 offen")
        a("s_mov_b64 exec, -1")
        a("s_waitcnt vmcnt(0)")
    a("s_branch L_aux4")
    a("L_coop:")
    a("s_lshl_b32 s58, s56, 2")
    a("s_add_u32 s58, s58, s57")
    a("v_lshlrev_b32 v40, 17, v2")
    a("v_lshl_or_b32 v40, v3, 4, v40")
    a("s_lshl_b32 s71, s58, 19")
    a("s_lshl_b32 s72, s55, 8")
    a("s_or_b32 s71, s71, s72")
    a("v_lshrrev_b32 v41, 3, v3")
    a("v_lshlrev_b32 v42, 10, v41")
    a("v_lshl_add_u32 v42, v2, 5, v42")
    a("s_lshl_b32 s72, s58, 7")
    a("buffer_load_dwordx4 v[44:47], v1, s[4:7], 0 offen")
    a("buffer_load_dwordx4 v[48:51], v1, s[4:7], 0 offen offset:1024")
    a("buffer_load_dwordx4 v[52:55], v42, s[4:7], s72 offen")
    a("buffer_load_dwordx4 v[56:59], v42, s[4:7], s72 offen offset:16")
    for i in range(16):
        r = 72 + 4 * i
        a(f"buffer_load_dwordx4 v[{r}:{r+3}], v40, s[8:11], s71 offen {wq_aux}")
        if i < 15: a("s_add_u32 s71, s71, s65")
    a("s_barrier")
    a("v_and_b32 v12, 1, v0")
    a("v_lshlrev_b32 v12, 4, v12")
    a("v_mov_b32 v13, 0xffff")
    a("v_lshlrev_b32 v12, v12, v13")
    a("v_bfe_u32 v13, v0, 1, 2")
    for r in range(4):
        a(f"v_cmp_eq_u32 vcc, {r}, v13")
        a(f"v_cndmask_b32 v{4+r}, 0, v12, vcc")
    a("v_cmp_eq_u32 s[66:67], 1, v41")
    a("s_waitcnt vmcnt(18) lgkmcnt(0)")
    epoch_calc()
    unpack(44, 24)
    unpack(48, 60)
    m0 = len(a.lines)
    ln_sums(24, 12, 68, 69, 70)
    l1 = a.lines[m0:]; del a.lines[m0:]
    ln_sums(60, 32, 76, 77, 78)
    l2 = a.lines[m0:]; del a.lines[m0:]
    for x, y in zip(l1, l2):
        a(x); a(y)
    for k, d in enumerate((60, 61, 62)):
        a(f"v_mov_b32 v{d}, s{68+k}")
        a(f"v_mov_b32 v63, s{76+k}")
        a(f"v_cndmask_b32 v{d}, v{d}, v63, s[66:67]")
    ln_finish("v60", 61, 62, 63)
    a("s_waitcnt vmcnt(16)")
    unpack(52, 24, 8)
    ln_apply(24, 24, 61, 62, 16)
    for i in range(16):
        a(f"v_cvt_pk_bf16_f32 v{24+i}, v{24+i}, v{24+i}")
    for i in range(16):
        t = 12 + 4 * (i & 1)
        for r in range(4):
            a(f"v_and_b32 v{t+r}, v{24+i}, v{4+r}")
        a(f"s_waitcnt vmcnt({15-i})")
        c = "0" if i == 0 else "v[20:23]"
        a(f"v_mfma_f32_16x16x32_bf16 v[20:23], v[{t}:{t+3}], v[{72+4*i}:{75+4*i}], {c}")
    a("v_lshrrev_b32 v40, 5, v0")
    a("v_lshlrev_b32 v40, 12, v40")
    a("v_and_b32 v41, 31, v0")
    a("v_lshl_add_u32 v40, v41, 4, v40")
    a("s_lshl_b32 s71, s55, 13")
    a(f"s_add_u32 s71, s71, {WS_QX}")
    a("s_lshl_b32 s72, s58, 9")
    a("s_add_u32 s72, s72, s71")
    a("v_mov_b32 v12, s31")
    for r in range(4):
        a(f"v_add_u32 v{20+r}, 0x80, v{20+r}")
    for r in range(4):
        a(f"v_and_or_b32 v{20+r}, v{20+r}, v12, s{60+r}")
    if not force_fb:
        a("buffer_store_dwordx4 v[20:23], v40, s[24:27], s72 offen")
    stampat(1)
    a("s_lshl_b32 s72, s56, 12")
    a("s_add_u32 s71, s71, s72")
    a("v_and_b32 v41, 1, v2")
    a("v_lshlrev_b32 v41, 3, v41")
    a("v_lshl_add_u32 v41, v3, 4, v41")
    a(f"v_add_u32 v41, {L_QB}, v41")
    a(f"s_movk_i32 s75, {qtries}")
    a("L_pX:")
    if qsleep: a(f"s_sleep {qsleep}")
    for k in range(4):
        a(f"buffer_load_dwordx4 v[{44+4*k}:{47+4*k}], v1, s[24:27], s71 offen offset:{1024*k} sc1")
    a("s_sub_u32 s75, s75, 1")
    a("s_cbranch_scc1 L_giveup")
    a("s_waitcnt vmcnt(0)")
    untag_check(list(range(44, 60)), 60, "pX")
    for r in range(4):
        a(f"v_add_f32 v{44+r}, v{44+r}, v{48+r}")
        a(f"v_add_f32 v{52+r}, v{52+r}, v{56+r}")
    for r in range(4): a(f"v_add_f32 v{44+r}, v{44+r}, v{52+r}")
    swap_add([44, 45, 46, 47], 48, "v_permlane32_swap_b32")
    a("v_cvt_pk_bf16_f32 v44, v44, v45")
    a("v_cvt_pk_bf16_f32 v45, v46, v47")
    a("ds_write_b64 v41, v[44:45]")
    a("v_lshlrev_b32 v8, 3, v0")
    a(f"v_add_u32 v11, {L_OP}, v8")
    a("s_branch L_qdone")
    a("L_giveup:")
    a(f"v_mov_b32 v12, {L_FB}")
    a("v_mov_b32 v13, 1")
    a("ds_write_b32 v12, v13")
    a("s_waitcnt vmcnt(0)")
    a("L_fallback:")
    a("buffer_load_dwordx4 v[20:23], v1, s[4:7], s52 offen")
    for k in range(4):
        a(f"buffer_load_dwordx4 v[{56+4*k}:{59+4*k}], v10, s[4:7], s53 offen offset:{16*k}")
    QR = 24
    q = dict(iss=0, landed=-1)
    def qreg(i): return 72 + 4 * (i % QR)
    def ld_wq():
        i = q["iss"]
        r = qreg(i)
        a(f"buffer_load_dwordx4 v[{r}:{r+3}], v8, s[8:11], s54 offen {wq_aux}")
        if i < 31: a("s_add_u32 s54, s54, s65")
        q["iss"] += 1
    def wait_wq(i):
        if i <= q["landed"]: return
        a(f"s_waitcnt vmcnt({q['iss'] - 1 - i})")
        q["landed"] = i
    for i in range(DQ): ld_wq()
    a(f"s_waitcnt vmcnt({DQ})")
    mark = len(a.lines)
    masks(12, 13)
    unpack(20, 24)
    ln_sums(24, 32, 68, 69, 70)
    a("v_mov_b32 v10, s69")
    a("v_mov_b32 v11, s70")
    ln_finish("s68", 10, 11, 9)
    unpack(56, 24, 16)
    ln_apply(24, 24, 10, 11, 32)
    for i in range(32):
        a(f"v_cvt_pk_bf16_f32 v{24+i}, v{24+i}, v{24+i}")
    body = a.lines[mark:]
    del a.lines[mark:]
    for k in range(0, len(body), chunk):
        if q["iss"] < QR:
            wait_wq(q["iss"] - DQ)
            ld_wq()
        for ln in body[k:k+chunk]: a(ln)
    for i in range(32):
        t = 12 + 4 * (i & 1)
        for r in range(4):
            a(f"v_and_b32 v{t+r}, v{24+i}, v{4+r}")
        if i <= q["landed"] and i % 4 == 0 and q["iss"] < 32 and q["iss"] - QR < i:
            wait_wq(q["landed"] + 1)
        wait_wq(i)
        while q["iss"] < 32 and q["iss"] - 1 - q["landed"] < DQ and q["iss"] - QR < i: ld_wq()
        c = "0" if i == 0 else "v[20:23]"
        a(f"v_mfma_f32_16x16x32_bf16 v[20:23], v[{t}:{t+3}], v[{qreg(i)}:{qreg(i)+3}], {c}")
    assert q["iss"] == 32
    a("s_lshl_b32 s52, s59, 9")
    a(f"s_add_u32 s52, s52, {L_QP}")
    a("v_lshlrev_b32 v8, 5, v3")
    a("v_lshl_add_u32 v8, v2, 4, v8")
    a("v_add_u32 v8, s52, v8")
    a("s_mov_b32 exec_hi, 0")
    a("ds_write_b128 v8, v[20:23]")
    a("s_mov_b64 exec, -1")
    a("s_cmp_lg_u32 s59, 0")
    a("s_cbranch_scc1 L_aux4")
    a("v_lshlrev_b32 v8, 3, v0")
    a(f"v_add_u32 v11, {L_OP}, v8")
    a("v_lshlrev_b32 v9, 2, v0")
    a(f"v_add_u32 v10, {L_QB}, v9")
    spin_head("pQ")
    for w in range(4):
        a(f"ds_read_b64 v[{12+2*w}:{13+2*w}], v11 offset:{L_QP - L_OP + 512*w}")
    spin_bail("pQ")
    a("s_waitcnt lgkmcnt(0)")
    empty_check(list(range(12, 20)), 20, "pQ")
    for w in range(1, 4):
        a(f"v_add_f32 v12, v12, v{12+2*w}")
        a(f"v_add_f32 v13, v13, v{13+2*w}")
    a("v_cvt_pk_bf16_f32 v12, v12, v13")
    a("ds_write_b32 v10, v12")
    a("L_qdone:")
    stampat(2)
    a("v_and_b32 v9, 7, v0")
    a("v_lshlrev_b32 v9, 3, v9")
    a(f"v_add_u32 v9, {L_MB}, v9")
    spin_head("pM")
    a("s_sleep 4")
    a("ds_read_b64 v[12:13], v9")
    spin_bail("pM")
    a("s_waitcnt lgkmcnt(0)")
    empty_check([12, 13], 14, "pM")
    oct_ = ("quad_perm:[1,0,3,2]", "quad_perm:[2,3,0,1]", "row_half_mirror")
    a("v_mov_b32 v16, v12")
    dpp_steps([16], oct_, "v_max_f32")
    a("v_sub_f32 v14, v12, v16")
    a(f"v_mul_f32 v14, {LOG2E:#x}, v14")
    a("v_exp_f32 v14, v14")
    a("v_mul_f32 v17, v13, v14")
    dpp_steps([17], oct_)
    a("s_getreg_b32 s53, hwreg(HW_REG_XCC_ID, 0, 4)")
    a("s_xor_b32 s53, s53, s29")
    a("v_mov_b32 v18, s29")
    a("v_mov_b32 v19, s53")
    a("s_lshl_b32 s52, s55, 1")
    a("s_add_u32 s52, s52, s56")
    a("s_lshl_b32 s52, s52, 2")
    a("s_add_u32 s52, s52, s57")
    a("s_lshl_b32 s53, s52, 7")
    a(f"s_add_u32 s53, s53, {WS_MLX}")
    a("s_lshl_b32 s52, s52, 9")
    a(f"s_add_u32 s52, s52, {WS_OP}")
    a("s_mov_b64 exec, 1")
    a("buffer_store_dwordx4 v[16:19], v8, s[24:27], s53 offen sc1")
    a("s_mov_b64 exec, -1")
    a(f"s_add_u32 s53, s52, {WS_OS - WS_OP}")
    stampat(3)
    for w in range(8):
        a(f"v_readlane_b32 s{44+w}, v14, {w}")
    a("v_and_b32 v9, 1, v0")
    a("v_lshlrev_b32 v9, 4, v9")
    a("v_lshrrev_b32 v9, v9, s29")
    a("v_bfe_u32 v10, v9, 8, 8")
    a("v_and_b32 v9, 0xff, v9")
    a("s_setprio 2")
    spin_head("pO")
    if osleep: a(f"s_sleep {osleep}")
    for w in range(8):
        a(f"ds_read_b64 v[{12+2*w}:{13+2*w}], v11 offset:{512*w}")
    spin_bail("pO")
    a("s_waitcnt lgkmcnt(0)")
    a("v_max3_u32 v28, v12, v14, v16")
    a("v_max3_u32 v29, v18, v20, v22")
    a("v_max3_u32 v28, v28, v24, v26")
    a("v_max_u32 v28, v28, v29")
    a("v_cmp_eq_u32 vcc, -1, v28")
    a("s_cbranch_vccnz L_pO")
    a("L_pO_ok:")
    if warm: a(";@warm ct L_wret1")
    stampat(5)
    a("v_mul_f32 v12, s44, v12"); a("v_mul_f32 v13, s44, v13")
    a("v_mul_f32 v20, s48, v20"); a("v_mul_f32 v21, s48, v21")
    for w in range(1, 4):
        a(f"v_fmac_f32 v12, s{44+w}, v{12+2*w}"); a(f"v_fmac_f32 v13, s{44+w}, v{13+2*w}")
        a(f"v_fmac_f32 v20, s{48+w}, v{20+2*w}"); a(f"v_fmac_f32 v21, s{48+w}, v{21+2*w}")
    a("v_add_f32 v12, v12, v20"); a("v_add_f32 v13, v13, v21")
    a("v_and_or_b32 v12, v12, s31, v9")
    a("v_and_or_b32 v13, v13, s31, v10")
    if local:
        a("buffer_store_dwordx2 v[12:13], v8, s[24:27], s52 offen")
    a("buffer_store_dwordx2 v[12:13], v8, s[24:27], s53 offen sc1")
    if warm: a(";@endwarm")
    stampat(6)
    a("L_aux4:")
    a(f"s_cmp_lt_u32 s2, {NMLP}")
    a("s_cbranch_scc1 L_aux5")
    a("s_cmp_lg_u32 s57, 1")
    a("s_cbranch_scc1 L_fin")
    a("L_aux5:")
    a("s_setprio 3")
    a("v_lshrrev_b32 v33, 2, v3")
    a("v_lshl_add_u32 v33, v2, 3, v33")
    a("v_and_b32 v34, 3, v0")
    a("v_bfe_u32 v6, v3, 2, 1")
    a(f"v_mul_u32_u24 v6, {APITCH}, v6")
    a("v_lshl_add_u32 v6, v2, 4, v6")
    a(f"v_add_u32 v6, {L_A}, v6")
    a(f"v_mov_b32 v35, {L_FL}")
    def gemm16(acc, filler=()):
        filler = list(filler)
        NB = 11 if acc2 else 12
        for ks in range(NB):
            a(f"ds_read_b128 v[{16+4*ks}:{19+4*ks}], v6 offset:{64*ks}")
        issued = NB
        per = (len(filler) + 13) // 14 if filler else 0
        waited = -1
        for ks in range(16):
            if ks > waited:
                tgt = min(ks + (wgrp - 1 if ks else 0), issued - 1)
                a(f"s_waitcnt lgkmcnt({issued - 1 - tgt})")
                waited = tgt
            ab = 16 + 4 * (ks % NB)
            ac = 60 if (acc2 and ks & 1) else acc
            c = "0" if ks < (2 if acc2 else 1) else f"v[{ac}:{ac+3}]"
            a(f"v_mfma_f32_16x16x32_bf16 v[{ac}:{ac+3}], v[{ab}:{ab+3}], v[{64+4*ks}:{67+4*ks}], {c}")
            if issued < 16:
                a(f"ds_read_b128 v[{ab}:{ab+3}], v6 offset:{64*issued}")
                issued += 1
            for _ in range(per):
                if filler: a(filler.pop(0))
        for ln in filler: a(ln)
        if acc2: a(f"v_add_f32 v{acc}, v{acc}, v60")
    a(f"s_cmp_lt_u32 s2, {NMLP}")
    a("s_cbranch_scc1 L_aux_m")
    a("v_lshlrev_b32 v10, 7, v33")
    a("v_lshl_add_u32 v10, v34, 3, v10")
    a("s_lshl_b32 s52, s59, 5")
    a("v_add_u32 v10, s52, v10")
    a("v_lshlrev_b32 v7, 3, v34")
    a("v_lshrrev_b32 v7, v7, s29")
    a("v_and_b32 v7, 0xff, v7")
    a("v_lshlrev_b32 v5, 2, v0")
    a("s_and_b32 s70, s2, 63")
    a("s_lshl_b32 s70, s70, 2")
    a("s_add_u32 s70, s70, s59")
    a("s_lshl_b32 s70, s70, 7")
    a(f"s_add_u32 s70, s70, {WS_ZX}")
    if zcopy:
        a("v_and_b32 v5, 31, v0")
        a("v_lshlrev_b32 v5, 2, v5")
        a("v_lshrrev_b32 v11, 5, v0")
        a("v_lshl_add_u32 v5, v11, 15, v5")
        for k in range(1, 4):
            a(f"s_add_u32 s{70+k}, s70, {k * 0x10000}")
    for kw in range(8):
        lds_wait(f"fr{kw}", 35, 12, 2 if kw == 0 else 0, off=4*kw)
        for ks in (2*kw, 2*kw+1):
            for hh in range(2):
                d = 64 + 4 * ks + 2 * hh
                a(f"ds_read_b64_tr_b16 v[{d}:{d+1}], v10 offset:{ks*4096 + hh*512}")
    a("s_waitcnt lgkmcnt(0)")
    stampat(7)
    if warm: a(";@warm ra L_wret")
    a("s_barrier")
    gemm16(12)
    if zcopy:
        a("v_and_or_b32 v12, v12, s31, v7")
        for k in range(4):
            a(f"buffer_store_dword v12, v5, s[24:27], s{70+k} offen sc1")
    else:
        a("s_mov_b32 exec_hi, 0")
        a("v_and_or_b32 v12, v12, s31, v7")
        a("buffer_store_dword v12, v5, s[24:27], s70 offen sc1")
        a("s_mov_b64 exec, -1")
    if warm: a(";@endwarm")
    stampat(8)
    a("s_branch L_fin")
    a("L_aux_m:")
    a("v_lshlrev_b32 v10, 6, v33")
    a("v_and_b32 v11, 1, v0")
    a("v_lshl_add_u32 v10, v11, 3, v10")
    a("v_bfe_u32 v11, v0, 1, 1")
    a(f"v_mul_u32_u24 v11, {L_UP}, v11")
    a("v_add_u32 v10, v11, v10")
    a("s_lshl_b32 s52, s59, 4")
    a("v_add_u32 v10, s52, v10")
    a(f"v_mul_u32_u24 v36, {DNP}, v33")
    a("v_lshl_add_u32 v36, v34, 3, v36")
    a("s_lshl_b32 s52, s59, 8")
    a(f"s_add_u32 s52, s52, {L_DN}")
    a("v_add_u32 v36, s52, v36")
    a("v_and_b32 v4, 1, v2")
    a("v_lshlrev_b32 v9, 10, v4")
    a("buffer_load_ushort v165, v9, s[4:7], 0 offen")
    a("v_lshlrev_b32 v166, 8, v4")
    a("v_lshl_add_u32 v166, v3, 4, v166")
    a(f"v_add_u32 v166, {L_ST}, v166")
    a("v_lshlrev_b32 v4, 6, v4")
    a("v_lshl_add_u32 v4, v3, 1, v4")
    a("s_lshl_b32 s52, s59, 4")
    a(f"s_add_u32 s52, s52, {L_ACT}")
    a("v_add_u32 v4, s52, v4")
    a("v_and_b32 v8, 1, v3")
    a("v_lshlrev_b32 v8, 6, v8")
    a("v_lshl_add_u32 v8, v2, 4, v8")
    a(f"v_add_u32 v8, {L_ACT}, v8")
    a(f"v_mov_b32 v11, {L_ZERO}")
    a("v_lshrrev_b32 v9, 2, v3")
    for u in range(4):
        a(f"v_cmp_eq_u32 vcc, {u}, v9")
        a(f"v_cndmask_b32 v{160+u}, v11, v8, vcc")
    a("v_mul_u32_u24 v5, 5504, v2")
    a("v_lshl_add_u32 v5, v3, 3, v5")
    a("s_mul_i32 s52, s59, 44032")
    a("s_lshl_b32 s53, s2, 7")
    a("s_add_u32 s52, s52, s53")
    a(f"s_add_u32 s52, s52, {WS_Y}")
    a("s_add_u32 s53, s52, 22016")
    a("v_and_b32 v7, 1, v0")
    a("v_lshlrev_b32 v7, 4, v7")
    a("v_lshrrev_b32 v7, v7, s29")
    a("v_bfe_u32 v164, v7, 8, 8")
    a("v_and_b32 v7, 0xff, v7")
    for r in range(4): a(f"v_mov_b32 v{40+r}, 0x3f803f80")
    for kw in range(8):
        lds_wait(f"fm{kw}", 35, 12, 2 if kw == 0 else 0, off=4*kw)
        if kw > 0:
            for ks in (2*kw-2, 2*kw-1):
                c = "0" if ks == 0 else "v[44:47]"
                a(f"v_mfma_f32_16x16x32_bf16 v[44:47], v[40:43], v[{64+4*ks}:{67+4*ks}], {c}")
        for ks in (2*kw, 2*kw+1):
            for hh in range(2):
                d = 64 + 4 * ks + 2 * hh
                a(f"ds_read_b64_tr_b16 v[{d}:{d+1}], v10 offset:{ks*2048 + hh*256}")
    a("s_waitcnt lgkmcnt(0) vmcnt(0)")
    for ks in (14, 15):
        a(f"v_mfma_f32_16x16x32_bf16 v[44:47], v[40:43], v[{64+4*ks}:{67+4*ks}], v[44:47]")
    a("v_lshlrev_b32 v165, 16, v165")
    a("v_mov_b32 v167, v44")
    a("v_and_b32 v11, 7, v0")
    a("v_lshlrev_b32 v11, 2, v11")
    a(f"v_add_u32 v11, {L_FD}, v11")
    lds_wait("fd", 11, 12, 0)
    for t in range(8):
        for hh in range(2):
            d = 128 + 4 * t + 2 * hh
            a(f"ds_read_b64_tr_b16 v[{d}:{d+1}], v36 offset:{hh*4*DNP + t*32}")
    a("s_waitcnt lgkmcnt(0)")
    stampat(7)
    if warm: a(";@warm ma L_wret")
    a("s_barrier")
    a("ds_read_b128 v[8:11], v166")
    mark = len(a.lines)
    a("v_add_f32 v8, v8, v10")
    a("v_add_f32 v9, v9, v11")
    dpp_steps([8, 9], ("quad_perm:[1,0,3,2]", "quad_perm:[2,3,0,1]", "row_half_mirror", "row_mirror"))
    ln_finish("v165", 8, 9, 10)
    a("v_and_b32 v166, 31, v0")
    a("v_lshlrev_b32 v166, 2, v166")
    a(f"v_add_u32 v166, {L_ACT}, v166")
    fill = a.lines[mark:]
    del a.lines[mark:]
    gemm16(12, fill)
    a("v_fma_f32 v12, -v8, v167, v12")
    a("v_mul_f32 v12, v12, v9")
    a("v_mul_f32 v13, 0xbfb8aa3b, v12")
    a("v_exp_f32 v13, v13")
    a("v_mul_f32_dpp v14, v12, v12 row_ror:8 row_mask:0xf bank_mask:0xf")
    a("v_add_f32 v13, 1.0, v13")
    a("v_rcp_f32 v13, v13")
    a("v_mul_f32 v13, v14, v13")
    a("v_mov_b32_dpp v14, v13 quad_perm:[1,0,3,2] row_mask:0xf bank_mask:0xf")
    a("v_cvt_pk_bf16_f32 v13, v13, v14")
    a("s_mov_b64 exec, 0x00550055")
    a("ds_write_b32 v4, v13")
    a("s_mov_b64 exec, -1")
    stampat(9)
    spin_head("pG")
    a("ds_read_b32 v32, v166")
    for u in range(4):
        a(f"ds_read_b128 v[{16+4*u}:{19+4*u}], v{160+u}")
    spin_bail("pG")
    a("s_waitcnt lgkmcnt(4)" if not stamps else "s_waitcnt lgkmcnt(0)")
    empty_check([32], 32, "pG")
    for u in range(4):
        a(f"s_waitcnt lgkmcnt({3-u})")
        for hf in range(2):
            acc = 8 + 4 * hf
            t = hf * 4 + u
            c = "0" if u == 0 else f"v[{acc}:{acc+3}]"
            a(f"v_mfma_f32_16x16x32_bf16 v[{acc}:{acc+3}], v[{16+4*u}:{19+4*u}], v[{128+4*t}:{131+4*t}], {c}")
    for hf in range(2):
        r = 8 + 4 * hf
        a(f"v_and_or_b32 v{r}, v{r}, s31, v7")
        a(f"v_and_or_b32 v{r+1}, v{r+1}, s31, v164")
        a(f"buffer_store_dwordx2 v[{r}:{r+1}], v5, s[24:27], s{52+hf} offen sc1")
    if warm: a(";@endwarm")
    stampat(8)

    a("L_fin:")
    if stamps:
        a("s_waitcnt lgkmcnt(0)")
        a("s_mul_i32 s64, s3, 80")
        a(f"s_add_u32 s64, s64, {L_STAMP}")
        a("v_mov_b32 v40, s64")
        a("s_mov_b64 exec, 1")
        for i in range(10):
            a(f"v_mov_b32 v12, s{80+2*i}")
            a(f"v_mov_b32 v13, s{81+2*i}")
            a(f"ds_write_b64 v40, v[12:13] offset:{8*i}")
        a("s_mov_b64 exec, -1")
        a("s_waitcnt lgkmcnt(0)")
        if href:
            a(f"s_cmp_lg_u32 s3, {href[0]}")
            a("s_cbranch_scc1 L_end")
            a("s_cmp_lt_u32 s2, 128")
            a("s_cbranch_scc1 L_end")
            a("L_hold2:")
            a("s_sleep 2")
            a("s_memrealtime s[66:67]")
            a("s_waitcnt lgkmcnt(0)")
            a(f"s_sub_u32 s66, s66, s{80 + 2 * href[1]}")
            a("s_cmp_lt_u32 s66, 3000")
            a("s_cbranch_scc1 L_hold2")
            a("s_branch L_end")
        a("s_cmp_lg_u32 s3, 9")
        a("s_cbranch_scc1 L_end")
        if hold_x is not None:
            a(f"s_cmp_lg_u32 s2, {128 + hold_x}")
            a("s_cbranch_scc1 L_end")
        a("L_hold:")
        a(f"s_sleep {32 if hold_x is None else 2}")
        a("s_memrealtime s[66:67]")
        a("s_waitcnt lgkmcnt(0)")
        a("s_sub_u32 s66, s66, s80")
        a(f"s_cmp_lt_u32 s66, {hold_t}")
        a("s_cbranch_scc1 L_hold")
        a(f"v_add_u32 v40, {L_STAMP}, v1")
        a("ds_read_b128 v[12:15], v40")
        a("s_mul_i32 s64, s2, 1280")
        a(f"s_add_u32 s64, s64, {512<<20}")
        a("v_add_u32 v40, s64, v1")
        a("s_waitcnt lgkmcnt(0)")
        a("global_store_dwordx4 v40, v[12:15], s[24:25]")
    a("L_end:")
    a("s_endpgm")
    a('.section .rodata,"a"')
    a(".p2align 6")
    a(f".amdhsa_kernel {NAME}_kernel")
    a(f"  .amdhsa_next_free_vgpr {NVGPR}")
    a("  .amdhsa_next_free_sgpr 102")
    a(f"  .amdhsa_accum_offset {NVGPR}")
    a("  .amdhsa_group_segment_fixed_size 0")
    a("  .amdhsa_kernarg_size 104")
    a("  .amdhsa_user_sgpr_count 2")
    a("  .amdhsa_user_sgpr_kernarg_segment_ptr 1")
    a("  .amdhsa_system_sgpr_workgroup_id_x 1")
    a(".end_amdhsa_kernel")
    return add_pads(a.finalize(), warm) if warm else a.finalize()

if __name__ == "__main__":
    out = sys.argv[1]
    kw = eval("dict(" + (sys.argv[2] if len(sys.argv) > 2 else "") + ")")
    open(out, "w").write(gen(**kw))
```

```python
import sys, json
from asmlib import Asm, add_pads
from gen import HDR, NAME

WS_EP = 0
WS_MLX = 0x1000
WS_OP = 0x9000
WS_OS = 0x29000
WS_ZX = 0x49000
WS_QX = 0x51000
WS_Y = 0xD1000
WS_SIZE = WS_Y + 43 * 4096
L_UP = 0x8020
L_DN = 0x10040
DNP = 1056
L_INIT = 0x18800
L_OP = L_INIT
L_QP = L_INIT + 0x1000
L_QB = L_INIT + 0x1800
L_MB = L_INIT + 0x1900
L_FL = L_INIT + 0x1940
L_ACT = L_INIT + 0x1980
L_SG = L_INIT + 0x1A00
L_FB = L_INIT + 0x1A40
L_HF = L_INIT + 0x1A60
L_FD = L_FL + 0x20
L_ZERO = L_INIT + 0x1C00
L_A = L_INIT + 0x1D00
APITCH = 1088
L_ST = L_A + 0x900
L_STAMP = L_ST + 0x200
LDS_SIZE = L_STAMP + 0x400
NMLP = 43
SPIN = 100000
LOG2E = 0x3fb8aa3b
SCALE = 0x3db504f3
NVGPR = 168

DOC = """;
; One persistent launch, one workgroup per CU: wg = split*64 + b*32 + h  (1024 keys of one (batch, head)).
;   waves 0..7  : stream K then V (nt loads, 3-4 KiB-deep ring), scores by v_dot2c + transposing DPP reduce,
; launch advances; where producer and consumer share an L2 a plain-store copy is read, else the write-through copy.
; The s_cbranch_execz chains let idle waves pull the tail code into the instruction cache.
"""

def gen(stamps=False, D0=2, N0=4, D=3, Dm=4, Dr=4, NPRE=24, ring=31, DQ=6,
        gvec=(0,1,5,6,7,8,9), wbit=2, gx=((3,0),(4,1),(5,5)), kv_aux="nt", wq_aux="", wo_aux="", mlp_aux="", dn_aux="",
        no_stage=False, CU=4, chunk=24, cdelay=0, local=True, osleep=0, rot_m=8, rot_r=16, c3=96|24,
        bm_from=0, br_from=0, early_m=1, early_r=4, hold_x=None, hold_t=4500, bsleep=2, aux_prio=0, noround=False, zcopy=False, masked=False, ins_r=None, ins_m=None, prep_at=12, qtries=8, qsleep=12, force_fb=False, fmap=True, falt=False, dn_lead=2, href=None, warm=64, acc2=False, wgrp=4, Dp=3, bp_from=64, pf=False, pf_delay=0, pf_cnt=8, yprio=0, yskip=(), maskA=False, heads=False, hdelay=0, phases=None, kvwarm=0, nosent=False, psleep=0):
    a = Asm()
    n = 32
    def stampat(i):
        if stamps:
            a(f"s_memrealtime s[{80+2*i}:{81+2*i}]")

    a(HDR + f"; @launch grid=(256,1,1) block=(768,1,1) lds={LDS_SIZE if stamps else L_STAMP}\n" + DOC.rstrip())
    a('.amdgcn_target "amdgcn-amd-amdhsa--gfx950"')
    a(".text")
    a(f".globl {NAME}_kernel")
    a(".p2align 8")
    a(f".type {NAME}_kernel,@function")
    a(f"{NAME}_kernel:")
    stampat(0)
    a("s_load_dwordx2 s[12:13], s[0:1], 8")
    a("s_load_dwordx2 s[4:5], s[0:1], 0")
    a("s_load_dwordx2 s[8:9], s[0:1], 24")
    a("s_load_dwordx2 s[24:25], s[0:1], 96")
    if stamps:
        for i in range(1, 10):
            a(f"s_mov_b64 s[{80+2*i}:{81+2*i}], 0")
    a("s_cmp_ge_u32 s2, 256")
    a("s_cbranch_scc1 L_end")
    a("v_lshrrev_b32 v2, 6, v0")
    a("v_and_b32 v0, 63, v0")
    a("v_readfirstlane_b32 s3, v2")
    a("v_lshlrev_b32 v1, 4, v0")
    a("s_mov_b32 s14, 0x10000000")
    a("s_mov_b32 s15, 0x20000")
    a("s_movk_i32 s6, 2048")
    a("s_mov_b32 s7, 0x20000")
    a(f"s_mov_b32 s26, {WS_SIZE}")
    a("s_mov_b32 s27, 0x20000")
    a("s_lshr_b32 s57, s2, 6")
    a("s_cmp_ge_u32 s3, 8")
    a("s_cbranch_scc1 L_aux")

    def epoch_load():
        a("s_load_dword s28, s[24:25], 0")
    def epoch_calc():
        a("s_and_b32 s29, s28, 0x7f7f7f7f")
        a("s_add_u32 s29, s29, 0x07050301")
        a("s_and_b32 s30, s28, 0x80808080")
        a("s_xor_b32 s29, s29, s30")
        for k in range(4):
            a(f"s_bfe_u32 s{60+k}, s29, {(8*k) | (8 << 16):#x}")
        a("s_mov_b32 s31, 0xffffff00")
    def srd(base, off, size):
        a(f"s_load_dwordx2 s[{base}:{base+1}], s[0:1], {off}")
        a(f"s_mov_b32 s{base+2}, {size}")
        a(f"s_mov_b32 s{base+3}, 0x20000")
    def masks(t0, t1):
        a(f"v_and_b32 v{t0}, 1, v0")
        a(f"v_lshlrev_b32 v{t0}, 4, v{t0}")
        a(f"v_mov_b32 v{t1}, 0xffff")
        a(f"v_lshlrev_b32 v{t0}, v{t0}, v{t1}")
        a(f"v_bfe_u32 v{t1}, v0, 1, 3")
        for r in range(4):
            a(f"v_cmp_eq_u32 vcc, {r}, v{t1}")
            a(f"v_cndmask_b32 v{4+r}, 0, v{t0}, vcc")
    def unpack(src, dst, n=4):
        for k in range(n):
            a(f"v_lshlrev_b32 v{dst+2*k}, 16, v{src+k}")
            a(f"v_and_b32 v{dst+2*k+1}, 0xffff0000, v{src+k}")
    def dpp_steps(regs, steps, op="v_add_f32"):
        for m in steps:
            for r in regs:
                a(f"{op}_dpp v{r}, v{r}, v{r} {m} row_mask:0xf bank_mask:0xf")
    def wave_reduce(regs, op="v_add_f32"):
        dpp_steps(regs, ("row_shr:1", "row_shr:2", "row_shr:4", "row_shr:8"), op)
        for r in regs:
            a(f"{op}_dpp v{r}, v{r}, v{r} row_bcast:15 row_mask:0xa bank_mask:0xf")
        for r in regs:
            a(f"{op}_dpp v{r}, v{r}, v{r} row_bcast:31 row_mask:0xc bank_mask:0xf")
    def bf16r(r):
        a(f"v_cvt_pk_bf16_f32 v{r}, v{r}, v{r}")
        a(f"v_lshlrev_b32 v{r}, 16, v{r}")
    def ln_sums(f, t, sc, o1, o2):
        a(f"v_readfirstlane_b32 s{sc}, v{f}")
        for i in range(8):
            a(f"v_subrev_f32 v{t+i}, s{sc}, v{f+i}")
        s1, s2 = t + 8, t + 9
        a(f"v_add_f32 v{s1}, v{t}, v{t+1}")
        a(f"v_mul_f32 v{s2}, v{t}, v{t}")
        a(f"v_fmac_f32 v{s2}, v{t+1}, v{t+1}")
        for i in range(2, 8):
            a(f"v_add_f32 v{s1}, v{s1}, v{t+i}")
            a(f"v_fmac_f32 v{s2}, v{t+i}, v{t+i}")
        wave_reduce([s1, s2])
        a(f"v_readlane_b32 s{o1}, v{s1}, 63")
        a(f"v_readlane_b32 s{o2}, v{s2}, 63")
    def ln_finish(c, mb, rs, t):
        a(f"v_mul_f32 v{mb}, 0x3b000000, v{mb}")
        a(f"v_mul_f32 v{rs}, 0x3b000000, v{rs}")
        a(f"v_fma_f32 v{rs}, -v{mb}, v{mb}, v{rs}")
        a(f"v_add_f32 v{mb}, {c}, v{mb}")
        a(f"v_max_f32 v{rs}, 0, v{rs}")
        a(f"v_cvt_pk_bf16_f32 v{t}, v{mb}, v{rs}")
        a(f"v_lshlrev_b32 v{mb}, 16, v{t}")
        a(f"v_and_b32 v{rs}, 0xffff0000, v{t}")
        a(f"v_add_f32 v{rs}, 0x3727c5ac, v{rs}")
        bf16r(rs)
        a(f"v_sqrt_f32 v{rs}, v{rs}")
        bf16r(rs)
        a(f"v_rcp_f32 v{rs}, v{rs}")
    def ln_apply(f, t, mb, rs, n=8):
        mbs = mb if isinstance(mb, (list, tuple)) else [mb] * n
        rss = rs if isinstance(rs, (list, tuple)) else [rs] * n
        for i in range(n):
            a(f"v_sub_f32 v{t+i}, v{f+i}, v{mbs[i]}")
        for k in range(n // 2):
            a(f"v_cvt_pk_bf16_f32 v{t+2*k+1}, v{t+2*k}, v{t+2*k+1}")
        for k in range(n // 2):
            a(f"v_lshlrev_b32 v{t+2*k}, 16, v{t+2*k+1}")
            a(f"v_and_b32 v{t+2*k+1}, 0xffff0000, v{t+2*k+1}")
        for i in range(n):
            a(f"v_mul_f32 v{t+i}, v{t+i}, v{rss[i]}")
    def spin_head(tag):
        a(f"s_mov_b32 s75, {SPIN}")
        a(f"L_{tag}:")
    def spin_bail(tag):
        a("s_sub_u32 s75, s75, 1")
        a(f"s_cbranch_scc1 L_{tag}_ok")
    def untag_check(regs, t, tag, pre=None):
        for i, r in enumerate(regs):
            if pre and r in pre: continue
            a(f"v_xor_b32 v{r}, s{60 + (i & 3)}, v{r}")
        rs = list(regs)
        a(f"v_or3_b32 v{t}, v{rs[0]}, v{rs[1]}, v{rs[2]}")
        rs = rs[3:]
        while len(rs) >= 2:
            a(f"v_or3_b32 v{t}, v{t}, v{rs[0]}, v{rs[1]}")
            rs = rs[2:]
        if rs:
            a(f"v_or_b32 v{t}, v{t}, v{rs[0]}")
        a(f"v_and_b32 v{t}, 0xff, v{t}")
        a(f"v_cmp_ne_u32 vcc, 0, v{t}")
        a(f"s_cbranch_vccnz L_{tag}")
        a(f"L_{tag}_ok:")
    def empty_check(regs, t, tag):
        rs = list(regs)
        if len(rs) == 1:
            a(f"v_cmp_eq_u32 vcc, -1, v{rs[0]}")
        else:
            if len(rs) >= 3:
                a(f"v_max3_u32 v{t}, v{rs[0]}, v{rs[1]}, v{rs[2]}"); rs = rs[3:]
            else:
                a(f"v_max_u32 v{t}, v{rs[0]}, v{rs[1]}"); rs = rs[2:]
            while len(rs) >= 2:
                a(f"v_max3_u32 v{t}, v{t}, v{rs[0]}, v{rs[1]}"); rs = rs[2:]
            if rs: a(f"v_max_u32 v{t}, v{t}, v{rs[0]}")
            a(f"v_cmp_eq_u32 vcc, -1, v{t}")
        a(f"s_cbranch_vccnz L_{tag}")
        a(f"L_{tag}_ok:")
    def masked_poll(tag, loads, t, mb=52):
        for k in range(len(loads)):
            a(f"s_mov_b64 s[{mb+2*k}:{mb+1+2*k}], -1")
        spin_head(tag)
        for k, (r, txt) in enumerate(loads):
            a(f"s_mov_b64 exec, s[{mb+2*k}:{mb+1+2*k}]")
            a(txt)
        spin_bail(tag)
        for k, (r, txt) in enumerate(loads):
            a(f"s_mov_b64 exec, s[{mb+2*k}:{mb+1+2*k}]")
            a(f"s_waitcnt vmcnt({len(loads)-1-k})")
            for i in range(4):
                a(f"v_xor_b32 v{r+i}, s{60+i}, v{r+i}")
            a(f"v_or3_b32 v{t}, v{r}, v{r+1}, v{r+2}")
            a(f"v_or_b32 v{t}, v{t}, v{r+3}")
            a(f"v_and_b32 v{t}, 0xff, v{t}")
            a(f"v_cmp_ne_u32 s[{mb+2*k}:{mb+1+2*k}], 0, v{t}")
        a(f"s_or_b64 s[64:65], s[{mb}:{mb+1}], s[{mb+2}:{mb+3}]")
        for k in range(2, len(loads)):
            a(f"s_or_b64 s[64:65], s[64:65], s[{mb+2*k}:{mb+1+2*k}]")
        a(f"s_cbranch_scc1 L_{tag}")
        a(f"L_{tag}_ok:")
        a("s_mov_b64 exec, -1")
    def swap_add(regs, tmp, sw):
        for i, r in enumerate(regs): a(f"v_mov_b32 v{tmp+i}, v{r}")
        for i, r in enumerate(regs): a(f"{sw} v{tmp+i}, v{r}")
        for i, r in enumerate(regs): a(f"v_add_f32 v{r}, v{r}, v{tmp+i}")
    def round4(base):
        a(f"v_cvt_pk_bf16_f32 v{base+1}, v{base}, v{base+1}")
        a(f"v_cvt_pk_bf16_f32 v{base+3}, v{base+2}, v{base+3}")
        a(f"v_lshlrev_b32 v{base}, 16, v{base+1}")
        a(f"v_and_b32 v{base+1}, 0xffff0000, v{base+1}")
        a(f"v_lshlrev_b32 v{base+2}, 16, v{base+3}")
        a(f"v_and_b32 v{base+3}, 0xffff0000, v{base+3}")
    def lds_wait(tag, addr, t, sleep, off=0):
        spin_head(tag)
        if sleep: a(f"s_sleep {sleep}")
        a(f"ds_read_b32 v{t}, v{addr} offset:{off}")
        spin_bail(tag)
        a("s_waitcnt lgkmcnt(0)")
        empty_check([t], t, tag)
    def P(G):
        r = 0
        for k, b in enumerate(gvec):
            if G >> k & 1: r ^= 1 << b
        return r

    a("s_and_b32 s52, s2, 63")
    a("s_lshl_b32 s52, s52, 2")
    a("s_add_u32 s52, s52, 3")
    a("s_lshl_b32 s52, s52, 20")
    a(f"s_lshl_b32 s53, s3, {10 + wbit}")
    a("s_xor_b32 s52, s52, s53")
    gl = list(gx)
    while gl:
        k, b = gl.pop(0)
        nn = 1
        while gl and gl[0] == (k + nn, b + nn):
            gl.pop(0); nn += 1
        a(f"s_bfe_u32 s53, s2, {k | (nn << 16):#x}")
        a(f"s_lshl_b32 s53, s53, {10 + b}")
        a("s_xor_b32 s52, s52, s53")
    a("s_lshl_b32 s53, s57, 18")
    a("s_xor_b32 s52, s52, s53")
    if phases is None:
        a("s_lshl_b32 s53, s57, 16")
    else:
        tab = sum((ph >> 2) << (8 * i) for i, ph in enumerate(phases))
        a("s_lshl_b32 s53, s57, 3")
        a(f"s_lshr_b32 s53, {tab:#x}, s53")
        a("s_and_b32 s53, s53, 7")
        a("s_lshl_b32 s53, s53, 15")
    a("s_xor_b32 s52, s52, s53")
    assert tuple(gvec) == (0,1,5,6,7,8,9)
    RB = 44
    def ringreg(j): return RB + 4 * (j % ring)
    def ld_text(j, rot=0):
        sr = 12 if j < n else 16
        p = P(((j + rot) % n) ^ rot)
        r = ringreg(j)
        if p:
            a(f"s_xor_b32 s53, s52, {p << 10}")
            so = 53
        else:
            so = 52
        a(f"buffer_load_dwordx4 v[{r}:{r+3}], v1, s[{sr}:{sr+3}], s{so} offen {kv_aux}")
    a("s_waitcnt lgkmcnt(0)")
    for j in range(D0): ld_text(j)
    srd(16, 16, 0x10000000)
    epoch_load()
    a("s_mov_b32 s64, 0xcccccccc"); a("s_mov_b32 s65, 0xcccccccc")
    a("s_mov_b32 s66, 0xaaaaaaaa"); a("s_mov_b32 s67, 0xaaaaaaaa")
    masks(12, 13)
    a("v_and_b32 v12, 15, v0")
    a("v_lshlrev_b32 v12, 4, v12")
    a(f"v_add_u32 v12, {L_QB}, v12")
    if yprio or yskip:
        a("s_cmp_ge_u32 s3, 4")
        a("s_cselect_b64 vcc, -1, 0")
    if yprio:
        a("s_cbranch_scc0 L_np")
        a(f"s_setprio {yprio}")
        a("L_np:")
    a("s_barrier")
    for j in range(D0, N0):
        a(f"s_waitcnt vmcnt({D0-1})")
        ld_text(j)
    a(f"s_cmp_lt_u32 s2, {NMLP}")
    a("s_cbranch_scc1 L_kv_m")
    a("s_cmp_eq_u32 s57, 1")
    a("s_cbranch_scc1 L_kv_r")

    def stage_done(sr=3):
        a(f"s_lshl_b32 s73, s{sr}, 2")
        a(f"s_add_u32 s73, s73, {L_FL}")
        a("v_mov_b32 v26, s73")
        a("v_mov_b32 v27, 0")
        a("ds_write_b32 v26, v27")

    def kv_path(role, Dx, bfrom, early):
        st = dict(iss=N0, landed=N0 - D0 - 1, cons=0)
        order = list(range(N0))
        NT = 2 * n
        stage = []
        def depth(): return Dx if st["cons"] >= bfrom else D
        def ld_kv():
            j = st["iss"]
            ld_text(j, 0 if phases is None else {"p": 0, "m": phases[0], "r": phases[1]}[role])
            st["iss"] += 1
            order.append(j)
        def wait_kv(j):
            if j <= st["landed"]: return
            a(f"s_waitcnt vmcnt({len(order) - 1 - order.index(j)})")
            st["landed"] = j
        if role == "m":
            srd(44, 48, 1024); srd(48, 80, 2048); srd(32, 56, 1409024); srd(36, 64, 1409024); srd(40, 72, 1409024)
        if role == "r":
            srd(20, 32, 0x400000)
        while st["iss"] < NPRE:
            d = depth()
            if st["iss"] in yskip and role == "p":
                wait_kv(st["iss"] - d - 1)
                a(f"s_cbranch_vccnz L_ys{st['iss']}")
                a(f"s_waitcnt vmcnt({d-1})")
                a(f"L_ys{st['iss']}:")
            elif st["iss"] - 1 - st["landed"] >= d:
                wait_kv(st["iss"] - d)
            ld_kv()
        stampat(1)
        if kvwarm: a(f";@warm kv{role} L_kret {kvwarm}")
        spin_head("wq" + role)
        a("ds_read_b128 v[8:11], v12")
        spin_bail("wq" + role)
        a("s_waitcnt lgkmcnt(0)")
        empty_check([8, 9, 10, 11], 13, "wq" + role)
        a("s_waitcnt lgkmcnt(0)")
        if role != "p": epoch_calc()
        stampat(2)
        def reduce_scores(dst):
            for i in range(8):
                a(f"v_add_f32_dpp v{24+i}, v{24+i}, v{24+i} row_ror:8 row_mask:0xf bank_mask:0x3")
            for i in range(8):
                a(f"v_add_f32_dpp v{24+i}, v{32+i}, v{32+i} row_ror:8 row_mask:0xf bank_mask:0xc")
            for i in range(4):
                a(f"v_add_f32_dpp v{24+i}, v{24+i}, v{24+i} row_half_mirror row_mask:0xf bank_mask:0x5")
            for i in range(4):
                a(f"v_add_f32_dpp v{24+i}, v{28+i}, v{28+i} row_half_mirror row_mask:0xf bank_mask:0xa")
            dpp_steps([24, 25, 26, 27], ("quad_perm:[2,3,0,1]",))
            a("v_cndmask_b32 v24, v24, v26, s[64:65]")
            a("v_cndmask_b32 v25, v25, v27, s[64:65]")
            dpp_steps([24, 25], ("quad_perm:[1,0,3,2]",))
            a(f"v_cndmask_b32 v{dst}, v24, v25, s[66:67]")
            if not noround: bf16r(dst)
            a(f"v_mul_f32 v{dst}, {SCALE:#x}, v{dst}")
            if not noround: bf16r(dst)
        def softmax_part():
            stampat(3)
            a("v_max_f32 v24, v2, v3")
            wave_reduce([24], "v_max_f32")
            a("v_readlane_b32 s72, v24, 63")
            for r in (2, 3): a(f"v_subrev_f32 v{r}, s72, v{r}")
            for r in (2, 3): a(f"v_mul_f32 v{r}, {LOG2E:#x}, v{r}")
            for r in (2, 3): a(f"v_exp_f32 v{r}, v{r}")
            a("v_add_f32 v25, v2, v3")
            for r in (2, 3): a(f"v_cvt_pk_bf16_f32 v{r}, v{r}, v{r}")
            wave_reduce([25])
            a("s_lshl_b32 s73, s3, 3")
            a(f"s_add_u32 s73, s73, {L_MB}")
            a("v_mov_b32 v26, s73")
            a("s_mov_b32 exec_lo, 0")
            a("s_mov_b32 exec_hi, 0x80000000")
            a("ds_write_b64 v26, v[24:25]")
            a("s_mov_b64 exec, -1")
            a("s_lshl_b32 s73, s3, 9")
            a(f"s_add_u32 s73, s73, {L_OP}")
            a("v_and_b32 v27, 15, v0")
            a("v_lshrrev_b32 v28, 4, v0")
            a("v_lshlrev_b32 v29, 5, v27")
            a("v_lshl_add_u32 v29, v28, 4, v29")
            a("v_add_u32 v29, s73, v29")
            stampat(4)
        def issue_stage():
            m0, voff, sr, so, aux = stage.pop(0)
            a(f"s_add_u32 m0, {m0}")
            a(f"s_add_u32 s53, {so}")
            if not no_stage:
                a(f"buffer_load_dwordx4 v{voff}, s[{sr}:{sr+3}], s53 offen {aux} lds")
                order.append("st")
        ins = {"r": ins_r, "m": ins_m}.get(role)
        ins = list(ins) if ins else []
        def inflight():
            pos = order.index(st["landed"])
            return sum(1 for x in order[pos+1:] if isinstance(x, int) or x == "st")
        def pump(extra=0):
            while st["iss"] < NT and inflight() < depth() + extra and st["iss"] - ring < st["cons"]:
                if ins and ins[0] <= st["iss"] and stage:
                    ins.pop(0)
                    issue_stage()
                    continue
                ld_kv()
            if st["iss"] == NT and stage and st["cons"] >= NT - early:
                issue_stage()
        def role_prep():
            if role == "r":
                a("s_and_b32 s76, s2, 7")
                a("s_lshr_b32 s77, s3, 1")
                a("s_lshl_b32 s78, s77, 3")
                a("s_add_u32 s78, s78, s76")
                a("s_lshl_b32 s68, s78, 17")
                a("s_lshl_b32 s78, s78, 1")
                a("s_and_b32 s73, s3, 1")
                a("s_add_u32 s78, s78, s73")
                a("s_lshl_b32 s79, s78, 9")
                a(f"s_add_u32 s79, s79, {WS_MLX}")
                a("s_lshl_b32 s78, s78, 11")
                a(f"s_add_u32 s78, s78, {WS_OP}")
                a("s_lshl_b32 s69, s73, 16")
                a("s_add_u32 s68, s68, s69")
                a("s_bfe_u32 s69, s2, 0x30003")
                a("s_lshl_b32 s69, s69, 7")
                a("s_add_u32 s68, s68, s69")
                a("s_lshl_b32 s69, s3, 13")
                a("v_and_b32 v31, 3, v0")
                a("v_lshlrev_b32 v31, 7, v31")
                a(f"s_mul_i32 s73, s73, {APITCH}")
                a("s_lshl_b32 s77, s77, 8")
                a("s_add_u32 s73, s73, s77")
                a(f"s_add_u32 s73, s73, {L_A}")
                a("v_and_b32 v30, 31, v0")
                a("v_lshlrev_b32 v30, 3, v30")
                a("v_lshrrev_b32 v32, 5, v0")
                a("v_lshl_add_u32 v30, v32, 2, v30")
                a("v_add_u32 v30, s73, v30")
                a("s_getreg_b32 s74, hwreg(HW_REG_XCC_ID, 0, 4)")
                a("v_lshrrev_b32 v32, 3, v0")
                a("v_and_b32 v33, 7, v0")
                a("v_lshlrev_b32 v32, 10, v32")
                a("v_lshl_or_b32 v32, v33, 4, v32")
                for i in range(8):
                    stage.append((f"s69, {1024*i}", 32, 20, f"s68, {8192*i}", wo_aux))
            if role == "m":
                a("v_bfe_u32 v38, v0, 2, 1")
                a("v_bfe_u32 v31, v0, 3, 2")
                a("v_lshlrev_b32 v30, 5, v31")
                a("v_and_b32 v31, 3, v0")
                a("v_lshl_add_u32 v30, v31, 3, v30")
                a("s_lshl_b32 s73, s3, 7")
                a("v_add_u32 v30, s73, v30")
                a("v_lshrrev_b32 v39, 5, v0")
                a("v_lshl_add_u32 v30, v39, 2, v30")
                a("v_lshl_add_u32 v39, v38, 10, v30")
                a("buffer_load_dword v36, v39, s[4:7], 0 offen")
                a("v_lshlrev_b32 v39, 10, v38")
                a("buffer_load_ushort v41, v39, s[4:7], 0 offen")
                a("buffer_load_dwordx4 v[32:35], v1, s[44:47], 0 offen")
                order.extend(["x", "c", "wr"])
                a(f"v_mul_u32_u24 v39, {APITCH}, v38")
                a("v_add_u32 v30, v30, v39")
                a(f"v_add_u32 v30, {L_A}, v30")
                a("v_lshrrev_b32 v39, 4, v0")
                a("v_lshlrev_b32 v39, 3, v39")
                a("v_lshl_add_u32 v39, v38, 8, v39")
                a("s_lshl_b32 s73, s3, 5")
                a(f"s_add_u32 s73, s73, {L_ST}")
                a("v_add_u32 v39, s73, v39")
                a("s_lshl_b32 s78, s3, 12")
                a(f"s_add_u32 s78, s78, {WS_ZX}")
                if zcopy:
                    a("s_getreg_b32 s73, hwreg(HW_REG_XCC_ID, 0, 3)")
                    a("s_lshl_b32 s73, s73, 15")
                    a("s_add_u32 s78, s78, s73")
                a("v_lshrrev_b32 v42, 2, v0")
                a("v_mul_u32_u24 v42, 2752, v42")
                a("v_lshl_add_u32 v42, v31, 4, v42")
                if fmap:
                    a("s_and_b32 s70, s2, 7")
                    a("s_min_u32 s71, s70, 3")
                    a("s_mul_i32 s70, s70, 5")
                    a("s_add_u32 s70, s70, s71")
                    a("s_lshr_b32 s71, s2, 3")
                    a("s_add_u32 s70, s70, s71")
                else:
                    a("s_mov_b32 s70, s2")
                if falt:
                    a("s_and_b32 s74, s70, 1")
                    a("s_lshl_b32 s74, s74, 2")
                    a("s_xor_b32 s74, s74, s3")
                else:
                    a("s_mov_b32 s74, s3")
                a("s_mul_i32 s68, s74, 176128")
                a("s_lshl_b32 s69, s70, 6")
                a("s_add_u32 s68, s68, s69")
                a("s_lshl_b32 s69, s74, 12")
                a("s_lshl_b32 s70, s70, 15")
                a("s_add_u32 s70, s70, s69")
                a(f"s_mul_i32 s71, s74, {4*DNP}")
                for i in range(4):
                    stage.append((f"s69, {1024*i}", 42, 32, f"s68, {44032*i}", mlp_aux))
                    stage.append((f"s69, {L_UP + 1024*i}", 42, 36, f"s68, {44032*i}", mlp_aux))
                for i in range(4):
                    stage.append((f"s71, {L_DN + DNP*i}", 1, 40, f"s70, {1024*i}", dn_aux))
        def consume(j):
            r = ringreg(j)
            st["cons"] = j
            if j < n:
                i = j & 15
                if i == 0:
                    for k in range(16):
                        a(f"v_mov_b32 v{24+k}, 0")
                wait_kv(j)
                pump(1 if i == 15 else 0)
                for k in range(4):
                    a(f"v_dot2c_f32_bf16 v{24+i}, v{r+k}, v{8+k}")
                if i == 15: reduce_scores(2 + (j >> 4))
                if j == n - 1: softmax_part()
            else:
                jj = j - n
                i = jj & 15
                pp = 2 + (jj >> 4)
                t = 12 + 4 * (i & 1)
                for k in range(4):
                    a(f"v_and_b32_dpp v{t+k}, v{pp}, v{4+k} row_newbcast:{i} row_mask:0xf bank_mask:0xf")
                pj = order.index(j)
                if pj > 0 and order[pj-1] == "st" and j > st["landed"] and st["iss"] < NT:
                    a(f"s_waitcnt vmcnt({len(order) - pj})")
                    pump(1)
                wait_kv(j)
                if j < NT - 1: pump()
                if jj > prep_at and not stage and "st" in order and not st.get("fl") and max(i for i, x in enumerate(order) if x == "st") < order.index(j):
                    stage_done(74 if role == "m" else 3); st["fl"] = True
                c = "0" if jj == 0 else "v[20:23]"
                a(f"v_mfma_f32_16x16x32_bf16 v[20:23], v[{t}:{t+3}], v[{r}:{r+3}], {c}")
                if jj == prep_at: role_prep()
                if jj == 20 and role == "r":
                    a("buffer_load_dwordx4 v[40:43], v31, s[24:27], s79 offen sc1")
                    order.append("ml")
        for j in range(NT):
            if j <= st["landed"] and j % CU == 0 and st["iss"] < NT and st["iss"] - ring < j:
                st["cons"] = j
                wait_kv(st["landed"] + 1)
                pump()
            consume(j)
        if kvwarm: a(";@endwarm")
        a("s_mov_b32 exec_hi, 0")
        a("ds_write_b128 v29, v[20:23]")
        a("s_mov_b64 exec, -1")
        stampat(5)
        keep = 4 if role == "m" else 0
        while len(stage) > keep: issue_stage()
        return lambda: [issue_stage() for _ in range(len(stage))]
    kv_path("p", Dp, bp_from, 0)
    a("s_branch L_fin")

    a("L_kv_r:")
    kv_path("r", Dr, br_from, early_r)
    if warm: a(";@warm rk L_wret")
    a(f"s_mov_b32 s75, {SPIN}")
    a("s_branch L_pL_chk")
    a("L_pL:")
    a("buffer_load_dwordx4 v[40:43], v31, s[24:27], s79 offen sc1")
    spin_bail("pL")
    a("s_waitcnt vmcnt(0)")
    a("L_pL_chk:")
    a("v_xor_b32 v54, s29, v42")
    a("v_xor_b32 v55, s29, v43")
    a("v_lshrrev_b32 v56, 4, v55")
    a("v_or_b32 v54, v54, v56")
    a("v_cmp_ne_u32 vcc, 0, v54")
    a("s_cbranch_vccnz L_pL")
    a("L_pL_ok:")
    a("v_mov_b32 v52, v40")
    a("v_mov_b32 v53, v41")
    a("v_mov_b32 v56, v52")
    dpp_steps([56], ("quad_perm:[1,0,3,2]", "quad_perm:[2,3,0,1]"), "v_max_f32")
    a("v_sub_f32 v52, v52, v56")
    a(f"v_mul_f32 v52, {LOG2E:#x}, v52")
    a("v_exp_f32 v52, v52")
    a("v_mul_f32 v53, v53, v52")
    dpp_steps([53], ("quad_perm:[1,0,3,2]", "quad_perm:[2,3,0,1]"))
    a("v_rcp_f32 v53, v53")
    a("v_mul_f32 v52, v52, v53")
    a(f"v_mov_b32 v54, {WS_OS - WS_OP}")
    if local:
        a("v_cmp_ne_u32 vcc, s74, v55")
        a("v_cndmask_b32 v55, 0, v54, vcc")
    else:
        a("v_mov_b32 v55, v54")
    for src, d0 in ((52, 56), (55, 58)):
        a(f"v_mov_b32_dpp v{d0}, v{src} quad_perm:[0,0,0,0] row_mask:0x3 bank_mask:0xf")
        a(f"v_mov_b32_dpp v{d0+1}, v{src} quad_perm:[2,2,2,2] row_mask:0x3 bank_mask:0xf")
        a(f"v_mov_b32_dpp v{d0}, v{src} quad_perm:[1,1,1,1] row_mask:0xc bank_mask:0xf")
        a(f"v_mov_b32_dpp v{d0+1}, v{src} quad_perm:[3,3,3,3] row_mask:0xc bank_mask:0xf")
    a("v_add_u32 v58, v58, v1")
    a("v_add_u32 v59, v59, v1")
    a("s_lshl_b32 s73, s3, 2")
    a(f"s_add_u32 s73, s73, {L_FL}")
    a("v_mov_b32 v26, s73")
    a("v_mov_b32 v27, 0")
    a("s_mov_b32 s68, 0x0c0c0400")
    a("s_mov_b32 s69, 0x04000c0c")
    if maskA:
        a("s_waitcnt vmcnt(0)")
        a("ds_write_b32 v26, v27")
        a("s_mov_b64 s[52:53], -1"); a("s_mov_b64 s[54:55], -1")
        spin_head("pA")
        a("s_mov_b64 exec, s[52:53]")
        a("buffer_load_dwordx4 v[44:47], v58, s[24:27], s78 offen sc1")
        a("s_mov_b64 exec, s[54:55]")
        a("buffer_load_dwordx4 v[48:51], v59, s[24:27], s78 offen offset:1024 sc1")
        a("s_mov_b64 exec, -1")
        a(f"s_cmp_lg_u32 s75, {SPIN - 400}")
        a("s_cbranch_scc1 L_pA_nf")
        a("v_add_u32 v58, v54, v1")
        a("v_add_u32 v59, v54, v1")
        a("L_pA_nf:")
        spin_bail("pA")
        a("s_waitcnt vmcnt(0)")
        for k, r in enumerate((44, 48)):
            a(f"v_perm_b32 v{60+2*k}, v{r+1}, v{r}, s68")
            a(f"v_perm_b32 v{61+2*k}, v{r+3}, v{r+2}, s69")
        a("v_or_b32 v60, v60, v61")
        a("v_or_b32 v62, v62, v63")
        a("v_cmp_ne_u32 s[52:53], s29, v60")
        a("v_cmp_ne_u32 s[54:55], s29, v62")
        a("s_or_b64 s[64:65], s[52:53], s[54:55]")
        a("s_cbranch_scc1 L_pA")
        a("L_pA_ok:")
        for r in range(44, 52): a(f"v_and_b32 v{r}, s31, v{r}")
    else:
        spin_head("pA")
        a("buffer_load_dwordx4 v[44:47], v58, s[24:27], s78 offen sc1")
        a("buffer_load_dwordx4 v[48:51], v59, s[24:27], s78 offen offset:1024 sc1")
        a(f"s_cmp_lg_u32 s75, {SPIN - 400}")
        a("s_cbranch_scc1 L_pA_nf")
        a("v_add_u32 v58, v54, v1")
        a("v_add_u32 v59, v54, v1")
        a("L_pA_nf:")
        spin_bail("pA")
        a("s_waitcnt vmcnt(2)")
        a("ds_write_b32 v26, v27")
        a("s_waitcnt vmcnt(0)")
        untag_check(list(range(44, 52)), 60, "pA")
    stampat(6)
    for r in range(4): a(f"v_mul_f32 v{44+r}, v{44+r}, v56")
    for r in range(4): a(f"v_fmac_f32 v{44+r}, v{48+r}, v57")
    a("v_permlane32_swap_b32 v44, v46")
    a("v_permlane32_swap_b32 v45, v47")
    a("v_add_f32 v44, v44, v46")
    a("v_add_f32 v45, v45, v47")
    a("v_cvt_pk_bf16_f32 v44, v44, v45")
    a("ds_write_b32 v30, v44")
    a("s_waitcnt lgkmcnt(0)")
    a("s_barrier")
    if warm: a(";@endwarm")
    stampat(7)
    a("s_mov_b64 exec, -1")
    a("s_branch L_fin")

    a("L_kv_m:")
    rest = kv_path("m", Dm, bm_from, early_m)
    unpack(36, 64, 1)
    a("v_lshlrev_b32 v41, 16, v41")
    a(f"s_waitcnt vmcnt({dn_lead})")
    rest()
    a(f"s_waitcnt vmcnt({0 if no_stage else 4})")
    stage_done(74)
    stampat(9)
    if warm: a(";@warm mk L_wret")
    if heads:
        a("v_lshrrev_b32 v61, 3, v0")
        a("v_lshlrev_b32 v61, 15, v61")
        a("v_and_b32 v62, 7, v0")
        a("v_lshl_add_u32 v61, v62, 9, v61")
        a("s_lshl_b32 s79, s3, 12")
        a(f"s_add_u32 s79, s79, {WS_OS}")
        a("s_and_b32 s73, s3, 1")
        a("s_lshl_b32 s73, s73, 4")
        a("s_lshr_b32 s77, s3, 1")
        a("s_lshl_b32 s77, s77, 2")
        a("s_add_u32 s73, s73, s77")
        a(f"s_add_u32 s73, s73, {L_HF}")
        a("v_mov_b32 v66, s73")
        a("v_lshrrev_b32 v67, 5, v0")
        a("v_lshlrev_b32 v67, 4, v67")
        a(f"v_add_u32 v67, {L_HF}, v67")
        for k in range(4): a(f"s_mov_b64 s[{52+2*k}:{53+2*k}], -1")
        a("s_mov_b32 exec_hi, 0")
        spin_head("pH")
        a("buffer_load_dwordx2 v[62:63], v61, s[24:27], s79 offen sc1")
        spin_bail("pH")
        a("s_waitcnt vmcnt(1)")
        a(f"ds_write_b32 v26, v27 offset:{L_FD - L_FL}")
        a("s_waitcnt vmcnt(0)")
        a("v_xor_b32 v62, s60, v62")
        a("v_xor_b32 v63, s61, v63")
        a("v_or_b32 v62, v62, v63")
        a("v_and_b32 v62, 0xff, v62")
        a("v_cmp_ne_u32 vcc, 0, v62")
        a("s_cbranch_vccz L_pH_ok")
        a("s_mov_b64 exec, vcc")
        a("s_branch L_pH")
        a("L_pH_ok:")
        a("s_mov_b64 exec, -1")
        if hdelay: a(f"s_sleep {hdelay}")
        a("ds_write_b32 v66, v27")
        stampat(1)
        spin_head("pB")
        a("ds_read_b128 v[68:71], v67")
        spin_bail("pB")
        a("s_waitcnt lgkmcnt(0)")
        for k in range(4):
            a(f"v_cmp_eq_u32 s[{64+2*k}:{65+2*k}], 0, v{68+k}")
        for k in range(4):
            a(f"s_and_b64 s[{64+2*k}:{65+2*k}], s[{64+2*k}:{65+2*k}], s[{52+2*k}:{53+2*k}]")
            a(f"s_mov_b64 exec, s[{64+2*k}:{65+2*k}]")
            a(f"buffer_load_dwordx4 v[{44+4*k}:{47+4*k}], v1, s[24:27], s78 offen offset:{1024*k} sc1")
        for k in range(4):
            r = 44 + 4 * k
            a(f"s_mov_b64 exec, s[{64+2*k}:{65+2*k}]")
            a(f"s_andn2_b64 s[{52+2*k}:{53+2*k}], s[{52+2*k}:{53+2*k}], exec")
            a(f"s_waitcnt vmcnt({3-k})")
            for i in range(4):
                a(f"v_xor_b32 v{r+i}, s{60+i}, v{r+i}")
            a(f"v_or3_b32 v60, v{r}, v{r+1}, v{r+2}")
            a(f"v_or_b32 v60, v60, v{r+3}")
            a("v_and_b32 v60, 0xff, v60")
            a("v_cmp_ne_u32 vcc, 0, v60")
            a(f"s_or_b64 s[{52+2*k}:{53+2*k}], s[{52+2*k}:{53+2*k}], vcc")
        a("s_mov_b64 exec, -1")
        a("s_or_b64 s[64:65], s[52:53], s[54:55]")
        a("s_or_b64 s[66:67], s[56:57], s[58:59]")
        a("s_or_b64 s[64:65], s[64:65], s[66:67]")
        a("s_cbranch_scc1 L_pB")
        a("L_pB_ok:")
    else:
        if nosent:
            a("s_waitcnt vmcnt(0)")
            a(f"ds_write_b32 v26, v27 offset:{L_FD - L_FL}")
        else:
            a("s_mov_b64 exec, 0xff")
            spin_head("pB0")
            if bsleep: a(f"s_sleep {bsleep}")
            a("buffer_load_dwordx4 v[44:47], v1, s[24:27], s78 offen sc1")
            spin_bail("pB0")
            a("s_waitcnt vmcnt(1)")
            a(f"ds_write_b32 v26, v27 offset:{L_FD - L_FL}")
            a("s_waitcnt vmcnt(0)")
            untag_check([44, 45, 46, 47], 60, "pB0")
            a("s_mov_b64 exec, -1")
        if masked:
            masked_poll("pB", [(44 + 4*k, f"buffer_load_dwordx4 v[{44+4*k}:{47+4*k}], v1, s[24:27], s78 offen offset:{1024*k} sc1") for k in range(4)], 60)
        else:
            spin_head("pB")
            if psleep: a(f"s_sleep {psleep}")
            for k in range(4):
                a(f"buffer_load_dwordx4 v[{44+4*k}:{47+4*k}], v1, s[24:27], s78 offen offset:{1024*k} sc1")
            spin_bail("pB")
            a("s_waitcnt vmcnt(0)")
            untag_check(list(range(44, 60)), 60, "pB")
    stampat(6)
    for r in range(4):
        a(f"v_add_f32 v{44+r}, v{44+r}, v{48+r}")
        a(f"v_add_f32 v{52+r}, v{52+r}, v{56+r}")
    for r in range(4): a(f"v_add_f32 v{44+r}, v{44+r}, v{52+r}")
    a("v_permlane32_swap_b32 v44, v46")
    a("v_permlane32_swap_b32 v45, v47")
    a("v_add_f32 v44, v44, v64")
    a("v_add_f32 v45, v45, v65")
    a("v_add_f32 v44, v44, v46")
    a("v_add_f32 v45, v45, v47")
    a("v_cvt_pk_bf16_f32 v48, v44, v45")
    a("ds_write_b32 v30, v48")
    unpack(48, 44, 1)
    a("v_sub_f32 v44, v44, v41")
    a("v_sub_f32 v45, v45, v41")
    a("v_mul_f32 v51, v44, v44")
    a("v_add_f32 v50, v44, v45")
    a("v_fmac_f32 v51, v45, v45")
    dpp_steps([50, 51], ("quad_perm:[1,0,3,2]", "quad_perm:[2,3,0,1]", "row_ror:8"))
    a("ds_write_b64 v39, v[50:51]")
    a("s_waitcnt lgkmcnt(0)")
    a("s_barrier")
    stampat(7)
    a("s_cmp_ge_u32 s3, 2")
    a("s_cbranch_scc1 L_fin")
    a("s_cmp_ge_u32 s2, 32")
    a("s_cbranch_scc1 L_fin")
    a(f"s_mul_i32 s73, s3, {APITCH}")
    a(f"s_add_u32 s73, s73, {L_A}")
    a("v_add_u32 v52, s73, v1")
    a("ds_read_b128 v[96:99], v52")
    a("v_lshrrev_b32 v40, 2, v0")
    a("v_and_b32 v43, 3, v0")
    a("v_lshlrev_b32 v44, 7, v40")
    a("v_lshl_or_b32 v44, v43, 4, v44")
    a("s_mul_i32 s78, s2, 5504")
    a("s_lshl_b32 s73, s3, 6")
    a("s_add_u32 s78, s78, s73")
    a(f"s_add_u32 s78, s78, {WS_Y}")
    a("s_add_u32 s79, s78, 2048")
    a("s_add_u32 s77, s78, 4096")
    a("s_lshl_b32 s74, s2, 5")
    a("s_lshl_b32 s73, s3, 4")
    a("s_add_u32 s76, s74, s73")
    a("v_lshlrev_b32 v45, 2, v43")
    a("v_lshrrev_b32 v47, 5, v0")
    a("v_lshl_add_u32 v45, v47, 1, v45")
    a("v_bfe_u32 v47, v0, 4, 1")
    a(f"v_mul_u32_u24 v46, {APITCH}, v47")
    a("v_add_u32 v46, v46, v45")
    a(f"s_add_u32 s73, s76, {L_A}")
    a("v_add_u32 v46, s73, v46")
    a("ds_read_u16 v50, v46")
    a("v_lshl_add_u32 v45, v47, 10, v45")
    a("v_lshlrev_b32 v51, 4, v47")
    a(f"v_add_u32 v51, {L_SG}, v51")
    a("s_waitcnt lgkmcnt(0)")
    unpack(96, 100)
    ln_sums(100, 108, 68, 69, 70)
    a("v_mov_b32 v124, s69")
    a("v_mov_b32 v125, s70")
    ln_finish("s68", 124, 125, 108)
    ln_apply(100, 108, 124, 125)
    for k in range(4):
        a(f"v_cvt_pk_bf16_f32 v{120+k}, v{108+2*k}, v{109+2*k}")
    if warm: a(";@endwarm")
    if warm: a(";@warm mk2 L_wret")
    a("v_mov_b32 v126, 0")
    for k in range(4):
        a(f"v_dot2c_f32_bf16 v126, v{120+k}, v{32+k}")
    wave_reduce([126])
    a("v_readlane_b32 s73, v126, 63")
    a("v_mov_b32 v126, s73")
    bf16r(126)
    a("v_mul_f32 v126, 0xbfb8aa3b, v126")
    a("v_exp_f32 v126, v126")
    a("v_add_f32 v126, 1.0, v126")
    a("v_rcp_f32 v126, v126")
    bf16r(126)
    a("v_mov_b32 v127, 0")
    a("s_lshl_b32 s73, s3, 4")
    a(f"s_add_u32 s73, s73, {L_SG}")
    a("v_mov_b32 v46, s73")
    a("ds_write_b128 v46, v[124:127]")
    a("v_lshlrev_b32 v104, 16, v50")
    for r in range(4): a(f"v_mov_b32 v{20+r}, 0")
    spin_head("pS")
    a("ds_read_b128 v[112:115], v51")
    spin_bail("pS")
    a("s_waitcnt lgkmcnt(0)")
    empty_check([112, 113, 114], 47, "pS")
    a("v_sub_f32 v100, v104, v112")
    bf16r(100)
    a("v_mul_f32 v100, v100, v113")
    bf16r(100)
    a("v_add_f32 v100, v100, v104")
    a("v_and_b32 v46, 31, v0")
    a("v_lshlrev_b32 v46, 2, v46")
    a(f"v_add_u32 v46, {L_ACT}, v46")
    lds_wait("pT", 46, 47, 0)
    stampat(8)
    spin_head("pC")
    if cdelay: a(f"s_sleep {cdelay}")
    a("buffer_load_dwordx4 v[12:15], v44, s[24:27], s78 offen sc1")
    a("buffer_load_dwordx4 v[16:19], v44, s[24:27], s79 offen sc1")
    a("s_mov_b32 exec_hi, 0xfff")
    a("buffer_load_dwordx4 v[20:23], v44, s[24:27], s77 offen sc1")
    a("s_waitcnt vmcnt(0)")
    for r in range(4): a(f"v_xor_b32 v{20+r}, s{60+r}, v{20+r}")
    a("s_mov_b64 exec, -1")
    spin_bail("pC")
    untag_check(list(range(12, 24)), 24, "pC", pre={20, 21, 22, 23})
    stampat(4)
    for r in range(4): a(f"v_add_f32 v{12+r}, v{12+r}, v{16+r}")
    for r in range(4): a(f"v_add_f32 v{12+r}, v{12+r}, v{20+r}")
    a("v_permlane32_swap_b32 v12, v14")
    a("v_permlane32_swap_b32 v13, v15")
    a("v_add_f32 v12, v12, v14")
    a("v_add_f32 v13, v13, v15")
    a("v_permlane16_swap_b32 v12, v13")
    a("v_add_f32 v12, v12, v13")
    dpp_steps([12], ("row_ror:4", "row_ror:8"))
    a("v_fmac_f32 v100, v12, v114")
    a("v_cvt_pk_bf16_f32 v12, v100, v100")
    a("s_mov_b32 exec_lo, 0x000f000f")
    a("s_mov_b32 exec_hi, 0x000f000f")
    a("buffer_store_short v12, v45, s[48:51], s76 offen")
    a("s_cmp_lg_u32 s76, 0")
    a("s_cbranch_scc1 L_noep")
    a("s_mov_b64 exec, 1")
    a("v_mov_b32 v14, s29")
    a("buffer_store_dword v14, v45, s[24:27], 0 offen")
    a("L_noep:")
    if warm: a(";@endwarm")
    a("s_mov_b64 exec, -1")
    stampat(3)
    a("s_branch L_fin")

    a("L_aux:")
    if aux_prio: a(f"s_setprio {aux_prio}")
    a("s_sub_u32 s59, s3, 8")
    a("s_and_b32 s55, s2, 31")
    a("s_bfe_u32 s56, s2, 0x10005")
    a("v_lshrrev_b32 v2, 4, v0")
    a("v_and_b32 v3, 15, v0")
    a("s_mov_b32 s10, 0x400000")
    a("s_mov_b32 s11, 0x20000")
    a("v_lshlrev_b32 v8, 18, v2")
    a("v_lshl_or_b32 v8, v3, 4, v8")
    a("s_lshl_b32 s54, s59, 20")
    a("s_lshl_b32 s53, s55, 8")
    a("s_or_b32 s54, s54, s53")
    a("v_lshlrev_b32 v10, 6, v2")
    a("s_lshl_b32 s52, s56, 10")
    a("s_lshl_b32 s53, s59, 8")
    a("s_add_u32 s53, s53, s52")
    a("s_movk_i32 s65, 0x2000")
    for r in range(4): a(f"v_mov_b32 v{12+r}, -1")
    a("s_lshl_b32 s58, s59, 11")
    a(f"s_add_u32 s58, s58, {L_INIT}")
    a("v_add_u32 v9, s58, v1")
    a("ds_write_b128 v9, v[12:15]")
    a("s_cmp_eq_u32 s59, 3")
    a("s_cbranch_scc0 L_i2")
    for r in range(4): a(f"v_mov_b32 v{12+r}, 0")
    a("s_mov_b64 exec, 1")
    a("L_i2:")
    a("ds_write_b128 v9, v[12:15] offset:1024")
    a("s_mov_b64 exec, -1")
    a("s_waitcnt lgkmcnt(0)")
    epoch_load()
    a("s_cmp_eq_u32 s59, 0")
    a("s_cbranch_scc1 L_coop")
    a("s_barrier")
    a(f"v_mov_b32 v12, {L_QB}")
    a("s_waitcnt lgkmcnt(0)")
    epoch_calc()
    if kvwarm:
        a("s_cmp_lg_u32 s59, 3")
        a("s_cbranch_scc1 L_kret")
        a("s_mov_b64 exec, 0")
        a(f"s_cmp_lt_u32 s2, {NMLP}")
        a("s_cbranch_scc1 L_w_kvm_0")
        a("s_cmp_eq_u32 s57, 1")
        a("s_cbranch_scc1 L_w_kvr_0")
        a("s_branch L_w_kvp_0")
        a("L_kret:")
        a("s_mov_b64 exec, -1")
    spin_head("fw")
    a("s_sleep 4")
    a(f"ds_read2_b32 v[14:15], v12 offset0:0 offset1:{(L_FB - L_QB) // 4}")
    spin_bail("fw")
    a("s_waitcnt lgkmcnt(0)")
    a("v_cmp_ne_u32 vcc, -1, v15")
    a("s_cbranch_vccnz L_fallback")
    a("v_cmp_eq_u32 vcc, -1, v14")
    a("s_cbranch_vccnz L_fw")
    a("L_fw_ok:")
    if warm:
        a("s_mov_b64 exec, 0")
        a("s_cmp_eq_u32 s59, 1")
        a("s_cbranch_scc1 L_w_ct_0")
        a("L_wret1:")
        a(f"s_cmp_lt_u32 s2, {NMLP}")
        a("s_cbranch_scc1 L_wm")
        a("s_cmp_lg_u32 s57, 1")
        a("s_cbranch_scc1 L_wret")
        a("s_cmp_eq_u32 s59, 2")
        a("s_cbranch_scc1 L_w_rk_0")
        a("s_cmp_eq_u32 s59, 3")
        a("s_cbranch_scc1 L_w_ra_0")
        a("s_branch L_wret")
        a("L_wm:")
        a("s_cmp_eq_u32 s59, 1")
        a("s_cbranch_scc1 L_w_ma_0")
        a("s_cmp_eq_u32 s59, 2")
        a("s_cbranch_scc1 L_w_mk_0")
        a("s_branch L_w_mk2_0")
        a("L_wret:")
        a("s_mov_b64 exec, -1")
        stampat(2)
    if pf:
        a("s_cmp_lg_u32 s59, 2")
        a("s_cbranch_scc1 L_aux4")
        srd(32, 56, 1409024); srd(36, 64, 1409024); srd(40, 72, 1409024)
        a("s_and_b32 s64, s2, 7")
        a("s_min_u32 s66, s64, 3")
        a("s_mul_i32 s67, s64, 5")
        a("s_add_u32 s66, s66, s67")
        a("s_cmp_lt_u32 s64, 3")
        a("s_cselect_b32 s67, 6, 5")
        a("s_lshr_b32 s69, s2, 3")
        a("v_and_b32 v41, 7, v0")
        a("v_lshrrev_b32 v40, 3, v0")
        a("v_mul_u32_u24 v40, 2752, v40")
        a("v_lshl_add_u32 v40, v41, 6, v40")
        a("s_mul_i32 s52, s69, 44032")
        a("s_lshl_b32 s53, s66, 6")
        a("s_add_u32 s52, s52, s53")
        a("s_add_u32 s53, s52, 22016")
        a("v_cmp_gt_u32 s[72:73], s67, v41")
        a("s_lshl_b32 s54, s66, 15")
        a("s_mul_i32 s58, s69, s67")
        a("s_lshl_b32 s58, s58, 10")
        a("s_add_u32 s54, s54, s58")
        a("s_add_u32 s58, s54, 0x1000")
        a("v_lshlrev_b32 v46, 6, v0")
        a("s_cmp_eq_u32 s67, 6")
        a("s_cselect_b32 s70, -1, 0xffff")
        a(f"v_min_u32 v39, {pf_cnt - 1}, v41")
        a("v_lshlrev_b32 v39, 9, v39")
        a(f"v_add_u32 v39, {L_OP}, v39")
        lds_wait("k2", 39, 41, 2)
        if pf_delay: a(f"s_sleep {pf_delay}")
        a("s_mov_b64 exec, s[72:73]")
        for k, (sr, so) in enumerate(((32, 52), (36, 52), (32, 53), (36, 53))):
            a(f"buffer_load_dword v{42+k}, v40, s[{sr}:{sr+3}], s{so} offen")
        a("s_mov_b64 exec, -1")
        a("buffer_load_dword v47, v46, s[40:43], s54 offen")
        a("s_mov_b32 exec_lo, s70")
        a("s_mov_b32 exec_hi, 0")
        a("buffer_load_dword v48, v46, s[40:43], s58 offen")
        a("s_mov_b64 exec, -1")
        a("s_waitcnt vmcnt(0)")
    a("s_branch L_aux4")
    a("L_coop:")
    a("s_lshl_b32 s58, s56, 2")
    a("s_add_u32 s58, s58, s57")
    a("v_lshlrev_b32 v40, 17, v2")
    a("v_lshl_or_b32 v40, v3, 4, v40")
    a("s_lshl_b32 s71, s58, 19")
    a("s_lshl_b32 s72, s55, 8")
    a("s_or_b32 s71, s71, s72")
    a("v_lshrrev_b32 v41, 3, v3")
    a("v_lshlrev_b32 v42, 10, v41")
    a("v_lshl_add_u32 v42, v2, 5, v42")
    a("s_lshl_b32 s72, s58, 7")
    a("buffer_load_dwordx4 v[44:47], v1, s[4:7], 0 offen")
    a("buffer_load_dwordx4 v[48:51], v1, s[4:7], 0 offen offset:1024")
    a("buffer_load_dwordx4 v[52:55], v42, s[4:7], s72 offen")
    a("buffer_load_dwordx4 v[56:59], v42, s[4:7], s72 offen offset:16")
    for i in range(16):
        r = 72 + 4 * i
        a(f"buffer_load_dwordx4 v[{r}:{r+3}], v40, s[8:11], s71 offen {wq_aux}")
        if i < 15: a("s_add_u32 s71, s71, s65")
    a("s_barrier")
    a("v_and_b32 v12, 1, v0")
    a("v_lshlrev_b32 v12, 4, v12")
    a("v_mov_b32 v13, 0xffff")
    a("v_lshlrev_b32 v12, v12, v13")
    a("v_bfe_u32 v13, v0, 1, 2")
    for r in range(4):
        a(f"v_cmp_eq_u32 vcc, {r}, v13")
        a(f"v_cndmask_b32 v{4+r}, 0, v12, vcc")
    a("v_cmp_eq_u32 s[66:67], 1, v41")
    a("s_waitcnt vmcnt(18) lgkmcnt(0)")
    epoch_calc()
    unpack(44, 24)
    unpack(48, 60)
    m0 = len(a.lines)
    ln_sums(24, 12, 68, 69, 70)
    l1 = a.lines[m0:]; del a.lines[m0:]
    ln_sums(60, 32, 76, 77, 78)
    l2 = a.lines[m0:]; del a.lines[m0:]
    for x, y in zip(l1, l2):
        a(x); a(y)
    for k, d in enumerate((60, 61, 62)):
        a(f"v_mov_b32 v{d}, s{68+k}")
        a(f"v_mov_b32 v63, s{76+k}")
        a(f"v_cndmask_b32 v{d}, v{d}, v63, s[66:67]")
    ln_finish("v60", 61, 62, 63)
    a("s_waitcnt vmcnt(16)")
    unpack(52, 24, 8)
    ln_apply(24, 24, 61, 62, 16)
    for i in range(16):
        a(f"v_cvt_pk_bf16_f32 v{24+i}, v{24+i}, v{24+i}")
    for i in range(16):
        t = 12 + 4 * (i & 1)
        for r in range(4):
            a(f"v_and_b32 v{t+r}, v{24+i}, v{4+r}")
        a(f"s_waitcnt vmcnt({15-i})")
        c = "0" if i == 0 else "v[20:23]"
        a(f"v_mfma_f32_16x16x32_bf16 v[20:23], v[{t}:{t+3}], v[{72+4*i}:{75+4*i}], {c}")
    a("v_lshrrev_b32 v40, 5, v0")
    a("v_lshlrev_b32 v42, 2, v40")
    a("v_lshlrev_b32 v40, 13, v40")
    a("v_and_b32 v41, 31, v0")
    a("v_lshl_add_u32 v40, v41, 4, v40")
    a("s_lshl_b32 s71, s55, 14")
    a(f"s_add_u32 s71, s71, {WS_QX}")
    a("s_lshl_b32 s72, s58, 10")
    a("s_add_u32 s72, s72, s71")
    for k in range(4):
        a(f"v_mov_b32 v{13+2*k}, s29")
    for k in range(4):
        a(f"v_mov_b32 v{12+2*k}, v{20+k}")
    if not force_fb:
        a("buffer_store_dwordx4 v[12:15], v40, s[24:27], s72 offen")
        a("buffer_store_dwordx4 v[16:19], v40, s[24:27], s72 offen offset:512")
    stampat(1)
    a("s_lshl_b32 s72, s56, 13")
    a("s_add_u32 s71, s71, s72")
    a("s_add_u32 s72, s71, 4096")
    a("v_and_b32 v41, 1, v2")
    a("v_lshl_add_u32 v41, v41, 3, v42")
    a("v_lshl_add_u32 v41, v3, 4, v41")
    a(f"v_add_u32 v41, {L_QB}, v41")
    a(f"s_movk_i32 s75, {qtries}")
    a("L_pX:")
    if qsleep: a(f"s_sleep {qsleep}")
    for k in range(8):
        a(f"buffer_load_dwordx4 v[{72+4*k}:{75+4*k}], v1, s[24:27], s{71 + k // 4} offen offset:{1024*(k&3)} sc1")
    a("s_sub_u32 s75, s75, 1")
    a("s_cbranch_scc1 L_giveup")
    a("s_waitcnt vmcnt(0)")
    tg = [73 + 2 * k for k in range(16)]
    for r in tg: a(f"v_xor_b32 v{r}, s29, v{r}")
    a(f"v_or3_b32 v60, v{tg[0]}, v{tg[1]}, v{tg[2]}")
    for k in range(3, 15, 2):
        a(f"v_or3_b32 v60, v60, v{tg[k]}, v{tg[k+1]}")
    a(f"v_or_b32 v60, v60, v{tg[15]}")
    a("v_cmp_ne_u32 vcc, 0, v60")
    a("s_cbranch_vccnz L_pX")
    for k in range(1, 8):
        a(f"v_add_f32 v72, v72, v{72+4*k}")
        a(f"v_add_f32 v74, v74, v{74+4*k}")
    a("v_cvt_pk_bf16_f32 v72, v72, v74")
    a("ds_write_b32 v41, v72")
    a("v_lshlrev_b32 v8, 3, v0")
    a(f"v_add_u32 v11, {L_OP}, v8")
    a("s_branch L_qdone")
    a("L_giveup:")
    a(f"v_mov_b32 v12, {L_FB}")
    a("v_mov_b32 v13, 1")
    a("ds_write_b32 v12, v13")
    a("s_waitcnt vmcnt(0)")
    a("L_fallback:")
    a("buffer_load_dwordx4 v[20:23], v1, s[4:7], s52 offen")
    for k in range(4):
        a(f"buffer_load_dwordx4 v[{56+4*k}:{59+4*k}], v10, s[4:7], s53 offen offset:{16*k}")
    QR = 24
    q = dict(iss=0, landed=-1)
    def qreg(i): return 72 + 4 * (i % QR)
    def ld_wq():
        i = q["iss"]
        r = qreg(i)
        a(f"buffer_load_dwordx4 v[{r}:{r+3}], v8, s[8:11], s54 offen {wq_aux}")
        if i < 31: a("s_add_u32 s54, s54, s65")
        q["iss"] += 1
    def wait_wq(i):
        if i <= q["landed"]: return
        a(f"s_waitcnt vmcnt({q['iss'] - 1 - i})")
        q["landed"] = i
    for i in range(DQ): ld_wq()
    a(f"s_waitcnt vmcnt({DQ})")
    mark = len(a.lines)
    masks(12, 13)
    unpack(20, 24)
    ln_sums(24, 32, 68, 69, 70)
    a("v_mov_b32 v10, s69")
    a("v_mov_b32 v11, s70")
    ln_finish("s68", 10, 11, 9)
    unpack(56, 24, 16)
    ln_apply(24, 24, 10, 11, 32)
    for i in range(32):
        a(f"v_cvt_pk_bf16_f32 v{24+i}, v{24+i}, v{24+i}")
    body = a.lines[mark:]
    del a.lines[mark:]
    for k in range(0, len(body), chunk):
        if q["iss"] < QR:
            wait_wq(q["iss"] - DQ)
            ld_wq()
        for ln in body[k:k+chunk]: a(ln)
    for i in range(32):
        t = 12 + 4 * (i & 1)
        for r in range(4):
            a(f"v_and_b32 v{t+r}, v{24+i}, v{4+r}")
        if i <= q["landed"] and i % 4 == 0 and q["iss"] < 32 and q["iss"] - QR < i:
            wait_wq(q["landed"] + 1)
        wait_wq(i)
        while q["iss"] < 32 and q["iss"] - 1 - q["landed"] < DQ and q["iss"] - QR < i: ld_wq()
        c = "0" if i == 0 else "v[20:23]"
        a(f"v_mfma_f32_16x16x32_bf16 v[20:23], v[{t}:{t+3}], v[{qreg(i)}:{qreg(i)+3}], {c}")
    assert q["iss"] == 32
    a("s_lshl_b32 s52, s59, 9")
    a(f"s_add_u32 s52, s52, {L_QP}")
    a("v_lshlrev_b32 v8, 5, v3")
    a("v_lshl_add_u32 v8, v2, 4, v8")
    a("v_add_u32 v8, s52, v8")
    a("s_mov_b32 exec_hi, 0")
    a("ds_write_b128 v8, v[20:23]")
    a("s_mov_b64 exec, -1")
    a("s_cmp_lg_u32 s59, 0")
    a("s_cbranch_scc1 L_aux4")
    a("v_lshlrev_b32 v8, 3, v0")
    a(f"v_add_u32 v11, {L_OP}, v8")
    a("v_lshlrev_b32 v9, 2, v0")
    a(f"v_add_u32 v10, {L_QB}, v9")
    spin_head("pQ")
    for w in range(4):
        a(f"ds_read_b64 v[{12+2*w}:{13+2*w}], v11 offset:{L_QP - L_OP + 512*w}")
    spin_bail("pQ")
    a("s_waitcnt lgkmcnt(0)")
    empty_check(list(range(12, 20)), 20, "pQ")
    for w in range(1, 4):
        a(f"v_add_f32 v12, v12, v{12+2*w}")
        a(f"v_add_f32 v13, v13, v{13+2*w}")
    a("v_cvt_pk_bf16_f32 v12, v12, v13")
    a("ds_write_b32 v10, v12")
    a("L_qdone:")
    stampat(2)
    a("v_and_b32 v9, 7, v0")
    a("v_lshlrev_b32 v9, 3, v9")
    a(f"v_add_u32 v9, {L_MB}, v9")
    spin_head("pM")
    a("s_sleep 4")
    a("ds_read_b64 v[12:13], v9")
    spin_bail("pM")
    a("s_waitcnt lgkmcnt(0)")
    empty_check([12, 13], 14, "pM")
    oct_ = ("quad_perm:[1,0,3,2]", "quad_perm:[2,3,0,1]", "row_half_mirror")
    a("v_mov_b32 v16, v12")
    dpp_steps([16], oct_, "v_max_f32")
    a("v_sub_f32 v14, v12, v16")
    a(f"v_mul_f32 v14, {LOG2E:#x}, v14")
    a("v_exp_f32 v14, v14")
    a("v_mul_f32 v17, v13, v14")
    dpp_steps([17], oct_)
    a("s_getreg_b32 s53, hwreg(HW_REG_XCC_ID, 0, 4)")
    a("s_xor_b32 s53, s53, s29")
    a("v_mov_b32 v18, s29")
    a("v_mov_b32 v19, s53")
    a("s_lshl_b32 s52, s55, 1")
    a("s_add_u32 s52, s52, s56")
    a("s_lshl_b32 s52, s52, 2")
    a("s_add_u32 s52, s52, s57")
    a("s_lshl_b32 s53, s52, 7")
    a(f"s_add_u32 s53, s53, {WS_MLX}")
    a("s_lshl_b32 s52, s52, 9")
    a(f"s_add_u32 s52, s52, {WS_OP}")
    a("s_mov_b64 exec, 1")
    a("buffer_store_dwordx4 v[16:19], v8, s[24:27], s53 offen sc1")
    a("s_mov_b64 exec, -1")
    a(f"s_add_u32 s53, s52, {WS_OS - WS_OP}")
    stampat(3)
    for w in range(8):
        a(f"v_readlane_b32 s{44+w}, v14, {w}")
    a("v_and_b32 v9, 1, v0")
    a("v_lshlrev_b32 v9, 4, v9")
    a("v_lshrrev_b32 v9, v9, s29")
    a("v_bfe_u32 v10, v9, 8, 8")
    a("v_and_b32 v9, 0xff, v9")
    a("s_setprio 2")
    spin_head("pO")
    if osleep: a(f"s_sleep {osleep}")
    for w in range(8):
        a(f"ds_read_b64 v[{12+2*w}:{13+2*w}], v11 offset:{512*w}")
    spin_bail("pO")
    a("s_waitcnt lgkmcnt(0)")
    a("v_max3_u32 v28, v12, v14, v16")
    a("v_max3_u32 v29, v18, v20, v22")
    a("v_max3_u32 v28, v28, v24, v26")
    a("v_max_u32 v28, v28, v29")
    a("v_cmp_eq_u32 vcc, -1, v28")
    a("s_cbranch_vccnz L_pO")
    a("L_pO_ok:")
    if warm: a(";@warm ct L_wret1")
    stampat(5)
    a("v_mul_f32 v12, s44, v12"); a("v_mul_f32 v13, s44, v13")
    a("v_mul_f32 v20, s48, v20"); a("v_mul_f32 v21, s48, v21")
    for w in range(1, 4):
        a(f"v_fmac_f32 v12, s{44+w}, v{12+2*w}"); a(f"v_fmac_f32 v13, s{44+w}, v{13+2*w}")
        a(f"v_fmac_f32 v20, s{48+w}, v{20+2*w}"); a(f"v_fmac_f32 v21, s{48+w}, v{21+2*w}")
    a("v_add_f32 v12, v12, v20"); a("v_add_f32 v13, v13, v21")
    a("v_and_or_b32 v12, v12, s31, v9")
    a("v_and_or_b32 v13, v13, s31, v10")
    if local:
        a("buffer_store_dwordx2 v[12:13], v8, s[24:27], s52 offen")
    a("buffer_store_dwordx2 v[12:13], v8, s[24:27], s53 offen sc1")
    if warm: a(";@endwarm")
    stampat(6)
    a("L_aux4:")
    a(f"s_cmp_lt_u32 s2, {NMLP}")
    a("s_cbranch_scc1 L_aux5")
    a("s_cmp_lg_u32 s57, 1")
    a("s_cbranch_scc1 L_fin")
    a("L_aux5:")
    a("s_setprio 3")
    a("v_lshrrev_b32 v33, 2, v3")
    a("v_lshl_add_u32 v33, v2, 3, v33")
    a("v_and_b32 v34, 3, v0")
    a("v_bfe_u32 v6, v3, 2, 1")
    a(f"v_mul_u32_u24 v6, {APITCH}, v6")
    a("v_lshl_add_u32 v6, v2, 4, v6")
    a(f"v_add_u32 v6, {L_A}, v6")
    a(f"v_mov_b32 v35, {L_FL}")
    def gemm16(acc, filler=()):
        filler = list(filler)
        NB = 11 if acc2 else 12
        for ks in range(NB):
            a(f"ds_read_b128 v[{16+4*ks}:{19+4*ks}], v6 offset:{64*ks}")
        issued = NB
        per = (len(filler) + 13) // 14 if filler else 0
        waited = -1
        for ks in range(16):
            if ks > waited:
                tgt = min(ks + (wgrp - 1 if ks else 0), issued - 1)
                a(f"s_waitcnt lgkmcnt({issued - 1 - tgt})")
                waited = tgt
            ab = 16 + 4 * (ks % NB)
            ac = 60 if (acc2 and ks & 1) else acc
            c = "0" if ks < (2 if acc2 else 1) else f"v[{ac}:{ac+3}]"
            a(f"v_mfma_f32_16x16x32_bf16 v[{ac}:{ac+3}], v[{ab}:{ab+3}], v[{64+4*ks}:{67+4*ks}], {c}")
            if issued < 16:
                a(f"ds_read_b128 v[{ab}:{ab+3}], v6 offset:{64*issued}")
                issued += 1
            for _ in range(per):
                if filler: a(filler.pop(0))
        for ln in filler: a(ln)
        if acc2: a(f"v_add_f32 v{acc}, v{acc}, v60")
    a(f"s_cmp_lt_u32 s2, {NMLP}")
    a("s_cbranch_scc1 L_aux_m")
    a("v_lshlrev_b32 v10, 7, v33")
    a("v_lshl_add_u32 v10, v34, 3, v10")
    a("s_lshl_b32 s52, s59, 5")
    a("v_add_u32 v10, s52, v10")
    a("v_lshlrev_b32 v7, 3, v34")
    a("v_lshrrev_b32 v7, v7, s29")
    a("v_and_b32 v7, 0xff, v7")
    a("v_lshlrev_b32 v5, 2, v0")
    a("s_and_b32 s70, s2, 63")
    a("s_lshl_b32 s70, s70, 2")
    a("s_add_u32 s70, s70, s59")
    a("s_lshl_b32 s70, s70, 7")
    a(f"s_add_u32 s70, s70, {WS_ZX}")
    if zcopy:
        a("v_and_b32 v5, 31, v0")
        a("v_lshlrev_b32 v5, 2, v5")
        a("v_lshrrev_b32 v11, 5, v0")
        a("v_lshl_add_u32 v5, v11, 15, v5")
        for k in range(1, 4):
            a(f"s_add_u32 s{70+k}, s70, {k * 0x10000}")
    for kw in range(8):
        lds_wait(f"fr{kw}", 35, 12, 2 if kw == 0 else 0, off=4*kw)
        for ks in (2*kw, 2*kw+1):
            for hh in range(2):
                d = 64 + 4 * ks + 2 * hh
                a(f"ds_read_b64_tr_b16 v[{d}:{d+1}], v10 offset:{ks*4096 + hh*512}")
    a("s_waitcnt lgkmcnt(0)")
    stampat(7)
    if warm: a(";@warm ra L_wret")
    a("s_barrier")
    gemm16(12)
    if zcopy:
        a("v_and_or_b32 v12, v12, s31, v7")
        for k in range(4):
            a(f"buffer_store_dword v12, v5, s[24:27], s{70+k} offen sc1")
    else:
        a("s_mov_b32 exec_hi, 0")
        a("v_and_or_b32 v12, v12, s31, v7")
        a("buffer_store_dword v12, v5, s[24:27], s70 offen sc1")
        a("s_mov_b64 exec, -1")
    if warm: a(";@endwarm")
    stampat(8)
    a("s_branch L_fin")
    a("L_aux_m:")
    a("v_lshlrev_b32 v10, 6, v33")
    a("v_and_b32 v11, 1, v0")
    a("v_lshl_add_u32 v10, v11, 3, v10")
    a("v_bfe_u32 v11, v0, 1, 1")
    a(f"v_mul_u32_u24 v11, {L_UP}, v11")
    a("v_add_u32 v10, v11, v10")
    a("s_lshl_b32 s52, s59, 4")
    a("v_add_u32 v10, s52, v10")
    a(f"v_mul_u32_u24 v36, {DNP}, v33")
    a("v_lshl_add_u32 v36, v34, 3, v36")
    a("s_lshl_b32 s52, s59, 8")
    a(f"s_add_u32 s52, s52, {L_DN}")
    a("v_add_u32 v36, s52, v36")
    a("v_and_b32 v4, 1, v2")
    a("v_lshlrev_b32 v9, 10, v4")
    a("buffer_load_ushort v165, v9, s[4:7], 0 offen")
    a("v_lshlrev_b32 v166, 8, v4")
    a("v_lshl_add_u32 v166, v3, 4, v166")
    a(f"v_add_u32 v166, {L_ST}, v166")
    a("v_lshlrev_b32 v4, 6, v4")
    a("v_lshl_add_u32 v4, v3, 1, v4")
    a("s_lshl_b32 s52, s59, 4")
    a(f"s_add_u32 s52, s52, {L_ACT}")
    a("v_add_u32 v4, s52, v4")
    a("v_and_b32 v8, 1, v3")
    a("v_lshlrev_b32 v8, 6, v8")
    a("v_lshl_add_u32 v8, v2, 4, v8")
    a(f"v_add_u32 v8, {L_ACT}, v8")
    a(f"v_mov_b32 v11, {L_ZERO}")
    a("v_lshrrev_b32 v9, 2, v3")
    for u in range(4):
        a(f"v_cmp_eq_u32 vcc, {u}, v9")
        a(f"v_cndmask_b32 v{160+u}, v11, v8, vcc")
    a("v_mul_u32_u24 v5, 5504, v2")
    a("v_lshl_add_u32 v5, v3, 3, v5")
    a("s_mul_i32 s52, s59, 44032")
    a("s_lshl_b32 s53, s2, 7")
    a("s_add_u32 s52, s52, s53")
    a(f"s_add_u32 s52, s52, {WS_Y}")
    a("s_add_u32 s53, s52, 22016")
    a("v_and_b32 v7, 1, v0")
    a("v_lshlrev_b32 v7, 4, v7")
    a("v_lshrrev_b32 v7, v7, s29")
    a("v_bfe_u32 v164, v7, 8, 8")
    a("v_and_b32 v7, 0xff, v7")
    for r in range(4): a(f"v_mov_b32 v{40+r}, 0x3f803f80")
    for kw in range(8):
        lds_wait(f"fm{kw}", 35, 12, 2 if kw == 0 else 0, off=4*kw)
        if kw > 0:
            for ks in (2*kw-2, 2*kw-1):
                c = "0" if ks == 0 else "v[44:47]"
                a(f"v_mfma_f32_16x16x32_bf16 v[44:47], v[40:43], v[{64+4*ks}:{67+4*ks}], {c}")
        for ks in (2*kw, 2*kw+1):
            for hh in range(2):
                d = 64 + 4 * ks + 2 * hh
                a(f"ds_read_b64_tr_b16 v[{d}:{d+1}], v10 offset:{ks*2048 + hh*256}")
    a("s_waitcnt lgkmcnt(0) vmcnt(0)")
    for ks in (14, 15):
        a(f"v_mfma_f32_16x16x32_bf16 v[44:47], v[40:43], v[{64+4*ks}:{67+4*ks}], v[44:47]")
    a("v_lshlrev_b32 v165, 16, v165")
    a("v_mov_b32 v167, v44")
    a("v_and_b32 v11, 7, v0")
    a("v_lshlrev_b32 v11, 2, v11")
    a(f"v_add_u32 v11, {L_FD}, v11")
    lds_wait("fd", 11, 12, 0)
    for t in range(8):
        for hh in range(2):
            d = 128 + 4 * t + 2 * hh
            a(f"ds_read_b64_tr_b16 v[{d}:{d+1}], v36 offset:{hh*4*DNP + t*32}")
    a("s_waitcnt lgkmcnt(0)")
    stampat(7)
    if warm: a(";@warm ma L_wret")
    a("s_barrier")
    a("ds_read_b128 v[8:11], v166")
    mark = len(a.lines)
    a("v_add_f32 v8, v8, v10")
    a("v_add_f32 v9, v9, v11")
    dpp_steps([8, 9], ("quad_perm:[1,0,3,2]", "quad_perm:[2,3,0,1]", "row_half_mirror", "row_mirror"))
    ln_finish("v165", 8, 9, 10)
    a("v_and_b32 v166, 31, v0")
    a("v_lshlrev_b32 v166, 2, v166")
    a(f"v_add_u32 v166, {L_ACT}, v166")
    fill = a.lines[mark:]
    del a.lines[mark:]
    gemm16(12, fill)
    a("v_fma_f32 v12, -v8, v167, v12")
    a("v_mul_f32 v12, v12, v9")
    a("v_mul_f32 v13, 0xbfb8aa3b, v12")
    a("v_exp_f32 v13, v13")
    a("v_mul_f32_dpp v14, v12, v12 row_ror:8 row_mask:0xf bank_mask:0xf")
    a("v_add_f32 v13, 1.0, v13")
    a("v_rcp_f32 v13, v13")
    a("v_mul_f32 v13, v14, v13")
    a("v_mov_b32_dpp v14, v13 quad_perm:[1,0,3,2] row_mask:0xf bank_mask:0xf")
    a("v_cvt_pk_bf16_f32 v13, v13, v14")
    a("s_mov_b64 exec, 0x00550055")
    a("ds_write_b32 v4, v13")
    a("s_mov_b64 exec, -1")
    stampat(9)
    spin_head("pG")
    a("ds_read_b32 v32, v166")
    for u in range(4):
        a(f"ds_read_b128 v[{16+4*u}:{19+4*u}], v{160+u}")
    spin_bail("pG")
    a("s_waitcnt lgkmcnt(4)" if not stamps else "s_waitcnt lgkmcnt(0)")
    empty_check([32], 32, "pG")
    for u in range(4):
        a(f"s_waitcnt lgkmcnt({3-u})")
        for hf in range(2):
            acc = 8 + 4 * hf
            t = hf * 4 + u
            c = "0" if u == 0 else f"v[{acc}:{acc+3}]"
            a(f"v_mfma_f32_16x16x32_bf16 v[{acc}:{acc+3}], v[{16+4*u}:{19+4*u}], v[{128+4*t}:{131+4*t}], {c}")
    for hf in range(2):
        r = 8 + 4 * hf
        a(f"v_and_or_b32 v{r}, v{r}, s31, v7")
        a(f"v_and_or_b32 v{r+1}, v{r+1}, s31, v164")
        a(f"buffer_store_dwordx2 v[{r}:{r+1}], v5, s[24:27], s{52+hf} offen sc1")
    if warm: a(";@endwarm")
    stampat(8)

    a("L_fin:")
    if stamps:
        a("s_waitcnt lgkmcnt(0)")
        a("s_mul_i32 s64, s3, 80")
        a(f"s_add_u32 s64, s64, {L_STAMP}")
        a("v_mov_b32 v40, s64")
        a("s_mov_b64 exec, 1")
        for i in range(10):
            a(f"v_mov_b32 v12, s{80+2*i}")
            a(f"v_mov_b32 v13, s{81+2*i}")
            a(f"ds_write_b64 v40, v[12:13] offset:{8*i}")
        a("s_mov_b64 exec, -1")
        a("s_waitcnt lgkmcnt(0)")
        if href:
            a(f"s_cmp_lg_u32 s3, {href[0]}")
            a("s_cbranch_scc1 L_end")
            a("s_cmp_lt_u32 s2, 128")
            a("s_cbranch_scc1 L_end")
            a("L_hold2:")
            a("s_sleep 2")
            a("s_memrealtime s[66:67]")
            a("s_waitcnt lgkmcnt(0)")
            a(f"s_sub_u32 s66, s66, s{80 + 2 * href[1]}")
            a("s_cmp_lt_u32 s66, 3000")
            a("s_cbranch_scc1 L_hold2")
            a("s_branch L_end")
        a("s_cmp_lg_u32 s3, 9")
        a("s_cbranch_scc1 L_end")
        if hold_x is not None:
            a(f"s_cmp_lg_u32 s2, {128 + hold_x}")
            a("s_cbranch_scc1 L_end")
        a("L_hold:")
        a(f"s_sleep {32 if hold_x is None else 2}")
        a("s_memrealtime s[66:67]")
        a("s_waitcnt lgkmcnt(0)")
        a("s_sub_u32 s66, s66, s80")
        a(f"s_cmp_lt_u32 s66, {hold_t}")
        a("s_cbranch_scc1 L_hold")
        a(f"v_add_u32 v40, {L_STAMP}, v1")
        a("ds_read_b128 v[12:15], v40")
        a("s_mul_i32 s64, s2, 1280")
        a(f"s_add_u32 s64, s64, {512<<20}")
        a("v_add_u32 v40, s64, v1")
        a("s_waitcnt lgkmcnt(0)")
        a("global_store_dwordx4 v40, v[12:15], s[24:25]")
    a("L_end:")
    a("s_endpgm")
    a('.section .rodata,"a"')
    a(".p2align 6")
    a(f".amdhsa_kernel {NAME}_kernel")
    a(f"  .amdhsa_next_free_vgpr {NVGPR}")
    a("  .amdhsa_next_free_sgpr 102")
    a(f"  .amdhsa_accum_offset {NVGPR}")
    a("  .amdhsa_group_segment_fixed_size 0")
    a("  .amdhsa_kernarg_size 104")
    a("  .amdhsa_user_sgpr_count 2")
    a("  .amdhsa_user_sgpr_kernarg_segment_ptr 1")
    a("  .amdhsa_system_sgpr_workgroup_id_x 1")
    a(".end_amdhsa_kernel")
    return add_pads(a.finalize(), warm) if warm else a.finalize()

if __name__ == "__main__":
    out = sys.argv[1]
    kw = eval("dict(" + (sys.argv[2] if len(sys.argv) > 2 else "") + ")")
    open(out, "w").write(gen(**kw))
```

```python
import sys, json
from asmlib import Asm, add_pads
from gen import HDR, NAME

WS_EP = 0
WS_MLX = 0x1000
WS_OP = 0x9000
WS_OS = 0x29000
WS_ZX = 0x49000
WS_QX = 0x51000
WS_Y = 0xD1000
WS_SIZE = WS_Y + 43 * 4096
L_UP = 0x8020
L_DN = 0x10040
DNP = 1056
L_INIT = 0x18800
L_OP = L_INIT
L_QP = L_INIT + 0x1000
L_QB = L_INIT + 0x1800
L_MB = L_INIT + 0x1900
L_FL = L_INIT + 0x1940
L_ACT = L_INIT + 0x1980
L_SG = L_INIT + 0x1A00
L_FB = L_INIT + 0x1A40
L_HF = L_INIT + 0x1A60
L_FD = L_FL + 0x20
L_ZERO = L_INIT + 0x1C00
L_A = L_INIT + 0x1D00
APITCH = 1088
L_ST = L_A + 0x900
L_STAMP = L_ST + 0x200
LDS_SIZE = L_STAMP + 0x400
NMLP = 43
SPIN = 1000000
LOG2E = 0x3fb8aa3b
SCALE = 0x3db504f3
NVGPR = 168

DOC = """;
; One persistent launch, one workgroup per CU: wg = split*64 + b*32 + h  (1024 keys of one (batch, head)).
;   waves 0..7  : stream K then V (nt loads, 3-4 KiB-deep ring), scores by v_dot2c + transposing DPP reduce,
; launch advances; where producer and consumer share an L2 a plain-store copy is read, else the write-through copy.
; The s_cbranch_execz chains let idle waves pull the tail code into the instruction cache.
"""

def gen(stamps=False, D0=2, N0=4, D=3, Dm=4, Dr=4, NPRE=24, ring=31, DQ=6,
        gvec=(0,1,5,6,7,8,9), wbit=2, gx=((3,0),(4,1),(5,5)), kv_aux="nt", wq_aux="", wo_aux="", mlp_aux="", dn_aux="",
        no_stage=False, CU=4, chunk=24, cdelay=0, local=True, osleep=0, rot_m=8, rot_r=16, c3=96|24,
        bm_from=0, br_from=0, early_m=1, early_r=4, hold_x=None, hold_t=4500, bsleep=2, aux_prio=0, noround=False, zcopy=False, masked=False, ins_r=None, ins_m=None, prep_at=12, qtries=8, qsleep=12, force_fb=False, fmap=True, falt=False, dn_lead=2, href=None, warm=64, acc2=False, wgrp=4, Dp=3, bp_from=64, pf=False, pf_delay=0, pf_cnt=8, yprio=0, yskip=(), maskA=False, heads=False, hdelay=0, phases=None, kvwarm=0, nosent=False, psleep=0, b0_at=0):
    a = Asm()
    n = 32
    def stampat(i):
        if stamps:
            a(f"s_memrealtime s[{80+2*i}:{81+2*i}]")

    a(HDR + f"; @launch grid=(256,1,1) block=(768,1,1) lds={LDS_SIZE if stamps else L_STAMP}\n" + DOC.rstrip())
    a('.amdgcn_target "amdgcn-amd-amdhsa--gfx950"')
    a(".text")
    a(f".globl {NAME}_kernel")
    a(".p2align 8")
    a(f".type {NAME}_kernel,@function")
    a(f"{NAME}_kernel:")
    stampat(0)
    a("s_load_dwordx2 s[12:13], s[0:1], 8")
    a("s_load_dwordx2 s[4:5], s[0:1], 0")
    a("s_load_dwordx2 s[8:9], s[0:1], 24")
    if stamps:
        for i in range(1, 10):
            a(f"s_mov_b64 s[{80+2*i}:{81+2*i}], 0")
    a("s_cmp_ge_u32 s2, 256")
    a("s_cbranch_scc1 L_end")
    a("v_lshrrev_b32 v2, 6, v0")
    a("v_and_b32 v0, 63, v0")
    a("v_readfirstlane_b32 s3, v2")
    a("v_lshlrev_b32 v1, 4, v0")
    a("s_mov_b32 s14, 0x10000000")
    a("s_mov_b32 s15, 0x20000")
    a("s_movk_i32 s6, 2048")
    a("s_mov_b32 s7, 0x20000")
    a(f"s_mov_b32 s26, {WS_SIZE}")
    a("s_mov_b32 s27, 0x20000")
    a("s_lshr_b32 s57, s2, 6")
    a("s_cmp_ge_u32 s3, 8")
    a("s_cbranch_scc1 L_aux")

    def epoch_load():
        a("s_load_dword s28, s[24:25], 0")
    def epoch_calc():
        a("s_and_b32 s29, s28, 0x7f7f7f7f")
        a("s_add_u32 s29, s29, 0x07050301")
        a("s_and_b32 s30, s28, 0x80808080")
        a("s_xor_b32 s29, s29, s30")
        for k in range(4):
            a(f"s_bfe_u32 s{60+k}, s29, {(8*k) | (8 << 16):#x}")
        a("s_mov_b32 s31, 0xffffff00")
    def srd(base, off, size):
        a(f"s_load_dwordx2 s[{base}:{base+1}], s[0:1], {off}")
        a(f"s_mov_b32 s{base+2}, {size}")
        a(f"s_mov_b32 s{base+3}, 0x20000")
    def masks(t0, t1):
        a(f"v_and_b32 v{t0}, 1, v0")
        a(f"v_lshlrev_b32 v{t0}, 4, v{t0}")
        a(f"v_mov_b32 v{t1}, 0xffff")
        a(f"v_lshlrev_b32 v{t0}, v{t0}, v{t1}")
        a(f"v_bfe_u32 v{t1}, v0, 1, 3")
        for r in range(4):
            a(f"v_cmp_eq_u32 vcc, {r}, v{t1}")
            a(f"v_cndmask_b32 v{4+r}, 0, v{t0}, vcc")
    def unpack(src, dst, n=4):
        for k in range(n):
            a(f"v_lshlrev_b32 v{dst+2*k}, 16, v{src+k}")
            a(f"v_and_b32 v{dst+2*k+1}, 0xffff0000, v{src+k}")
    def dpp_steps(regs, steps, op="v_add_f32"):
        for m in steps:
            for r in regs:
                a(f"{op}_dpp v{r}, v{r}, v{r} {m} row_mask:0xf bank_mask:0xf")
    def wave_reduce(regs, op="v_add_f32"):
        dpp_steps(regs, ("row_shr:1", "row_shr:2", "row_shr:4", "row_shr:8"), op)
        for r in regs:
            a(f"{op}_dpp v{r}, v{r}, v{r} row_bcast:15 row_mask:0xa bank_mask:0xf")
        for r in regs:
            a(f"{op}_dpp v{r}, v{r}, v{r} row_bcast:31 row_mask:0xc bank_mask:0xf")
    def bf16r(r):
        a(f"v_cvt_pk_bf16_f32 v{r}, v{r}, v{r}")
        a(f"v_lshlrev_b32 v{r}, 16, v{r}")
    def ln_sums(f, t, sc, o1, o2):
        a(f"v_readfirstlane_b32 s{sc}, v{f}")
        for i in range(8):
            a(f"v_subrev_f32 v{t+i}, s{sc}, v{f+i}")
        s1, s2 = t + 8, t + 9
        a(f"v_add_f32 v{s1}, v{t}, v{t+1}")
        a(f"v_mul_f32 v{s2}, v{t}, v{t}")
        a(f"v_fmac_f32 v{s2}, v{t+1}, v{t+1}")
        for i in range(2, 8):
            a(f"v_add_f32 v{s1}, v{s1}, v{t+i}")
            a(f"v_fmac_f32 v{s2}, v{t+i}, v{t+i}")
        wave_reduce([s1, s2])
        a(f"v_readlane_b32 s{o1}, v{s1}, 63")
        a(f"v_readlane_b32 s{o2}, v{s2}, 63")
    def ln_finish(c, mb, rs, t):
        a(f"v_mul_f32 v{mb}, 0x3b000000, v{mb}")
        a(f"v_mul_f32 v{rs}, 0x3b000000, v{rs}")
        a(f"v_fma_f32 v{rs}, -v{mb}, v{mb}, v{rs}")
        a(f"v_add_f32 v{mb}, {c}, v{mb}")
        a(f"v_max_f32 v{rs}, 0, v{rs}")
        a(f"v_cvt_pk_bf16_f32 v{t}, v{mb}, v{rs}")
        a(f"v_lshlrev_b32 v{mb}, 16, v{t}")
        a(f"v_and_b32 v{rs}, 0xffff0000, v{t}")
        a(f"v_add_f32 v{rs}, 0x3727c5ac, v{rs}")
        bf16r(rs)
        a(f"v_sqrt_f32 v{rs}, v{rs}")
        bf16r(rs)
        a(f"v_rcp_f32 v{rs}, v{rs}")
    def ln_apply(f, t, mb, rs, n=8):
        mbs = mb if isinstance(mb, (list, tuple)) else [mb] * n
        rss = rs if isinstance(rs, (list, tuple)) else [rs] * n
        for i in range(n):
            a(f"v_sub_f32 v{t+i}, v{f+i}, v{mbs[i]}")
        for k in range(n // 2):
            a(f"v_cvt_pk_bf16_f32 v{t+2*k+1}, v{t+2*k}, v{t+2*k+1}")
        for k in range(n // 2):
            a(f"v_lshlrev_b32 v{t+2*k}, 16, v{t+2*k+1}")
            a(f"v_and_b32 v{t+2*k+1}, 0xffff0000, v{t+2*k+1}")
        for i in range(n):
            a(f"v_mul_f32 v{t+i}, v{t+i}, v{rss[i]}")
    def spin_head(tag):
        a(f"s_mov_b32 s75, {SPIN}")
        a(f"L_{tag}:")
    def spin_bail(tag):
        a("s_sub_u32 s75, s75, 1")
        a(f"s_cbranch_scc1 L_{tag}_ok")
    def untag_check(regs, t, tag, pre=None):
        for i, r in enumerate(regs):
            if pre and r in pre: continue
            a(f"v_xor_b32 v{r}, s{60 + (i & 3)}, v{r}")
        rs = list(regs)
        a(f"v_or3_b32 v{t}, v{rs[0]}, v{rs[1]}, v{rs[2]}")
        rs = rs[3:]
        while len(rs) >= 2:
            a(f"v_or3_b32 v{t}, v{t}, v{rs[0]}, v{rs[1]}")
            rs = rs[2:]
        if rs:
            a(f"v_or_b32 v{t}, v{t}, v{rs[0]}")
        a(f"v_and_b32 v{t}, 0xff, v{t}")
        a(f"v_cmp_ne_u32 vcc, 0, v{t}")
        a(f"s_cbranch_vccnz L_{tag}")
        a(f"L_{tag}_ok:")
    def empty_check(regs, t, tag):
        rs = list(regs)
        if len(rs) == 1:
            a(f"v_cmp_eq_u32 vcc, -1, v{rs[0]}")
        else:
            if len(rs) >= 3:
                a(f"v_max3_u32 v{t}, v{rs[0]}, v{rs[1]}, v{rs[2]}"); rs = rs[3:]
            else:
                a(f"v_max_u32 v{t}, v{rs[0]}, v{rs[1]}"); rs = rs[2:]
            while len(rs) >= 2:
                a(f"v_max3_u32 v{t}, v{t}, v{rs[0]}, v{rs[1]}"); rs = rs[2:]
            if rs: a(f"v_max_u32 v{t}, v{t}, v{rs[0]}")
            a(f"v_cmp_eq_u32 vcc, -1, v{t}")
        a(f"s_cbranch_vccnz L_{tag}")
        a(f"L_{tag}_ok:")
    def masked_poll(tag, loads, t, mb=52):
        for k in range(len(loads)):
            a(f"s_mov_b64 s[{mb+2*k}:{mb+1+2*k}], -1")
        spin_head(tag)
        for k, (r, txt) in enumerate(loads):
            a(f"s_mov_b64 exec, s[{mb+2*k}:{mb+1+2*k}]")
            a(txt)
        spin_bail(tag)
        for k, (r, txt) in enumerate(loads):
            a(f"s_mov_b64 exec, s[{mb+2*k}:{mb+1+2*k}]")
            a(f"s_waitcnt vmcnt({len(loads)-1-k})")
            for i in range(4):
                a(f"v_xor_b32 v{r+i}, s{60+i}, v{r+i}")
            a(f"v_or3_b32 v{t}, v{r}, v{r+1}, v{r+2}")
            a(f"v_or_b32 v{t}, v{t}, v{r+3}")
            a(f"v_and_b32 v{t}, 0xff, v{t}")
            a(f"v_cmp_ne_u32 s[{mb+2*k}:{mb+1+2*k}], 0, v{t}")
        a(f"s_or_b64 s[64:65], s[{mb}:{mb+1}], s[{mb+2}:{mb+3}]")
        for k in range(2, len(loads)):
            a(f"s_or_b64 s[64:65], s[64:65], s[{mb+2*k}:{mb+1+2*k}]")
        a(f"s_cbranch_scc1 L_{tag}")
        a(f"L_{tag}_ok:")
        a("s_mov_b64 exec, -1")
    def swap_add(regs, tmp, sw):
        for i, r in enumerate(regs): a(f"v_mov_b32 v{tmp+i}, v{r}")
        for i, r in enumerate(regs): a(f"{sw} v{tmp+i}, v{r}")
        for i, r in enumerate(regs): a(f"v_add_f32 v{r}, v{r}, v{tmp+i}")
    def round4(base):
        a(f"v_cvt_pk_bf16_f32 v{base+1}, v{base}, v{base+1}")
        a(f"v_cvt_pk_bf16_f32 v{base+3}, v{base+2}, v{base+3}")
        a(f"v_lshlrev_b32 v{base}, 16, v{base+1}")
        a(f"v_and_b32 v{base+1}, 0xffff0000, v{base+1}")
        a(f"v_lshlrev_b32 v{base+2}, 16, v{base+3}")
        a(f"v_and_b32 v{base+3}, 0xffff0000, v{base+3}")
    def lds_wait(tag, addr, t, sleep, off=0):
        spin_head(tag)
        if sleep: a(f"s_sleep {sleep}")
        a(f"ds_read_b32 v{t}, v{addr} offset:{off}")
        spin_bail(tag)
        a("s_waitcnt lgkmcnt(0)")
        empty_check([t], t, tag)
    def P(G):
        r = 0
        for k, b in enumerate(gvec):
            if G >> k & 1: r ^= 1 << b
        return r

    a("s_and_b32 s52, s2, 63")
    a("s_lshl_b32 s52, s52, 2")
    a("s_add_u32 s52, s52, 3")
    a("s_lshl_b32 s52, s52, 20")
    a(f"s_lshl_b32 s53, s3, {10 + wbit}")
    a("s_xor_b32 s52, s52, s53")
    gl = list(gx)
    while gl:
        k, b = gl.pop(0)
        nn = 1
        while gl and gl[0] == (k + nn, b + nn):
            gl.pop(0); nn += 1
        a(f"s_bfe_u32 s53, s2, {k | (nn << 16):#x}")
        a(f"s_lshl_b32 s53, s53, {10 + b}")
        a("s_xor_b32 s52, s52, s53")
    a("s_lshl_b32 s53, s57, 18")
    a("s_xor_b32 s52, s52, s53")
    if phases is None:
        a("s_lshl_b32 s53, s57, 16")
    else:
        tab = sum((ph >> 2) << (8 * i) for i, ph in enumerate(phases))
        a("s_lshl_b32 s53, s57, 3")
        a(f"s_lshr_b32 s53, {tab:#x}, s53")
        a("s_and_b32 s53, s53, 7")
        a("s_lshl_b32 s53, s53, 15")
    a("s_xor_b32 s52, s52, s53")
    assert tuple(gvec) == (0,1,5,6,7,8,9)
    RB = 44
    def ringreg(j): return RB + 4 * (j % ring)
    def ld_text(j, rot=0):
        sr = 12 if j < n else 16
        p = P(((j + rot) % n) ^ rot)
        r = ringreg(j)
        if p:
            a(f"s_xor_b32 s53, s52, {p << 10}")
            so = 53
        else:
            so = 52
        a(f"buffer_load_dwordx4 v[{r}:{r+3}], v1, s[{sr}:{sr+3}], s{so} offen {kv_aux}")
    a("s_waitcnt lgkmcnt(0)")
    for j in range(D0): ld_text(j)
    a("s_load_dwordx2 s[24:25], s[0:1], 96")
    srd(16, 16, 0x10000000)
    a("s_mov_b32 s64, 0xcccccccc"); a("s_mov_b32 s65, 0xcccccccc")
    a("s_mov_b32 s66, 0xaaaaaaaa"); a("s_mov_b32 s67, 0xaaaaaaaa")
    masks(12, 13)
    a("v_and_b32 v12, 15, v0")
    a("v_lshlrev_b32 v12, 4, v12")
    a(f"v_add_u32 v12, {L_QB}, v12")
    a("s_waitcnt lgkmcnt(0)")
    epoch_load()
    if yprio or yskip:
        a("s_cmp_ge_u32 s3, 4")
        a("s_cselect_b64 vcc, -1, 0")
    if yprio:
        a("s_cbranch_scc0 L_np")
        a(f"s_setprio {yprio}")
        a("L_np:")
    if not b0_at: a("s_barrier")
    for j in range(D0, N0):
        a(f"s_waitcnt vmcnt({D0-1})")
        ld_text(j)
    a(f"s_cmp_lt_u32 s2, {NMLP}")
    a("s_cbranch_scc1 L_kv_m")
    a("s_cmp_eq_u32 s57, 1")
    a("s_cbranch_scc1 L_kv_r")

    def stage_done(sr=3):
        a(f"s_lshl_b32 s73, s{sr}, 2")
        a(f"s_add_u32 s73, s73, {L_FL}")
        a("v_mov_b32 v26, s73")
        a("v_mov_b32 v27, 0")
        a("ds_write_b32 v26, v27")

    def kv_path(role, Dx, bfrom, early):
        st = dict(iss=N0, landed=N0 - D0 - 1, cons=0)
        order = list(range(N0))
        NT = 2 * n
        stage = []
        def depth(): return Dx if st["cons"] >= bfrom else D
        def ld_kv():
            j = st["iss"]
            ld_text(j, 0 if phases is None else {"p": 0, "m": phases[0], "r": phases[1]}[role])
            st["iss"] += 1
            order.append(j)
        def wait_kv(j):
            if j <= st["landed"]: return
            a(f"s_waitcnt vmcnt({len(order) - 1 - order.index(j)})")
            st["landed"] = j
        if role == "m":
            srd(44, 48, 1024); srd(48, 80, 2048); srd(32, 56, 1409024); srd(36, 64, 1409024); srd(40, 72, 1409024)
        if role == "r":
            srd(20, 32, 0x400000)
        while st["iss"] < NPRE:
            d = depth()
            if st["iss"] in yskip and role == "p":
                wait_kv(st["iss"] - d - 1)
                a(f"s_cbranch_vccnz L_ys{st['iss']}")
                a(f"s_waitcnt vmcnt({d-1})")
                a(f"L_ys{st['iss']}:")
            elif st["iss"] - 1 - st["landed"] >= d:
                wait_kv(st["iss"] - d)
            ld_kv()
            if st["iss"] == b0_at: a("s_barrier")
        stampat(1)
        if kvwarm: a(f";@warm kv{role} L_kret {kvwarm}")
        spin_head("wq" + role)
        a("ds_read_b128 v[8:11], v12")
        spin_bail("wq" + role)
        a("s_waitcnt lgkmcnt(0)")
        empty_check([8, 9, 10, 11], 13, "wq" + role)
        a("s_waitcnt lgkmcnt(0)")
        if role != "p": epoch_calc()
        stampat(2)
        def reduce_scores(dst):
            for i in range(8):
                a(f"v_add_f32_dpp v{24+i}, v{24+i}, v{24+i} row_ror:8 row_mask:0xf bank_mask:0x3")
            for i in range(8):
                a(f"v_add_f32_dpp v{24+i}, v{32+i}, v{32+i} row_ror:8 row_mask:0xf bank_mask:0xc")
            for i in range(4):
                a(f"v_add_f32_dpp v{24+i}, v{24+i}, v{24+i} row_half_mirror row_mask:0xf bank_mask:0x5")
            for i in range(4):
                a(f"v_add_f32_dpp v{24+i}, v{28+i}, v{28+i} row_half_mirror row_mask:0xf bank_mask:0xa")
            dpp_steps([24, 25, 26, 27], ("quad_perm:[2,3,0,1]",))
            a("v_cndmask_b32 v24, v24, v26, s[64:65]")
            a("v_cndmask_b32 v25, v25, v27, s[64:65]")
            dpp_steps([24, 25], ("quad_perm:[1,0,3,2]",))
            a(f"v_cndmask_b32 v{dst}, v24, v25, s[66:67]")
            if not noround: bf16r(dst)
            a(f"v_mul_f32 v{dst}, {SCALE:#x}, v{dst}")
            if not noround: bf16r(dst)
        def softmax_part():
            stampat(3)
            a("v_max_f32 v24, v2, v3")
            wave_reduce([24], "v_max_f32")
            a("v_readlane_b32 s72, v24, 63")
            for r in (2, 3): a(f"v_subrev_f32 v{r}, s72, v{r}")
            for r in (2, 3): a(f"v_mul_f32 v{r}, {LOG2E:#x}, v{r}")
            for r in (2, 3): a(f"v_exp_f32 v{r}, v{r}")
            a("v_add_f32 v25, v2, v3")
            for r in (2, 3): a(f"v_cvt_pk_bf16_f32 v{r}, v{r}, v{r}")
            wave_reduce([25])
            a("s_lshl_b32 s73, s3, 3")
            a(f"s_add_u32 s73, s73, {L_MB}")
            a("v_mov_b32 v26, s73")
            a("s_mov_b32 exec_lo, 0")
            a("s_mov_b32 exec_hi, 0x80000000")
            a("ds_write_b64 v26, v[24:25]")
            a("s_mov_b64 exec, -1")
            a("s_lshl_b32 s73, s3, 9")
            a(f"s_add_u32 s73, s73, {L_OP}")
            a("v_and_b32 v27, 15, v0")
            a("v_lshrrev_b32 v28, 4, v0")
            a("v_lshlrev_b32 v29, 5, v27")
            a("v_lshl_add_u32 v29, v28, 4, v29")
            a("v_add_u32 v29, s73, v29")
            stampat(4)
        def issue_stage():
            m0, voff, sr, so, aux = stage.pop(0)
            a(f"s_add_u32 m0, {m0}")
            a(f"s_add_u32 s53, {so}")
            if not no_stage:
                a(f"buffer_load_dwordx4 v{voff}, s[{sr}:{sr+3}], s53 offen {aux} lds")
                order.append("st")
        ins = {"r": ins_r, "m": ins_m}.get(role)
        ins = list(ins) if ins else []
        def inflight():
            pos = order.index(st["landed"])
            return sum(1 for x in order[pos+1:] if isinstance(x, int) or x == "st")
        def pump(extra=0):
            while st["iss"] < NT and inflight() < depth() + extra and st["iss"] - ring < st["cons"]:
                if ins and ins[0] <= st["iss"] and stage:
                    ins.pop(0)
                    issue_stage()
                    continue
                ld_kv()
            if st["iss"] == NT and stage and st["cons"] >= NT - early:
                issue_stage()
        def role_prep():
            if role == "r":
                a("s_and_b32 s76, s2, 7")
                a("s_lshr_b32 s77, s3, 1")
                a("s_lshl_b32 s78, s77, 3")
                a("s_add_u32 s78, s78, s76")
                a("s_lshl_b32 s68, s78, 17")
                a("s_lshl_b32 s78, s78, 1")
                a("s_and_b32 s73, s3, 1")
                a("s_add_u32 s78, s78, s73")
                a("s_lshl_b32 s79, s78, 9")
                a(f"s_add_u32 s79, s79, {WS_MLX}")
                a("s_lshl_b32 s78, s78, 11")
                a(f"s_add_u32 s78, s78, {WS_OP}")
                a("s_lshl_b32 s69, s73, 16")
                a("s_add_u32 s68, s68, s69")
                a("s_bfe_u32 s69, s2, 0x30003")
                a("s_lshl_b32 s69, s69, 7")
                a("s_add_u32 s68, s68, s69")
                a("s_lshl_b32 s69, s3, 13")
                a("v_and_b32 v31, 3, v0")
                a("v_lshlrev_b32 v31, 7, v31")
                a(f"s_mul_i32 s73, s73, {APITCH}")
                a("s_lshl_b32 s77, s77, 8")
                a("s_add_u32 s73, s73, s77")
                a(f"s_add_u32 s73, s73, {L_A}")
                a("v_and_b32 v30, 31, v0")
                a("v_lshlrev_b32 v30, 3, v30")
                a("v_lshrrev_b32 v32, 5, v0")
                a("v_lshl_add_u32 v30, v32, 2, v30")
                a("v_add_u32 v30, s73, v30")
                a("s_getreg_b32 s74, hwreg(HW_REG_XCC_ID, 0, 4)")
                a("v_lshrrev_b32 v32, 3, v0")
                a("v_and_b32 v33, 7, v0")
                a("v_lshlrev_b32 v32, 10, v32")
                a("v_lshl_or_b32 v32, v33, 4, v32")
                for i in range(8):
                    stage.append((f"s69, {1024*i}", 32, 20, f"s68, {8192*i}", wo_aux))
            if role == "m":
                a("v_bfe_u32 v38, v0, 2, 1")
                a("v_bfe_u32 v31, v0, 3, 2")
                a("v_lshlrev_b32 v30, 5, v31")
                a("v_and_b32 v31, 3, v0")
                a("v_lshl_add_u32 v30, v31, 3, v30")
                a("s_lshl_b32 s73, s3, 7")
                a("v_add_u32 v30, s73, v30")
                a("v_lshrrev_b32 v39, 5, v0")
                a("v_lshl_add_u32 v30, v39, 2, v30")
                a("v_lshl_add_u32 v39, v38, 10, v30")
                a("buffer_load_dword v36, v39, s[4:7], 0 offen")
                a("v_lshlrev_b32 v39, 10, v38")
                a("buffer_load_ushort v41, v39, s[4:7], 0 offen")
                a("buffer_load_dwordx4 v[32:35], v1, s[44:47], 0 offen")
                order.extend(["x", "c", "wr"])
                a(f"v_mul_u32_u24 v39, {APITCH}, v38")
                a("v_add_u32 v30, v30, v39")
                a(f"v_add_u32 v30, {L_A}, v30")
                a("v_lshrrev_b32 v39, 4, v0")
                a("v_lshlrev_b32 v39, 3, v39")
                a("v_lshl_add_u32 v39, v38, 8, v39")
                a("s_lshl_b32 s73, s3, 5")
                a(f"s_add_u32 s73, s73, {L_ST}")
                a("v_add_u32 v39, s73, v39")
                a("s_lshl_b32 s78, s3, 12")
                a(f"s_add_u32 s78, s78, {WS_ZX}")
                if zcopy:
                    a("s_getreg_b32 s73, hwreg(HW_REG_XCC_ID, 0, 3)")
                    a("s_lshl_b32 s73, s73, 15")
                    a("s_add_u32 s78, s78, s73")
                a("v_lshrrev_b32 v42, 2, v0")
                a("v_mul_u32_u24 v42, 2752, v42")
                a("v_lshl_add_u32 v42, v31, 4, v42")
                if fmap:
                    a("s_and_b32 s70, s2, 7")
                    a("s_min_u32 s71, s70, 3")
                    a("s_mul_i32 s70, s70, 5")
                    a("s_add_u32 s70, s70, s71")
                    a("s_lshr_b32 s71, s2, 3")
                    a("s_add_u32 s70, s70, s71")
                else:
                    a("s_mov_b32 s70, s2")
                if falt:
                    a("s_and_b32 s74, s70, 1")
                    a("s_lshl_b32 s74, s74, 2")
                    a("s_xor_b32 s74, s74, s3")
                else:
                    a("s_mov_b32 s74, s3")
                a("s_mul_i32 s68, s74, 176128")
                a("s_lshl_b32 s69, s70, 6")
                a("s_add_u32 s68, s68, s69")
                a("s_lshl_b32 s69, s74, 12")
                a("s_lshl_b32 s70, s70, 15")
                a("s_add_u32 s70, s70, s69")
                a(f"s_mul_i32 s71, s74, {4*DNP}")
                for i in range(4):
                    stage.append((f"s69, {1024*i}", 42, 32, f"s68, {44032*i}", mlp_aux))
                    stage.append((f"s69, {L_UP + 1024*i}", 42, 36, f"s68, {44032*i}", mlp_aux))
                for i in range(4):
                    stage.append((f"s71, {L_DN + DNP*i}", 1, 40, f"s70, {1024*i}", dn_aux))
        def consume(j):
            r = ringreg(j)
            st["cons"] = j
            if j < n:
                i = j & 15
                if i == 0:
                    for k in range(16):
                        a(f"v_mov_b32 v{24+k}, 0")
                wait_kv(j)
                pump(1 if i == 15 else 0)
                for k in range(4):
                    a(f"v_dot2c_f32_bf16 v{24+i}, v{r+k}, v{8+k}")
                if i == 15: reduce_scores(2 + (j >> 4))
                if j == n - 1: softmax_part()
            else:
                jj = j - n
                i = jj & 15
                pp = 2 + (jj >> 4)
                t = 12 + 4 * (i & 1)
                for k in range(4):
                    a(f"v_and_b32_dpp v{t+k}, v{pp}, v{4+k} row_newbcast:{i} row_mask:0xf bank_mask:0xf")
                pj = order.index(j)
                if pj > 0 and order[pj-1] == "st" and j > st["landed"] and st["iss"] < NT:
                    a(f"s_waitcnt vmcnt({len(order) - pj})")
                    pump(1)
                wait_kv(j)
                if j < NT - 1: pump()
                if jj > prep_at and not stage and "st" in order and not st.get("fl") and max(i for i, x in enumerate(order) if x == "st") < order.index(j):
                    stage_done(74 if role == "m" else 3); st["fl"] = True
                c = "0" if jj == 0 else "v[20:23]"
                a(f"v_mfma_f32_16x16x32_bf16 v[20:23], v[{t}:{t+3}], v[{r}:{r+3}], {c}")
                if jj == prep_at: role_prep()
                if jj == 20 and role == "r":
                    a("buffer_load_dwordx4 v[40:43], v31, s[24:27], s79 offen sc1")
                    order.append("ml")
        for j in range(NT):
            if j <= st["landed"] and j % CU == 0 and st["iss"] < NT and st["iss"] - ring < j:
                st["cons"] = j
                wait_kv(st["landed"] + 1)
                pump()
            consume(j)
        if kvwarm: a(";@endwarm")
        a("s_mov_b32 exec_hi, 0")
        a("ds_write_b128 v29, v[20:23]")
        a("s_mov_b64 exec, -1")
        stampat(5)
        keep = 4 if role == "m" else 0
        while len(stage) > keep: issue_stage()
        return lambda: [issue_stage() for _ in range(len(stage))]
    kv_path("p", Dp, bp_from, 0)
    a("s_branch L_fin")

    a("L_kv_r:")
    kv_path("r", Dr, br_from, early_r)
    if warm: a(";@warm rk L_wret")
    a(f"s_mov_b32 s75, {SPIN}")
    a("s_branch L_pL_chk")
    a("L_pL:")
    a("buffer_load_dwordx4 v[40:43], v31, s[24:27], s79 offen sc1")
    spin_bail("pL")
    a("s_waitcnt vmcnt(0)")
    a("L_pL_chk:")
    a("v_xor_b32 v54, s29, v42")
    a("v_xor_b32 v55, s29, v43")
    a("v_lshrrev_b32 v56, 4, v55")
    a("v_or_b32 v54, v54, v56")
    a("v_cmp_ne_u32 vcc, 0, v54")
    a("s_cbranch_vccnz L_pL")
    a("L_pL_ok:")
    a("v_mov_b32 v52, v40")
    a("v_mov_b32 v53, v41")
    a("v_mov_b32 v56, v52")
    dpp_steps([56], ("quad_perm:[1,0,3,2]", "quad_perm:[2,3,0,1]"), "v_max_f32")
    a("v_sub_f32 v52, v52, v56")
    a(f"v_mul_f32 v52, {LOG2E:#x}, v52")
    a("v_exp_f32 v52, v52")
    a("v_mul_f32 v53, v53, v52")
    dpp_steps([53], ("quad_perm:[1,0,3,2]", "quad_perm:[2,3,0,1]"))
    a("v_rcp_f32 v53, v53")
    a("v_mul_f32 v52, v52, v53")
    a(f"v_mov_b32 v54, {WS_OS - WS_OP}")
    if local:
        a("v_cmp_ne_u32 vcc, s74, v55")
        a("v_cndmask_b32 v55, 0, v54, vcc")
    else:
        a("v_mov_b32 v55, v54")
    for src, d0 in ((52, 56), (55, 58)):
        a(f"v_mov_b32_dpp v{d0}, v{src} quad_perm:[0,0,0,0] row_mask:0x3 bank_mask:0xf")
        a(f"v_mov_b32_dpp v{d0+1}, v{src} quad_perm:[2,2,2,2] row_mask:0x3 bank_mask:0xf")
        a(f"v_mov_b32_dpp v{d0}, v{src} quad_perm:[1,1,1,1] row_mask:0xc bank_mask:0xf")
        a(f"v_mov_b32_dpp v{d0+1}, v{src} quad_perm:[3,3,3,3] row_mask:0xc bank_mask:0xf")
    a("v_add_u32 v58, v58, v1")
    a("v_add_u32 v59, v59, v1")
    a("s_lshl_b32 s73, s3, 2")
    a(f"s_add_u32 s73, s73, {L_FL}")
    a("v_mov_b32 v26, s73")
    a("v_mov_b32 v27, 0")
    a("s_mov_b32 s68, 0x0c0c0400")
    a("s_mov_b32 s69, 0x04000c0c")
    if maskA:
        a("s_waitcnt vmcnt(0)")
        a("ds_write_b32 v26, v27")
        a("s_mov_b64 s[52:53], -1"); a("s_mov_b64 s[54:55], -1")
        spin_head("pA")
        a("s_mov_b64 exec, s[52:53]")
        a("buffer_load_dwordx4 v[44:47], v58, s[24:27], s78 offen sc1")
        a("s_mov_b64 exec, s[54:55]")
        a("buffer_load_dwordx4 v[48:51], v59, s[24:27], s78 offen offset:1024 sc1")
        a("s_mov_b64 exec, -1")
        a(f"s_cmp_lg_u32 s75, {SPIN - 400}")
        a("s_cbranch_scc1 L_pA_nf")
        a("v_add_u32 v58, v54, v1")
        a("v_add_u32 v59, v54, v1")
        a("L_pA_nf:")
        spin_bail("pA")
        a("s_waitcnt vmcnt(0)")
        for k, r in enumerate((44, 48)):
            a(f"v_perm_b32 v{60+2*k}, v{r+1}, v{r}, s68")
            a(f"v_perm_b32 v{61+2*k}, v{r+3}, v{r+2}, s69")
        a("v_or_b32 v60, v60, v61")
        a("v_or_b32 v62, v62, v63")
        a("v_cmp_ne_u32 s[52:53], s29, v60")
        a("v_cmp_ne_u32 s[54:55], s29, v62")
        a("s_or_b64 s[64:65], s[52:53], s[54:55]")
        a("s_cbranch_scc1 L_pA")
        a("L_pA_ok:")
        for r in range(44, 52): a(f"v_and_b32 v{r}, s31, v{r}")
    else:
        spin_head("pA")
        a("buffer_load_dwordx4 v[44:47], v58, s[24:27], s78 offen sc1")
        a("buffer_load_dwordx4 v[48:51], v59, s[24:27], s78 offen offset:1024 sc1")
        a(f"s_cmp_lg_u32 s75, {SPIN - 400}")
        a("s_cbranch_scc1 L_pA_nf")
        a("v_add_u32 v58, v54, v1")
        a("v_add_u32 v59, v54, v1")
        a("L_pA_nf:")
        spin_bail("pA")
        a("s_waitcnt vmcnt(2)")
        a("ds_write_b32 v26, v27")
        a("s_waitcnt vmcnt(0)")
        untag_check(list(range(44, 52)), 60, "pA")
    stampat(6)
    for r in range(4): a(f"v_mul_f32 v{44+r}, v{44+r}, v56")
    for r in range(4): a(f"v_fmac_f32 v{44+r}, v{48+r}, v57")
    a("v_permlane32_swap_b32 v44, v46")
    a("v_permlane32_swap_b32 v45, v47")
    a("v_add_f32 v44, v44, v46")
    a("v_add_f32 v45, v45, v47")
    a("v_cvt_pk_bf16_f32 v44, v44, v45")
    a("ds_write_b32 v30, v44")
    a("s_waitcnt lgkmcnt(0)")
    a("s_barrier")
    if warm: a(";@endwarm")
    stampat(7)
    a("s_mov_b64 exec, -1")
    a("s_branch L_fin")

    a("L_kv_m:")
    rest = kv_path("m", Dm, bm_from, early_m)
    unpack(36, 64, 1)
    a("v_lshlrev_b32 v41, 16, v41")
    a(f"s_waitcnt vmcnt({dn_lead})")
    rest()
    a(f"s_waitcnt vmcnt({0 if no_stage else 4})")
    stage_done(74)
    stampat(9)
    if warm: a(";@warm mk L_wret")
    if heads:
        a("v_lshrrev_b32 v61, 3, v0")
        a("v_lshlrev_b32 v61, 15, v61")
        a("v_and_b32 v62, 7, v0")
        a("v_lshl_add_u32 v61, v62, 9, v61")
        a("s_lshl_b32 s79, s3, 12")
        a(f"s_add_u32 s79, s79, {WS_OS}")
        a("s_and_b32 s73, s3, 1")
        a("s_lshl_b32 s73, s73, 4")
        a("s_lshr_b32 s77, s3, 1")
        a("s_lshl_b32 s77, s77, 2")
        a("s_add_u32 s73, s73, s77")
        a(f"s_add_u32 s73, s73, {L_HF}")
        a("v_mov_b32 v66, s73")
        a("v_lshrrev_b32 v67, 5, v0")
        a("v_lshlrev_b32 v67, 4, v67")
        a(f"v_add_u32 v67, {L_HF}, v67")
        for k in range(4): a(f"s_mov_b64 s[{52+2*k}:{53+2*k}], -1")
        a("s_mov_b32 exec_hi, 0")
        spin_head("pH")
        a("buffer_load_dwordx2 v[62:63], v61, s[24:27], s79 offen sc1")
        spin_bail("pH")
        a("s_waitcnt vmcnt(1)")
        a(f"ds_write_b32 v26, v27 offset:{L_FD - L_FL}")
        a("s_waitcnt vmcnt(0)")
        a("v_xor_b32 v62, s60, v62")
        a("v_xor_b32 v63, s61, v63")
        a("v_or_b32 v62, v62, v63")
        a("v_and_b32 v62, 0xff, v62")
        a("v_cmp_ne_u32 vcc, 0, v62")
        a("s_cbranch_vccz L_pH_ok")
        a("s_mov_b64 exec, vcc")
        a("s_branch L_pH")
        a("L_pH_ok:")
        a("s_mov_b64 exec, -1")
        if hdelay: a(f"s_sleep {hdelay}")
        a("ds_write_b32 v66, v27")
        stampat(1)
        spin_head("pB")
        a("ds_read_b128 v[68:71], v67")
        spin_bail("pB")
        a("s_waitcnt lgkmcnt(0)")
        for k in range(4):
            a(f"v_cmp_eq_u32 s[{64+2*k}:{65+2*k}], 0, v{68+k}")
        for k in range(4):
            a(f"s_and_b64 s[{64+2*k}:{65+2*k}], s[{64+2*k}:{65+2*k}], s[{52+2*k}:{53+2*k}]")
            a(f"s_mov_b64 exec, s[{64+2*k}:{65+2*k}]")
            a(f"buffer_load_dwordx4 v[{44+4*k}:{47+4*k}], v1, s[24:27], s78 offen offset:{1024*k} sc1")
        for k in range(4):
            r = 44 + 4 * k
            a(f"s_mov_b64 exec, s[{64+2*k}:{65+2*k}]")
            a(f"s_andn2_b64 s[{52+2*k}:{53+2*k}], s[{52+2*k}:{53+2*k}], exec")
            a(f"s_waitcnt vmcnt({3-k})")
            for i in range(4):
                a(f"v_xor_b32 v{r+i}, s{60+i}, v{r+i}")
            a(f"v_or3_b32 v60, v{r}, v{r+1}, v{r+2}")
            a(f"v_or_b32 v60, v60, v{r+3}")
            a("v_and_b32 v60, 0xff, v60")
            a("v_cmp_ne_u32 vcc, 0, v60")
            a(f"s_or_b64 s[{52+2*k}:{53+2*k}], s[{52+2*k}:{53+2*k}], vcc")
        a("s_mov_b64 exec, -1")
        a("s_or_b64 s[64:65], s[52:53], s[54:55]")
        a("s_or_b64 s[66:67], s[56:57], s[58:59]")
        a("s_or_b64 s[64:65], s[64:65], s[66:67]")
        a("s_cbranch_scc1 L_pB")
        a("L_pB_ok:")
    else:
        if nosent:
            a("s_waitcnt vmcnt(0)")
            a(f"ds_write_b32 v26, v27 offset:{L_FD - L_FL}")
        else:
            a("s_mov_b64 exec, 0xff")
            spin_head("pB0")
            if bsleep: a(f"s_sleep {bsleep}")
            a("buffer_load_dwordx4 v[44:47], v1, s[24:27], s78 offen sc1")
            spin_bail("pB0")
            a("s_waitcnt vmcnt(1)")
            a(f"ds_write_b32 v26, v27 offset:{L_FD - L_FL}")
            a("s_waitcnt vmcnt(0)")
            untag_check([44, 45, 46, 47], 60, "pB0")
            a("s_mov_b64 exec, -1")
        if masked:
            masked_poll("pB", [(44 + 4*k, f"buffer_load_dwordx4 v[{44+4*k}:{47+4*k}], v1, s[24:27], s78 offen offset:{1024*k} sc1") for k in range(4)], 60)
        else:
            spin_head("pB")
            if psleep: a(f"s_sleep {psleep}")
            for k in range(4):
                a(f"buffer_load_dwordx4 v[{44+4*k}:{47+4*k}], v1, s[24:27], s78 offen offset:{1024*k} sc1")
            spin_bail("pB")
            a("s_waitcnt vmcnt(0)")
            untag_check(list(range(44, 60)), 60, "pB")
    stampat(6)
    for r in range(4):
        a(f"v_add_f32 v{44+r}, v{44+r}, v{48+r}")
        a(f"v_add_f32 v{52+r}, v{52+r}, v{56+r}")
    for r in range(4): a(f"v_add_f32 v{44+r}, v{44+r}, v{52+r}")
    a("v_permlane32_swap_b32 v44, v46")
    a("v_permlane32_swap_b32 v45, v47")
    a("v_add_f32 v44, v44, v64")
    a("v_add_f32 v45, v45, v65")
    a("v_add_f32 v44, v44, v46")
    a("v_add_f32 v45, v45, v47")
    a("v_cvt_pk_bf16_f32 v48, v44, v45")
    a("ds_write_b32 v30, v48")
    unpack(48, 44, 1)
    a("v_sub_f32 v44, v44, v41")
    a("v_sub_f32 v45, v45, v41")
    a("v_mul_f32 v51, v44, v44")
    a("v_add_f32 v50, v44, v45")
    a("v_fmac_f32 v51, v45, v45")
    dpp_steps([50, 51], ("quad_perm:[1,0,3,2]", "quad_perm:[2,3,0,1]", "row_ror:8"))
    a("ds_write_b64 v39, v[50:51]")
    a("s_waitcnt lgkmcnt(0)")
    a("s_barrier")
    stampat(7)
    a("s_cmp_ge_u32 s3, 2")
    a("s_cbranch_scc1 L_fin")
    a("s_cmp_ge_u32 s2, 32")
    a("s_cbranch_scc1 L_fin")
    a(f"s_mul_i32 s73, s3, {APITCH}")
    a(f"s_add_u32 s73, s73, {L_A}")
    a("v_add_u32 v52, s73, v1")
    a("ds_read_b128 v[96:99], v52")
    a("v_lshrrev_b32 v40, 2, v0")
    a("v_and_b32 v43, 3, v0")
    a("v_lshlrev_b32 v44, 7, v40")
    a("v_lshl_or_b32 v44, v43, 4, v44")
    a("s_mul_i32 s78, s2, 5504")
    a("s_lshl_b32 s73, s3, 6")
    a("s_add_u32 s78, s78, s73")
    a(f"s_add_u32 s78, s78, {WS_Y}")
    a("s_add_u32 s79, s78, 2048")
    a("s_add_u32 s77, s78, 4096")
    a("s_lshl_b32 s74, s2, 5")
    a("s_lshl_b32 s73, s3, 4")
    a("s_add_u32 s76, s74, s73")
    a("v_lshlrev_b32 v45, 2, v43")
    a("v_lshrrev_b32 v47, 5, v0")
    a("v_lshl_add_u32 v45, v47, 1, v45")
    a("v_bfe_u32 v47, v0, 4, 1")
    a(f"v_mul_u32_u24 v46, {APITCH}, v47")
    a("v_add_u32 v46, v46, v45")
    a(f"s_add_u32 s73, s76, {L_A}")
    a("v_add_u32 v46, s73, v46")
    a("ds_read_u16 v50, v46")
    a("v_lshl_add_u32 v45, v47, 10, v45")
    a("v_lshlrev_b32 v51, 4, v47")
    a(f"v_add_u32 v51, {L_SG}, v51")
    a("s_waitcnt lgkmcnt(0)")
    unpack(96, 100)
    ln_sums(100, 108, 68, 69, 70)
    a("v_mov_b32 v124, s69")
    a("v_mov_b32 v125, s70")
    ln_finish("s68", 124, 125, 108)
    ln_apply(100, 108, 124, 125)
    for k in range(4):
        a(f"v_cvt_pk_bf16_f32 v{120+k}, v{108+2*k}, v{109+2*k}")
    if warm: a(";@endwarm")
    if warm: a(";@warm mk2 L_wret")
    a("v_mov_b32 v126, 0")
    for k in range(4):
        a(f"v_dot2c_f32_bf16 v126, v{120+k}, v{32+k}")
    wave_reduce([126])
    a("v_readlane_b32 s73, v126, 63")
    a("v_mov_b32 v126, s73")
    bf16r(126)
    a("v_mul_f32 v126, 0xbfb8aa3b, v126")
    a("v_exp_f32 v126, v126")
    a("v_add_f32 v126, 1.0, v126")
    a("v_rcp_f32 v126, v126")
    bf16r(126)
    a("v_mov_b32 v127, 0")
    a("s_lshl_b32 s73, s3, 4")
    a(f"s_add_u32 s73, s73, {L_SG}")
    a("v_mov_b32 v46, s73")
    a("ds_write_b128 v46, v[124:127]")
    a("v_lshlrev_b32 v104, 16, v50")
    for r in range(4): a(f"v_mov_b32 v{20+r}, 0")
    spin_head("pS")
    a("ds_read_b128 v[112:115], v51")
    spin_bail("pS")
    a("s_waitcnt lgkmcnt(0)")
    empty_check([112, 113, 114], 47, "pS")
    a("v_sub_f32 v100, v104, v112")
    bf16r(100)
    a("v_mul_f32 v100, v100, v113")
    bf16r(100)
    a("v_add_f32 v100, v100, v104")
    a("v_and_b32 v46, 31, v0")
    a("v_lshlrev_b32 v46, 2, v46")
    a(f"v_add_u32 v46, {L_ACT}, v46")
    lds_wait("pT", 46, 47, 0)
    stampat(8)
    spin_head("pC")
    if cdelay: a(f"s_sleep {cdelay}")
    a("buffer_load_dwordx4 v[12:15], v44, s[24:27], s78 offen sc1")
    a("buffer_load_dwordx4 v[16:19], v44, s[24:27], s79 offen sc1")
    a("s_mov_b32 exec_hi, 0xfff")
    a("buffer_load_dwordx4 v[20:23], v44, s[24:27], s77 offen sc1")
    a("s_waitcnt vmcnt(0)")
    for r in range(4): a(f"v_xor_b32 v{20+r}, s{60+r}, v{20+r}")
    a("s_mov_b64 exec, -1")
    spin_bail("pC")
    untag_check(list(range(12, 24)), 24, "pC", pre={20, 21, 22, 23})
    stampat(4)
    for r in range(4): a(f"v_add_f32 v{12+r}, v{12+r}, v{16+r}")
    for r in range(4): a(f"v_add_f32 v{12+r}, v{12+r}, v{20+r}")
    a("v_permlane32_swap_b32 v12, v14")
    a("v_permlane32_swap_b32 v13, v15")
    a("v_add_f32 v12, v12, v14")
    a("v_add_f32 v13, v13, v15")
    a("v_permlane16_swap_b32 v12, v13")
    a("v_add_f32 v12, v12, v13")
    dpp_steps([12], ("row_ror:4", "row_ror:8"))
    a("v_fmac_f32 v100, v12, v114")
    a("v_cvt_pk_bf16_f32 v12, v100, v100")
    a("s_mov_b32 exec_lo, 0x000f000f")
    a("s_mov_b32 exec_hi, 0x000f000f")
    a("buffer_store_short v12, v45, s[48:51], s76 offen")
    a("s_cmp_lg_u32 s76, 0")
    a("s_cbranch_scc1 L_noep")
    a("s_mov_b64 exec, 1")
    a("v_mov_b32 v14, s29")
    a("buffer_store_dword v14, v45, s[24:27], 0 offen")
    a("L_noep:")
    if warm: a(";@endwarm")
    a("s_mov_b64 exec, -1")
    stampat(3)
    a("s_branch L_fin")

    a("L_aux:")
    a("s_load_dwordx2 s[24:25], s[0:1], 96")
    if aux_prio: a(f"s_setprio {aux_prio}")
    a("s_sub_u32 s59, s3, 8")
    a("s_and_b32 s55, s2, 31")
    a("s_bfe_u32 s56, s2, 0x10005")
    a("v_lshrrev_b32 v2, 4, v0")
    a("v_and_b32 v3, 15, v0")
    a("s_mov_b32 s10, 0x400000")
    a("s_mov_b32 s11, 0x20000")
    a("v_lshlrev_b32 v8, 18, v2")
    a("v_lshl_or_b32 v8, v3, 4, v8")
    a("s_lshl_b32 s54, s59, 20")
    a("s_lshl_b32 s53, s55, 8")
    a("s_or_b32 s54, s54, s53")
    a("v_lshlrev_b32 v10, 6, v2")
    a("s_lshl_b32 s52, s56, 10")
    a("s_lshl_b32 s53, s59, 8")
    a("s_add_u32 s53, s53, s52")
    a("s_movk_i32 s65, 0x2000")
    for r in range(4): a(f"v_mov_b32 v{12+r}, -1")
    a("s_lshl_b32 s58, s59, 11")
    a(f"s_add_u32 s58, s58, {L_INIT}")
    a("v_add_u32 v9, s58, v1")
    a("ds_write_b128 v9, v[12:15]")
    a("s_cmp_eq_u32 s59, 3")
    a("s_cbranch_scc0 L_i2")
    for r in range(4): a(f"v_mov_b32 v{12+r}, 0")
    a("s_mov_b64 exec, 1")
    a("L_i2:")
    a("ds_write_b128 v9, v[12:15] offset:1024")
    a("s_mov_b64 exec, -1")
    a("s_waitcnt lgkmcnt(0)")
    epoch_load()
    a("s_cmp_eq_u32 s59, 0")
    a("s_cbranch_scc1 L_coop")
    a("s_barrier")
    a(f"v_mov_b32 v12, {L_QB}")
    a("s_waitcnt lgkmcnt(0)")
    epoch_calc()
    if kvwarm:
        a("s_cmp_lg_u32 s59, 3")
        a("s_cbranch_scc1 L_kret")
        a("s_mov_b64 exec, 0")
        a(f"s_cmp_lt_u32 s2, {NMLP}")
        a("s_cbranch_scc1 L_w_kvm_0")
        a("s_cmp_eq_u32 s57, 1")
        a("s_cbranch_scc1 L_w_kvr_0")
        a("s_branch L_w_kvp_0")
        a("L_kret:")
        a("s_mov_b64 exec, -1")
    spin_head("fw")
    a("s_sleep 4")
    a(f"ds_read2_b32 v[14:15], v12 offset0:0 offset1:{(L_FB - L_QB) // 4}")
    spin_bail("fw")
    a("s_waitcnt lgkmcnt(0)")
    a("v_cmp_ne_u32 vcc, -1, v15")
    a("s_cbranch_vccnz L_fallback")
    a("v_cmp_eq_u32 vcc, -1, v14")
    a("s_cbranch_vccnz L_fw")
    a("L_fw_ok:")
    if warm:
        a("s_mov_b64 exec, 0")
        a("s_cmp_eq_u32 s59, 1")
        a("s_cbranch_scc1 L_w_ct_0")
        a("L_wret1:")
        a(f"s_cmp_lt_u32 s2, {NMLP}")
        a("s_cbranch_scc1 L_wm")
        a("s_cmp_lg_u32 s57, 1")
        a("s_cbranch_scc1 L_wret")
        a("s_cmp_eq_u32 s59, 2")
        a("s_cbranch_scc1 L_w_rk_0")
        a("s_cmp_eq_u32 s59, 3")
        a("s_cbranch_scc1 L_w_ra_0")
        a("s_branch L_wret")
        a("L_wm:")
        a("s_cmp_eq_u32 s59, 1")
        a("s_cbranch_scc1 L_w_ma_0")
        a("s_cmp_eq_u32 s59, 2")
        a("s_cbranch_scc1 L_w_mk_0")
        a("s_branch L_w_mk2_0")
        a("L_wret:")
        a("s_mov_b64 exec, -1")
        stampat(2)
    if pf:
        a("s_cmp_lg_u32 s59, 2")
        a("s_cbranch_scc1 L_aux4")
        srd(32, 56, 1409024); srd(36, 64, 1409024); srd(40, 72, 1409024)
        a("s_and_b32 s64, s2, 7")
        a("s_min_u32 s66, s64, 3")
        a("s_mul_i32 s67, s64, 5")
        a("s_add_u32 s66, s66, s67")
        a("s_cmp_lt_u32 s64, 3")
        a("s_cselect_b32 s67, 6, 5")
        a("s_lshr_b32 s69, s2, 3")
        a("v_and_b32 v41, 7, v0")
        a("v_lshrrev_b32 v40, 3, v0")
        a("v_mul_u32_u24 v40, 2752, v40")
        a("v_lshl_add_u32 v40, v41, 6, v40")
        a("s_mul_i32 s52, s69, 44032")
        a("s_lshl_b32 s53, s66, 6")
        a("s_add_u32 s52, s52, s53")
        a("s_add_u32 s53, s52, 22016")
        a("v_cmp_gt_u32 s[72:73], s67, v41")
        a("s_lshl_b32 s54, s66, 15")
        a("s_mul_i32 s58, s69, s67")
        a("s_lshl_b32 s58, s58, 10")
        a("s_add_u32 s54, s54, s58")
        a("s_add_u32 s58, s54, 0x1000")
        a("v_lshlrev_b32 v46, 6, v0")
        a("s_cmp_eq_u32 s67, 6")
        a("s_cselect_b32 s70, -1, 0xffff")
        a(f"v_min_u32 v39, {pf_cnt - 1}, v41")
        a("v_lshlrev_b32 v39, 9, v39")
        a(f"v_add_u32 v39, {L_OP}, v39")
        lds_wait("k2", 39, 41, 2)
        if pf_delay: a(f"s_sleep {pf_delay}")
        a("s_mov_b64 exec, s[72:73]")
        for k, (sr, so) in enumerate(((32, 52), (36, 52), (32, 53), (36, 53))):
            a(f"buffer_load_dword v{42+k}, v40, s[{sr}:{sr+3}], s{so} offen")
        a("s_mov_b64 exec, -1")
        a("buffer_load_dword v47, v46, s[40:43], s54 offen")
        a("s_mov_b32 exec_lo, s70")
        a("s_mov_b32 exec_hi, 0")
        a("buffer_load_dword v48, v46, s[40:43], s58 offen")
        a("s_mov_b64 exec, -1")
        a("s_waitcnt vmcnt(0)")
    a("s_branch L_aux4")
    a("L_coop:")
    a("s_lshl_b32 s58, s56, 2")
    a("s_add_u32 s58, s58, s57")
    a("v_lshlrev_b32 v40, 17, v2")
    a("v_lshl_or_b32 v40, v3, 4, v40")
    a("s_lshl_b32 s71, s58, 19")
    a("s_lshl_b32 s72, s55, 8")
    a("s_or_b32 s71, s71, s72")
    a("v_lshrrev_b32 v41, 3, v3")
    a("v_lshlrev_b32 v42, 10, v41")
    a("v_lshl_add_u32 v42, v2, 5, v42")
    a("s_lshl_b32 s72, s58, 7")
    a("buffer_load_dwordx4 v[44:47], v1, s[4:7], 0 offen")
    a("buffer_load_dwordx4 v[48:51], v1, s[4:7], 0 offen offset:1024")
    a("buffer_load_dwordx4 v[52:55], v42, s[4:7], s72 offen")
    a("buffer_load_dwordx4 v[56:59], v42, s[4:7], s72 offen offset:16")
    for i in range(16):
        r = 72 + 4 * i
        a(f"buffer_load_dwordx4 v[{r}:{r+3}], v40, s[8:11], s71 offen {wq_aux}")
        if i < 15: a("s_add_u32 s71, s71, s65")
    if not b0_at: a("s_barrier")
    a("v_and_b32 v12, 1, v0")
    a("v_lshlrev_b32 v12, 4, v12")
    a("v_mov_b32 v13, 0xffff")
    a("v_lshlrev_b32 v12, v12, v13")
    a("v_bfe_u32 v13, v0, 1, 2")
    for r in range(4):
        a(f"v_cmp_eq_u32 vcc, {r}, v13")
        a(f"v_cndmask_b32 v{4+r}, 0, v12, vcc")
    a("v_cmp_eq_u32 s[66:67], 1, v41")
    a("s_waitcnt vmcnt(18) lgkmcnt(0)")
    epoch_calc()
    unpack(44, 24)
    unpack(48, 60)
    m0 = len(a.lines)
    ln_sums(24, 12, 68, 69, 70)
    l1 = a.lines[m0:]; del a.lines[m0:]
    ln_sums(60, 32, 76, 77, 78)
    l2 = a.lines[m0:]; del a.lines[m0:]
    for x, y in zip(l1, l2):
        a(x); a(y)
    for k, d in enumerate((60, 61, 62)):
        a(f"v_mov_b32 v{d}, s{68+k}")
        a(f"v_mov_b32 v63, s{76+k}")
        a(f"v_cndmask_b32 v{d}, v{d}, v63, s[66:67]")
    ln_finish("v60", 61, 62, 63)
    a("s_waitcnt vmcnt(16)")
    unpack(52, 24, 8)
    ln_apply(24, 24, 61, 62, 16)
    for i in range(16):
        a(f"v_cvt_pk_bf16_f32 v{24+i}, v{24+i}, v{24+i}")
    for i in range(16):
        t = 12 + 4 * (i & 1)
        for r in range(4):
            a(f"v_and_b32 v{t+r}, v{24+i}, v{4+r}")
        a(f"s_waitcnt vmcnt({15-i})")
        c = "0" if i == 0 else "v[20:23]"
        a(f"v_mfma_f32_16x16x32_bf16 v[20:23], v[{t}:{t+3}], v[{72+4*i}:{75+4*i}], {c}")
    a("v_lshrrev_b32 v40, 5, v0")
    a("v_lshlrev_b32 v42, 2, v40")
    a("v_lshlrev_b32 v40, 13, v40")
    a("v_and_b32 v41, 31, v0")
    a("v_lshl_add_u32 v40, v41, 4, v40")
    a("s_lshl_b32 s71, s55, 14")
    a(f"s_add_u32 s71, s71, {WS_QX}")
    a("s_lshl_b32 s72, s58, 10")
    a("s_add_u32 s72, s72, s71")
    for k in range(4):
        a(f"v_mov_b32 v{13+2*k}, s29")
    for k in range(4):
        a(f"v_mov_b32 v{12+2*k}, v{20+k}")
    if not force_fb:
        a("buffer_store_dwordx4 v[12:15], v40, s[24:27], s72 offen")
        a("buffer_store_dwordx4 v[16:19], v40, s[24:27], s72 offen offset:512")
    stampat(1)
    a("s_lshl_b32 s72, s56, 13")
    a("s_add_u32 s71, s71, s72")
    a("s_add_u32 s72, s71, 4096")
    a("v_and_b32 v41, 1, v2")
    a("v_lshl_add_u32 v41, v41, 3, v42")
    a("v_lshl_add_u32 v41, v3, 4, v41")
    a(f"v_add_u32 v41, {L_QB}, v41")
    a(f"s_movk_i32 s75, {qtries}")
    if b0_at: a("s_barrier")
    a("L_pX:")
    if qsleep: a(f"s_sleep {qsleep}")
    for k in range(8):
        a(f"buffer_load_dwordx4 v[{72+4*k}:{75+4*k}], v1, s[24:27], s{71 + k // 4} offen offset:{1024*(k&3)} sc1")
    a("s_sub_u32 s75, s75, 1")
    a("s_cbranch_scc1 L_giveup")
    a("s_waitcnt vmcnt(0)")
    tg = [73 + 2 * k for k in range(16)]
    for r in tg: a(f"v_xor_b32 v{r}, s29, v{r}")
    a(f"v_or3_b32 v60, v{tg[0]}, v{tg[1]}, v{tg[2]}")
    for k in range(3, 15, 2):
        a(f"v_or3_b32 v60, v60, v{tg[k]}, v{tg[k+1]}")
    a(f"v_or_b32 v60, v60, v{tg[15]}")
    a("v_cmp_ne_u32 vcc, 0, v60")
    a("s_cbranch_vccnz L_pX")
    for k in range(1, 8):
        a(f"v_add_f32 v72, v72, v{72+4*k}")
        a(f"v_add_f32 v74, v74, v{74+4*k}")
    a("v_cvt_pk_bf16_f32 v72, v72, v74")
    a("ds_write_b32 v41, v72")
    a("v_lshlrev_b32 v8, 3, v0")
    a(f"v_add_u32 v11, {L_OP}, v8")
    a("s_branch L_qdone")
    a("L_giveup:")
    a(f"v_mov_b32 v12, {L_FB}")
    a("v_mov_b32 v13, 1")
    a("ds_write_b32 v12, v13")
    a("s_waitcnt vmcnt(0)")
    a("L_fallback:")
    a("buffer_load_dwordx4 v[20:23], v1, s[4:7], s52 offen")
    for k in range(4):
        a(f"buffer_load_dwordx4 v[{56+4*k}:{59+4*k}], v10, s[4:7], s53 offen offset:{16*k}")
    QR = 24
    q = dict(iss=0, landed=-1)
    def qreg(i): return 72 + 4 * (i % QR)
    def ld_wq():
        i = q["iss"]
        r = qreg(i)
        a(f"buffer_load_dwordx4 v[{r}:{r+3}], v8, s[8:11], s54 offen {wq_aux}")
        if i < 31: a("s_add_u32 s54, s54, s65")
        q["iss"] += 1
    def wait_wq(i):
        if i <= q["landed"]: return
        a(f"s_waitcnt vmcnt({q['iss'] - 1 - i})")
        q["landed"] = i
    for i in range(DQ): ld_wq()
    a(f"s_waitcnt vmcnt({DQ})")
    mark = len(a.lines)
    masks(12, 13)
    unpack(20, 24)
    ln_sums(24, 32, 68, 69, 70)
    a("v_mov_b32 v10, s69")
    a("v_mov_b32 v11, s70")
    ln_finish("s68", 10, 11, 9)
    unpack(56, 24, 16)
    ln_apply(24, 24, 10, 11, 32)
    for i in range(32):
        a(f"v_cvt_pk_bf16_f32 v{24+i}, v{24+i}, v{24+i}")
    body = a.lines[mark:]
    del a.lines[mark:]
    for k in range(0, len(body), chunk):
        if q["iss"] < QR:
            wait_wq(q["iss"] - DQ)
            ld_wq()
        for ln in body[k:k+chunk]: a(ln)
    for i in range(32):
        t = 12 + 4 * (i & 1)
        for r in range(4):
            a(f"v_and_b32 v{t+r}, v{24+i}, v{4+r}")
        if i <= q["landed"] and i % 4 == 0 and q["iss"] < 32 and q["iss"] - QR < i:
            wait_wq(q["landed"] + 1)
        wait_wq(i)
        while q["iss"] < 32 and q["iss"] - 1 - q["landed"] < DQ and q["iss"] - QR < i: ld_wq()
        c = "0" if i == 0 else "v[20:23]"
        a(f"v_mfma_f32_16x16x32_bf16 v[20:23], v[{t}:{t+3}], v[{qreg(i)}:{qreg(i)+3}], {c}")
    assert q["iss"] == 32
    a("s_lshl_b32 s52, s59, 9")
    a(f"s_add_u32 s52, s52, {L_QP}")
    a("v_lshlrev_b32 v8, 5, v3")
    a("v_lshl_add_u32 v8, v2, 4, v8")
    a("v_add_u32 v8, s52, v8")
    a("s_mov_b32 exec_hi, 0")
    a("ds_write_b128 v8, v[20:23]")
    a("s_mov_b64 exec, -1")
    a("s_cmp_lg_u32 s59, 0")
    a("s_cbranch_scc1 L_aux4")
    a("v_lshlrev_b32 v8, 3, v0")
    a(f"v_add_u32 v11, {L_OP}, v8")
    a("v_lshlrev_b32 v9, 2, v0")
    a(f"v_add_u32 v10, {L_QB}, v9")
    spin_head("pQ")
    for w in range(4):
        a(f"ds_read_b64 v[{12+2*w}:{13+2*w}], v11 offset:{L_QP - L_OP + 512*w}")
    spin_bail("pQ")
    a("s_waitcnt lgkmcnt(0)")
    empty_check(list(range(12, 20)), 20, "pQ")
    for w in range(1, 4):
        a(f"v_add_f32 v12, v12, v{12+2*w}")
        a(f"v_add_f32 v13, v13, v{13+2*w}")
    a("v_cvt_pk_bf16_f32 v12, v12, v13")
    a("ds_write_b32 v10, v12")
    a("L_qdone:")
    stampat(2)
    a("v_and_b32 v9, 7, v0")
    a("v_lshlrev_b32 v9, 3, v9")
    a(f"v_add_u32 v9, {L_MB}, v9")
    spin_head("pM")
    a("s_sleep 4")
    a("ds_read_b64 v[12:13], v9")
    spin_bail("pM")
    a("s_waitcnt lgkmcnt(0)")
    empty_check([12, 13], 14, "pM")
    oct_ = ("quad_perm:[1,0,3,2]", "quad_perm:[2,3,0,1]", "row_half_mirror")
    a("v_mov_b32 v16, v12")
    dpp_steps([16], oct_, "v_max_f32")
    a("v_sub_f32 v14, v12, v16")
    a(f"v_mul_f32 v14, {LOG2E:#x}, v14")
    a("v_exp_f32 v14, v14")
    a("v_mul_f32 v17, v13, v14")
    dpp_steps([17], oct_)
    a("s_getreg_b32 s53, hwreg(HW_REG_XCC_ID, 0, 4)")
    a("s_xor_b32 s53, s53, s29")
    a("v_mov_b32 v18, s29")
    a("v_mov_b32 v19, s53")
    a("s_lshl_b32 s52, s55, 1")
    a("s_add_u32 s52, s52, s56")
    a("s_lshl_b32 s52, s52, 2")
    a("s_add_u32 s52, s52, s57")
    a("s_lshl_b32 s53, s52, 7")
    a(f"s_add_u32 s53, s53, {WS_MLX}")
    a("s_lshl_b32 s52, s52, 9")
    a(f"s_add_u32 s52, s52, {WS_OP}")
    a("s_mov_b64 exec, 1")
    a("buffer_store_dwordx4 v[16:19], v8, s[24:27], s53 offen sc1")
    a("s_mov_b64 exec, -1")
    a(f"s_add_u32 s53, s52, {WS_OS - WS_OP}")
    stampat(3)
    for w in range(8):
        a(f"v_readlane_b32 s{44+w}, v14, {w}")
    a("v_and_b32 v9, 1, v0")
    a("v_lshlrev_b32 v9, 4, v9")
    a("v_lshrrev_b32 v9, v9, s29")
    a("v_bfe_u32 v10, v9, 8, 8")
    a("v_and_b32 v9, 0xff, v9")
    a("s_setprio 2")
    spin_head("pO")
    if osleep: a(f"s_sleep {osleep}")
    for w in range(8):
        a(f"ds_read_b64 v[{12+2*w}:{13+2*w}], v11 offset:{512*w}")
    spin_bail("pO")
    a("s_waitcnt lgkmcnt(0)")
    a("v_max3_u32 v28, v12, v14, v16")
    a("v_max3_u32 v29, v18, v20, v22")
    a("v_max3_u32 v28, v28, v24, v26")
    a("v_max_u32 v28, v28, v29")
    a("v_cmp_eq_u32 vcc, -1, v28")
    a("s_cbranch_vccnz L_pO")
    a("L_pO_ok:")
    if warm: a(";@warm ct L_wret1")
    stampat(5)
    a("v_mul_f32 v12, s44, v12"); a("v_mul_f32 v13, s44, v13")
    a("v_mul_f32 v20, s48, v20"); a("v_mul_f32 v21, s48, v21")
    for w in range(1, 4):
        a(f"v_fmac_f32 v12, s{44+w}, v{12+2*w}"); a(f"v_fmac_f32 v13, s{44+w}, v{13+2*w}")
        a(f"v_fmac_f32 v20, s{48+w}, v{20+2*w}"); a(f"v_fmac_f32 v21, s{48+w}, v{21+2*w}")
    a("v_add_f32 v12, v12, v20"); a("v_add_f32 v13, v13, v21")
    a("v_and_or_b32 v12, v12, s31, v9")
    a("v_and_or_b32 v13, v13, s31, v10")
    if local:
        a("buffer_store_dwordx2 v[12:13], v8, s[24:27], s52 offen")
    a("buffer_store_dwordx2 v[12:13], v8, s[24:27], s53 offen sc1")
    if warm: a(";@endwarm")
    stampat(6)
    a("L_aux4:")
    a(f"s_cmp_lt_u32 s2, {NMLP}")
    a("s_cbranch_scc1 L_aux5")
    a("s_cmp_lg_u32 s57, 1")
    a("s_cbranch_scc1 L_fin")
    a("L_aux5:")
    a("s_setprio 3")
    a("v_lshrrev_b32 v33, 2, v3")
    a("v_lshl_add_u32 v33, v2, 3, v33")
    a("v_and_b32 v34, 3, v0")
    a("v_bfe_u32 v6, v3, 2, 1")
    a(f"v_mul_u32_u24 v6, {APITCH}, v6")
    a("v_lshl_add_u32 v6, v2, 4, v6")
    a(f"v_add_u32 v6, {L_A}, v6")
    a(f"v_mov_b32 v35, {L_FL}")
    def gemm16(acc, filler=()):
        filler = list(filler)
        NB = 11 if acc2 else 12
        for ks in range(NB):
            a(f"ds_read_b128 v[{16+4*ks}:{19+4*ks}], v6 offset:{64*ks}")
        issued = NB
        per = (len(filler) + 13) // 14 if filler else 0
        waited = -1
        for ks in range(16):
            if ks > waited:
                tgt = min(ks + (wgrp - 1 if ks else 0), issued - 1)
                a(f"s_waitcnt lgkmcnt({issued - 1 - tgt})")
                waited = tgt
            ab = 16 + 4 * (ks % NB)
            ac = 60 if (acc2 and ks & 1) else acc
            c = "0" if ks < (2 if acc2 else 1) else f"v[{ac}:{ac+3}]"
            a(f"v_mfma_f32_16x16x32_bf16 v[{ac}:{ac+3}], v[{ab}:{ab+3}], v[{64+4*ks}:{67+4*ks}], {c}")
            if issued < 16:
                a(f"ds_read_b128 v[{ab}:{ab+3}], v6 offset:{64*issued}")
                issued += 1
            for _ in range(per):
                if filler: a(filler.pop(0))
        for ln in filler: a(ln)
        if acc2: a(f"v_add_f32 v{acc}, v{acc}, v60")
    a(f"s_cmp_lt_u32 s2, {NMLP}")
    a("s_cbranch_scc1 L_aux_m")
    a("v_lshlrev_b32 v10, 7, v33")
    a("v_lshl_add_u32 v10, v34, 3, v10")
    a("s_lshl_b32 s52, s59, 5")
    a("v_add_u32 v10, s52, v10")
    a("v_lshlrev_b32 v7, 3, v34")
    a("v_lshrrev_b32 v7, v7, s29")
    a("v_and_b32 v7, 0xff, v7")
    a("v_lshlrev_b32 v5, 2, v0")
    a("s_and_b32 s70, s2, 63")
    a("s_lshl_b32 s70, s70, 2")
    a("s_add_u32 s70, s70, s59")
    a("s_lshl_b32 s70, s70, 7")
    a(f"s_add_u32 s70, s70, {WS_ZX}")
    if zcopy:
        a("v_and_b32 v5, 31, v0")
        a("v_lshlrev_b32 v5, 2, v5")
        a("v_lshrrev_b32 v11, 5, v0")
        a("v_lshl_add_u32 v5, v11, 15, v5")
        for k in range(1, 4):
            a(f"s_add_u32 s{70+k}, s70, {k * 0x10000}")
    for kw in range(8):
        lds_wait(f"fr{kw}", 35, 12, 2 if kw == 0 else 0, off=4*kw)
        for ks in (2*kw, 2*kw+1):
            for hh in range(2):
                d = 64 + 4 * ks + 2 * hh
                a(f"ds_read_b64_tr_b16 v[{d}:{d+1}], v10 offset:{ks*4096 + hh*512}")
    a("s_waitcnt lgkmcnt(0)")
    stampat(7)
    if warm: a(";@warm ra L_wret")
    a("s_barrier")
    gemm16(12)
    if zcopy:
        a("v_and_or_b32 v12, v12, s31, v7")
        for k in range(4):
            a(f"buffer_store_dword v12, v5, s[24:27], s{70+k} offen sc1")
    else:
        a("s_mov_b32 exec_hi, 0")
        a("v_and_or_b32 v12, v12, s31, v7")
        a("buffer_store_dword v12, v5, s[24:27], s70 offen sc1")
        a("s_mov_b64 exec, -1")
    if warm: a(";@endwarm")
    stampat(8)
    a("s_branch L_fin")
    a("L_aux_m:")
    a("v_lshlrev_b32 v10, 6, v33")
    a("v_and_b32 v11, 1, v0")
    a("v_lshl_add_u32 v10, v11, 3, v10")
    a("v_bfe_u32 v11, v0, 1, 1")
    a(f"v_mul_u32_u24 v11, {L_UP}, v11")
    a("v_add_u32 v10, v11, v10")
    a("s_lshl_b32 s52, s59, 4")
    a("v_add_u32 v10, s52, v10")
    a(f"v_mul_u32_u24 v36, {DNP}, v33")
    a("v_lshl_add_u32 v36, v34, 3, v36")
    a("s_lshl_b32 s52, s59, 8")
    a(f"s_add_u32 s52, s52, {L_DN}")
    a("v_add_u32 v36, s52, v36")
    a("v_and_b32 v4, 1, v2")
    a("v_lshlrev_b32 v9, 10, v4")
    a("buffer_load_ushort v165, v9, s[4:7], 0 offen")
    a("v_lshlrev_b32 v166, 8, v4")
    a("v_lshl_add_u32 v166, v3, 4, v166")
    a(f"v_add_u32 v166, {L_ST}, v166")
    a("v_lshlrev_b32 v4, 6, v4")
    a("v_lshl_add_u32 v4, v3, 1, v4")
    a("s_lshl_b32 s52, s59, 4")
    a(f"s_add_u32 s52, s52, {L_ACT}")
    a("v_add_u32 v4, s52, v4")
    a("v_and_b32 v8, 1, v3")
    a("v_lshlrev_b32 v8, 6, v8")
    a("v_lshl_add_u32 v8, v2, 4, v8")
    a(f"v_add_u32 v8, {L_ACT}, v8")
    a(f"v_mov_b32 v11, {L_ZERO}")
    a("v_lshrrev_b32 v9, 2, v3")
    for u in range(4):
        a(f"v_cmp_eq_u32 vcc, {u}, v9")
        a(f"v_cndmask_b32 v{160+u}, v11, v8, vcc")
    a("v_mul_u32_u24 v5, 5504, v2")
    a("v_lshl_add_u32 v5, v3, 3, v5")
    a("s_mul_i32 s52, s59, 44032")
    a("s_lshl_b32 s53, s2, 7")
    a("s_add_u32 s52, s52, s53")
    a(f"s_add_u32 s52, s52, {WS_Y}")
    a("s_add_u32 s53, s52, 22016")
    a("v_and_b32 v7, 1, v0")
    a("v_lshlrev_b32 v7, 4, v7")
    a("v_lshrrev_b32 v7, v7, s29")
    a("v_bfe_u32 v164, v7, 8, 8")
    a("v_and_b32 v7, 0xff, v7")
    for r in range(4): a(f"v_mov_b32 v{40+r}, 0x3f803f80")
    for kw in range(8):
        lds_wait(f"fm{kw}", 35, 12, 2 if kw == 0 else 0, off=4*kw)
        if kw > 0:
            for ks in (2*kw-2, 2*kw-1):
                c = "0" if ks == 0 else "v[44:47]"
                a(f"v_mfma_f32_16x16x32_bf16 v[44:47], v[40:43], v[{64+4*ks}:{67+4*ks}], {c}")
        for ks in (2*kw, 2*kw+1):
            for hh in range(2):
                d = 64 + 4 * ks + 2 * hh
                a(f"ds_read_b64_tr_b16 v[{d}:{d+1}], v10 offset:{ks*2048 + hh*256}")
    a("s_waitcnt lgkmcnt(0) vmcnt(0)")
    for ks in (14, 15):
        a(f"v_mfma_f32_16x16x32_bf16 v[44:47], v[40:43], v[{64+4*ks}:{67+4*ks}], v[44:47]")
    a("v_lshlrev_b32 v165, 16, v165")
    a("v_mov_b32 v167, v44")
    a("v_and_b32 v11, 7, v0")
    a("v_lshlrev_b32 v11, 2, v11")
    a(f"v_add_u32 v11, {L_FD}, v11")
    lds_wait("fd", 11, 12, 0)
    for t in range(8):
        for hh in range(2):
            d = 128 + 4 * t + 2 * hh
            a(f"ds_read_b64_tr_b16 v[{d}:{d+1}], v36 offset:{hh*4*DNP + t*32}")
    a("s_waitcnt lgkmcnt(0)")
    stampat(7)
    if warm: a(";@warm ma L_wret")
    a("s_barrier")
    a("ds_read_b128 v[8:11], v166")
    mark = len(a.lines)
    a("v_add_f32 v8, v8, v10")
    a("v_add_f32 v9, v9, v11")
    dpp_steps([8, 9], ("quad_perm:[1,0,3,2]", "quad_perm:[2,3,0,1]", "row_half_mirror", "row_mirror"))
    ln_finish("v165", 8, 9, 10)
    a("v_and_b32 v166, 31, v0")
    a("v_lshlrev_b32 v166, 2, v166")
    a(f"v_add_u32 v166, {L_ACT}, v166")
    fill = a.lines[mark:]
    del a.lines[mark:]
    gemm16(12, fill)
    a("v_fma_f32 v12, -v8, v167, v12")
    a("v_mul_f32 v12, v12, v9")
    a("v_mul_f32 v13, 0xbfb8aa3b, v12")
    a("v_exp_f32 v13, v13")
    a("v_mul_f32_dpp v14, v12, v12 row_ror:8 row_mask:0xf bank_mask:0xf")
    a("v_add_f32 v13, 1.0, v13")
    a("v_rcp_f32 v13, v13")
    a("v_mul_f32 v13, v14, v13")
    a("v_mov_b32_dpp v14, v13 quad_perm:[1,0,3,2] row_mask:0xf bank_mask:0xf")
    a("v_cvt_pk_bf16_f32 v13, v13, v14")
    a("s_mov_b64 exec, 0x00550055")
    a("ds_write_b32 v4, v13")
    a("s_mov_b64 exec, -1")
    stampat(9)
    spin_head("pG")
    a("ds_read_b32 v32, v166")
    for u in range(4):
        a(f"ds_read_b128 v[{16+4*u}:{19+4*u}], v{160+u}")
    spin_bail("pG")
    a("s_waitcnt lgkmcnt(4)" if not stamps else "s_waitcnt lgkmcnt(0)")
    empty_check([32], 32, "pG")
    for u in range(4):
        a(f"s_waitcnt lgkmcnt({3-u})")
        for hf in range(2):
            acc = 8 + 4 * hf
            t = hf * 4 + u
            c = "0" if u == 0 else f"v[{acc}:{acc+3}]"
            a(f"v_mfma_f32_16x16x32_bf16 v[{acc}:{acc+3}], v[{16+4*u}:{19+4*u}], v[{128+4*t}:{131+4*t}], {c}")
    for hf in range(2):
        r = 8 + 4 * hf
        a(f"v_and_or_b32 v{r}, v{r}, s31, v7")
        a(f"v_and_or_b32 v{r+1}, v{r+1}, s31, v164")
        a(f"buffer_store_dwordx2 v[{r}:{r+1}], v5, s[24:27], s{52+hf} offen sc1")
    if warm: a(";@endwarm")
    stampat(8)

    a("L_fin:")
    if stamps:
        a("s_waitcnt lgkmcnt(0)")
        a("s_mul_i32 s64, s3, 80")
        a(f"s_add_u32 s64, s64, {L_STAMP}")
        a("v_mov_b32 v40, s64")
        a("s_mov_b64 exec, 1")
        for i in range(10):
            a(f"v_mov_b32 v12, s{80+2*i}")
            a(f"v_mov_b32 v13, s{81+2*i}")
            a(f"ds_write_b64 v40, v[12:13] offset:{8*i}")
        a("s_mov_b64 exec, -1")
        a("s_waitcnt lgkmcnt(0)")
        if href:
            a(f"s_cmp_lg_u32 s3, {href[0]}")
            a("s_cbranch_scc1 L_end")
            a("s_cmp_lt_u32 s2, 128")
            a("s_cbranch_scc1 L_end")
            a("L_hold2:")
            a("s_sleep 2")
            a("s_memrealtime s[66:67]")
            a("s_waitcnt lgkmcnt(0)")
            a(f"s_sub_u32 s66, s66, s{80 + 2 * href[1]}")
            a("s_cmp_lt_u32 s66, 3000")
            a("s_cbranch_scc1 L_hold2")
            a("s_branch L_end")
        a("s_cmp_lg_u32 s3, 9")
        a("s_cbranch_scc1 L_end")
        if hold_x is not None:
            a(f"s_cmp_lg_u32 s2, {128 + hold_x}")
            a("s_cbranch_scc1 L_end")
        a("L_hold:")
        a(f"s_sleep {32 if hold_x is None else 2}")
        a("s_memrealtime s[66:67]")
        a("s_waitcnt lgkmcnt(0)")
        a("s_sub_u32 s66, s66, s80")
        a(f"s_cmp_lt_u32 s66, {hold_t}")
        a("s_cbranch_scc1 L_hold")
        a(f"v_add_u32 v40, {L_STAMP}, v1")
        a("ds_read_b128 v[12:15], v40")
        a("s_mul_i32 s64, s2, 1280")
        a(f"s_add_u32 s64, s64, {512<<20}")
        a("v_add_u32 v40, s64, v1")
        a("s_waitcnt lgkmcnt(0)")
        a("global_store_dwordx4 v40, v[12:15], s[24:25]")
    a("L_end:")
    a("s_endpgm")
    a('.section .rodata,"a"')
    a(".p2align 6")
    a(f".amdhsa_kernel {NAME}_kernel")
    a(f"  .amdhsa_next_free_vgpr {NVGPR}")
    a("  .amdhsa_next_free_sgpr 102")
    a(f"  .amdhsa_accum_offset {NVGPR}")
    a("  .amdhsa_group_segment_fixed_size 0")
    a("  .amdhsa_kernarg_size 104")
    a("  .amdhsa_user_sgpr_count 2")
    a("  .amdhsa_user_sgpr_kernarg_segment_ptr 1")
    a("  .amdhsa_system_sgpr_workgroup_id_x 1")
    a(".end_amdhsa_kernel")
    return add_pads(a.finalize(), warm) if warm else a.finalize()

if __name__ == "__main__":
    out = sys.argv[1]
    kw = eval("dict(" + (sys.argv[2] if len(sys.argv) > 2 else "") + ")")
    open(out, "w").write(gen(**kw))
```

```python
import sys, json
from asmlib import Asm, add_pads
from gen import HDR, NAME

WS_EP = 0
WS_MLX = 0x1000
WS_OP = 0x9000
WS_OS = 0x29000
WS_ZX = 0x49000
WS_QX = 0x51000
WS_Y = 0xD1000
WS_SIZE = WS_Y + 43 * 4096
L_UP = 0x8020
L_DN = 0x10040
DNP = 1056
L_INIT = 0x18800
L_OP = L_INIT
L_QP = L_INIT + 0x1000
L_QB = L_INIT + 0x1800
L_MB = L_INIT + 0x1900
L_FL = L_INIT + 0x1940
L_ACT = L_INIT + 0x1980
L_SG = L_INIT + 0x1A00
L_FB = L_INIT + 0x1A40
L_HF = L_INIT + 0x1A60
L_FD = L_FL + 0x20
L_ZERO = L_INIT + 0x1C00
L_A = L_INIT + 0x1D00
APITCH = 1088
L_ST = L_A + 0x900
L_STAMP = L_ST + 0x200
LDS_SIZE = L_STAMP + 0x400
NMLP = 43
SPIN = 1000000
LOG2E = 0x3fb8aa3b
SCALE = 0x3db504f3
NVGPR = 168

DOC = """;
; One persistent launch, one workgroup per CU: wg = split*64 + b*32 + h  (1024 keys of one (batch, head)).
;   waves 0..7  : stream K then V (nt loads, 3-4 KiB-deep ring), scores by v_dot2c + transposing DPP reduce,
; launch advances; where producer and consumer share an L2 a plain-store copy is read, else the write-through copy.
; The s_cbranch_execz chains let idle waves pull the tail code into the instruction cache.
"""

def gen(stamps=False, D0=2, N0=4, D=3, Dm=4, Dr=4, NPRE=24, ring=31, DQ=6,
        gvec=(0,1,5,6,7,8,9), wbit=2, gx=((3,0),(4,1),(5,5)), kv_aux="nt", wq_aux="", wo_aux="", mlp_aux="", dn_aux="",
        no_stage=False, CU=4, chunk=24, cdelay=0, local=True, osleep=0, rot_m=8, rot_r=16, c3=96|24,
        bm_from=0, br_from=0, early_m=1, early_r=4, hold_x=None, hold_t=4500, bsleep=2, aux_prio=0, noround=False, zcopy=False, masked=False, ins_r=None, ins_m=None, prep_at=12, qtries=8, qsleep=12, force_fb=False, fmap=True, falt=False, dn_lead=2, href=None, warm=64, acc2=False, wgrp=4, Dp=3, bp_from=64, pf=False, pf_delay=0, pf_cnt=8, yprio=0, yskip=(), maskA=False, heads=False, hdelay=0, phases=None, kvwarm=0, nosent=False, psleep=0, b0_at=0, pipeB=0, pipeA=0, pipeC=0):
    a = Asm()
    n = 32
    def stampat(i):
        if stamps:
            a(f"s_memrealtime s[{80+2*i}:{81+2*i}]")

    a(HDR + f"; @launch grid=(256,1,1) block=(768,1,1) lds={LDS_SIZE if stamps else L_STAMP}\n" + DOC.rstrip())
    a('.amdgcn_target "amdgcn-amd-amdhsa--gfx950"')
    a(".text")
    a(f".globl {NAME}_kernel")
    a(".p2align 8")
    a(f".type {NAME}_kernel,@function")
    a(f"{NAME}_kernel:")
    stampat(0)
    a("s_load_dwordx2 s[12:13], s[0:1], 8")
    a("s_load_dwordx2 s[4:5], s[0:1], 0")
    a("s_load_dwordx2 s[8:9], s[0:1], 24")
    if stamps:
        for i in range(1, 10):
            a(f"s_mov_b64 s[{80+2*i}:{81+2*i}], 0")
    a("s_cmp_ge_u32 s2, 256")
    a("s_cbranch_scc1 L_end")
    a("v_lshrrev_b32 v2, 6, v0")
    a("v_and_b32 v0, 63, v0")
    a("v_readfirstlane_b32 s3, v2")
    a("v_lshlrev_b32 v1, 4, v0")
    a("s_mov_b32 s14, 0x10000000")
    a("s_mov_b32 s15, 0x20000")
    a("s_movk_i32 s6, 2048")
    a("s_mov_b32 s7, 0x20000")
    a(f"s_mov_b32 s26, {WS_SIZE}")
    a("s_mov_b32 s27, 0x20000")
    a("s_lshr_b32 s57, s2, 6")
    a("s_cmp_ge_u32 s3, 8")
    a("s_cbranch_scc1 L_aux")

    def epoch_load():
        a("s_load_dword s28, s[24:25], 0")
    def epoch_calc():
        a("s_and_b32 s29, s28, 0x7f7f7f7f")
        a("s_add_u32 s29, s29, 0x07050301")
        a("s_and_b32 s30, s28, 0x80808080")
        a("s_xor_b32 s29, s29, s30")
        for k in range(4):
            a(f"s_bfe_u32 s{60+k}, s29, {(8*k) | (8 << 16):#x}")
        a("s_mov_b32 s31, 0xffffff00")
    def srd(base, off, size):
        a(f"s_load_dwordx2 s[{base}:{base+1}], s[0:1], {off}")
        a(f"s_mov_b32 s{base+2}, {size}")
        a(f"s_mov_b32 s{base+3}, 0x20000")
    def masks(t0, t1):
        a(f"v_and_b32 v{t0}, 1, v0")
        a(f"v_lshlrev_b32 v{t0}, 4, v{t0}")
        a(f"v_mov_b32 v{t1}, 0xffff")
        a(f"v_lshlrev_b32 v{t0}, v{t0}, v{t1}")
        a(f"v_bfe_u32 v{t1}, v0, 1, 3")
        for r in range(4):
            a(f"v_cmp_eq_u32 vcc, {r}, v{t1}")
            a(f"v_cndmask_b32 v{4+r}, 0, v{t0}, vcc")
    def unpack(src, dst, n=4):
        for k in range(n):
            a(f"v_lshlrev_b32 v{dst+2*k}, 16, v{src+k}")
            a(f"v_and_b32 v{dst+2*k+1}, 0xffff0000, v{src+k}")
    def dpp_steps(regs, steps, op="v_add_f32"):
        for m in steps:
            for r in regs:
                a(f"{op}_dpp v{r}, v{r}, v{r} {m} row_mask:0xf bank_mask:0xf")
    def wave_reduce(regs, op="v_add_f32"):
        dpp_steps(regs, ("row_shr:1", "row_shr:2", "row_shr:4", "row_shr:8"), op)
        for r in regs:
            a(f"{op}_dpp v{r}, v{r}, v{r} row_bcast:15 row_mask:0xa bank_mask:0xf")
        for r in regs:
            a(f"{op}_dpp v{r}, v{r}, v{r} row_bcast:31 row_mask:0xc bank_mask:0xf")
    def bf16r(r):
        a(f"v_cvt_pk_bf16_f32 v{r}, v{r}, v{r}")
        a(f"v_lshlrev_b32 v{r}, 16, v{r}")
    def ln_sums(f, t, sc, o1, o2):
        a(f"v_readfirstlane_b32 s{sc}, v{f}")
        for i in range(8):
            a(f"v_subrev_f32 v{t+i}, s{sc}, v{f+i}")
        s1, s2 = t + 8, t + 9
        a(f"v_add_f32 v{s1}, v{t}, v{t+1}")
        a(f"v_mul_f32 v{s2}, v{t}, v{t}")
        a(f"v_fmac_f32 v{s2}, v{t+1}, v{t+1}")
        for i in range(2, 8):
            a(f"v_add_f32 v{s1}, v{s1}, v{t+i}")
            a(f"v_fmac_f32 v{s2}, v{t+i}, v{t+i}")
        wave_reduce([s1, s2])
        a(f"v_readlane_b32 s{o1}, v{s1}, 63")
        a(f"v_readlane_b32 s{o2}, v{s2}, 63")
    def ln_finish(c, mb, rs, t):
        a(f"v_mul_f32 v{mb}, 0x3b000000, v{mb}")
        a(f"v_mul_f32 v{rs}, 0x3b000000, v{rs}")
        a(f"v_fma_f32 v{rs}, -v{mb}, v{mb}, v{rs}")
        a(f"v_add_f32 v{mb}, {c}, v{mb}")
        a(f"v_max_f32 v{rs}, 0, v{rs}")
        a(f"v_cvt_pk_bf16_f32 v{t}, v{mb}, v{rs}")
        a(f"v_lshlrev_b32 v{mb}, 16, v{t}")
        a(f"v_and_b32 v{rs}, 0xffff0000, v{t}")
        a(f"v_add_f32 v{rs}, 0x3727c5ac, v{rs}")
        bf16r(rs)
        a(f"v_sqrt_f32 v{rs}, v{rs}")
        bf16r(rs)
        a(f"v_rcp_f32 v{rs}, v{rs}")
    def ln_apply(f, t, mb, rs, n=8):
        mbs = mb if isinstance(mb, (list, tuple)) else [mb] * n
        rss = rs if isinstance(rs, (list, tuple)) else [rs] * n
        for i in range(n):
            a(f"v_sub_f32 v{t+i}, v{f+i}, v{mbs[i]}")
        for k in range(n // 2):
            a(f"v_cvt_pk_bf16_f32 v{t+2*k+1}, v{t+2*k}, v{t+2*k+1}")
        for k in range(n // 2):
            a(f"v_lshlrev_b32 v{t+2*k}, 16, v{t+2*k+1}")
            a(f"v_and_b32 v{t+2*k+1}, 0xffff0000, v{t+2*k+1}")
        for i in range(n):
            a(f"v_mul_f32 v{t+i}, v{t+i}, v{rss[i]}")
    def spin_head(tag):
        a(f"s_mov_b32 s75, {SPIN}")
        a(f"L_{tag}:")
    def spin_bail(tag):
        a("s_sub_u32 s75, s75, 1")
        a(f"s_cbranch_scc1 L_{tag}_ok")
    def untag_check(regs, t, tag, pre=None):
        for i, r in enumerate(regs):
            if pre and r in pre: continue
            a(f"v_xor_b32 v{r}, s{60 + (i & 3)}, v{r}")
        rs = list(regs)
        a(f"v_or3_b32 v{t}, v{rs[0]}, v{rs[1]}, v{rs[2]}")
        rs = rs[3:]
        while len(rs) >= 2:
            a(f"v_or3_b32 v{t}, v{t}, v{rs[0]}, v{rs[1]}")
            rs = rs[2:]
        if rs:
            a(f"v_or_b32 v{t}, v{t}, v{rs[0]}")
        a(f"v_and_b32 v{t}, 0xff, v{t}")
        a(f"v_cmp_ne_u32 vcc, 0, v{t}")
        a(f"s_cbranch_vccnz L_{tag}")
        a(f"L_{tag}_ok:")
    def empty_check(regs, t, tag):
        rs = list(regs)
        if len(rs) == 1:
            a(f"v_cmp_eq_u32 vcc, -1, v{rs[0]}")
        else:
            if len(rs) >= 3:
                a(f"v_max3_u32 v{t}, v{rs[0]}, v{rs[1]}, v{rs[2]}"); rs = rs[3:]
            else:
                a(f"v_max_u32 v{t}, v{rs[0]}, v{rs[1]}"); rs = rs[2:]
            while len(rs) >= 2:
                a(f"v_max3_u32 v{t}, v{t}, v{rs[0]}, v{rs[1]}"); rs = rs[2:]
            if rs: a(f"v_max_u32 v{t}, v{t}, v{rs[0]}")
            a(f"v_cmp_eq_u32 vcc, -1, v{t}")
        a(f"s_cbranch_vccnz L_{tag}")
        a(f"L_{tag}_ok:")
    def masked_poll(tag, loads, t, mb=52):
        for k in range(len(loads)):
            a(f"s_mov_b64 s[{mb+2*k}:{mb+1+2*k}], -1")
        spin_head(tag)
        for k, (r, txt) in enumerate(loads):
            a(f"s_mov_b64 exec, s[{mb+2*k}:{mb+1+2*k}]")
            a(txt)
        spin_bail(tag)
        for k, (r, txt) in enumerate(loads):
            a(f"s_mov_b64 exec, s[{mb+2*k}:{mb+1+2*k}]")
            a(f"s_waitcnt vmcnt({len(loads)-1-k})")
            for i in range(4):
                a(f"v_xor_b32 v{r+i}, s{60+i}, v{r+i}")
            a(f"v_or3_b32 v{t}, v{r}, v{r+1}, v{r+2}")
            a(f"v_or_b32 v{t}, v{t}, v{r+3}")
            a(f"v_and_b32 v{t}, 0xff, v{t}")
            a(f"v_cmp_ne_u32 s[{mb+2*k}:{mb+1+2*k}], 0, v{t}")
        a(f"s_or_b64 s[64:65], s[{mb}:{mb+1}], s[{mb+2}:{mb+3}]")
        for k in range(2, len(loads)):
            a(f"s_or_b64 s[64:65], s[64:65], s[{mb+2*k}:{mb+1+2*k}]")
        a(f"s_cbranch_scc1 L_{tag}")
        a(f"L_{tag}_ok:")
        a("s_mov_b64 exec, -1")
    def pipe_poll(tag, loads, dst, t, depth, mb=52, init=None, extra=None):
        nl = len(loads)
        a("s_mov_b32 s68, 0x0c0c0400")
        a("s_mov_b32 s69, 0x04000c0c")
        for k in range(nl):
            if init and init[k]:
                a(f"s_mov_b32 s{mb+2*k}, {init[k][0]}"); a(f"s_mov_b32 s{mb+1+2*k}, {init[k][1]}")
            else:
                a(f"s_mov_b64 s[{mb+2*k}:{mb+1+2*k}], -1")
        def sweep():
            for k, (r, txt) in enumerate(loads):
                a(f"s_mov_b64 exec, s[{mb+2*k}:{mb+1+2*k}]")
                a(txt)
            a("s_mov_b64 exec, -1")
        sweep()
        a(f"s_mov_b32 s75, {SPIN}")
        a("s_waitcnt vmcnt(0)")
        a(f"s_branch L_{tag}_chk")
        a(f"L_{tag}:")
        sweep()
        if extra: extra()
        spin_bail(tag)
        a(f"s_waitcnt vmcnt({nl * (depth - 1)})")
        a(f"L_{tag}_chk:")
        for k, (r, txt) in enumerate(loads):
            a(f"v_perm_b32 v{t+2*k}, v{r+1}, v{r}, s68")
            a(f"v_perm_b32 v{t+2*k+1}, v{r+3}, v{r+2}, s69")
        for k in range(nl):
            a(f"v_or_b32 v{t+2*k}, v{t+2*k}, v{t+2*k+1}")
        for k in range(nl):
            a(f"v_cmp_ne_u32 s[{mb+2*k}:{mb+1+2*k}], s29, v{t+2*k}")
        a(f"s_or_b64 s[64:65], s[{mb}:{mb+1}], s[{mb+2}:{mb+3}]")
        for k in range(2, nl):
            a(f"s_or_b64 s[64:65], s[64:65], s[{mb+2*k}:{mb+1+2*k}]")
        a(f"s_cbranch_scc1 L_{tag}")
        a(f"L_{tag}_ok:")
        for k, (r, txt) in enumerate(loads):
            for i in range(4):
                a(f"v_and_b32 v{dst+4*k+i}, s31, v{r+i}")
    def swap_add(regs, tmp, sw):
        for i, r in enumerate(regs): a(f"v_mov_b32 v{tmp+i}, v{r}")
        for i, r in enumerate(regs): a(f"{sw} v{tmp+i}, v{r}")
        for i, r in enumerate(regs): a(f"v_add_f32 v{r}, v{r}, v{tmp+i}")
    def round4(base):
        a(f"v_cvt_pk_bf16_f32 v{base+1}, v{base}, v{base+1}")
        a(f"v_cvt_pk_bf16_f32 v{base+3}, v{base+2}, v{base+3}")
        a(f"v_lshlrev_b32 v{base}, 16, v{base+1}")
        a(f"v_and_b32 v{base+1}, 0xffff0000, v{base+1}")
        a(f"v_lshlrev_b32 v{base+2}, 16, v{base+3}")
        a(f"v_and_b32 v{base+3}, 0xffff0000, v{base+3}")
    def lds_wait(tag, addr, t, sleep, off=0):
        spin_head(tag)
        if sleep: a(f"s_sleep {sleep}")
        a(f"ds_read_b32 v{t}, v{addr} offset:{off}")
        spin_bail(tag)
        a("s_waitcnt lgkmcnt(0)")
        empty_check([t], t, tag)
    def P(G):
        r = 0
        for k, b in enumerate(gvec):
            if G >> k & 1: r ^= 1 << b
        return r

    a("s_and_b32 s52, s2, 63")
    a("s_lshl_b32 s52, s52, 2")
    a("s_add_u32 s52, s52, 3")
    a("s_lshl_b32 s52, s52, 20")
    a(f"s_lshl_b32 s53, s3, {10 + wbit}")
    a("s_xor_b32 s52, s52, s53")
    gl = list(gx)
    while gl:
        k, b = gl.pop(0)
        nn = 1
        while gl and gl[0] == (k + nn, b + nn):
            gl.pop(0); nn += 1
        a(f"s_bfe_u32 s53, s2, {k | (nn << 16):#x}")
        a(f"s_lshl_b32 s53, s53, {10 + b}")
        a("s_xor_b32 s52, s52, s53")
    a("s_lshl_b32 s53, s57, 18")
    a("s_xor_b32 s52, s52, s53")
    if phases is None:
        a("s_lshl_b32 s53, s57, 16")
    else:
        tab = sum((ph >> 2) << (8 * i) for i, ph in enumerate(phases))
        a("s_lshl_b32 s53, s57, 3")
        a(f"s_lshr_b32 s53, {tab:#x}, s53")
        a("s_and_b32 s53, s53, 7")
        a("s_lshl_b32 s53, s53, 15")
    a("s_xor_b32 s52, s52, s53")
    assert tuple(gvec) == (0,1,5,6,7,8,9)
    RB = 44
    def ringreg(j): return RB + 4 * (j % ring)
    def ld_text(j, rot=0):
        sr = 12 if j < n else 16
        p = P(((j + rot) % n) ^ rot)
        r = ringreg(j)
        if p:
            a(f"s_xor_b32 s53, s52, {p << 10}")
            so = 53
        else:
            so = 52
        a(f"buffer_load_dwordx4 v[{r}:{r+3}], v1, s[{sr}:{sr+3}], s{so} offen {kv_aux}")
    a("s_waitcnt lgkmcnt(0)")
    for j in range(D0): ld_text(j)
    a("s_load_dwordx2 s[24:25], s[0:1], 96")
    srd(16, 16, 0x10000000)
    a("s_mov_b32 s64, 0xcccccccc"); a("s_mov_b32 s65, 0xcccccccc")
    a("s_mov_b32 s66, 0xaaaaaaaa"); a("s_mov_b32 s67, 0xaaaaaaaa")
    masks(12, 13)
    a("v_and_b32 v12, 15, v0")
    a("v_lshlrev_b32 v12, 4, v12")
    a(f"v_add_u32 v12, {L_QB}, v12")
    a("s_waitcnt lgkmcnt(0)")
    epoch_load()
    if yprio or yskip:
        a("s_cmp_ge_u32 s3, 4")
        a("s_cselect_b64 vcc, -1, 0")
    if yprio:
        a("s_cbranch_scc0 L_np")
        a(f"s_setprio {yprio}")
        a("L_np:")
    if not b0_at: a("s_barrier")
    for j in range(D0, N0):
        a(f"s_waitcnt vmcnt({D0-1})")
        ld_text(j)
    a(f"s_cmp_lt_u32 s2, {NMLP}")
    a("s_cbranch_scc1 L_kv_m")
    a("s_cmp_eq_u32 s57, 1")
    a("s_cbranch_scc1 L_kv_r")

    def stage_done(sr=3):
        a(f"s_lshl_b32 s73, s{sr}, 2")
        a(f"s_add_u32 s73, s73, {L_FL}")
        a("v_mov_b32 v26, s73")
        a("v_mov_b32 v27, 0")
        a("ds_write_b32 v26, v27")

    def kv_path(role, Dx, bfrom, early):
        st = dict(iss=N0, landed=N0 - D0 - 1, cons=0)
        order = list(range(N0))
        NT = 2 * n
        stage = []
        def depth(): return Dx if st["cons"] >= bfrom else D
        def ld_kv():
            j = st["iss"]
            ld_text(j, 0 if phases is None else {"p": 0, "m": phases[0], "r": phases[1]}[role])
            st["iss"] += 1
            order.append(j)
        def wait_kv(j):
            if j <= st["landed"]: return
            a(f"s_waitcnt vmcnt({len(order) - 1 - order.index(j)})")
            st["landed"] = j
        if role == "m":
            srd(44, 48, 1024); srd(48, 80, 2048); srd(32, 56, 1409024); srd(36, 64, 1409024); srd(40, 72, 1409024)
        if role == "r":
            srd(20, 32, 0x400000)
        while st["iss"] < NPRE:
            d = depth()
            if st["iss"] in yskip and role == "p":
                wait_kv(st["iss"] - d - 1)
                a(f"s_cbranch_vccnz L_ys{st['iss']}")
                a(f"s_waitcnt vmcnt({d-1})")
                a(f"L_ys{st['iss']}:")
            elif st["iss"] - 1 - st["landed"] >= d:
                wait_kv(st["iss"] - d)
            ld_kv()
            if st["iss"] == b0_at: a("s_barrier")
        stampat(1)
        if kvwarm: a(f";@warm kv{role} L_kret {kvwarm}")
        spin_head("wq" + role)
        a("ds_read_b128 v[8:11], v12")
        spin_bail("wq" + role)
        a("s_waitcnt lgkmcnt(0)")
        empty_check([8, 9, 10, 11], 13, "wq" + role)
        a("s_waitcnt lgkmcnt(0)")
        if role != "p": epoch_calc()
        stampat(2)
        def reduce_scores(dst):
            for i in range(8):
                a(f"v_add_f32_dpp v{24+i}, v{24+i}, v{24+i} row_ror:8 row_mask:0xf bank_mask:0x3")
            for i in range(8):
                a(f"v_add_f32_dpp v{24+i}, v{32+i}, v{32+i} row_ror:8 row_mask:0xf bank_mask:0xc")
            for i in range(4):
                a(f"v_add_f32_dpp v{24+i}, v{24+i}, v{24+i} row_half_mirror row_mask:0xf bank_mask:0x5")
            for i in range(4):
                a(f"v_add_f32_dpp v{24+i}, v{28+i}, v{28+i} row_half_mirror row_mask:0xf bank_mask:0xa")
            dpp_steps([24, 25, 26, 27], ("quad_perm:[2,3,0,1]",))
            a("v_cndmask_b32 v24, v24, v26, s[64:65]")
            a("v_cndmask_b32 v25, v25, v27, s[64:65]")
            dpp_steps([24, 25], ("quad_perm:[1,0,3,2]",))
            a(f"v_cndmask_b32 v{dst}, v24, v25, s[66:67]")
            if not noround: bf16r(dst)
            a(f"v_mul_f32 v{dst}, {SCALE:#x}, v{dst}")
            if not noround: bf16r(dst)
        def softmax_part():
            stampat(3)
            a("v_max_f32 v24, v2, v3")
            wave_reduce([24], "v_max_f32")
            a("v_readlane_b32 s72, v24, 63")
            for r in (2, 3): a(f"v_subrev_f32 v{r}, s72, v{r}")
            for r in (2, 3): a(f"v_mul_f32 v{r}, {LOG2E:#x}, v{r}")
            for r in (2, 3): a(f"v_exp_f32 v{r}, v{r}")
            a("v_add_f32 v25, v2, v3")
            for r in (2, 3): a(f"v_cvt_pk_bf16_f32 v{r}, v{r}, v{r}")
            wave_reduce([25])
            a("s_lshl_b32 s73, s3, 3")
            a(f"s_add_u32 s73, s73, {L_MB}")
            a("v_mov_b32 v26, s73")
            a("s_mov_b32 exec_lo, 0")
            a("s_mov_b32 exec_hi, 0x80000000")
            a("ds_write_b64 v26, v[24:25]")
            a("s_mov_b64 exec, -1")
            a("s_lshl_b32 s73, s3, 9")
            a(f"s_add_u32 s73, s73, {L_OP}")
            a("v_and_b32 v27, 15, v0")
            a("v_lshrrev_b32 v28, 4, v0")
            a("v_lshlrev_b32 v29, 5, v27")
            a("v_lshl_add_u32 v29, v28, 4, v29")
            a("v_add_u32 v29, s73, v29")
            stampat(4)
        def issue_stage():
            m0, voff, sr, so, aux = stage.pop(0)
            a(f"s_add_u32 m0, {m0}")
            a(f"s_add_u32 s53, {so}")
            if not no_stage:
                a(f"buffer_load_dwordx4 v{voff}, s[{sr}:{sr+3}], s53 offen {aux} lds")
                order.append("st")
        ins = {"r": ins_r, "m": ins_m}.get(role)
        ins = list(ins) if ins else []
        def inflight():
            pos = order.index(st["landed"])
            return sum(1 for x in order[pos+1:] if isinstance(x, int) or x == "st")
        def pump(extra=0):
            while st["iss"] < NT and inflight() < depth() + extra and st["iss"] - ring < st["cons"]:
                if ins and ins[0] <= st["iss"] and stage:
                    ins.pop(0)
                    issue_stage()
                    continue
                ld_kv()
            if st["iss"] == NT and stage and st["cons"] >= NT - early:
                issue_stage()
        def role_prep():
            if role == "r":
                a("s_and_b32 s76, s2, 7")
                a("s_lshr_b32 s77, s3, 1")
                a("s_lshl_b32 s78, s77, 3")
                a("s_add_u32 s78, s78, s76")
                a("s_lshl_b32 s68, s78, 17")
                a("s_lshl_b32 s78, s78, 1")
                a("s_and_b32 s73, s3, 1")
                a("s_add_u32 s78, s78, s73")
                a("s_lshl_b32 s79, s78, 9")
                a(f"s_add_u32 s79, s79, {WS_MLX}")
                a("s_lshl_b32 s78, s78, 11")
                a(f"s_add_u32 s78, s78, {WS_OP}")
                a("s_lshl_b32 s69, s73, 16")
                a("s_add_u32 s68, s68, s69")
                a("s_bfe_u32 s69, s2, 0x30003")
                a("s_lshl_b32 s69, s69, 7")
                a("s_add_u32 s68, s68, s69")
                a("s_lshl_b32 s69, s3, 13")
                a("v_and_b32 v31, 3, v0")
                a("v_lshlrev_b32 v31, 7, v31")
                a(f"s_mul_i32 s73, s73, {APITCH}")
                a("s_lshl_b32 s77, s77, 8")
                a("s_add_u32 s73, s73, s77")
                a(f"s_add_u32 s73, s73, {L_A}")
                a("v_and_b32 v30, 31, v0")
                a("v_lshlrev_b32 v30, 3, v30")
                a("v_lshrrev_b32 v32, 5, v0")
                a("v_lshl_add_u32 v30, v32, 2, v30")
                a("v_add_u32 v30, s73, v30")
                a("s_getreg_b32 s74, hwreg(HW_REG_XCC_ID, 0, 4)")
                a("v_lshrrev_b32 v32, 3, v0")
                a("v_and_b32 v33, 7, v0")
                a("v_lshlrev_b32 v32, 10, v32")
                a("v_lshl_or_b32 v32, v33, 4, v32")
                for i in range(8):
                    stage.append((f"s69, {1024*i}", 32, 20, f"s68, {8192*i}", wo_aux))
            if role == "m":
                a("v_bfe_u32 v38, v0, 2, 1")
                a("v_bfe_u32 v31, v0, 3, 2")
                a("v_lshlrev_b32 v30, 5, v31")
                a("v_and_b32 v31, 3, v0")
                a("v_lshl_add_u32 v30, v31, 3, v30")
                a("s_lshl_b32 s73, s3, 7")
                a("v_add_u32 v30, s73, v30")
                a("v_lshrrev_b32 v39, 5, v0")
                a("v_lshl_add_u32 v30, v39, 2, v30")
                a("v_lshl_add_u32 v39, v38, 10, v30")
                a("buffer_load_dword v36, v39, s[4:7], 0 offen")
                a("v_lshlrev_b32 v39, 10, v38")
                a("buffer_load_ushort v41, v39, s[4:7], 0 offen")
                a("buffer_load_dwordx4 v[32:35], v1, s[44:47], 0 offen")
                order.extend(["x", "c", "wr"])
                a(f"v_mul_u32_u24 v39, {APITCH}, v38")
                a("v_add_u32 v30, v30, v39")
                a(f"v_add_u32 v30, {L_A}, v30")
                a("v_lshrrev_b32 v39, 4, v0")
                a("v_lshlrev_b32 v39, 3, v39")
                a("v_lshl_add_u32 v39, v38, 8, v39")
                a("s_lshl_b32 s73, s3, 5")
                a(f"s_add_u32 s73, s73, {L_ST}")
                a("v_add_u32 v39, s73, v39")
                a("s_lshl_b32 s78, s3, 12")
                a(f"s_add_u32 s78, s78, {WS_ZX}")
                if zcopy:
                    a("s_getreg_b32 s73, hwreg(HW_REG_XCC_ID, 0, 3)")
                    a("s_lshl_b32 s73, s73, 15")
                    a("s_add_u32 s78, s78, s73")
                a("v_lshrrev_b32 v42, 2, v0")
                a("v_mul_u32_u24 v42, 2752, v42")
                a("v_lshl_add_u32 v42, v31, 4, v42")
                if fmap:
                    a("s_and_b32 s70, s2, 7")
                    a("s_min_u32 s71, s70, 3")
                    a("s_mul_i32 s70, s70, 5")
                    a("s_add_u32 s70, s70, s71")
                    a("s_lshr_b32 s71, s2, 3")
                    a("s_add_u32 s70, s70, s71")
                else:
                    a("s_mov_b32 s70, s2")
                if falt:
                    a("s_and_b32 s74, s70, 1")
                    a("s_lshl_b32 s74, s74, 2")
                    a("s_xor_b32 s74, s74, s3")
                else:
                    a("s_mov_b32 s74, s3")
                a("s_mul_i32 s68, s74, 176128")
                a("s_lshl_b32 s69, s70, 6")
                a("s_add_u32 s68, s68, s69")
                a("s_lshl_b32 s69, s74, 12")
                a("s_lshl_b32 s70, s70, 15")
                a("s_add_u32 s70, s70, s69")
                a(f"s_mul_i32 s71, s74, {4*DNP}")
                for i in range(4):
                    stage.append((f"s69, {1024*i}", 42, 32, f"s68, {44032*i}", mlp_aux))
                    stage.append((f"s69, {L_UP + 1024*i}", 42, 36, f"s68, {44032*i}", mlp_aux))
                for i in range(4):
                    stage.append((f"s71, {L_DN + DNP*i}", 1, 40, f"s70, {1024*i}", dn_aux))
        def consume(j):
            r = ringreg(j)
            st["cons"] = j
            if j < n:
                i = j & 15
                if i == 0:
                    for k in range(16):
                        a(f"v_mov_b32 v{24+k}, 0")
                wait_kv(j)
                pump(1 if i == 15 else 0)
                for k in range(4):
                    a(f"v_dot2c_f32_bf16 v{24+i}, v{r+k}, v{8+k}")
                if i == 15: reduce_scores(2 + (j >> 4))
                if j == n - 1: softmax_part()
            else:
                jj = j - n
                i = jj & 15
                pp = 2 + (jj >> 4)
                t = 12 + 4 * (i & 1)
                for k in range(4):
                    a(f"v_and_b32_dpp v{t+k}, v{pp}, v{4+k} row_newbcast:{i} row_mask:0xf bank_mask:0xf")
                pj = order.index(j)
                if pj > 0 and order[pj-1] == "st" and j > st["landed"] and st["iss"] < NT:
                    a(f"s_waitcnt vmcnt({len(order) - pj})")
                    pump(1)
                wait_kv(j)
                if j < NT - 1: pump()
                if jj > prep_at and not stage and "st" in order and not st.get("fl") and max(i for i, x in enumerate(order) if x == "st") < order.index(j):
                    stage_done(74 if role == "m" else 3); st["fl"] = True
                c = "0" if jj == 0 else "v[20:23]"
                a(f"v_mfma_f32_16x16x32_bf16 v[20:23], v[{t}:{t+3}], v[{r}:{r+3}], {c}")
                if jj == prep_at: role_prep()
                if jj == 20 and role == "r":
                    a("buffer_load_dwordx4 v[40:43], v31, s[24:27], s79 offen sc1")
                    order.append("ml")
        for j in range(NT):
            if j <= st["landed"] and j % CU == 0 and st["iss"] < NT and st["iss"] - ring < j:
                st["cons"] = j
                wait_kv(st["landed"] + 1)
                pump()
            consume(j)
        if kvwarm: a(";@endwarm")
        a("s_mov_b32 exec_hi, 0")
        a("ds_write_b128 v29, v[20:23]")
        a("s_mov_b64 exec, -1")
        stampat(5)
        keep = 4 if role == "m" else 0
        while len(stage) > keep: issue_stage()
        return lambda: [issue_stage() for _ in range(len(stage))]
    kv_path("p", Dp, bp_from, 0)
    a("s_branch L_fin")

    a("L_kv_r:")
    kv_path("r", Dr, br_from, early_r)
    if warm: a(";@warm rk L_wret")
    a(f"s_mov_b32 s75, {SPIN}")
    a("s_branch L_pL_chk")
    a("L_pL:")
    a("buffer_load_dwordx4 v[40:43], v31, s[24:27], s79 offen sc1")
    spin_bail("pL")
    a("s_waitcnt vmcnt(0)")
    a("L_pL_chk:")
    a("v_xor_b32 v54, s29, v42")
    a("v_xor_b32 v55, s29, v43")
    a("v_lshrrev_b32 v56, 4, v55")
    a("v_or_b32 v54, v54, v56")
    a("v_cmp_ne_u32 vcc, 0, v54")
    a("s_cbranch_vccnz L_pL")
    a("L_pL_ok:")
    a("v_mov_b32 v52, v40")
    a("v_mov_b32 v53, v41")
    a("v_mov_b32 v56, v52")
    dpp_steps([56], ("quad_perm:[1,0,3,2]", "quad_perm:[2,3,0,1]"), "v_max_f32")
    a("v_sub_f32 v52, v52, v56")
    a(f"v_mul_f32 v52, {LOG2E:#x}, v52")
    a("v_exp_f32 v52, v52")
    a("v_mul_f32 v53, v53, v52")
    dpp_steps([53], ("quad_perm:[1,0,3,2]", "quad_perm:[2,3,0,1]"))
    a("v_rcp_f32 v53, v53")
    a("v_mul_f32 v52, v52, v53")
    a(f"v_mov_b32 v54, {WS_OS - WS_OP}")
    if local:
        a("v_cmp_ne_u32 vcc, s74, v55")
        a("v_cndmask_b32 v55, 0, v54, vcc")
    else:
        a("v_mov_b32 v55, v54")
    for src, d0 in ((52, 56), (55, 58)):
        a(f"v_mov_b32_dpp v{d0}, v{src} quad_perm:[0,0,0,0] row_mask:0x3 bank_mask:0xf")
        a(f"v_mov_b32_dpp v{d0+1}, v{src} quad_perm:[2,2,2,2] row_mask:0x3 bank_mask:0xf")
        a(f"v_mov_b32_dpp v{d0}, v{src} quad_perm:[1,1,1,1] row_mask:0xc bank_mask:0xf")
        a(f"v_mov_b32_dpp v{d0+1}, v{src} quad_perm:[3,3,3,3] row_mask:0xc bank_mask:0xf")
    a("v_add_u32 v58, v58, v1")
    a("v_add_u32 v59, v59, v1")
    a("s_lshl_b32 s73, s3, 2")
    a(f"s_add_u32 s73, s73, {L_FL}")
    a("v_mov_b32 v26, s73")
    a("v_mov_b32 v27, 0")
    a("s_mov_b32 s68, 0x0c0c0400")
    a("s_mov_b32 s69, 0x04000c0c")
    if pipeA:
        a("s_waitcnt vmcnt(0)")
        a("ds_write_b32 v26, v27")
        def fb():
            a(f"s_cmp_lg_u32 s75, {SPIN - 1000}")
            a("s_cbranch_scc1 L_pA_nf")
            a("v_add_u32 v58, v54, v1")
            a("v_add_u32 v59, v54, v1")
            a("s_waitcnt vmcnt(0)")
            a("L_pA_nf:")
        pipe_poll("pA", [(128, "buffer_load_dwordx4 v[128:131], v58, s[24:27], s78 offen sc1"), (132, "buffer_load_dwordx4 v[132:135], v59, s[24:27], s78 offen offset:1024 sc1")], 44, 144, pipeA, extra=fb)
    elif maskA:
        a("s_waitcnt vmcnt(0)")
        a("ds_write_b32 v26, v27")
        a("s_mov_b64 s[52:53], -1"); a("s_mov_b64 s[54:55], -1")
        spin_head("pA")
        a("s_mov_b64 exec, s[52:53]")
        a("buffer_load_dwordx4 v[44:47], v58, s[24:27], s78 offen sc1")
        a("s_mov_b64 exec, s[54:55]")
        a("buffer_load_dwordx4 v[48:51], v59, s[24:27], s78 offen offset:1024 sc1")
        a("s_mov_b64 exec, -1")
        a(f"s_cmp_lg_u32 s75, {SPIN - 400}")
        a("s_cbranch_scc1 L_pA_nf")
        a("v_add_u32 v58, v54, v1")
        a("v_add_u32 v59, v54, v1")
        a("L_pA_nf:")
        spin_bail("pA")
        a("s_waitcnt vmcnt(0)")
        for k, r in enumerate((44, 48)):
            a(f"v_perm_b32 v{60+2*k}, v{r+1}, v{r}, s68")
            a(f"v_perm_b32 v{61+2*k}, v{r+3}, v{r+2}, s69")
        a("v_or_b32 v60, v60, v61")
        a("v_or_b32 v62, v62, v63")
        a("v_cmp_ne_u32 s[52:53], s29, v60")
        a("v_cmp_ne_u32 s[54:55], s29, v62")
        a("s_or_b64 s[64:65], s[52:53], s[54:55]")
        a("s_cbranch_scc1 L_pA")
        a("L_pA_ok:")
        for r in range(44, 52): a(f"v_and_b32 v{r}, s31, v{r}")
    else:
        spin_head("pA")
        a("buffer_load_dwordx4 v[44:47], v58, s[24:27], s78 offen sc1")
        a("buffer_load_dwordx4 v[48:51], v59, s[24:27], s78 offen offset:1024 sc1")
        a(f"s_cmp_lg_u32 s75, {SPIN - 400}")
        a("s_cbranch_scc1 L_pA_nf")
        a("v_add_u32 v58, v54, v1")
        a("v_add_u32 v59, v54, v1")
        a("L_pA_nf:")
        spin_bail("pA")
        a("s_waitcnt vmcnt(2)")
        a("ds_write_b32 v26, v27")
        a("s_waitcnt vmcnt(0)")
        untag_check(list(range(44, 52)), 60, "pA")
    stampat(6)
    for r in range(4): a(f"v_mul_f32 v{44+r}, v{44+r}, v56")
    for r in range(4): a(f"v_fmac_f32 v{44+r}, v{48+r}, v57")
    a("v_permlane32_swap_b32 v44, v46")
    a("v_permlane32_swap_b32 v45, v47")
    a("v_add_f32 v44, v44, v46")
    a("v_add_f32 v45, v45, v47")
    a("v_cvt_pk_bf16_f32 v44, v44, v45")
    a("ds_write_b32 v30, v44")
    a("s_waitcnt lgkmcnt(0)")
    a("s_barrier")
    if warm: a(";@endwarm")
    stampat(7)
    a("s_mov_b64 exec, -1")
    a("s_branch L_fin")

    a("L_kv_m:")
    rest = kv_path("m", Dm, bm_from, early_m)
    unpack(36, 64, 1)
    a("v_lshlrev_b32 v41, 16, v41")
    a(f"s_waitcnt vmcnt({dn_lead})")
    rest()
    a(f"s_waitcnt vmcnt({0 if no_stage else 4})")
    stage_done(74)
    stampat(9)
    if warm: a(";@warm mk L_wret")
    if heads:
        a("v_lshrrev_b32 v61, 3, v0")
        a("v_lshlrev_b32 v61, 15, v61")
        a("v_and_b32 v62, 7, v0")
        a("v_lshl_add_u32 v61, v62, 9, v61")
        a("s_lshl_b32 s79, s3, 12")
        a(f"s_add_u32 s79, s79, {WS_OS}")
        a("s_and_b32 s73, s3, 1")
        a("s_lshl_b32 s73, s73, 4")
        a("s_lshr_b32 s77, s3, 1")
        a("s_lshl_b32 s77, s77, 2")
        a("s_add_u32 s73, s73, s77")
        a(f"s_add_u32 s73, s73, {L_HF}")
        a("v_mov_b32 v66, s73")
        a("v_lshrrev_b32 v67, 5, v0")
        a("v_lshlrev_b32 v67, 4, v67")
        a(f"v_add_u32 v67, {L_HF}, v67")
        for k in range(4): a(f"s_mov_b64 s[{52+2*k}:{53+2*k}], -1")
        a("s_mov_b32 exec_hi, 0")
        spin_head("pH")
        a("buffer_load_dwordx2 v[62:63], v61, s[24:27], s79 offen sc1")
        spin_bail("pH")
        a("s_waitcnt vmcnt(1)")
        a(f"ds_write_b32 v26, v27 offset:{L_FD - L_FL}")
        a("s_waitcnt vmcnt(0)")
        a("v_xor_b32 v62, s60, v62")
        a("v_xor_b32 v63, s61, v63")
        a("v_or_b32 v62, v62, v63")
        a("v_and_b32 v62, 0xff, v62")
        a("v_cmp_ne_u32 vcc, 0, v62")
        a("s_cbranch_vccz L_pH_ok")
        a("s_mov_b64 exec, vcc")
        a("s_branch L_pH")
        a("L_pH_ok:")
        a("s_mov_b64 exec, -1")
        if hdelay: a(f"s_sleep {hdelay}")
        a("ds_write_b32 v66, v27")
        stampat(1)
        spin_head("pB")
        a("ds_read_b128 v[68:71], v67")
        spin_bail("pB")
        a("s_waitcnt lgkmcnt(0)")
        for k in range(4):
            a(f"v_cmp_eq_u32 s[{64+2*k}:{65+2*k}], 0, v{68+k}")
        for k in range(4):
            a(f"s_and_b64 s[{64+2*k}:{65+2*k}], s[{64+2*k}:{65+2*k}], s[{52+2*k}:{53+2*k}]")
            a(f"s_mov_b64 exec, s[{64+2*k}:{65+2*k}]")
            a(f"buffer_load_dwordx4 v[{44+4*k}:{47+4*k}], v1, s[24:27], s78 offen offset:{1024*k} sc1")
        for k in range(4):
            r = 44 + 4 * k
            a(f"s_mov_b64 exec, s[{64+2*k}:{65+2*k}]")
            a(f"s_andn2_b64 s[{52+2*k}:{53+2*k}], s[{52+2*k}:{53+2*k}], exec")
            a(f"s_waitcnt vmcnt({3-k})")
            for i in range(4):
                a(f"v_xor_b32 v{r+i}, s{60+i}, v{r+i}")
            a(f"v_or3_b32 v60, v{r}, v{r+1}, v{r+2}")
            a(f"v_or_b32 v60, v60, v{r+3}")
            a("v_and_b32 v60, 0xff, v60")
            a("v_cmp_ne_u32 vcc, 0, v60")
            a(f"s_or_b64 s[{52+2*k}:{53+2*k}], s[{52+2*k}:{53+2*k}], vcc")
        a("s_mov_b64 exec, -1")
        a("s_or_b64 s[64:65], s[52:53], s[54:55]")
        a("s_or_b64 s[66:67], s[56:57], s[58:59]")
        a("s_or_b64 s[64:65], s[64:65], s[66:67]")
        a("s_cbranch_scc1 L_pB")
        a("L_pB_ok:")
    else:
        if nosent:
            a("s_waitcnt vmcnt(0)")
            a(f"ds_write_b32 v26, v27 offset:{L_FD - L_FL}")
        else:
            a("s_mov_b64 exec, 0xff")
            spin_head("pB0")
            if bsleep: a(f"s_sleep {bsleep}")
            a("buffer_load_dwordx4 v[44:47], v1, s[24:27], s78 offen sc1")
            spin_bail("pB0")
            a("s_waitcnt vmcnt(1)")
            a(f"ds_write_b32 v26, v27 offset:{L_FD - L_FL}")
            a("s_waitcnt vmcnt(0)")
            untag_check([44, 45, 46, 47], 60, "pB0")
            a("s_mov_b64 exec, -1")
        if pipeB:
            pipe_poll("pB", [(128 + 4*k, f"buffer_load_dwordx4 v[{128+4*k}:{131+4*k}], v1, s[24:27], s78 offen offset:{1024*k} sc1") for k in range(4)], 44, 144, pipeB)
        elif masked:
            masked_poll("pB", [(44 + 4*k, f"buffer_load_dwordx4 v[{44+4*k}:{47+4*k}], v1, s[24:27], s78 offen offset:{1024*k} sc1") for k in range(4)], 60)
        else:
            spin_head("pB")
            if psleep: a(f"s_sleep {psleep}")
            for k in range(4):
                a(f"buffer_load_dwordx4 v[{44+4*k}:{47+4*k}], v1, s[24:27], s78 offen offset:{1024*k} sc1")
            spin_bail("pB")
            a("s_waitcnt vmcnt(0)")
            untag_check(list(range(44, 60)), 60, "pB")
    stampat(6)
    for r in range(4):
        a(f"v_add_f32 v{44+r}, v{44+r}, v{48+r}")
        a(f"v_add_f32 v{52+r}, v{52+r}, v{56+r}")
    for r in range(4): a(f"v_add_f32 v{44+r}, v{44+r}, v{52+r}")
    a("v_permlane32_swap_b32 v44, v46")
    a("v_permlane32_swap_b32 v45, v47")
    a("v_add_f32 v44, v44, v64")
    a("v_add_f32 v45, v45, v65")
    a("v_add_f32 v44, v44, v46")
    a("v_add_f32 v45, v45, v47")
    a("v_cvt_pk_bf16_f32 v48, v44, v45")
    a("ds_write_b32 v30, v48")
    unpack(48, 44, 1)
    a("v_sub_f32 v44, v44, v41")
    a("v_sub_f32 v45, v45, v41")
    a("v_mul_f32 v51, v44, v44")
    a("v_add_f32 v50, v44, v45")
    a("v_fmac_f32 v51, v45, v45")
    dpp_steps([50, 51], ("quad_perm:[1,0,3,2]", "quad_perm:[2,3,0,1]", "row_ror:8"))
    a("ds_write_b64 v39, v[50:51]")
    a("s_waitcnt lgkmcnt(0)")
    a("s_barrier")
    stampat(7)
    a("s_cmp_ge_u32 s3, 2")
    a("s_cbranch_scc1 L_fin")
    a("s_cmp_ge_u32 s2, 32")
    a("s_cbranch_scc1 L_fin")
    a(f"s_mul_i32 s73, s3, {APITCH}")
    a(f"s_add_u32 s73, s73, {L_A}")
    a("v_add_u32 v52, s73, v1")
    a("ds_read_b128 v[96:99], v52")
    a("v_lshrrev_b32 v40, 2, v0")
    a("v_and_b32 v43, 3, v0")
    a("v_lshlrev_b32 v44, 7, v40")
    a("v_lshl_or_b32 v44, v43, 4, v44")
    a("s_mul_i32 s78, s2, 5504")
    a("s_lshl_b32 s73, s3, 6")
    a("s_add_u32 s78, s78, s73")
    a(f"s_add_u32 s78, s78, {WS_Y}")
    a("s_add_u32 s79, s78, 2048")
    a("s_add_u32 s77, s78, 4096")
    a("s_lshl_b32 s74, s2, 5")
    a("s_lshl_b32 s73, s3, 4")
    a("s_add_u32 s76, s74, s73")
    a("v_lshlrev_b32 v45, 2, v43")
    a("v_lshrrev_b32 v47, 5, v0")
    a("v_lshl_add_u32 v45, v47, 1, v45")
    a("v_bfe_u32 v47, v0, 4, 1")
    a(f"v_mul_u32_u24 v46, {APITCH}, v47")
    a("v_add_u32 v46, v46, v45")
    a(f"s_add_u32 s73, s76, {L_A}")
    a("v_add_u32 v46, s73, v46")
    a("ds_read_u16 v50, v46")
    a("v_lshl_add_u32 v45, v47, 10, v45")
    a("v_lshlrev_b32 v51, 4, v47")
    a(f"v_add_u32 v51, {L_SG}, v51")
    a("s_waitcnt lgkmcnt(0)")
    unpack(96, 100)
    ln_sums(100, 108, 68, 69, 70)
    a("v_mov_b32 v124, s69")
    a("v_mov_b32 v125, s70")
    ln_finish("s68", 124, 125, 108)
    ln_apply(100, 108, 124, 125)
    for k in range(4):
        a(f"v_cvt_pk_bf16_f32 v{120+k}, v{108+2*k}, v{109+2*k}")
    if warm: a(";@endwarm")
    if warm: a(";@warm mk2 L_wret")
    a("v_mov_b32 v126, 0")
    for k in range(4):
        a(f"v_dot2c_f32_bf16 v126, v{120+k}, v{32+k}")
    wave_reduce([126])
    a("v_readlane_b32 s73, v126, 63")
    a("v_mov_b32 v126, s73")
    bf16r(126)
    a("v_mul_f32 v126, 0xbfb8aa3b, v126")
    a("v_exp_f32 v126, v126")
    a("v_add_f32 v126, 1.0, v126")
    a("v_rcp_f32 v126, v126")
    bf16r(126)
    a("v_mov_b32 v127, 0")
    a("s_lshl_b32 s73, s3, 4")
    a(f"s_add_u32 s73, s73, {L_SG}")
    a("v_mov_b32 v46, s73")
    a("ds_write_b128 v46, v[124:127]")
    a("v_lshlrev_b32 v104, 16, v50")
    for r in range(4): a(f"v_mov_b32 v{20+r}, 0")
    spin_head("pS")
    a("ds_read_b128 v[112:115], v51")
    spin_bail("pS")
    a("s_waitcnt lgkmcnt(0)")
    empty_check([112, 113, 114], 47, "pS")
    a("v_sub_f32 v100, v104, v112")
    bf16r(100)
    a("v_mul_f32 v100, v100, v113")
    bf16r(100)
    a("v_add_f32 v100, v100, v104")
    a("v_and_b32 v46, 31, v0")
    a("v_lshlrev_b32 v46, 2, v46")
    a(f"v_add_u32 v46, {L_ACT}, v46")
    lds_wait("pT", 46, 47, 0)
    stampat(8)
    spin_head("pC")
    if cdelay: a(f"s_sleep {cdelay}")
    a("buffer_load_dwordx4 v[12:15], v44, s[24:27], s78 offen sc1")
    a("buffer_load_dwordx4 v[16:19], v44, s[24:27], s79 offen sc1")
    a("s_mov_b32 exec_hi, 0xfff")
    a("buffer_load_dwordx4 v[20:23], v44, s[24:27], s77 offen sc1")
    a("s_waitcnt vmcnt(0)")
    for r in range(4): a(f"v_xor_b32 v{20+r}, s{60+r}, v{20+r}")
    a("s_mov_b64 exec, -1")
    spin_bail("pC")
    untag_check(list(range(12, 24)), 24, "pC", pre={20, 21, 22, 23})
    stampat(4)
    for r in range(4): a(f"v_add_f32 v{12+r}, v{12+r}, v{16+r}")
    for r in range(4): a(f"v_add_f32 v{12+r}, v{12+r}, v{20+r}")
    a("v_permlane32_swap_b32 v12, v14")
    a("v_permlane32_swap_b32 v13, v15")
    a("v_add_f32 v12, v12, v14")
    a("v_add_f32 v13, v13, v15")
    a("v_permlane16_swap_b32 v12, v13")
    a("v_add_f32 v12, v12, v13")
    dpp_steps([12], ("row_ror:4", "row_ror:8"))
    a("v_fmac_f32 v100, v12, v114")
    a("v_cvt_pk_bf16_f32 v12, v100, v100")
    a("s_mov_b32 exec_lo, 0x000f000f")
    a("s_mov_b32 exec_hi, 0x000f000f")
    a("buffer_store_short v12, v45, s[48:51], s76 offen")
    a("s_cmp_lg_u32 s76, 0")
    a("s_cbranch_scc1 L_noep")
    a("s_mov_b64 exec, 1")
    a("v_mov_b32 v14, s29")
    a("buffer_store_dword v14, v45, s[24:27], 0 offen")
    a("L_noep:")
    if warm: a(";@endwarm")
    a("s_mov_b64 exec, -1")
    stampat(3)
    a("s_branch L_fin")

    a("L_aux:")
    a("s_load_dwordx2 s[24:25], s[0:1], 96")
    if aux_prio: a(f"s_setprio {aux_prio}")
    a("s_sub_u32 s59, s3, 8")
    a("s_and_b32 s55, s2, 31")
    a("s_bfe_u32 s56, s2, 0x10005")
    a("v_lshrrev_b32 v2, 4, v0")
    a("v_and_b32 v3, 15, v0")
    a("s_mov_b32 s10, 0x400000")
    a("s_mov_b32 s11, 0x20000")
    a("v_lshlrev_b32 v8, 18, v2")
    a("v_lshl_or_b32 v8, v3, 4, v8")
    a("s_lshl_b32 s54, s59, 20")
    a("s_lshl_b32 s53, s55, 8")
    a("s_or_b32 s54, s54, s53")
    a("v_lshlrev_b32 v10, 6, v2")
    a("s_lshl_b32 s52, s56, 10")
    a("s_lshl_b32 s53, s59, 8")
    a("s_add_u32 s53, s53, s52")
    a("s_movk_i32 s65, 0x2000")
    for r in range(4): a(f"v_mov_b32 v{12+r}, -1")
    a("s_lshl_b32 s58, s59, 11")
    a(f"s_add_u32 s58, s58, {L_INIT}")
    a("v_add_u32 v9, s58, v1")
    a("ds_write_b128 v9, v[12:15]")
    a("s_cmp_eq_u32 s59, 3")
    a("s_cbranch_scc0 L_i2")
    for r in range(4): a(f"v_mov_b32 v{12+r}, 0")
    a("s_mov_b64 exec, 1")
    a("L_i2:")
    a("ds_write_b128 v9, v[12:15] offset:1024")
    a("s_mov_b64 exec, -1")
    a("s_waitcnt lgkmcnt(0)")
    epoch_load()
    a("s_cmp_eq_u32 s59, 0")
    a("s_cbranch_scc1 L_coop")
    a("s_barrier")
    a(f"v_mov_b32 v12, {L_QB}")
    a("s_waitcnt lgkmcnt(0)")
    epoch_calc()
    if kvwarm:
        a("s_cmp_lg_u32 s59, 3")
        a("s_cbranch_scc1 L_kret")
        a("s_mov_b64 exec, 0")
        a(f"s_cmp_lt_u32 s2, {NMLP}")
        a("s_cbranch_scc1 L_w_kvm_0")
        a("s_cmp_eq_u32 s57, 1")
        a("s_cbranch_scc1 L_w_kvr_0")
        a("s_branch L_w_kvp_0")
        a("L_kret:")
        a("s_mov_b64 exec, -1")
    spin_head("fw")
    a("s_sleep 4")
    a(f"ds_read2_b32 v[14:15], v12 offset0:0 offset1:{(L_FB - L_QB) // 4}")
    spin_bail("fw")
    a("s_waitcnt lgkmcnt(0)")
    a("v_cmp_ne_u32 vcc, -1, v15")
    a("s_cbranch_vccnz L_fallback")
    a("v_cmp_eq_u32 vcc, -1, v14")
    a("s_cbranch_vccnz L_fw")
    a("L_fw_ok:")
    if warm:
        a("s_mov_b64 exec, 0")
        a("s_cmp_eq_u32 s59, 1")
        a("s_cbranch_scc1 L_w_ct_0")
        a("L_wret1:")
        a(f"s_cmp_lt_u32 s2, {NMLP}")
        a("s_cbranch_scc1 L_wm")
        a("s_cmp_lg_u32 s57, 1")
        a("s_cbranch_scc1 L_wret")
        a("s_cmp_eq_u32 s59, 2")
        a("s_cbranch_scc1 L_w_rk_0")
        a("s_cmp_eq_u32 s59, 3")
        a("s_cbranch_scc1 L_w_ra_0")
        a("s_branch L_wret")
        a("L_wm:")
        a("s_cmp_eq_u32 s59, 1")
        a("s_cbranch_scc1 L_w_ma_0")
        a("s_cmp_eq_u32 s59, 2")
        a("s_cbranch_scc1 L_w_mk_0")
        a("s_branch L_w_mk2_0")
        a("L_wret:")
        a("s_mov_b64 exec, -1")
        stampat(2)
    if pf:
        a("s_cmp_lg_u32 s59, 2")
        a("s_cbranch_scc1 L_aux4")
        srd(32, 56, 1409024); srd(36, 64, 1409024); srd(40, 72, 1409024)
        a("s_and_b32 s64, s2, 7")
        a("s_min_u32 s66, s64, 3")
        a("s_mul_i32 s67, s64, 5")
        a("s_add_u32 s66, s66, s67")
        a("s_cmp_lt_u32 s64, 3")
        a("s_cselect_b32 s67, 6, 5")
        a("s_lshr_b32 s69, s2, 3")
        a("v_and_b32 v41, 7, v0")
        a("v_lshrrev_b32 v40, 3, v0")
        a("v_mul_u32_u24 v40, 2752, v40")
        a("v_lshl_add_u32 v40, v41, 6, v40")
        a("s_mul_i32 s52, s69, 44032")
        a("s_lshl_b32 s53, s66, 6")
        a("s_add_u32 s52, s52, s53")
        a("s_add_u32 s53, s52, 22016")
        a("v_cmp_gt_u32 s[72:73], s67, v41")
        a("s_lshl_b32 s54, s66, 15")
        a("s_mul_i32 s58, s69, s67")
        a("s_lshl_b32 s58, s58, 10")
        a("s_add_u32 s54, s54, s58")
        a("s_add_u32 s58, s54, 0x1000")
        a("v_lshlrev_b32 v46, 6, v0")
        a("s_cmp_eq_u32 s67, 6")
        a("s_cselect_b32 s70, -1, 0xffff")
        a(f"v_min_u32 v39, {pf_cnt - 1}, v41")
        a("v_lshlrev_b32 v39, 9, v39")
        a(f"v_add_u32 v39, {L_OP}, v39")
        lds_wait("k2", 39, 41, 2)
        if pf_delay: a(f"s_sleep {pf_delay}")
        a("s_mov_b64 exec, s[72:73]")
        for k, (sr, so) in enumerate(((32, 52), (36, 52), (32, 53), (36, 53))):
            a(f"buffer_load_dword v{42+k}, v40, s[{sr}:{sr+3}], s{so} offen")
        a("s_mov_b64 exec, -1")
        a("buffer_load_dword v47, v46, s[40:43], s54 offen")
        a("s_mov_b32 exec_lo, s70")
        a("s_mov_b32 exec_hi, 0")
        a("buffer_load_dword v48, v46, s[40:43], s58 offen")
        a("s_mov_b64 exec, -1")
        a("s_waitcnt vmcnt(0)")
    a("s_branch L_aux4")
    a("L_coop:")
    a("s_lshl_b32 s58, s56, 2")
    a("s_add_u32 s58, s58, s57")
    a("v_lshlrev_b32 v40, 17, v2")
    a("v_lshl_or_b32 v40, v3, 4, v40")
    a("s_lshl_b32 s71, s58, 19")
    a("s_lshl_b32 s72, s55, 8")
    a("s_or_b32 s71, s71, s72")
    a("v_lshrrev_b32 v41, 3, v3")
    a("v_lshlrev_b32 v42, 10, v41")
    a("v_lshl_add_u32 v42, v2, 5, v42")
    a("s_lshl_b32 s72, s58, 7")
    a("buffer_load_dwordx4 v[44:47], v1, s[4:7], 0 offen")
    a("buffer_load_dwordx4 v[48:51], v1, s[4:7], 0 offen offset:1024")
    a("buffer_load_dwordx4 v[52:55], v42, s[4:7], s72 offen")
    a("buffer_load_dwordx4 v[56:59], v42, s[4:7], s72 offen offset:16")
    for i in range(16):
        r = 72 + 4 * i
        a(f"buffer_load_dwordx4 v[{r}:{r+3}], v40, s[8:11], s71 offen {wq_aux}")
        if i < 15: a("s_add_u32 s71, s71, s65")
    if not b0_at: a("s_barrier")
    a("v_and_b32 v12, 1, v0")
    a("v_lshlrev_b32 v12, 4, v12")
    a("v_mov_b32 v13, 0xffff")
    a("v_lshlrev_b32 v12, v12, v13")
    a("v_bfe_u32 v13, v0, 1, 2")
    for r in range(4):
        a(f"v_cmp_eq_u32 vcc, {r}, v13")
        a(f"v_cndmask_b32 v{4+r}, 0, v12, vcc")
    a("v_cmp_eq_u32 s[66:67], 1, v41")
    a("s_waitcnt vmcnt(18) lgkmcnt(0)")
    epoch_calc()
    unpack(44, 24)
    unpack(48, 60)
    m0 = len(a.lines)
    ln_sums(24, 12, 68, 69, 70)
    l1 = a.lines[m0:]; del a.lines[m0:]
    ln_sums(60, 32, 76, 77, 78)
    l2 = a.lines[m0:]; del a.lines[m0:]
    for x, y in zip(l1, l2):
        a(x); a(y)
    for k, d in enumerate((60, 61, 62)):
        a(f"v_mov_b32 v{d}, s{68+k}")
        a(f"v_mov_b32 v63, s{76+k}")
        a(f"v_cndmask_b32 v{d}, v{d}, v63, s[66:67]")
    ln_finish("v60", 61, 62, 63)
    a("s_waitcnt vmcnt(16)")
    unpack(52, 24, 8)
    ln_apply(24, 24, 61, 62, 16)
    for i in range(16):
        a(f"v_cvt_pk_bf16_f32 v{24+i}, v{24+i}, v{24+i}")
    for i in range(16):
        t = 12 + 4 * (i & 1)
        for r in range(4):
            a(f"v_and_b32 v{t+r}, v{24+i}, v{4+r}")
        a(f"s_waitcnt vmcnt({15-i})")
        c = "0" if i == 0 else "v[20:23]"
        a(f"v_mfma_f32_16x16x32_bf16 v[20:23], v[{t}:{t+3}], v[{72+4*i}:{75+4*i}], {c}")
    a("v_lshrrev_b32 v40, 5, v0")
    a("v_lshlrev_b32 v42, 2, v40")
    a("v_lshlrev_b32 v40, 13, v40")
    a("v_and_b32 v41, 31, v0")
    a("v_lshl_add_u32 v40, v41, 4, v40")
    a("s_lshl_b32 s71, s55, 14")
    a(f"s_add_u32 s71, s71, {WS_QX}")
    a("s_lshl_b32 s72, s58, 10")
    a("s_add_u32 s72, s72, s71")
    for k in range(4):
        a(f"v_mov_b32 v{13+2*k}, s29")
    for k in range(4):
        a(f"v_mov_b32 v{12+2*k}, v{20+k}")
    if not force_fb:
        a("buffer_store_dwordx4 v[12:15], v40, s[24:27], s72 offen")
        a("buffer_store_dwordx4 v[16:19], v40, s[24:27], s72 offen offset:512")
    stampat(1)
    a("s_lshl_b32 s72, s56, 13")
    a("s_add_u32 s71, s71, s72")
    a("s_add_u32 s72, s71, 4096")
    a("v_and_b32 v41, 1, v2")
    a("v_lshl_add_u32 v41, v41, 3, v42")
    a("v_lshl_add_u32 v41, v3, 4, v41")
    a(f"v_add_u32 v41, {L_QB}, v41")
    a(f"s_movk_i32 s75, {qtries}")
    if b0_at: a("s_barrier")
    a("L_pX:")
    if qsleep: a(f"s_sleep {qsleep}")
    for k in range(8):
        a(f"buffer_load_dwordx4 v[{72+4*k}:{75+4*k}], v1, s[24:27], s{71 + k // 4} offen offset:{1024*(k&3)} sc1")
    a("s_sub_u32 s75, s75, 1")
    a("s_cbranch_scc1 L_giveup")
    a("s_waitcnt vmcnt(0)")
    tg = [73 + 2 * k for k in range(16)]
    for r in tg: a(f"v_xor_b32 v{r}, s29, v{r}")
    a(f"v_or3_b32 v60, v{tg[0]}, v{tg[1]}, v{tg[2]}")
    for k in range(3, 15, 2):
        a(f"v_or3_b32 v60, v60, v{tg[k]}, v{tg[k+1]}")
    a(f"v_or_b32 v60, v60, v{tg[15]}")
    a("v_cmp_ne_u32 vcc, 0, v60")
    a("s_cbranch_vccnz L_pX")
    for k in range(1, 8):
        a(f"v_add_f32 v72, v72, v{72+4*k}")
        a(f"v_add_f32 v74, v74, v{74+4*k}")
    a("v_cvt_pk_bf16_f32 v72, v72, v74")
    a("ds_write_b32 v41, v72")
    a("v_lshlrev_b32 v8, 3, v0")
    a(f"v_add_u32 v11, {L_OP}, v8")
    a("s_branch L_qdone")
    a("L_giveup:")
    a(f"v_mov_b32 v12, {L_FB}")
    a("v_mov_b32 v13, 1")
    a("ds_write_b32 v12, v13")
    a("s_waitcnt vmcnt(0)")
    a("L_fallback:")
    a("buffer_load_dwordx4 v[20:23], v1, s[4:7], s52 offen")
    for k in range(4):
        a(f"buffer_load_dwordx4 v[{56+4*k}:{59+4*k}], v10, s[4:7], s53 offen offset:{16*k}")
    QR = 24
    q = dict(iss=0, landed=-1)
    def qreg(i): return 72 + 4 * (i % QR)
    def ld_wq():
        i = q["iss"]
        r = qreg(i)
        a(f"buffer_load_dwordx4 v[{r}:{r+3}], v8, s[8:11], s54 offen {wq_aux}")
        if i < 31: a("s_add_u32 s54, s54, s65")
        q["iss"] += 1
    def wait_wq(i):
        if i <= q["landed"]: return
        a(f"s_waitcnt vmcnt({q['iss'] - 1 - i})")
        q["landed"] = i
    for i in range(DQ): ld_wq()
    a(f"s_waitcnt vmcnt({DQ})")
    mark = len(a.lines)
    masks(12, 13)
    unpack(20, 24)
    ln_sums(24, 32, 68, 69, 70)
    a("v_mov_b32 v10, s69")
    a("v_mov_b32 v11, s70")
    ln_finish("s68", 10, 11, 9)
    unpack(56, 24, 16)
    ln_apply(24, 24, 10, 11, 32)
    for i in range(32):
        a(f"v_cvt_pk_bf16_f32 v{24+i}, v{24+i}, v{24+i}")
    body = a.lines[mark:]
    del a.lines[mark:]
    for k in range(0, len(body), chunk):
        if q["iss"] < QR:
            wait_wq(q["iss"] - DQ)
            ld_wq()
        for ln in body[k:k+chunk]: a(ln)
    for i in range(32):
        t = 12 + 4 * (i & 1)
        for r in range(4):
            a(f"v_and_b32 v{t+r}, v{24+i}, v{4+r}")
        if i <= q["landed"] and i % 4 == 0 and q["iss"] < 32 and q["iss"] - QR < i:
            wait_wq(q["landed"] + 1)
        wait_wq(i)
        while q["iss"] < 32 and q["iss"] - 1 - q["landed"] < DQ and q["iss"] - QR < i: ld_wq()
        c = "0" if i == 0 else "v[20:23]"
        a(f"v_mfma_f32_16x16x32_bf16 v[20:23], v[{t}:{t+3}], v[{qreg(i)}:{qreg(i)+3}], {c}")
    assert q["iss"] == 32
    a("s_lshl_b32 s52, s59, 9")
    a(f"s_add_u32 s52, s52, {L_QP}")
    a("v_lshlrev_b32 v8, 5, v3")
    a("v_lshl_add_u32 v8, v2, 4, v8")
    a("v_add_u32 v8, s52, v8")
    a("s_mov_b32 exec_hi, 0")
    a("ds_write_b128 v8, v[20:23]")
    a("s_mov_b64 exec, -1")
    a("s_cmp_lg_u32 s59, 0")
    a("s_cbranch_scc1 L_aux4")
    a("v_lshlrev_b32 v8, 3, v0")
    a(f"v_add_u32 v11, {L_OP}, v8")
    a("v_lshlrev_b32 v9, 2, v0")
    a(f"v_add_u32 v10, {L_QB}, v9")
    spin_head("pQ")
    for w in range(4):
        a(f"ds_read_b64 v[{12+2*w}:{13+2*w}], v11 offset:{L_QP - L_OP + 512*w}")
    spin_bail("pQ")
    a("s_waitcnt lgkmcnt(0)")
    empty_check(list(range(12, 20)), 20, "pQ")
    for w in range(1, 4):
        a(f"v_add_f32 v12, v12, v{12+2*w}")
        a(f"v_add_f32 v13, v13, v{13+2*w}")
    a("v_cvt_pk_bf16_f32 v12, v12, v13")
    a("ds_write_b32 v10, v12")
    a("L_qdone:")
    stampat(2)
    a("v_and_b32 v9, 7, v0")
    a("v_lshlrev_b32 v9, 3, v9")
    a(f"v_add_u32 v9, {L_MB}, v9")
    spin_head("pM")
    a("s_sleep 4")
    a("ds_read_b64 v[12:13], v9")
    spin_bail("pM")
    a("s_waitcnt lgkmcnt(0)")
    empty_check([12, 13], 14, "pM")
    oct_ = ("quad_perm:[1,0,3,2]", "quad_perm:[2,3,0,1]", "row_half_mirror")
    a("v_mov_b32 v16, v12")
    dpp_steps([16], oct_, "v_max_f32")
    a("v_sub_f32 v14, v12, v16")
    a(f"v_mul_f32 v14, {LOG2E:#x}, v14")
    a("v_exp_f32 v14, v14")
    a("v_mul_f32 v17, v13, v14")
    dpp_steps([17], oct_)
    a("s_getreg_b32 s53, hwreg(HW_REG_XCC_ID, 0, 4)")
    a("s_xor_b32 s53, s53, s29")
    a("v_mov_b32 v18, s29")
    a("v_mov_b32 v19, s53")
    a("s_lshl_b32 s52, s55, 1")
    a("s_add_u32 s52, s52, s56")
    a("s_lshl_b32 s52, s52, 2")
    a("s_add_u32 s52, s52, s57")
    a("s_lshl_b32 s53, s52, 7")
    a(f"s_add_u32 s53, s53, {WS_MLX}")
    a("s_lshl_b32 s52, s52, 9")
    a(f"s_add_u32 s52, s52, {WS_OP}")
    a("s_mov_b64 exec, 1")
    a("buffer_store_dwordx4 v[16:19], v8, s[24:27], s53 offen sc1")
    a("s_mov_b64 exec, -1")
    a(f"s_add_u32 s53, s52, {WS_OS - WS_OP}")
    stampat(3)
    for w in range(8):
        a(f"v_readlane_b32 s{44+w}, v14, {w}")
    a("v_and_b32 v9, 1, v0")
    a("v_lshlrev_b32 v9, 4, v9")
    a("v_lshrrev_b32 v9, v9, s29")
    a("v_bfe_u32 v10, v9, 8, 8")
    a("v_and_b32 v9, 0xff, v9")
    a("s_setprio 2")
    spin_head("pO")
    if osleep: a(f"s_sleep {osleep}")
    for w in range(8):
        a(f"ds_read_b64 v[{12+2*w}:{13+2*w}], v11 offset:{512*w}")
    spin_bail("pO")
    a("s_waitcnt lgkmcnt(0)")
    a("v_max3_u32 v28, v12, v14, v16")
    a("v_max3_u32 v29, v18, v20, v22")
    a("v_max3_u32 v28, v28, v24, v26")
    a("v_max_u32 v28, v28, v29")
    a("v_cmp_eq_u32 vcc, -1, v28")
    a("s_cbranch_vccnz L_pO")
    a("L_pO_ok:")
    if warm: a(";@warm ct L_wret1")
    stampat(5)
    a("v_mul_f32 v12, s44, v12"); a("v_mul_f32 v13, s44, v13")
    a("v_mul_f32 v20, s48, v20"); a("v_mul_f32 v21, s48, v21")
    for w in range(1, 4):
        a(f"v_fmac_f32 v12, s{44+w}, v{12+2*w}"); a(f"v_fmac_f32 v13, s{44+w}, v{13+2*w}")
        a(f"v_fmac_f32 v20, s{48+w}, v{20+2*w}"); a(f"v_fmac_f32 v21, s{48+w}, v{21+2*w}")
    a("v_add_f32 v12, v12, v20"); a("v_add_f32 v13, v13, v21")
    a("v_and_or_b32 v12, v12, s31, v9")
    a("v_and_or_b32 v13, v13, s31, v10")
    if local:
        a("buffer_store_dwordx2 v[12:13], v8, s[24:27], s52 offen")
    a("buffer_store_dwordx2 v[12:13], v8, s[24:27], s53 offen sc1")
    if warm: a(";@endwarm")
    stampat(6)
    a("L_aux4:")
    a(f"s_cmp_lt_u32 s2, {NMLP}")
    a("s_cbranch_scc1 L_aux5")
    a("s_cmp_lg_u32 s57, 1")
    a("s_cbranch_scc1 L_fin")
    a("L_aux5:")
    a("s_setprio 3")
    a("v_lshrrev_b32 v33, 2, v3")
    a("v_lshl_add_u32 v33, v2, 3, v33")
    a("v_and_b32 v34, 3, v0")
    a("v_bfe_u32 v6, v3, 2, 1")
    a(f"v_mul_u32_u24 v6, {APITCH}, v6")
    a("v_lshl_add_u32 v6, v2, 4, v6")
    a(f"v_add_u32 v6, {L_A}, v6")
    a(f"v_mov_b32 v35, {L_FL}")
    def gemm16(acc, filler=()):
        filler = list(filler)
        NB = 11 if acc2 else 12
        for ks in range(NB):
            a(f"ds_read_b128 v[{16+4*ks}:{19+4*ks}], v6 offset:{64*ks}")
        issued = NB
        per = (len(filler) + 13) // 14 if filler else 0
        waited = -1
        for ks in range(16):
            if ks > waited:
                tgt = min(ks + (wgrp - 1 if ks else 0), issued - 1)
                a(f"s_waitcnt lgkmcnt({issued - 1 - tgt})")
                waited = tgt
            ab = 16 + 4 * (ks % NB)
            ac = 60 if (acc2 and ks & 1) else acc
            c = "0" if ks < (2 if acc2 else 1) else f"v[{ac}:{ac+3}]"
            a(f"v_mfma_f32_16x16x32_bf16 v[{ac}:{ac+3}], v[{ab}:{ab+3}], v[{64+4*ks}:{67+4*ks}], {c}")
            if issued < 16:
                a(f"ds_read_b128 v[{ab}:{ab+3}], v6 offset:{64*issued}")
                issued += 1
            for _ in range(per):
                if filler: a(filler.pop(0))
        for ln in filler: a(ln)
        if acc2: a(f"v_add_f32 v{acc}, v{acc}, v60")
    a(f"s_cmp_lt_u32 s2, {NMLP}")
    a("s_cbranch_scc1 L_aux_m")
    a("v_lshlrev_b32 v10, 7, v33")
    a("v_lshl_add_u32 v10, v34, 3, v10")
    a("s_lshl_b32 s52, s59, 5")
    a("v_add_u32 v10, s52, v10")
    a("v_lshlrev_b32 v7, 3, v34")
    a("v_lshrrev_b32 v7, v7, s29")
    a("v_and_b32 v7, 0xff, v7")
    a("v_lshlrev_b32 v5, 2, v0")
    a("s_and_b32 s70, s2, 63")
    a("s_lshl_b32 s70, s70, 2")
    a("s_add_u32 s70, s70, s59")
    a("s_lshl_b32 s70, s70, 7")
    a(f"s_add_u32 s70, s70, {WS_ZX}")
    if zcopy:
        a("v_and_b32 v5, 31, v0")
        a("v_lshlrev_b32 v5, 2, v5")
        a("v_lshrrev_b32 v11, 5, v0")
        a("v_lshl_add_u32 v5, v11, 15, v5")
        for k in range(1, 4):
            a(f"s_add_u32 s{70+k}, s70, {k * 0x10000}")
    for kw in range(8):
        lds_wait(f"fr{kw}", 35, 12, 2 if kw == 0 else 0, off=4*kw)
        for ks in (2*kw, 2*kw+1):
            for hh in range(2):
                d = 64 + 4 * ks + 2 * hh
                a(f"ds_read_b64_tr_b16 v[{d}:{d+1}], v10 offset:{ks*4096 + hh*512}")
    a("s_waitcnt lgkmcnt(0)")
    stampat(7)
    if warm: a(";@warm ra L_wret")
    a("s_barrier")
    gemm16(12)
    if zcopy:
        a("v_and_or_b32 v12, v12, s31, v7")
        for k in range(4):
            a(f"buffer_store_dword v12, v5, s[24:27], s{70+k} offen sc1")
    else:
        a("s_mov_b32 exec_hi, 0")
        a("v_and_or_b32 v12, v12, s31, v7")
        a("buffer_store_dword v12, v5, s[24:27], s70 offen sc1")
        a("s_mov_b64 exec, -1")
    if warm: a(";@endwarm")
    stampat(8)
    a("s_branch L_fin")
    a("L_aux_m:")
    a("v_lshlrev_b32 v10, 6, v33")
    a("v_and_b32 v11, 1, v0")
    a("v_lshl_add_u32 v10, v11, 3, v10")
    a("v_bfe_u32 v11, v0, 1, 1")
    a(f"v_mul_u32_u24 v11, {L_UP}, v11")
    a("v_add_u32 v10, v11, v10")
    a("s_lshl_b32 s52, s59, 4")
    a("v_add_u32 v10, s52, v10")
    a(f"v_mul_u32_u24 v36, {DNP}, v33")
    a("v_lshl_add_u32 v36, v34, 3, v36")
    a("s_lshl_b32 s52, s59, 8")
    a(f"s_add_u32 s52, s52, {L_DN}")
    a("v_add_u32 v36, s52, v36")
    a("v_and_b32 v4, 1, v2")
    a("v_lshlrev_b32 v9, 10, v4")
    a("buffer_load_ushort v165, v9, s[4:7], 0 offen")
    a("v_lshlrev_b32 v166, 8, v4")
    a("v_lshl_add_u32 v166, v3, 4, v166")
    a(f"v_add_u32 v166, {L_ST}, v166")
    a("v_lshlrev_b32 v4, 6, v4")
    a("v_lshl_add_u32 v4, v3, 1, v4")
    a("s_lshl_b32 s52, s59, 4")
    a(f"s_add_u32 s52, s52, {L_ACT}")
    a("v_add_u32 v4, s52, v4")
    a("v_and_b32 v8, 1, v3")
    a("v_lshlrev_b32 v8, 6, v8")
    a("v_lshl_add_u32 v8, v2, 4, v8")
    a(f"v_add_u32 v8, {L_ACT}, v8")
    a(f"v_mov_b32 v11, {L_ZERO}")
    a("v_lshrrev_b32 v9, 2, v3")
    for u in range(4):
        a(f"v_cmp_eq_u32 vcc, {u}, v9")
        a(f"v_cndmask_b32 v{160+u}, v11, v8, vcc")
    a("v_mul_u32_u24 v5, 5504, v2")
    a("v_lshl_add_u32 v5, v3, 3, v5")
    a("s_mul_i32 s52, s59, 44032")
    a("s_lshl_b32 s53, s2, 7")
    a("s_add_u32 s52, s52, s53")
    a(f"s_add_u32 s52, s52, {WS_Y}")
    a("s_add_u32 s53, s52, 22016")
    a("v_and_b32 v7, 1, v0")
    a("v_lshlrev_b32 v7, 4, v7")
    a("v_lshrrev_b32 v7, v7, s29")
    a("v_bfe_u32 v164, v7, 8, 8")
    a("v_and_b32 v7, 0xff, v7")
    for r in range(4): a(f"v_mov_b32 v{40+r}, 0x3f803f80")
    for kw in range(8):
        lds_wait(f"fm{kw}", 35, 12, 2 if kw == 0 else 0, off=4*kw)
        if kw > 0:
            for ks in (2*kw-2, 2*kw-1):
                c = "0" if ks == 0 else "v[44:47]"
                a(f"v_mfma_f32_16x16x32_bf16 v[44:47], v[40:43], v[{64+4*ks}:{67+4*ks}], {c}")
        for ks in (2*kw, 2*kw+1):
            for hh in range(2):
                d = 64 + 4 * ks + 2 * hh
                a(f"ds_read_b64_tr_b16 v[{d}:{d+1}], v10 offset:{ks*2048 + hh*256}")
    a("s_waitcnt lgkmcnt(0) vmcnt(0)")
    for ks in (14, 15):
        a(f"v_mfma_f32_16x16x32_bf16 v[44:47], v[40:43], v[{64+4*ks}:{67+4*ks}], v[44:47]")
    a("v_lshlrev_b32 v165, 16, v165")
    a("v_mov_b32 v167, v44")
    a("v_and_b32 v11, 7, v0")
    a("v_lshlrev_b32 v11, 2, v11")
    a(f"v_add_u32 v11, {L_FD}, v11")
    lds_wait("fd", 11, 12, 0)
    for t in range(8):
        for hh in range(2):
            d = 128 + 4 * t + 2 * hh
            a(f"ds_read_b64_tr_b16 v[{d}:{d+1}], v36 offset:{hh*4*DNP + t*32}")
    a("s_waitcnt lgkmcnt(0)")
    stampat(7)
    if warm: a(";@warm ma L_wret")
    a("s_barrier")
    a("ds_read_b128 v[8:11], v166")
    mark = len(a.lines)
    a("v_add_f32 v8, v8, v10")
    a("v_add_f32 v9, v9, v11")
    dpp_steps([8, 9], ("quad_perm:[1,0,3,2]", "quad_perm:[2,3,0,1]", "row_half_mirror", "row_mirror"))
    ln_finish("v165", 8, 9, 10)
    a("v_and_b32 v166, 31, v0")
    a("v_lshlrev_b32 v166, 2, v166")
    a(f"v_add_u32 v166, {L_ACT}, v166")
    fill = a.lines[mark:]
    del a.lines[mark:]
    gemm16(12, fill)
    a("v_fma_f32 v12, -v8, v167, v12")
    a("v_mul_f32 v12, v12, v9")
    a("v_mul_f32 v13, 0xbfb8aa3b, v12")
    a("v_exp_f32 v13, v13")
    a("v_mul_f32_dpp v14, v12, v12 row_ror:8 row_mask:0xf bank_mask:0xf")
    a("v_add_f32 v13, 1.0, v13")
    a("v_rcp_f32 v13, v13")
    a("v_mul_f32 v13, v14, v13")
    a("v_mov_b32_dpp v14, v13 quad_perm:[1,0,3,2] row_mask:0xf bank_mask:0xf")
    a("v_cvt_pk_bf16_f32 v13, v13, v14")
    a("s_mov_b64 exec, 0x00550055")
    a("ds_write_b32 v4, v13")
    a("s_mov_b64 exec, -1")
    stampat(9)
    spin_head("pG")
    a("ds_read_b32 v32, v166")
    for u in range(4):
        a(f"ds_read_b128 v[{16+4*u}:{19+4*u}], v{160+u}")
    spin_bail("pG")
    a("s_waitcnt lgkmcnt(4)" if not stamps else "s_waitcnt lgkmcnt(0)")
    empty_check([32], 32, "pG")
    for u in range(4):
        a(f"s_waitcnt lgkmcnt({3-u})")
        for hf in range(2):
            acc = 8 + 4 * hf
            t = hf * 4 + u
            c = "0" if u == 0 else f"v[{acc}:{acc+3}]"
            a(f"v_mfma_f32_16x16x32_bf16 v[{acc}:{acc+3}], v[{16+4*u}:{19+4*u}], v[{128+4*t}:{131+4*t}], {c}")
    for hf in range(2):
        r = 8 + 4 * hf
        a(f"v_and_or_b32 v{r}, v{r}, s31, v7")
        a(f"v_and_or_b32 v{r+1}, v{r+1}, s31, v164")
        a(f"buffer_store_dwordx2 v[{r}:{r+1}], v5, s[24:27], s{52+hf} offen sc1")
    if warm: a(";@endwarm")
    stampat(8)

    a("L_fin:")
    if stamps:
        a("s_waitcnt lgkmcnt(0)")
        a("s_mul_i32 s64, s3, 80")
        a(f"s_add_u32 s64, s64, {L_STAMP}")
        a("v_mov_b32 v40, s64")
        a("s_mov_b64 exec, 1")
        for i in range(10):
            a(f"v_mov_b32 v12, s{80+2*i}")
            a(f"v_mov_b32 v13, s{81+2*i}")
            a(f"ds_write_b64 v40, v[12:13] offset:{8*i}")
        a("s_mov_b64 exec, -1")
        a("s_waitcnt lgkmcnt(0)")
        if href:
            a(f"s_cmp_lg_u32 s3, {href[0]}")
            a("s_cbranch_scc1 L_end")
            a("s_cmp_lt_u32 s2, 128")
            a("s_cbranch_scc1 L_end")
            a("L_hold2:")
            a("s_sleep 2")
            a("s_memrealtime s[66:67]")
            a("s_waitcnt lgkmcnt(0)")
            a(f"s_sub_u32 s66, s66, s{80 + 2 * href[1]}")
            a("s_cmp_lt_u32 s66, 3000")
            a("s_cbranch_scc1 L_hold2")
            a("s_branch L_end")
        a("s_cmp_lg_u32 s3, 9")
        a("s_cbranch_scc1 L_end")
        if hold_x is not None:
            a(f"s_cmp_lg_u32 s2, {128 + hold_x}")
            a("s_cbranch_scc1 L_end")
        a("L_hold:")
        a(f"s_sleep {32 if hold_x is None else 2}")
        a("s_memrealtime s[66:67]")
        a("s_waitcnt lgkmcnt(0)")
        a("s_sub_u32 s66, s66, s80")
        a(f"s_cmp_lt_u32 s66, {hold_t}")
        a("s_cbranch_scc1 L_hold")
        a(f"v_add_u32 v40, {L_STAMP}, v1")
        a("ds_read_b128 v[12:15], v40")
        a("s_mul_i32 s64, s2, 1280")
        a(f"s_add_u32 s64, s64, {512<<20}")
        a("v_add_u32 v40, s64, v1")
        a("s_waitcnt lgkmcnt(0)")
        a("global_store_dwordx4 v40, v[12:15], s[24:25]")
    a("L_end:")
    a("s_endpgm")
    a('.section .rodata,"a"')
    a(".p2align 6")
    a(f".amdhsa_kernel {NAME}_kernel")
    a(f"  .amdhsa_next_free_vgpr {NVGPR}")
    a("  .amdhsa_next_free_sgpr 102")
    a(f"  .amdhsa_accum_offset {NVGPR}")
    a("  .amdhsa_group_segment_fixed_size 0")
    a("  .amdhsa_kernarg_size 104")
    a("  .amdhsa_user_sgpr_count 2")
    a("  .amdhsa_user_sgpr_kernarg_segment_ptr 1")
    a("  .amdhsa_system_sgpr_workgroup_id_x 1")
    a(".end_amdhsa_kernel")
    return add_pads(a.finalize(), warm) if warm else a.finalize()

if __name__ == "__main__":
    out = sys.argv[1]
    kw = eval("dict(" + (sys.argv[2] if len(sys.argv) > 2 else "") + ")")
    open(out, "w").write(gen(**kw))
```
